```python
import torch

def _softmax(x, axis=-1):
    return torch.softmax(x, dim=axis)
def _gelu(x):
    return torch.nn.functional.gelu(x, approximate="tanh")
def _silu(x):
    return torch.nn.functional.silu(x)
def _sigmoid(x):
    return torch.sigmoid(x)
def _layernorm(x, axis=-1, eps=1e-5):
    m = x.mean(dim=axis, keepdim=True)
    v = x.var(dim=axis, keepdim=True, unbiased=False)
    return (x - m) / torch.sqrt(v + eps)
def _scatter_add(tgt, idx, src, axis=0):
    return tgt.clone().index_add_(axis, idx, src)
def _segment_sum(src, seg, n):
    out = torch.zeros((n,) + src.shape[1:], dtype=src.dtype)
    return out.index_add_(0, seg, src)
def _pad(x, pw):
    flat = tuple(v for pair in reversed(pw) for v in pair)
    return torch.nn.functional.pad(x, flat)

kernel_name = 'recurrent_scan__gqa_block_cached__swiglu_ffn__decode'

def setup_inputs():

    _w = (lambda a: (lambda t: t.to(torch.bfloat16) if t.is_floating_point() else t)(torch.as_tensor(a)))
    def _A_setup():
        B, Sq, D = 1, 1, 512
        Hq, Hkv, Sk, Dh = 32, 8, 32768, 128
        assert Hq % Hkv == 0, (Hq, Hkv)
        return {
            "x": _w((lambda *s: torch.randn(*s, dtype=torch.bfloat16) * 0.05)(B, Sq, D)),
            "k_cache": _w((lambda *s: torch.randn(*s, dtype=torch.bfloat16) * 0.8)(B, Hkv, Sk, Dh)),
            "v_cache": _w((lambda *s: torch.randn(*s, dtype=torch.bfloat16) * 0.8)(B, Hkv, Sk, Dh)),
            "wq": _w((lambda *s: torch.randn(*s, dtype=torch.bfloat16) * 0.8)(D, Hq * Dh) * (D ** -0.5)),
            "wo": _w((lambda *s: torch.randn(*s, dtype=torch.bfloat16) * 0.8)(Hq * Dh, D) * ((Hq * Dh) ** -0.5)),
        }
    _A_in = _A_setup()

    def _B_setup():
        B, S, D, F = 1, 1, 512, 1792
        return {
            "x": _w((lambda *s: torch.randn(*s, dtype=torch.bfloat16) * 0.05)(B, S, D)),
            "w_gate": _w((lambda *s: torch.randn(*s, dtype=torch.bfloat16) * 0.2)(D, F)),
            "w_up": _w((lambda *s: torch.randn(*s, dtype=torch.bfloat16) * 0.2)(D, F)),
            "w_down": _w((lambda *s: torch.randn(*s, dtype=torch.bfloat16) * 0.2)(F, D)),
        }
    _B_in = _B_setup()

    return {
        "A_x": _A_in["x"],
        "A_k_cache": _A_in["k_cache"],
        "A_v_cache": _A_in["v_cache"],
        "A_wq": _A_in["wq"],
        "A_wo": _A_in["wo"],
        "B_x": _B_in["x"],
        "B_w_gate": _B_in["w_gate"],
        "B_w_up": _B_in["w_up"],
        "B_w_down": _B_in["w_down"],
    }

def reference(A_x, A_k_cache, A_v_cache, A_wq, A_wo, B_x, B_w_gate, B_w_up, B_w_down):
    def _A_ref(x, k_cache, v_cache, wq, wo):
        B, Sq, D = x.shape
        Hq, Dh = 32, 128
        Hkv = k_cache.shape[1]
        rep = Hq // Hkv
        q = (lambda x, *d: x.permute(*d))((x @ wq).reshape(B, Sq, Hq, Dh), 0, 2, 1, 3)
        k = (lambda x, n, axis: torch.repeat_interleave(x, n, dim=axis))(k_cache, rep, axis=1)
        v = (lambda x, n, axis: torch.repeat_interleave(x, n, dim=axis))(v_cache, rep, axis=1)
        scores = torch.einsum("bhqd,bhkd->bhqk", q, k) * (Dh ** -0.5)
        p = _softmax(scores, axis=-1)
        o = torch.einsum("bhqk,bhkd->bhqd", p, v)
        return (lambda x, *d: x.permute(*d))(o, 0, 2, 1, 3).reshape(B, Sq, Hq * Dh) @ wo

    def _B_ref(x, w_gate, w_up, w_down):
        g = _silu(x @ w_gate)
        u = x @ w_up
        return (g * u) @ w_down

    x = A_x
    xn = _layernorm(x, axis=-1)
    s = _A_ref(xn, A_k_cache, A_v_cache, A_wq, A_wo)
    g = _silu(_B_ref(xn, B_w_gate, B_w_up, B_w_down))
    return x + s * g
```

```python
import math, struct, sys

NAME = 'recurrent_scan__gqa_block_cached__swiglu_ffn__decode_kernel'

HEADER = """; Kernarg layout for this problem (96 bytes, ptrs only, base s[0:1]):
"""

def f2u(x):
    return struct.unpack('<I', struct.pack('<f', x))[0]

QBOX  = 0x001000
MLBOX = 0x008000
OBOX  = 0x100000
FBOX  = 0x200000
SBOX  = 0x300000
STAMP = 0x800000

L_QP = 0
L_MB = 1024
L_LB = 1152
L_O2 = 1280
L_S2 = 1792
L_F2 = 2304
L_OB = 4096
LDS_BYTES = 4096 + 8 * 2560

SRD_K, SRD_V, SRD_X, SRD_WQ, SRD_WO, SRD_WG, SRD_WU, SRD_WD, SRD_OUT, SRD_WS = \
    [f's[{b}:{b+3}]' for b in range(28, 68, 4)]
sG, sJ, sW, sTAG, sOFF, sT0, sT1, sT2, sPLO, sPHI, sC, sCNT, sHI = [f's{i}' for i in range(68, 81)]
sL2E = 's81'
sST = 's[82:83]'


class G:
    def __init__(self, D=4, pol='nt', wpol='nt', CPC=16, stamps=False, nq=14, spin=200000):
        self.D, self.pol, self.wpol, self.CPC, self.stamps, self.nq, self.spin = D, pol, wpol, CPC, stamps, nq, spin
        self.L = []
        self.vm = []
        self.nv = 4
        self.nlab = 0
        self.nstamp = 0
        self.stamp_names = []

    def a(self, s):
        self.L.append('    ' + s)

    def lab(self, s):
        self.L.append(s + ':')

    def newlab(self, p):
        self.nlab += 1
        return f'L_{p}_{self.nlab}'

    def alloc(self, n, align=1):
        self.nv = (self.nv + align - 1) // align * align
        r = self.nv
        self.nv += n
        assert self.nv <= 128, self.nv
        return r

    def load(self, name, text):
        self.a(text)
        self.vm.append(name)

    def wait(self, name):
        i = self.vm.index(name)
        n = len(self.vm) - 1 - i
        assert n <= 63
        self.a(f's_waitcnt vmcnt({n})')

    def stamp(self, name):
        if not self.stamps:
            return
        self.a(f's_memrealtime {sST}')
        self.a('s_waitcnt lgkmcnt(0)')
        self.a(f'v_writelane_b32 v{self.vST}, s82, {self.nstamp}')
        self.stamp_names.append(name)
        self.nstamp += 1

    def dpp(self, op, d, s0, s1, ctl, bank=0xf):
        self.a(f'{op}_dpp v{d}, v{s0}, v{s1} {ctl} row_mask:0xf bank_mask:{hex(bank)}')

    def rows_allreduce(self, op, v, t, do16=True, do32=True):
        if do16:
            self.a(f'v_mov_b32 v{t}, v{v}')
            self.a('s_nop 1')
            self.a(f'v_permlane16_swap_b32 v{v}, v{t}')
            self.a(f'{op} v{v}, v{v}, v{t}')
        if do32:
            self.a(f'v_mov_b32 v{t}, v{v}')
            self.a('s_nop 1')
            self.a(f'v_permlane32_swap_b32 v{v}, v{t}')
            self.a(f'{op} v{v}, v{v}, v{t}')

    def inrow_allreduce(self, op, v, rots):
        for r in rots:
            self.a('s_nop 1')
            self.dpp(op, v, v, v, f'row_ror:{r}')

    def bf16r(self, d, s):
        self.a(f'v_cvt_pk_bf16_f32 v{d}, v{s}, v{s}')
        self.a(f'v_and_b32 v{d}, 0xffff0000, v{d}')

    def sum8(self, d, b):
        self.a(f'v_add_f32 v{b}, v{b}, v{b+4}')
        self.a(f'v_add_f32 v{b+1}, v{b+1}, v{b+5}')
        self.a(f'v_add_f32 v{b+2}, v{b+2}, v{b+6}')
        self.a(f'v_add_f32 v{b+3}, v{b+3}, v{b+7}')
        self.a(f'v_add_f32 v{b}, v{b}, v{b+2}')
        self.a(f'v_add_f32 v{b+1}, v{b+1}, v{b+3}')
        self.a(f'v_add_f32 v{d}, v{b}, v{b+1}')

    def silu_bf16(self, d, x, t):
        self.a(f'v_mul_f32 v{t}, {sL2E}, v{x}')
        self.a(f'v_exp_f32 v{t}, -v{t}')
        self.a('s_nop 0')
        self.a(f'v_add_f32 v{t}, 1.0, v{t}')
        self.a(f'v_rcp_f32 v{t}, v{t}')
        self.a('s_nop 0')
        self.a(f'v_mul_f32 v{t}, v{x}, v{t}')
        self.bf16r(d, t)

    def check_tags(self, regs, t0, t1):
        self.a(f'v_xor_b32 v{t0}, {sTAG}, v{regs[0]}')
        for r in regs[1:]:
            self.a(f'v_xor_b32 v{t1}, {sTAG}, v{r}')
            self.a(f'v_or_b32 v{t0}, v{t0}, v{t1}')
        self.a(f'v_cmp_ne_u32 vcc, 0, v{t0}')

    def poll(self, loads, tagregs, t0, t1, first_issued):
        again, done = self.newlab('again'), self.newlab('done')
        if first_issued:
            self.check_tags(tagregs, t0, t1)
            self.a(f's_cbranch_vccz {done}')
        self.a(f's_mov_b32 {sCNT}, {self.spin}')
        self.lab(again)
        for x in loads:
            self.a(x)
        self.a(f's_sub_u32 {sCNT}, {sCNT}, 1')
        self.a('s_waitcnt vmcnt(0)')
        self.a(f's_cbranch_scc1 {done}')
        self.check_tags(tagregs, t0, t1)
        self.a(f's_cbranch_vccnz {again}')
        self.lab(done)

    def colpart(self, w, xn, A, out):
        for k in range(8):
            self.a(f'v_lshlrev_b32 v{A+2*k}, 16, v{w+k}')
            self.a(f'v_and_b32 v{A+2*k+1}, 0xffff0000, v{w+k}')
        for e in range(16):
            self.a(f'v_mul_f32 v{A+e}, v{A+e}, v{xn}')
        self.a('s_nop 0')
        for e in range(8):
            self.a(f'v_permlane32_swap_b32 v{A+e}, v{A+e+8}')
        for e in range(8):
            self.a(f'v_add_f32 v{A+e}, v{A+e}, v{A+e+8}')
        self.a('s_nop 0')
        for e in range(4):
            self.a(f'v_permlane16_swap_b32 v{A+e}, v{A+e+4}')
        for e in range(4):
            self.a(f'v_add_f32 v{A+e}, v{A+e}, v{A+e+4}')
        self.a('s_nop 0')
        d0, d1 = A + 8, A + 9
        self.dpp('v_add_f32', d0, A + 0, A + 0, 'row_ror:8', 0x3)
        self.dpp('v_add_f32', d1, A + 1, A + 1, 'row_ror:8', 0x3)
        self.a('s_nop 0')
        self.dpp('v_add_f32', d0, A + 2, A + 2, 'row_ror:8', 0xc)
        self.dpp('v_add_f32', d1, A + 3, A + 3, 'row_ror:8', 0xc)
        self.a('s_nop 0')
        self.dpp('v_add_f32', out, d0, d0, 'row_ror:12', 0x5)
        self.a('s_nop 1')
        self.dpp('v_add_f32', out, d1, d1, 'row_ror:4', 0xa)
        self.a('s_nop 1')
        self.dpp('v_add_f32', out, out, out, 'quad_perm:[1,0,3,2]')
        self.a('s_nop 1')
        self.dpp('v_add_f32', out, out, out, 'quad_perm:[2,3,0,1]')

    def srd(self, srd, p, nbytes):
        b = int(srd[2:srd.index(':')])
        self.a(f's_mov_b32 s{b}, s{p}')
        self.a(f's_mov_b32 s{b+1}, s{p+1}')
        self.a(f's_mov_b32 s{b+2}, {hex(nbytes)}')
        self.a(f's_mov_b32 s{b+3}, 0x20000')

    def slot(self, n):
        return 128 + 4 * (n % 32)

    def issue(self):
        n = self.n
        r = self.slot(n)
        off = (n % 32) * 8192
        srd, vo = (SRD_K, self.vK) if n < 32 else (SRD_V, self.vV)
        if off == 0:
            so = '0'
        else:
            self.a(f's_mov_b32 {sOFF}, {hex(off)}')
            so = sOFF
        self.load(f'L{n}', f'buffer_load_dwordx4 v[{r}:{r+3}], v{vo}, {srd}, {so} offen {self.pol}')
        self.n += 1

    def step(self):
        if self.n >= self.D:
            self.wait(f'L{self.n - self.D}')
        self.issue()

    def steps_to(self, n):
        while self.n < n:
            self.step()

    def qk_batch(self, beta):
        half, t = beta >> 2, beta & 3
        Dr = self.vD
        self.wait(f'L{4*beta+3}')
        for gam in range(4):
            r = self.slot(4 * beta + gam)
            self.a(f'v_mfma_f32_16x16x32_bf16 v[{Dr+4*gam}:{Dr+4*gam+3}], v[{r}:{r+3}], v[{self.vBq}:{self.vBq+3}], 0')
        self.a('s_nop 7')
        for k in (1, 2, 3):
            for gam in range(4):
                P = self.vP + 4 * half + gam
                d = Dr + 4 * gam
                self.dpp('v_add_f32', P, d + ((t + k) & 3), d + t if k == 1 else P, f'row_ror:{16-4*k}', 1 << t)

    def pv_perm(self, tau, pair):
        B = self.vD
        v0 = self.slot(32 + 4 * tau + 2 * pair)
        v1 = self.slot(32 + 4 * tau + 2 * pair + 1)
        self.wait(f'L{32+4*tau+2*pair+1}')
        for e in range(8):
            self.a(f'v_perm_b32 v{B+2*e+pair}, v{v1+(e>>1)}, v{v0+(e>>1)}, {sPHI if e & 1 else sPLO}')

    def pv_mfma(self, tau):
        half, t = tau >> 2, tau & 3
        B = self.vD
        PA = self.vPA + 2 * half
        for e in range(8):
            ac = self.vAcc + 4 * e
            c = '0' if tau == 0 else f'v[{ac}:{ac+3}]'
            self.a(f'v_mfma_f32_4x4x4_16b_bf16 v[{ac}:{ac+3}], v[{PA}:{PA+1}], v[{B+2*e}:{B+2*e+1}], {c} cbsz:2 abid:{t}')

    def gather_loads(self, box, A):
        out = []
        for u in range(self.CPC // 4):
            out.append((f's_mov_b32 {sT2}, {hex(box + u*8192)}',
                        f'buffer_load_dwordx4 v[{A+4*u}:{A+4*u+3}], v{self.vGo}, {SRD_WS}, {sT2} offen sc1'))
        return out

    def gather_reduce(self, A, ldsoff, t):
        nl = self.CPC // 4
        for u in range(1, nl):
            self.a(f'v_add_f32 v{A}, v{A}, v{A+4*u}')
            self.a(f'v_add_f32 v{A+2}, v{A+2}, v{A+4*u+2}')
        self.a('s_nop 1')
        self.a(f'v_permlane32_swap_b32 v{A}, v{A+2}')
        self.a(f'v_add_f32 v{A}, v{A}, v{A+2}')
        self.rows_allreduce('v_add_f32', A, t, do32=False)
        lpp = self.CPC // 2
        self.inrow_allreduce('v_add_f32', A, [r for r in (8, 4, 2) if r >= lpp])
        self.a(f'ds_write_b32 v{self.vS2w}, v{A} offset:{ldsoff}')

    def gen(self):
        a = self.a
        D, CPC = self.D, self.CPC
        NCONS = 512 // CPC
        vLane = 1
        self.vK, self.vV = 2, 3
        self.vAcc = self.alloc(32, 4)
        self.vD = self.alloc(16, 4)
        self.vP = self.alloc(8, 4)
        self.vPA = self.alloc(4, 4)
        self.vBq = self.alloc(4, 4)
        vW = self.alloc(16, 4)
        vWD = self.alloc(8, 4)
        vX = self.alloc(8, 4)
        vT = self.alloc(8, 4)
        vXn = self.alloc(1)
        vXr = self.alloc(1)
        vM = self.alloc(1)
        vWt = self.alloc(1)
        vGf = self.alloc(1)
        vXo = self.alloc(1)
        vT2 = self.alloc(1)
        self.vGo = self.alloc(1)
        self.vS2w = self.alloc(1)
        vPub = self.alloc(1)
        vDat = self.alloc(4, 4)
        self.vST = self.alloc(1)
        vD, vP, vPA, vBq, vAcc = self.vD, self.vP, self.vPA, self.vBq, self.vAcc
        self.n = 0

        self.L.append(f'; @launch grid=(256,1,1) block=(512,1,1) lds={LDS_BYTES}')
        self.L.append('.amdgcn_target "amdgcn-amd-amdhsa--gfx950"')
        self.L.append('.text')
        self.L.append(f'.globl {NAME}')
        self.L.append('.p2align 8')
        self.L.append(f'.type {NAME},@function')
        self.lab(NAME)
        a('s_cmp_ge_u32 s2, 0x100')
        a('s_cbranch_scc1 L_end')
        if self.stamps:
            a(f's_memrealtime {sST}')
        a('s_load_dwordx16 s[4:19], s[0:1], 0')
        a('s_load_dwordx8 s[20:27], s[0:1], 64')
        a(f'v_lshrrev_b32 v{vT}, 6, v0')
        a(f'v_and_b32 v{vLane}, 63, v0')
        a(f'v_readfirstlane_b32 {sW}, v{vT}')
        a(f's_and_b32 {sG}, s2, 7')
        a(f's_lshr_b32 {sJ}, s2, 3')
        a(f's_lshl_b32 {sT0}, {sG}, 23')
        a(f's_lshl_b32 {sT1}, {sJ}, 18')
        a(f's_add_u32 {sT0}, {sT0}, {sT1}')
        a(f's_lshl_b32 {sT1}, {sW}, 10')
        a(f's_add_u32 {sT0}, {sT0}, {sT1}')
        a(f'v_bfe_u32 v{vT}, v{vLane}, 2, 2')
        a(f'v_lshlrev_b32 v{vT}, 8, v{vT}')
        a(f'v_and_b32 v{vT+1}, 3, v{vLane}')
        a(f'v_lshlrev_b32 v{vT+1}, 4, v{vT+1}')
        a(f'v_lshrrev_b32 v{vT+2}, 4, v{vLane}')
        a(f'v_lshlrev_b32 v{vT+2}, 6, v{vT+2}')
        a(f'v_add3_u32 v{self.vK}, v{vT}, v{vT+1}, v{vT+2}')
        a(f'v_add_u32 v{self.vK}, {sT0}, v{self.vK}')
        a(f'v_lshl_add_u32 v{self.vV}, v{vLane}, 4, {sT0}')
        a('s_waitcnt lgkmcnt(0)')
        if self.stamps:
            a(f'v_mov_b32 v{self.vST}, 0')
            a(f'v_writelane_b32 v{self.vST}, s82, 0')
            self.stamp_names.append('start')
            self.nstamp = 1
        self.srd(SRD_K, 6, 64 << 20)
        self.steps_to(D)
        a(f's_load_dword {sTAG}, s[26:27], 0')
        self.srd(SRD_X, 4, 1024)
        self.srd(SRD_WQ, 10, 4 << 20)
        self.srd(SRD_WG, 16, 512 * 3584)
        self.srd(SRD_WU, 18, 512 * 3584)
        a(f'v_lshlrev_b32 v{vT}, 4, v{vLane}')
        a(f'v_lshlrev_b32 v{vT2}, 1, v0')
        self.load('x16', f'buffer_load_dwordx4 v[{vX}:{vX+3}], v{vT}, {SRD_X}, 0 offen')
        self.load('xrow', f'buffer_load_short_d16_hi v{vXr}, v{vT2}, {SRD_X}, 0 offen')
        a(f's_lshl_b32 {sT0}, {sG}, 10')
        a(f's_lshl_b32 {sT1}, {sJ}, 5')
        a(f's_add_u32 {sT0}, {sT0}, {sT1}')
        a(f'v_lshl_add_u32 v{vT}, v0, 13, {sT0}')
        self.load('wq0', f'buffer_load_dwordx4 v[{vW}:{vW+3}], v{vT}, {SRD_WQ}, 0 offen {self.wpol}')
        self.load('wq1', f'buffer_load_dwordx4 v[{vW+4}:{vW+7}], v{vT}, {SRD_WQ}, 0 offen offset:16 {self.wpol}')
        a(f's_mul_i32 {sT0}, {sG}, 28')
        a(f's_add_u32 {sT0}, {sT0}, {sJ}')
        a(f's_lshl_b32 {sT1}, {sT0}, 4')
        a(f's_lshl_b32 {sT2}, {sT0}, 13')
        a(f's_cmp_ge_u32 {sJ}, 28')
        a(f's_cselect_b32 {sT1}, 0x10000000, {sT1}')
        a(f's_cselect_b32 {sT2}, 0x10000000, {sT2}')
        a(f's_movk_i32 {sT0}, 3584')
        a(f'v_mul_u32_u24 v{vT}, {sT0}, v0')
        a(f'v_add_u32 v{vT}, {sT1}, v{vT}')
        self.load('wg', f'buffer_load_dwordx4 v[{vW+8}:{vW+11}], v{vT}, {SRD_WG}, 0 offen {self.wpol}')
        self.load('wu', f'buffer_load_dwordx4 v[{vW+12}:{vW+15}], v{vT}, {SRD_WU}, 0 offen {self.wpol}')
        a(f'v_add_u32 v{vPub}, {sT2}, v{vT2}')
        self.srd(SRD_V, 8, 64 << 20)
        self.srd(SRD_WD, 20, 1792 * 1024)
        self.srd(SRD_WS, 26, 256 << 20)
        self.srd(SRD_WO, 12, 4 << 20)
        self.srd(SRD_OUT, 22, 1024)
        a(f's_mov_b32 {sPLO}, 0x05040100')
        a(f's_mov_b32 {sPHI}, 0x07060302')
        a(f's_mov_b32 {sC}, {hex(f2u(math.log2(math.e) / math.sqrt(128.0)))}')
        a(f's_mov_b32 {sL2E}, {hex(f2u(math.log2(math.e)))}')
        a(f's_movk_i32 {sHI}, 0x1000')
        self.steps_to(2 * D)
        for e in range(8):
            so = '0' if e < 4 else sHI
            self.load(f'wd{e}', f'buffer_load_short_d16_hi v{vWD+e}, v{vPub}, {SRD_WD}, {so} offen offset:{(e & 3)*1024} {self.wpol}')
        a('s_waitcnt lgkmcnt(0)')
        a(f's_mul_i32 {sTAG}, {sTAG}, 0x9e3779b1')
        a(f's_add_u32 {sTAG}, {sTAG}, 0x7f4a7c15')
        self.stamp('issued2D')

        self.wait('xrow')
        A = vD
        for k in range(4):
            a(f'v_lshlrev_b32 v{A+2*k}, 16, v{vX+k}')
            a(f'v_and_b32 v{A+2*k+1}, 0xffff0000, v{vX+k}')
        a(f'v_add_f32 v{vT}, v{A}, v{A+1}')
        for k in range(2, 8):
            a(f'v_add_f32 v{vT}, v{vT}, v{A+k}')
        self.inrow_allreduce('v_add_f32', vT, (8, 4, 2, 1))
        self.rows_allreduce('v_add_f32', vT, vT + 1)
        a(f'v_mul_f32 v{vT}, {hex(f2u(1/512.))}, v{vT}')
        for k in range(8):
            a(f'v_sub_f32 v{A+k}, v{A+k}, v{vT}')
        a(f'v_mul_f32 v{vT+2}, v{A}, v{A}')
        for k in range(1, 8):
            a(f'v_fmac_f32 v{vT+2}, v{A+k}, v{A+k}')
        self.inrow_allreduce('v_add_f32', vT + 2, (8, 4, 2, 1))
        self.rows_allreduce('v_add_f32', vT + 2, vT + 1)
        a(f'v_mul_f32 v{vT+2}, {hex(f2u(1/512.))}, v{vT+2}')
        self.bf16r(vT, vT)
        self.bf16r(vT + 2, vT + 2)
        a(f'v_add_f32 v{vT+2}, {hex(f2u(1e-5))}, v{vT+2}')
        self.bf16r(vT + 2, vT + 2)
        a(f'v_sqrt_f32 v{vT+2}, v{vT+2}')
        a(f'v_sub_f32 v{vT}, v{vXr}, v{vT}')
        self.bf16r(vT + 2, vT + 2)
        self.bf16r(vT, vT)
        a(f'v_rcp_f32 v{vT+3}, v{vT+2}')
        a('s_nop 0')
        a(f'v_mul_f32 v{vT+4}, v{vT}, v{vT+3}')
        a(f'v_fma_f32 v{vT+5}, -v{vT+4}, v{vT+2}, v{vT}')
        a(f'v_fmac_f32 v{vT+4}, v{vT+5}, v{vT+3}')
        self.bf16r(vXn, vT + 4)
        a(f'v_lshrrev_b32 v{vT+6}, 2, v{vLane}')
        a(f'v_lshlrev_b32 v{vT+6}, 5, v{vT+6}')
        a(f's_lshl_b32 {sT0}, {sW}, 2')
        a(f'v_add_u32 v{vT+6}, {sT0}, v{vT+6}')
        self.step()
        self.wait('wq1')
        self.colpart(vW, vXn, A, vT)
        a(f'ds_write_b32 v{vT+6}, v{vT} offset:{L_QP}')
        self.step()
        self.wait('wu')
        self.colpart(vW + 8, vXn, A, vT + 1)
        a(f'ds_write_b32 v{vT+6}, v{vT+1} offset:{L_QP+512}')
        self.step()
        a('s_waitcnt lgkmcnt(0)')
        a('s_barrier')
        self.stamp('bar1')

        skip = self.newlab('noq')
        a(f's_cmp_lg_u32 {sW}, 0')
        a(f's_cbranch_scc1 {skip}')
        a(f'v_and_b32 v{vT}, 7, v{vLane}')
        a(f'v_lshlrev_b32 v{vT+1}, 6, v{vT}')
        for k in range(4):
            a(f'ds_read_b128 v[{A+4*k}:{A+4*k+3}], v{vT+1} offset:{L_QP+16*k}')
        a(f's_and_b32 {sT0}, {sJ}, 7')
        a(f's_lshl_b32 {sT0}, {sT0}, 8')
        a(f's_lshr_b32 {sT1}, {sJ}, 3')
        a(f's_lshl_b32 {sT1}, {sT1}, 5')
        a(f's_add_u32 {sT0}, {sT0}, {sT1}')
        a(f's_lshl_b32 {sT1}, {sG}, 11')
        a(f's_add_u32 {sT0}, {sT0}, {sT1}')
        a(f's_add_u32 {sT0}, {sT0}, {hex(QBOX)}')
        a(f'v_lshrrev_b32 v{vT+2}, 2, v{vT}')
        a(f'v_lshlrev_b32 v{vT+2}, 7, v{vT+2}')
        a(f'v_and_b32 v{vT}, 3, v{vT}')
        a(f'v_lshlrev_b32 v{vT}, 3, v{vT}')
        a(f'v_add3_u32 v{vT}, v{vT}, v{vT+2}, {sT0}')
        a('s_waitcnt lgkmcnt(0)')
        self.sum8(vT + 2, A)
        self.sum8(vT + 3, A + 8)
        a(f'v_cvt_pk_bf16_f32 v{vDat}, v{vT+2}, v{vT+3}')
        a(f'v_mov_b32 v{vDat+1}, {sTAG}')
        a('s_mov_b64 exec, 0xff')
        a(f'buffer_store_dwordx2 v[{vDat}:{vDat+1}], v{vT}, {SRD_WS}, 0 offen sc1')
        a('s_mov_b64 exec, -1')
        self.lab(skip)

        a(f'v_and_b32 v{vT}, 7, v{vLane}')
        a(f'v_lshlrev_b32 v{vT}, 5, v{vT}')
        a(f'ds_read_b128 v[{A}:{A+3}], v{vT} offset:{L_QP+512}')
        a(f'ds_read_b128 v[{A+4}:{A+7}], v{vT} offset:{L_QP+512+16}')
        a(f'ds_read_b128 v[{A+8}:{A+11}], v{vT} offset:{L_QP+768}')
        a(f'ds_read_b128 v[{A+12}:{A+15}], v{vT} offset:{L_QP+768+16}')
        self.step()
        lg = int(math.log2(CPC))
        a(f'v_lshrrev_b32 v{vT+4}, {lg}, v0')
        a(f'v_lshlrev_b32 v{vT+4}, {lg+11}, v{vT+4}')
        a(f'v_and_b32 v{vT+5}, {CPC-1}, v0')
        a(f'v_lshlrev_b32 v{vT+5}, 3, v{vT+5}')
        a(f's_lshl_b32 {sT0}, s2, {lg+3}')
        a(f'v_add3_u32 v{vPub}, v{vT+4}, v{vT+5}, {sT0}')
        a('s_waitcnt lgkmcnt(0)')
        self.sum8(vT, A)
        self.sum8(vT + 1, A + 8)
        self.bf16r(vT, vT)
        self.bf16r(vT + 1, vT + 1)
        self.silu_bf16(vT + 2, vT, vT + 3)
        a(f'v_mul_f32 v{vT+2}, v{vT+2}, v{vT+1}')
        self.bf16r(vT + 2, vT + 2)
        a(f'v_mov_b32 v{vDat}, 0')
        a(f'v_mov_b32 v{vDat+1}, {sTAG}')
        self.wait('wd7')
        for e in range(8):
            a('s_nop 1' if e == 0 else 's_nop 0') if e < 1 else None
            self.dpp('v_fmac_f32', vDat if e % 2 == 0 else vDat + 2, vT + 2, vWD + e, f'row_newbcast:{e}') if e != 1 else \
                self.dpp('v_mul_f32', vDat + 2, vT + 2, vWD + e, f'row_newbcast:{e}')
            a('s_nop 0')
        a(f'v_add_f32 v{vDat}, v{vDat}, v{vDat+2}')
        a(f's_mov_b32 {sT0}, {hex(FBOX)}')
        a(f'buffer_store_dwordx2 v[{vDat}:{vDat+1}], v{vPub}, {SRD_WS}, {sT0} offen sc1')
        self.stamp('fpub')

        self.steps_to(self.nq)
        a(f's_lshl_b32 {sT0}, {sG}, 11')
        a(f's_add_u32 {sT0}, {sT0}, {hex(QBOX)}')
        a(f'v_lshl_add_u32 v{vT}, v{vLane}, 5, {sT0}')
        ql = [f'buffer_load_dwordx4 v[{vX}:{vX+3}], v{vT}, {SRD_WS}, 0 offen sc1',
              f'buffer_load_dwordx4 v[{vX+4}:{vX+7}], v{vT}, {SRD_WS}, 0 offen offset:16 sc1']
        self.load('q0', ql[0])
        self.load('q1', ql[1])
        self.steps_to(self.nq + D - 1)
        self.wait('q1')
        self.poll(ql, [vX + 1, vX + 3, vX + 5, vX + 7], vT + 1, vT + 2, True)
        for k in range(4):
            a(f'v_mov_b32 v{vBq+k}, v{vX+2*k}')
        self.stamp('gotq')

        beta = 0
        while beta < 8:
            self.step()
            if 4 * beta + 3 <= self.n - 1 - D + 1:
                self.qk_batch(beta)
                beta += 1
            assert self.n <= 31 + 4 * beta or beta == 8, (self.n, beta)
        self.stamp('qkdone')
        a(f'v_max3_f32 v{vT}, v{vP}, v{vP+1}, v{vP+2}')
        a(f'v_max3_f32 v{vT+1}, v{vP+3}, v{vP+4}, v{vP+5}')
        a(f'v_max3_f32 v{vT}, v{vT}, v{vP+6}, v{vP+7}')
        a(f'v_max_f32 v{vT}, v{vT}, v{vT+1}')
        self.inrow_allreduce('v_max_f32', vT, (8, 4))
        self.rows_allreduce('v_max_f32', vT, vT + 1)
        a(f'v_and_b32 v{vT+6}, 3, v{vLane}')
        a(f'v_lshlrev_b32 v{vT+6}, 5, v{vT+6}')
        a(f's_lshl_b32 {sT0}, {sW}, 2')
        a(f'v_add_u32 v{vT+7}, {sT0}, v{vT+6}')
        a(f'ds_write_b32 v{vT+7}, v{vT} offset:{L_MB}')
        a('s_waitcnt lgkmcnt(0)')
        a('s_barrier')
        a(f'ds_read_b128 v[{A}:{A+3}], v{vT+6} offset:{L_MB}')
        a(f'ds_read_b128 v[{A+4}:{A+7}], v{vT+6} offset:{L_MB+16}')
        self.step()
        a('s_waitcnt lgkmcnt(0)')
        a(f'v_max3_f32 v{vT}, v{A}, v{A+1}, v{A+2}')
        a(f'v_max3_f32 v{vT+1}, v{A+3}, v{A+4}, v{A+5}')
        a(f'v_max3_f32 v{vT}, v{vT}, v{A+6}, v{A+7}')
        a(f'v_max_f32 v{vM}, v{vT}, v{vT+1}')
        a(f'v_mul_f32 v{vT}, {sC}, v{vM}')
        for i in range(8):
            a(f'v_fma_f32 v{vP+i}, v{vP+i}, {sC}, -v{vT}')
        for i in range(8):
            a(f'v_exp_f32 v{vP+i}, v{vP+i}')
        a('s_nop 0')
        for i in range(4):
            a(f'v_cvt_pk_bf16_f32 v{vPA+i}, v{vP+2*i}, v{vP+2*i+1}')
        self.sum8(vT, vP)
        self.inrow_allreduce('v_add_f32', vT, (8, 4))
        self.rows_allreduce('v_add_f32', vT, vT + 1)
        a(f'ds_write_b32 v{vT+7}, v{vT} offset:{L_LB}')
        self.step()
        a('s_waitcnt lgkmcnt(0)')
        a('s_barrier')
        skip = self.newlab('noml')
        a(f's_cmp_lg_u32 {sW}, 0')
        a(f's_cbranch_scc1 {skip}')
        a(f'ds_read_b128 v[{A}:{A+3}], v{vT+6} offset:{L_LB}')
        a(f'ds_read_b128 v[{A+4}:{A+7}], v{vT+6} offset:{L_LB+16}')
        a(f's_lshl_b32 {sT0}, {sG}, 11')
        a(f's_lshl_b32 {sT1}, {sJ}, 4')
        a(f's_add_u32 {sT0}, {sT0}, {sT1}')
        a(f's_add_u32 {sT0}, {sT0}, {hex(MLBOX)}')
        a(f'v_lshl_add_u32 v{vT}, v{vT+6}, 4, {sT0}')
        a(f'v_mov_b32 v{vDat}, v{vM}')
        a(f'v_mov_b32 v{vDat+2}, {sTAG}')
        a(f'v_mov_b32 v{vDat+3}, {sTAG}')
        a('s_waitcnt lgkmcnt(0)')
        self.sum8(vDat + 1, A)
        a('s_mov_b64 exec, 0xf')
        a(f'buffer_store_dwordx4 v[{vDat}:{vDat+3}], v{vT}, {SRD_WS}, 0 offen sc1')
        a('s_mov_b64 exec, -1')
        self.lab(skip)
        self.stamp('mlpub')

        a(f's_lshl_b32 {sT0}, s2, {lg+11}')
        a(f'v_lshl_add_u32 v{self.vGo}, v0, 4, {sT0}')
        lpp = CPC // 2
        a(f'v_and_b32 v{vT}, {lpp-1}, v{vLane}')
        a(f'v_lshlrev_b32 v{vT}, 6, v{vT}')
        a(f'v_lshrrev_b32 v{vT+1}, 5, v{vLane}')
        a(f'v_lshlrev_b32 v{vT+1}, 5, v{vT+1}')
        a(f's_lshl_b32 {sT0}, {sW}, 2')
        a(f'v_add3_u32 v{self.vS2w}, v{vT}, v{vT+1}, {sT0}')

        tau = 0
        ml_issue = 56
        mlreg = vX
        a(f's_lshl_b32 {sT0}, {sG}, 11')
        a(f's_lshr_b32 {sT1}, {sJ}, 3')
        a(f's_lshl_b32 {sT1}, {sT1}, 9')
        a(f's_add_u32 {sT0}, {sT0}, {sT1}')
        a(f's_add_u32 {sT0}, {sT0}, {hex(MLBOX)}')
        a(f'v_and_b32 v{vT+6}, 31, v{vLane}')
        a(f'v_lshl_add_u32 v{vT+6}, v{vT+6}, 4, {sT0}')
        mll = [f'buffer_load_dwordx4 v[{mlreg}:{mlreg+3}], v{vT+6}, {SRD_WS}, 0 offen sc1']
        ml_done = False
        FG = self.slot(32)
        tags = [FG + 4 * u + k for u in range(CPC // 4) for k in (1, 3)]
        fl = self.gather_loads(FBOX, FG)
        f_issue = 48
        while self.n < 64:
            self.step()
            if self.n == f_issue:
                assert tau >= 1
                skip = self.newlab('nof')
                a(f's_lshl_b32 {sT0}, s2, {lg+1}')
                a(f'v_and_b32 v{vT}, {CPC-1}, v{vLane}')
                a(f'v_lshl_add_u32 v{vGf}, v{vT}, 1, {sT0}')
                a(f's_cmp_ge_u32 s2, {NCONS}')
                a(f's_cbranch_scc1 {skip}')
                for x, y in fl:
                    a(x)
                    a(y)
                a(f'buffer_load_short_d16_hi v{vXo}, v{vGf}, {SRD_X}, 0 offen')
                self.lab(skip)
                f_mark = len(self.vm)
            if self.n == f_issue + D:
                skip = self.newlab('nof2')
                a(f's_cmp_ge_u32 s2, {NCONS}')
                a(f's_cbranch_scc1 {skip}')
                a(f's_waitcnt vmcnt({len(self.vm) - f_mark})')
                self.poll([z for xy in fl for z in xy], tags, vT, vT + 1, True)
                self.gather_reduce(FG, L_F2, vT)
                self.lab(skip)
            if self.n == ml_issue:
                self.load('ml', mll[0])
            if 32 + 4 * tau + 3 <= self.n - D:
                self.pv_perm(tau, 0)
                self.pv_perm(tau, 1)
                self.pv_mfma(tau)
                tau += 1
            if self.n == ml_issue + D:
                self.wait('ml')
                self.poll(mll, [mlreg + 2, mlreg + 3], vT, vT + 1, True)
                a(f'v_mov_b32 v{vT}, v{mlreg}')
                self.inrow_allreduce('v_max_f32', vT, (8, 4, 2, 1))
                self.rows_allreduce('v_max_f32', vT, vT + 1, do32=False)
                a(f'v_sub_f32 v{vT}, v{mlreg}, v{vT}')
                a(f'v_mul_f32 v{vT}, {sC}, v{vT}')
                a(f'v_exp_f32 v{vT}, v{vT}')
                a('s_nop 0')
                a(f'v_mul_f32 v{vT+2}, v{vT}, v{mlreg+1}')
                self.inrow_allreduce('v_add_f32', vT + 2, (8, 4, 2, 1))
                self.rows_allreduce('v_add_f32', vT + 2, vT + 1, do32=False)
                a(f'v_rcp_f32 v{vT+2}, v{vT+2}')
                a(f'v_lshrrev_b32 v{vT+3}, 4, v0')
                a(f'v_lshlrev_b32 v{vT+3}, 2, v{vT+3}')
                a(f'v_mul_f32 v{vT}, v{vT}, v{vT+2}')
                a(f'ds_bpermute_b32 v{vWt}, v{vT+3}, v{vT}')
                a('s_waitcnt lgkmcnt(0)')
                ml_done = True
        assert ml_done
        self.stamp('allissued')
        a(f's_lshl_b32 {sT0}, {sG}, 19')
        a(f's_lshl_b32 {sT1}, {sJ}, 14')
        a(f's_add_u32 {sT0}, {sT0}, {sT1}')
        for e in range(16):
            if e and e % 4 == 0:
                a(f's_add_u32 {sT0}, {sT0}, 0x1000')
            self.load(f'wo{e}', f'buffer_load_short_d16_hi v{vW+e}, v{vT2}, {SRD_WO}, {sT0} offen offset:{(e & 3)*1024} {self.wpol}')
        a(f'v_lshrrev_b32 v{vT}, 4, v{vLane}')
        a(f'v_mul_u32_u24 v{vT}, 160, v{vT}')
        a(f'v_and_b32 v{vT+1}, 15, v{vLane}')
        a(f'v_lshlrev_b32 v{vT+1}, 3, v{vT+1}')
        a(f's_mul_i32 {sT0}, {sW}, 2560')
        a(f'v_add3_u32 v{vT+6}, v{vT}, v{vT+1}, {sT0}')
        a(f'v_lshrrev_b32 v{vT}, 7, v0')
        a(f'v_mul_u32_u24 v{vT}, 640, v{vT}')
        a(f'v_bfe_u32 v{vT+1}, v0, 1, 2')
        a(f'v_mul_u32_u24 v{vT+1}, 160, v{vT+1}')
        a(f'v_bfe_u32 v{vT+2}, v0, 3, 4')
        a(f'v_lshlrev_b32 v{vT+2}, 3, v{vT+2}')
        a(f'v_add3_u32 v{vT}, v{vT}, v{vT+1}, v{vT+2}')
        a(f'v_and_b32 v{vT+1}, 1, v0')
        a(f'v_lshl_add_u32 v{vT+7}, v{vT+1}, 2, v{vT}')
        a(f'v_add_u32 v{vT+7}, {L_OB}, v{vT+7}')
        a(f's_lshl_b32 {sT0}, {sG}, 17')
        a(f's_lshl_b32 {sT1}, {sJ}, 7')
        a(f's_add_u32 {sT0}, {sT0}, {sT1}')
        a(f's_add_u32 {sT0}, {sT0}, {hex(OBOX)}')
        a(f'v_lshrrev_b32 v{vT}, 4, v0')
        a(f'v_lshlrev_b32 v{vT}, 12, v{vT}')
        a(f'v_and_b32 v{vT+1}, 15, v0')
        a(f'v_lshlrev_b32 v{vT+1}, 3, v{vT+1}')
        a(f'v_add3_u32 v{vT+5}, v{vT}, v{vT+1}, {sT0}')
        a(f's_lshl_b32 {sT0}, {sG}, 17')
        a(f's_lshl_b32 {sT1}, {sJ}, 12')
        a(f's_add_u32 {sT0}, {sT0}, {sT1}')
        a(f's_add_u32 {sT0}, {sT0}, {hex(OBOX)}')
        a(f'v_lshl_add_u32 v{vT+4}, v0, 3, {sT0}')
        a(f'v_mov_b32 v{vDat+1}, {sTAG}')
        while tau < 8:
            self.pv_perm(tau, 0)
            self.pv_perm(tau, 1)
            self.pv_mfma(tau)
            tau += 1
        self.stamp('pvdone')
        for e in range(4):
            for h in range(4):
                a(f'v_permlane32_swap_b32 v{vAcc+4*e+h}, v{vAcc+4*(e+4)+h}') if not (e == 0 and h == 0) else \
                    (a('s_nop 1'), a(f'v_permlane32_swap_b32 v{vAcc}, v{vAcc+16}'))
        for e in range(4):
            for h in range(4):
                a(f'v_add_f32 v{vAcc+4*e+h}, v{vAcc+4*e+h}, v{vAcc+4*(e+4)+h}')
        for e in range(2):
            for h in range(4):
                a(f'v_permlane16_swap_b32 v{vAcc+4*e+h}, v{vAcc+4*(e+2)+h}')
        for h in range(4):
            a(f'v_add_f32 v{vD+2*h}, v{vAcc+h}, v{vAcc+8+h}')
            a(f'v_add_f32 v{vD+2*h+1}, v{vAcc+4+h}, v{vAcc+12+h}')
            a(f'ds_write_b64 v{vT+6}, v[{vD+2*h}:{vD+2*h+1}] offset:{L_OB+640*h}')
        a('s_waitcnt lgkmcnt(0)')
        a('s_barrier')
        for k in range(4):
            a(f'ds_read2st64_b32 v[{vD+2*k}:{vD+2*k+1}], v{vT+7} offset0:{20*k} offset1:{20*k+10}')
        a('s_waitcnt lgkmcnt(0)')
        self.sum8(vDat, vD)
        a(f'buffer_store_dwordx2 v[{vDat}:{vDat+1}], v{vT+5}, {SRD_WS}, 0 offen sc1')
        self.stamp('opub')

        ol = [f'buffer_load_dwordx2 v[{vX}:{vX+1}], v{vT+4}, {SRD_WS}, 0 offen sc1']
        self.poll(ol, [vX + 1], vT, vT + 1, False)
        self.stamp('goto')
        a(f'v_mul_f32 v{vX}, v{vX}, v{vWt}')
        self.rows_allreduce('v_add_f32', vX, vT)
        a(f'v_and_b32 v{vT+1}, 15, v{vLane}')
        a(f'v_lshlrev_b32 v{vT+1}, 5, v{vT+1}')
        a(f's_lshl_b32 {sT0}, {sW}, 2')
        a(f'v_add_u32 v{vT+2}, {sT0}, v{vT+1}')
        a(f'ds_write_b32 v{vT+2}, v{vX} offset:{L_O2}')
        a('s_waitcnt lgkmcnt(0)')
        a('s_barrier')
        a(f'ds_read_b128 v[{vD}:{vD+3}], v{vT+1} offset:{L_O2}')
        a(f'ds_read_b128 v[{vD+4}:{vD+7}], v{vT+1} offset:{L_O2+16}')
        a('s_waitcnt lgkmcnt(0)')
        self.sum8(vT, vD)
        a('s_nop 1')
        for e in range(16):
            op = 'v_mul_f32' if e < 4 else 'v_fmac_f32'
            self.dpp(op, vD + (e & 3), vT, vW + e, f'row_newbcast:{e}')
        a(f'v_add_f32 v{vD}, v{vD}, v{vD+2}')
        a(f'v_add_f32 v{vD+1}, v{vD+1}, v{vD+3}')
        a(f'v_add_f32 v{vDat}, v{vD}, v{vD+1}')
        a(f's_mov_b32 {sT0}, {hex(SBOX)}')
        a(f'buffer_store_dwordx2 v[{vDat}:{vDat+1}], v{vPub}, {SRD_WS}, {sT0} offen sc1')
        self.stamp('spub')

        a(f's_cmp_ge_u32 s2, {NCONS}')
        a('s_cbranch_scc1 L_fin')
        a(f'v_and_b32 v{vT+1}, {CPC-1}, v{vLane}')
        a(f'v_lshlrev_b32 v{vT+1}, 5, v{vT+1}')
        a(f'ds_read_b128 v[{vD}:{vD+3}], v{vT+1} offset:{L_F2}')
        a(f'ds_read_b128 v[{vD+4}:{vD+7}], v{vT+1} offset:{L_F2+16}')
        sl = self.gather_loads(SBOX, FG)
        for x, y in sl:
            a(x)
            a(y)
        a('s_waitcnt lgkmcnt(0)')
        self.sum8(vT + 2, vD)
        self.bf16r(vT + 2, vT + 2)
        self.silu_bf16(vT + 3, vT + 2, vT + 4)
        a('s_waitcnt vmcnt(0)')
        self.poll([z for xy in sl for z in xy], tags, vT, vT + 2, True)
        self.stamp('gots')
        self.gather_reduce(FG, L_S2, vT)
        a('s_waitcnt lgkmcnt(0)')
        a('s_barrier')
        a(f's_cmp_lg_u32 {sW}, 0')
        a('s_cbranch_scc1 L_fin')
        a(f'ds_read_b128 v[{vD}:{vD+3}], v{vT+1} offset:{L_S2}')
        a(f'ds_read_b128 v[{vD+4}:{vD+7}], v{vT+1} offset:{L_S2+16}')
        a('s_waitcnt lgkmcnt(0)')
        self.sum8(vT, vD)
        self.bf16r(vT, vT)
        a(f'v_mul_f32 v{vT}, v{vT}, v{vT+3}')
        self.bf16r(vT, vT)
        a(f'v_add_f32 v{vT}, v{vT}, v{vXo}')
        a(f'v_cvt_pk_bf16_f32 v{vT}, v{vT}, v{vT}')
        a(f's_mov_b64 exec, {hex((1 << CPC) - 1)}')
        a(f'buffer_store_short v{vT}, v{vGf}, {SRD_OUT}, 0 offen')
        a('s_mov_b64 exec, -1')
        a('s_cmp_lg_u32 s2, 0')
        a('s_cbranch_scc1 L_fin')
        a(f'v_mov_b32 v{vT}, 0')
        a('s_mov_b64 exec, 1')
        a(f'buffer_store_dword v{vDat+1}, v{vT}, {SRD_WS}, 0 offen sc1')
        a('s_mov_b64 exec, -1')
        self.lab('L_fin')
        if self.stamps:
            self.stamp('end')
            a(f's_getreg_b32 {sT1}, hwreg(HW_REG_XCC_ID)')
            a(f'v_writelane_b32 v{self.vST}, {sT1}, 63')
            a(f's_lshl_b32 {sT0}, s2, 3')
            a(f's_add_u32 {sT0}, {sT0}, {sW}')
            a(f's_lshl_b32 {sT0}, {sT0}, 8')
            a(f's_add_u32 {sT0}, {sT0}, {hex(STAMP)}')
            a(f'v_lshl_add_u32 v{vT}, v{vLane}, 2, {sT0}')
            a(f'buffer_store_dword v{self.vST}, v{vT}, {SRD_WS}, 0 offen')
        self.lab('L_end')
        a('s_endpgm')
        self.L += ['.section .rodata,"a"', '.p2align 6', f'.amdhsa_kernel {NAME}',
                   '  .amdhsa_next_free_vgpr 256', '  .amdhsa_next_free_sgpr 96', '  .amdhsa_accum_offset 256',
                   '  .amdhsa_group_segment_fixed_size 0', '  .amdhsa_kernarg_size 96',
                   '  .amdhsa_user_sgpr_count 2', '  .amdhsa_user_sgpr_kernarg_segment_ptr 1',
                   '  .amdhsa_system_sgpr_workgroup_id_x 1',
                   '  .amdhsa_float_denorm_mode_32 3', '.end_amdhsa_kernel']
        return HEADER + '\n'.join(self.L) + '\n'


def gen(**kw):
    g = G(**kw)
    s = g.gen()
    return s, g.stamp_names


if __name__ == '__main__':
    kw = eval('dict(' + (sys.argv[2] if len(sys.argv) > 2 else '') + ')')
    s, _ = gen(**kw)
    open(sys.argv[1], 'w').write(s)
```

```python
import math, struct, sys

NAME = 'recurrent_scan__gqa_block_cached__swiglu_ffn__decode_kernel'

HEADER = """; Kernarg layout for this problem (96 bytes, ptrs only, base s[0:1]):
"""


def f2u(x):
    return struct.unpack('<I', struct.pack('<f', x))[0]


QBOX  = 0x010000
HBOX  = 0x020000
MLBOX = 0x030000
OBOX  = 0x100000
FBOX  = 0x200000
SBOX  = 0x300000
STAMP = 0x800000

L_BQ = 0
L_XN = 1024
L_MB = 3072
L_LB = 3200
L_WB = 3328
L_GB = 3456
L_XB = 3584
L_O2 = 3712
L_S2 = 4224
L_OB = 5376
LDS_BYTES = L_OB + 8 * 2560

SRD_A, SRD_B, SRD_X, SRD_C, SRD_OUT, SRD_WS = [f's[{b}:{b+3}]' for b in range(28, 52, 4)]
sG, sJ, sW, sTAG, sOFF, sT0, sT1, sT2, sPLO, sPHI, sC, sCNT = [f's{i}' for i in range(52, 64)]
sL2E, sSEL, sSA, sSB = 's3', 's64', 's65', 's66'
STAMP_BASE = 68
NVGPR = 168
RING = 24
RING0 = NVGPR - 4 * RING


class G:
    def __init__(self, D=4, D0=4, pol='nt', wpol='nt', opol='nt', CPC=16, stamps=False, nA=24, spin=200000,
                 padk=7, warm=True, pref=True, exp=()):
        self.__dict__.update(locals())
        self.L = []
        self.vm = []
        self.nlab = 0
        self.stamp_names = []
        self.padding = False
        self.npad = 0
        self.since_pad = 0

    def a(self, s):
        self.L.append('    ' + s)
        if self.padding:
            self.since_pad += 1
            if self.since_pad >= self.padk:
                self.pad()

    def pad(self):
        self.L.append(f'L_pad_{self.npad}:')
        self.L.append(f'    s_cbranch_execz L_pad_{self.npad+1}')
        self.npad += 1
        self.since_pad = 0

    def lab(self, s):
        self.L.append(s + ':')

    def newlab(self, p):
        self.nlab += 1
        return f'L_{p}_{self.nlab}'

    def load(self, name, text):
        self.a(text)
        self.vm.append(name)

    def wait(self, name):
        n = len(self.vm) - 1 - self.vm.index(name)
        assert n <= 63
        self.a(f's_waitcnt vmcnt({n})')

    def stamp(self, name):
        if not self.stamps:
            return
        if self.stamps is True:
            if name.startswith('_'):
                return
        elif name not in self.stamps and name not in ('start', 'end'):
            return
        i = len(self.stamp_names)
        assert STAMP_BASE + 2 * i + 1 <= 101
        self.a(f's_memrealtime s[{STAMP_BASE+2*i}:{STAMP_BASE+2*i+1}]')
        self.stamp_names.append(name)

    def dpp(self, op, d, s0, s1, ctl, bank=0xf):
        self.a(f'{op}_dpp v{d}, v{s0}, v{s1} {ctl} row_mask:0xf bank_mask:{hex(bank)}')

    def rows_allreduce(self, op, v, t, do16=True, do32=True):
        if do16:
            self.a(f'v_mov_b32 v{t}, v{v}')
            self.a('s_nop 1')
            self.a(f'v_permlane16_swap_b32 v{v}, v{t}')
            self.a(f'{op} v{v}, v{v}, v{t}')
        if do32:
            self.a(f'v_mov_b32 v{t}, v{v}')
            self.a('s_nop 1')
            self.a(f'v_permlane32_swap_b32 v{v}, v{t}')
            self.a(f'{op} v{v}, v{v}, v{t}')

    def inrow_allreduce(self, op, v, rots):
        for r in rots:
            self.a('s_nop 1')
            self.dpp(op, v, v, v, f'row_ror:{r}')

    def bf16r(self, d, s):
        self.a(f'v_cvt_pk_bf16_f32 v{d}, v{s}, v{s}')
        self.a(f'v_and_b32 v{d}, 0xffff0000, v{d}')

    def sum8(self, d, b):
        for k in range(4):
            self.a(f'v_add_f32 v{b+k}, v{b+k}, v{b+4+k}')
        self.a(f'v_add_f32 v{b}, v{b}, v{b+2}')
        self.a(f'v_add_f32 v{b+1}, v{b+1}, v{b+3}')
        self.a(f'v_add_f32 v{d}, v{b}, v{b+1}')

    def max8(self, d, b, t):
        self.a(f'v_max3_f32 v{d}, v{b}, v{b+1}, v{b+2}')
        self.a(f'v_max3_f32 v{t}, v{b+3}, v{b+4}, v{b+5}')
        self.a(f'v_max3_f32 v{d}, v{d}, v{b+6}, v{b+7}')
        self.a(f'v_max_f32 v{d}, v{d}, v{t}')

    def silu_bf16(self, d, x, t):
        self.a(f'v_mul_f32 v{t}, {hex(f2u(math.log2(math.e)))}, v{x}')
        self.a(f'v_exp_f32 v{t}, -v{t}')
        self.a('s_nop 0')
        self.a(f'v_add_f32 v{t}, 1.0, v{t}')
        self.a(f'v_rcp_f32 v{t}, v{t}')
        self.a('s_nop 0')
        self.a(f'v_mul_f32 v{t}, v{x}, v{t}')
        self.bf16r(d, t)

    def make_tag(self):
        self.a(f's_and_b32 {sT0}, {sTAG}, 0x7f7f7f7f')
        self.a(f's_add_u32 {sT0}, {sT0}, 0x47611b35')
        self.a(f's_and_b32 {sTAG}, {sTAG}, 0x80808080')
        self.a(f's_xor_b32 {sTAG}, {sTAG}, {sT0}')

    def check_quads(self, quads, vtag, t0, t1, t2):
        for i, q in enumerate(quads):
            self.a(f'v_perm_b32 v{t0}, v{q+1}, v{q}, {sSA}')
            self.a(f'v_perm_b32 v{t1}, v{q+3}, v{q+2}, {sSB}')
            if i == 0:
                self.a(f'v_bitop3_b32 v{t2}, v{t0}, v{t1}, v{vtag} bitop3:0x56')
            else:
                self.a(f'v_bitop3_b32 v{t0}, v{t0}, v{t1}, v{vtag} bitop3:0x56')
                self.a(f'v_or_b32 v{t2}, v{t2}, v{t0}')
        self.a(f'v_cmp_ne_u32 vcc, 0, v{t2}')

    def poll(self, loads, check, first_issued=False, sleep=0):
        again, done = self.newlab('again'), self.newlab('done')
        self.a(f's_mov_b32 {sCNT}, {self.spin}')
        if first_issued:
            check()
            self.a(f's_cbranch_vccz {done}')
        self.lab(again)
        if sleep:
            self.a(f's_sleep {sleep}')
        for x in loads:
            self.a(x)
        self.a(f's_sub_u32 {sCNT}, {sCNT}, 1')
        self.a('s_waitcnt vmcnt(0)')
        self.a(f's_cbranch_scc1 {done}')
        check()
        self.a(f's_cbranch_vccnz {again}')
        self.lab(done)

    def quad_reduce(self, v, lpp):
        self.a('s_nop 1')
        self.a(f'v_permlane32_swap_b32 v{v}, v{v+2}')
        self.a(f'v_permlane32_swap_b32 v{v+1}, v{v+3}')
        self.a(f'v_add_f32 v{v}, v{v}, v{v+2}')
        self.a(f'v_add_f32 v{v+1}, v{v+1}, v{v+3}')
        self.a('s_nop 1')
        self.a(f'v_permlane16_swap_b32 v{v}, v{v+1}')
        self.a(f'v_add_f32 v{v}, v{v}, v{v+1}')
        self.inrow_allreduce('v_add_f32', v, [r for r in (8, 4, 2) if r >= lpp])

    def srd(self, srd, p, nbytes):
        b = int(srd[2:srd.index(':')])
        self.a(f's_mov_b64 s[{b}:{b+1}], s[{p}:{p+1}]')
        self.a(f's_mov_b32 s{b+2}, {hex(nbytes)}')
        self.a(f's_mov_b32 s{b+3}, 0x20000')

    def barrier(self):
        self.a('s_waitcnt lgkmcnt(0)')
        if 'nobar' not in self.exp:
            self.a('s_barrier')

    def slot(self, n):
        return RING0 + 4 * (n % RING)

    def issue(self):
        n = self.n
        if n >= RING:
            old = n - RING
            assert (old < 32 and old < 4 * self.beta) or (old >= 32 and old - 32 < 4 * self.tau), (n, self.beta, self.tau)
        r = self.slot(n)
        off = (n % 32) * 8192
        srd, vo = (SRD_A, self.vK) if n < 32 else (SRD_B, self.vV)
        if off == 0:
            so = '0'
        else:
            self.a(f's_mov_b32 {sOFF}, {hex(off)}')
            so = sOFF
        self.load(f'L{n}', f'buffer_load_dwordx4 v[{r}:{r+3}], v{vo}, {srd}, {so} offen {self.pol}')
        self.stamp(f'_L{n}')
        self.n += 1

    def step(self):
        if self.n >= self.D0:
            self.wait(f'L{self.n - self.D}')
        self.issue()

    def steps_to(self, n):
        while self.n < n:
            self.step()

    def qk_batch(self):
        beta = self.beta
        half, t = beta >> 2, beta & 3
        Dr = self.vD
        self.wait(f'L{4*beta+3}')
        if 'noqk' in self.exp:
            self.beta += 1
            return
        for gam in range(4):
            r = self.slot(4 * beta + gam)
            self.a(f'v_mfma_f32_16x16x32_bf16 v[{Dr+4*gam}:{Dr+4*gam+3}], v[{r}:{r+3}], v[{self.vBq}:{self.vBq+3}], 0')
        self.a('s_nop 7')
        for k in (1, 2, 3):
            for gam in range(4):
                P = self.vP + 4 * half + gam
                d = Dr + 4 * gam
                self.dpp('v_add_f32', P, d + ((t + k) & 3), d + t if k == 1 else P, f'row_ror:{16-4*k}', 1 << t)
        self.beta += 1

    def pv_group(self):
        tau = self.tau
        if 'nopv' in self.exp:
            self.wait(f'L{32+4*tau+3}')
            self.tau += 1
            return
        B = self.vD
        for pair in range(2):
            v0 = self.slot(32 + 4 * tau + 2 * pair)
            v1 = self.slot(32 + 4 * tau + 2 * pair + 1)
            self.wait(f'L{32+4*tau+2*pair+1}')
            for e in range(8):
                self.a(f'v_perm_b32 v{B+2*e+pair}, v{v1+(e>>1)}, v{v0+(e>>1)}, {sPHI if e & 1 else sPLO}')
        half, t = tau >> 2, tau & 3
        PA = self.vPA + 2 * half
        for e in range(8):
            ac = self.vAcc + 4 * e
            c = '0' if tau == 0 else f'v[{ac}:{ac+3}]'
            self.a(f'v_mfma_f32_4x4x4_16b_bf16 v[{ac}:{ac+3}], v[{PA}:{PA+1}], v[{B+2*e}:{B+2*e+1}], {c} cbsz:2 abid:{t}')
        self.tau += 1

    def gen(self):
        a = self.a
        self.L.append(f'; @launch grid=(256,1,1) block=(704,1,1) lds={LDS_BYTES}')
        self.L.append('.amdgcn_target "amdgcn-amd-amdhsa--gfx950"')
        self.L.append('.text')
        self.L.append(f'.globl {NAME}')
        self.L.append('.p2align 8')
        self.L.append(f'.type {NAME},@function')
        self.lab(NAME)
        a('s_load_dwordx16 s[4:19], s[0:1], 0')
        a('s_load_dwordx8 s[20:27], s[0:1], 64')
        if self.stamps:
            for i in range(STAMP_BASE, 102, 2):
                a(f's_mov_b64 s[{i}:{i+1}], 0')
            self.stamp('start')
        a('s_cmp_ge_u32 s2, 0x100')
        a('s_cbranch_scc1 L_end')
        a('v_lshrrev_b32 v4, 6, v0')
        a('v_and_b32 v1, 63, v0')
        a(f'v_readfirstlane_b32 {sW}, v4')
        a(f's_and_b32 {sG}, s2, 7')
        a(f's_lshr_b32 {sJ}, s2, 3')
        a(f's_cmp_ge_u32 {sW}, 8')
        a('s_cbranch_scc1 L_helper')
        self.stream_wave()
        self.helpers()
        if self.stamps:
            self.lab('L_exit')
            self.stamp('end')
            a('s_waitcnt lgkmcnt(0)')
            a('v_mov_b32 v4, 0')
            for i in range(len(self.stamp_names)):
                a(f'v_writelane_b32 v4, s{STAMP_BASE+2*i}, {i}')
            a(f's_getreg_b32 {sT1}, hwreg(HW_REG_XCC_ID)')
            a(f'v_writelane_b32 v4, {sT1}, 63')
            a(f's_mul_i32 {sT0}, s2, 11')
            a(f's_add_u32 {sT0}, {sT0}, {sW}')
            a(f's_lshl_b32 {sT0}, {sT0}, 8')
            a(f's_add_u32 {sT0}, {sT0}, {hex(STAMP)}')
            a(f'v_lshl_add_u32 v5, v1, 2, {sT0}')
            a(f'buffer_store_dword v4, v5, {SRD_WS}, 0 offen')
        else:
            self.lab('L_exit')
        self.lab('L_end')
        self.lab(f'L_pad_{self.npad}')
        a('s_endpgm')
        self.lab('L_codeend')
        self.L += ['.section .rodata,"a"', '.p2align 6', f'.amdhsa_kernel {NAME}',
                   f'  .amdhsa_next_free_vgpr {NVGPR}', '  .amdhsa_next_free_sgpr 102', f'  .amdhsa_accum_offset {NVGPR}',
                   '  .amdhsa_group_segment_fixed_size 0', '  .amdhsa_kernarg_size 96',
                   '  .amdhsa_user_sgpr_count 2', '  .amdhsa_user_sgpr_kernarg_segment_ptr 1',
                   '  .amdhsa_system_sgpr_workgroup_id_x 1',
                   '  .amdhsa_float_denorm_mode_32 3', '.end_amdhsa_kernel']
        return HEADER + '\n'.join(self.L) + '\n'

    def stream_wave(self):
        a = self.a
        D, CPC = self.D, self.CPC
        NCONS = 512 // CPC
        lg = int(math.log2(CPC))
        vLane = 1
        self.vK, self.vV = 2, 3
        vAcc = self.vAcc = 4
        vP = self.vP = 4
        vD = self.vD = 36
        vPA = self.vPA = vBq = self.vBq = 52
        vT = 56
        vA0, vA1, vA2, vA3, vA4, vA5, vTB, vWt = range(64, 72)
        assert RING0 == 72
        self.n = self.beta = self.tau = 0
        self.vm = []

        a(f's_lshl_b32 {sT0}, {sG}, 23')
        a(f's_lshl_b32 {sT1}, {sJ}, 18')
        a(f's_add_u32 {sT0}, {sT0}, {sT1}')
        a(f's_lshl_b32 {sT1}, {sW}, 10')
        a(f's_add_u32 {sT0}, {sT0}, {sT1}')
        a(f'v_bfe_u32 v{vT}, v{vLane}, 2, 2')
        a(f'v_lshlrev_b32 v{vT}, 8, v{vT}')
        a(f'v_and_b32 v{vT+1}, 3, v{vLane}')
        a(f'v_lshl_add_u32 v{vT}, v{vT+1}, 4, v{vT}')
        a(f'v_lshrrev_b32 v{vT+2}, 4, v{vLane}')
        a(f'v_lshlrev_b32 v{vT+2}, 6, v{vT+2}')
        a(f'v_add3_u32 v{self.vK}, v{vT}, v{vT+2}, {sT0}')
        a('s_waitcnt lgkmcnt(0)')
        self.srd(SRD_A, 6, 64 << 20)
        self.steps_to(self.D0)
        self.stamp('issued0')
        a(f's_load_dword {sTAG}, s[26:27], 0')
        a(f'v_lshl_add_u32 v{self.vV}, v{vLane}, 4, {sT0}')
        self.srd(SRD_B, 8, 64 << 20)
        self.srd(SRD_WS, 26, 256 << 20)
        self.srd(SRD_C, 12, 4 << 20)
        self.srd(SRD_OUT, 22, 1024)
        a(f's_mov_b32 {sPLO}, 0x05040100')
        a(f's_mov_b32 {sPHI}, 0x07060302')
        a(f's_mov_b32 {sC}, {hex(f2u(math.log2(math.e) / math.sqrt(128.0)))}')
        a(f's_mov_b32 {sSEL}, 0x07060500')
        a(f's_mov_b32 {sSA}, 0x0c0c0400')
        a(f's_mov_b32 {sSB}, 0x04000c0c')
        self.steps_to(self.nA)
        a(f'v_lshlrev_b32 v{vT}, 4, v{vLane}')
        self.stamp('preA')
        self.barrier()
        a(f'ds_read_b128 v[{vBq}:{vBq+3}], v{vT} offset:{L_BQ}')
        self.stamp('A')
        self.make_tag()
        a(f'v_and_b32 v{vT+6}, 3, v{vLane}')
        a(f'v_lshlrev_b32 v{vT+5}, 3, v{vT+6}')
        a(f'v_lshrrev_b32 v{vTB}, v{vT+5}, {sTAG}')
        a(f'v_lshlrev_b32 v{vT+6}, 5, v{vT+6}')
        a(f's_lshl_b32 {sT0}, {sW}, 2')
        a(f'v_add_u32 v{vT+7}, {sT0}, v{vT+6}')
        a('s_waitcnt lgkmcnt(0)')
        while self.beta < 8:
            if 4 * self.beta + 3 <= self.n - D:
                self.qk_batch()
            if self.beta < 8:
                self.step()
        self.max8(vT, vP, vT + 1)
        self.inrow_allreduce('v_max_f32', vT, (8, 4))
        self.rows_allreduce('v_max_f32', vT, vT + 1)
        a(f'ds_write_b32 v{vT+7}, v{vT} offset:{L_MB}')
        self.step()
        self.stamp('preB')
        self.barrier()
        a(f'ds_read_b128 v[{vD}:{vD+3}], v{vT+6} offset:{L_MB}')
        a(f'ds_read_b128 v[{vD+4}:{vD+7}], v{vT+6} offset:{L_MB+16}')
        a('s_waitcnt lgkmcnt(0)')
        self.max8(vT, vD, vT + 1)
        a(f'v_mul_f32 v{vT}, {sC}, v{vT}')
        for i in range(8):
            a(f'v_fma_f32 v{vP+i}, v{vP+i}, {sC}, -v{vT}')
        for i in range(8):
            a(f'v_exp_f32 v{vP+i}, v{vP+i}')
        a('s_nop 0')
        for i in range(4):
            a(f'v_cvt_pk_bf16_f32 v{vPA+i}, v{vP+2*i}, v{vP+2*i+1}')
        self.sum8(vT, vP)
        self.inrow_allreduce('v_add_f32', vT, (8, 4))
        self.rows_allreduce('v_add_f32', vT, vT + 1)
        a(f'ds_write_b32 v{vT+7}, v{vT} offset:{L_LB}')
        self.step()
        self.barrier()
        self.stamp('C')
        self.step()

        a(f'v_lshrrev_b32 v{vT}, 4, v{vLane}')
        a(f'v_mul_u32_u24 v{vT}, 160, v{vT}')
        a(f'v_and_b32 v{vT+1}, 15, v{vLane}')
        a(f'v_lshlrev_b32 v{vT+2}, 3, v{vT+1}')
        a(f's_mul_i32 {sT0}, {sW}, 2560')
        a(f'v_add3_u32 v{vA0}, v{vT}, v{vT+2}, {sT0}')
        a(f'v_lshrrev_b32 v{vT}, 7, v0')
        a(f'v_mul_u32_u24 v{vT}, 640, v{vT}')
        a(f'v_bfe_u32 v{vT+2}, v0, 1, 2')
        a(f'v_mul_u32_u24 v{vT+2}, 160, v{vT+2}')
        a(f'v_bfe_u32 v{vT+3}, v0, 3, 4')
        a(f'v_lshlrev_b32 v{vT+3}, 3, v{vT+3}')
        a(f'v_add3_u32 v{vT}, v{vT}, v{vT+2}, v{vT+3}')
        a(f'v_and_b32 v{vT+2}, 1, v0')
        a(f'v_lshl_add_u32 v{vA1}, v{vT+2}, 2, v{vT}')
        a(f'v_add_u32 v{vA1}, {L_OB}, v{vA1}')
        a(f's_lshl_b32 {sT2}, {sG}, 16')
        a(f's_add_u32 {sT2}, {sT2}, {hex(OBOX)}')
        a(f's_lshl_b32 {sT1}, {sJ}, 6')
        a(f's_add_u32 {sT0}, {sT2}, {sT1}')
        a(f'v_lshrrev_b32 v{vT}, 4, v0')
        a(f'v_lshlrev_b32 v{vWt}, 2, v{vT}')
        a(f'v_lshlrev_b32 v{vT}, 11, v{vT}')
        a(f'v_lshlrev_b32 v{vT+2}, 2, v{vT+1}')
        a(f'v_add3_u32 v{vA2}, v{vT}, v{vT+2}, {sT0}')
        a(f's_lshl_b32 {sT1}, {sJ}, 11')
        a(f's_add_u32 {sT0}, {sT2}, {sT1}')
        a(f'v_lshl_add_u32 v{vA3}, v0, 2, {sT0}')
        a(f'v_lshrrev_b32 v{vT}, {lg}, v0')
        a(f'v_lshlrev_b32 v{vT}, {lg+10}, v{vT}')
        a(f'v_and_b32 v{vT+2}, {CPC-1}, v0')
        a(f'v_lshlrev_b32 v{vT+2}, 2, v{vT+2}')
        a(f's_lshl_b32 {sT0}, s2, {lg+2}')
        a(f's_add_u32 {sT0}, {sT0}, {hex(SBOX)}')
        a(f'v_add3_u32 v{vA4}, v{vT}, v{vT+2}, {sT0}')
        a(f'v_lshlrev_b32 v{vA5}, 1, v0')
        a(f'v_lshlrev_b32 v{vT+6}, 5, v{vT+1}')
        a(f's_lshl_b32 {sT0}, {sW}, 2')
        a(f'v_add_u32 v{vT+7}, {sT0}, v{vT+6}')

        while self.n < 64:
            if 32 + 4 * self.tau + 3 <= self.n - D:
                self.pv_group()
            self.step()
        self.stamp('allissued')
        vW = self.slot(40)
        SG = self.slot(44)
        assert self.tau >= 4 and vW == RING0 + 64
        a(f's_lshl_b32 {sT0}, {sG}, 19')
        a(f's_lshl_b32 {sT1}, {sJ}, 14')
        a(f's_add_u32 {sT0}, {sT0}, {sT1}')
        for e in range(16):
            if e and e % 4 == 0:
                a(f's_add_u32 {sT0}, {sT0}, 0x1000')
            self.load(f'wo{e}', f'buffer_load_short_d16_hi v{vW+e}, v{vA5}, {SRD_C}, {sT0} offen offset:{(e & 3)*1024} {self.opol}')
        while self.tau < 7:
            self.pv_group()
        if self.warm:
            self.padding = True
            self.pad()
        self.pv_group()
        self.stamp('pvdone')
        if 'notail' in self.exp:
            a('s_branch L_exit')
        a('s_nop 1')
        for e in range(4):
            for h in range(4):
                a(f'v_permlane32_swap_b32 v{vAcc+4*e+h}, v{vAcc+4*(e+4)+h}')
        for e in range(4):
            for h in range(4):
                a(f'v_add_f32 v{vAcc+4*e+h}, v{vAcc+4*e+h}, v{vAcc+4*(e+4)+h}')
        for e in range(2):
            for h in range(4):
                a(f'v_permlane16_swap_b32 v{vAcc+4*e+h}, v{vAcc+4*(e+2)+h}')
        for h in range(4):
            a(f'v_add_f32 v{vD+2*h}, v{vAcc+h}, v{vAcc+8+h}')
            a(f'v_add_f32 v{vD+2*h+1}, v{vAcc+4+h}, v{vAcc+12+h}')
            a(f'ds_write_b64 v{vA0}, v[{vD+2*h}:{vD+2*h+1}] offset:{L_OB+640*h}')
        self.barrier()
        for k in range(4):
            a(f'ds_read2st64_b32 v[{vD+2*k}:{vD+2*k+1}], v{vA1} offset0:{20*k} offset1:{20*k+10}')
        a(f'ds_read_b32 v{vWt}, v{vWt} offset:{L_WB}')
        a('s_waitcnt lgkmcnt(1)')
        self.sum8(vT, vD)
        a(f'v_perm_b32 v{vT}, v{vT}, v{vTB}, {sSEL}')
        a(f'buffer_store_dword v{vT}, v{vA2}, {SRD_WS}, 0 offen sc1')
        self.stamp('opub')

        self.poll([f'buffer_load_dword v{vT+1}, v{vA3}, {SRD_WS}, 0 offen sc1'],
                  lambda: a(f'v_cmp_ne_u32_sdwa vcc, v{vT+1}, v{vTB} src0_sel:BYTE_0 src1_sel:BYTE_0'))
        self.stamp('goto')
        a('s_waitcnt lgkmcnt(0)')
        a(f'v_mul_f32 v{vT+1}, v{vT+1}, v{vWt}')
        self.rows_allreduce('v_add_f32', vT + 1, vT + 2)
        a(f'ds_write_b32 v{vT+7}, v{vT+1} offset:{L_O2}')
        self.barrier()
        a(f'ds_read_b128 v[{vD}:{vD+3}], v{vT+6} offset:{L_O2}')
        a(f'ds_read_b128 v[{vD+4}:{vD+7}], v{vT+6} offset:{L_O2+16}')
        a('s_waitcnt lgkmcnt(0)')
        self.sum8(vT, vD)
        a('s_nop 1')
        for e in range(16):
            op = 'v_mul_f32' if e < 4 else 'v_fmac_f32'
            self.dpp(op, vD + (e & 3), vT, vW + e, f'row_newbcast:{e}')
        a(f'v_add_f32 v{vD}, v{vD}, v{vD+2}')
        a(f'v_add_f32 v{vD+1}, v{vD+1}, v{vD+3}')
        a(f'v_add_f32 v{vT}, v{vD}, v{vD+1}')
        a(f'v_perm_b32 v{vT}, v{vT}, v{vTB}, {sSEL}')
        a(f'buffer_store_dword v{vT}, v{vA4}, {SRD_WS}, 0 offen sc1')
        self.stamp('spub')

        a(f's_cmp_ge_u32 s2, {NCONS}')
        a('s_cbranch_scc1 L_exit')
        nl, lpp = CPC // 8, CPC // 4
        a(f's_lshl_b32 {sT0}, s2, {lg+10}')
        a(f's_add_u32 {sT0}, {sT0}, {hex(SBOX)}')
        a(f'v_lshl_add_u32 v{vA0}, v0, 4, {sT0}')
        sl = []
        for u in range(nl):
            if u:
                sl.append(f's_movk_i32 {sT2}, {hex(u*8192)}')
            sl.append(f'buffer_load_dwordx4 v[{SG+4*u}:{SG+4*u+3}], v{vA0}, {SRD_WS}, {sT2 if u else 0} offen sc1')
        for x in sl:
            a(x)
        a(f'v_mov_b32 v{vA1}, {sTAG}')
        a(f'v_and_b32 v{vT+1}, {lpp-1}, v{vLane}')
        a(f'v_lshlrev_b32 v{vT+1}, 7, v{vT+1}')
        a(f'v_lshrrev_b32 v{vT+2}, 4, v{vLane}')
        a(f'v_lshlrev_b32 v{vT+2}, 5, v{vT+2}')
        a(f's_lshl_b32 {sT0}, {sW}, 2')
        a(f'v_add3_u32 v{vA2}, v{vT+1}, v{vT+2}, {sT0}')
        a(f'v_and_b32 v{vT+1}, {CPC-1}, v{vLane}')
        a(f'v_lshlrev_b32 v{vA3}, 5, v{vT+1}')
        a(f'v_lshlrev_b32 v{vT+2}, 2, v{vT+1}')
        a(f'ds_read_b32 v{vA4}, v{vT+2} offset:{L_GB}')
        a(f'ds_read_b32 v{vA5}, v{vT+2} offset:{L_XB}')
        a(f's_lshl_b32 {sT0}, s2, {lg+1}')
        a(f'v_lshl_add_u32 v{vWt}, v{vT+1}, 1, {sT0}')
        a('s_waitcnt vmcnt(0)')
        self.poll(sl, lambda: self.check_quads([SG + 4 * u for u in range(nl)], vA1, vT + 1, vT + 2, vT + 3), True)
        self.stamp('gots')
        for u in range(1, nl):
            for k in range(4):
                a(f'v_add_f32 v{SG+k}, v{SG+k}, v{SG+4*u+k}')
        self.quad_reduce(SG, lpp)
        a(f'ds_write_b32 v{vA2}, v{SG} offset:{L_S2}')
        self.barrier()
        a(f's_cmp_lg_u32 {sW}, 0')
        a('s_cbranch_scc1 L_exit')
        a(f'ds_read_b128 v[{vD}:{vD+3}], v{vA3} offset:{L_S2}')
        a(f'ds_read_b128 v[{vD+4}:{vD+7}], v{vA3} offset:{L_S2+16}')
        a(f's_mov_b32 exec_lo, {hex((1 << CPC) - 1)}')
        a('s_mov_b32 exec_hi, 0')
        a('s_waitcnt lgkmcnt(0)')
        self.sum8(vT, vD)
        self.bf16r(vT, vT)
        a(f'v_mul_f32 v{vT}, v{vT}, v{vA4}')
        self.bf16r(vT, vT)
        a(f'v_add_f32 v{vT}, v{vT}, v{vA5}')
        a(f'v_cvt_pk_bf16_f32 v{vT}, v{vT}, v{vT}')
        a(f'buffer_store_short v{vT}, v{vWt}, {SRD_OUT}, 0 offen')
        self.padding = False
        a('s_mov_b64 exec, -1')
        a('s_cmp_lg_u32 s2, 0')
        a('s_cbranch_scc1 L_exit')
        a(f'v_mov_b32 v{vT}, 0')
        a('s_mov_b64 exec, 1')
        a(f'buffer_store_dword v{vA1}, v{vT}, {SRD_WS}, 0 offen sc1')
        a('s_mov_b64 exec, -1')
        a('s_branch L_exit')

    def helpers(self):
        a = self.a
        CPC = self.CPC
        NCONS = 512 // CPC
        lg = int(math.log2(CPC))
        vLane = 1
        vT = 4
        vX = 16
        vA = 24
        vB = 32
        vW = 40
        vTag, vTB = 2, 3
        sSTR, sPUB = sPLO, sPHI
        self.lab('L_helper')
        if 'nohelp' in self.exp:
            a('s_endpgm')
        a('s_waitcnt lgkmcnt(0)')
        self.stamp('_hstart')
        a(f's_load_dword {sTAG}, s[26:27], 0')
        self.srd(SRD_WS, 26, 256 << 20)
        a(f's_cmp_eq_u32 {sW}, 10')
        a('s_cbranch_scc1 L_h2')
        self.vm = []
        self.srd(SRD_X, 4, 1024)
        a(f'v_lshlrev_b32 v{vT}, 4, v{vLane}')
        self.load('x16', f'buffer_load_dwordx4 v[{vX}:{vX+3}], v{vT}, {SRD_X}, 0 offen')
        sRB, sCB, sSTR, sCOL, sPUB = 's60', 's61', 's62', 's67', 's3'
        a(f's_and_b32 {sRB}, {sJ}, 3')
        a(f's_lshr_b32 {sCB}, {sJ}, 2')
        a(f's_cmp_eq_u32 {sW}, 8')
        a('s_cbranch_scc0 L_h1_setup')
        self.srd(SRD_A, 10, 4 << 20)
        a(f's_movk_i32 {sSTR}, 0x2000')
        a(f's_lshl_b32 {sCOL}, {sG}, 10')
        a(f's_lshl_b32 {sT0}, {sCB}, 7')
        a(f's_add_u32 {sCOL}, {sCOL}, {sT0}')
        a(f's_lshl_b32 {sPUB}, {sG}, 13')
        a(f's_lshl_b32 {sT0}, {sRB}, 11')
        a(f's_add_u32 {sPUB}, {sPUB}, {sT0}')
        a(f's_lshl_b32 {sT0}, {sCB}, 8')
        a(f's_add_u32 {sPUB}, {sPUB}, {sT0}')
        a(f's_add_u32 {sPUB}, {sPUB}, {hex(QBOX)}')
        a('s_branch L_tile')
        self.lab('L_h1_setup')
        a(f's_cmp_ge_u32 {sJ}, 28')
        a('s_cbranch_scc1 L_h1_notile')
        a(f's_lshl_b32 {sCB}, {sCB}, 3')
        a(f's_add_u32 {sCB}, {sCB}, {sG}')
        a(f's_sub_u32 {sT0}, {sCB}, 28')
        a(f's_cmp_ge_u32 {sCB}, 28')
        a(f's_cselect_b32 {sCB}, {sT0}, {sCB}')
        a('s_cselect_b64 s[28:29], s[18:19], s[16:17]')
        a(f's_cselect_b32 {sPUB}, {hex(4*7168)}, 0')
        a(f's_add_u32 {sPUB}, {sPUB}, {hex(HBOX)}')
        a(f's_mov_b32 s30, {hex(512*3584)}')
        a('s_mov_b32 s31, 0x20000')
        a(f's_movk_i32 {sSTR}, 3584')
        a(f's_lshl_b32 {sCOL}, {sCB}, 7')
        a(f's_mul_i32 {sT0}, {sRB}, 7168')
        a(f's_add_u32 {sPUB}, {sPUB}, {sT0}')
        a(f's_lshl_b32 {sT0}, {sCB}, 8')
        a(f's_add_u32 {sPUB}, {sPUB}, {sT0}')
        self.lab('L_tile')
        a(f'v_lshrrev_b32 v{vT+1}, 3, v{vLane}')
        a(f'v_lshlrev_b32 v{vT+1}, 4, v{vT+1}')
        a(f's_lshl_b32 {sT0}, {sRB}, 7')
        a(f'v_add_u32 v{vT+1}, {sT0}, v{vT+1}')
        a(f'v_mul_u32_u24 v{vT+2}, {sSTR}, v{vT+1}')
        a(f'v_and_b32 v{vT+3}, 7, v{vLane}')
        a(f'v_lshlrev_b32 v{vT+3}, 4, v{vT+3}')
        a(f'v_add3_u32 v{vT+2}, v{vT+2}, v{vT+3}, {sCOL}')
        a(f's_mov_b32 {sOFF}, 0')
        for u in range(16):
            self.load(f't{u}', f'buffer_load_dwordx4 v[{vW+4*u}:{vW+4*u+3}], v{vT+2}, {SRD_A}, {sOFF} offen {self.wpol}')
            if u < 15:
                a(f's_add_u32 {sOFF}, {sOFF}, {sSTR}')
        self.stamp('_tissued')
        a(f's_sub_u32 {sT0}, {sW}, 8')
        a(f's_lshl_b32 {sT0}, {sT0}, 10')
        a(f'v_add_u32 v{vT}, {sT0}, v{vT}')
        a(f'v_lshl_add_u32 v{vT+1}, v{vT+1}, 1, {sT0}')
        a(f'v_lshrrev_b32 v{vT+4}, 3, v{vLane}')
        a(f'v_lshlrev_b32 v{vT+3}, 1, v{vT+3}')
        a(f'v_lshl_add_u32 v{vT+3}, v{vT+4}, 2, v{vT+3}')
        a(f'v_add_u32 v{vT+3}, {sPUB}, v{vT+3}')
        a(f'v_and_b32 v{vT+4}, 3, v{vT+4}')
        a(f'v_lshlrev_b32 v{vT+4}, 3, v{vT+4}')
        a(f's_mov_b32 {sPLO}, 0x05040100')
        a(f's_mov_b32 {sPHI}, 0x07060302')
        self.wait('x16')
        self.stamp('_x16')
        for k in range(4):
            a(f'v_lshlrev_b32 v{vA+2*k}, 16, v{vX+k}')
            a(f'v_and_b32 v{vA+2*k+1}, 0xffff0000, v{vX+k}')
        m, s2, t = vT + 5, vT + 6, vT + 7
        a(f'v_add_f32 v{m}, v{vA}, v{vA+1}')
        for k in range(2, 8):
            a(f'v_add_f32 v{m}, v{m}, v{vA+k}')
        self.inrow_allreduce('v_add_f32', m, (8, 4, 2, 1))
        self.rows_allreduce('v_add_f32', m, t)
        a(f'v_mul_f32 v{m}, {hex(f2u(1/512.))}, v{m}')
        for k in range(8):
            a(f'v_sub_f32 v{vB+k}, v{vA+k}, v{m}')
        a(f'v_mul_f32 v{s2}, v{vB}, v{vB}')
        for k in range(1, 8):
            a(f'v_fmac_f32 v{s2}, v{vB+k}, v{vB+k}')
        self.inrow_allreduce('v_add_f32', s2, (8, 4, 2, 1))
        self.rows_allreduce('v_add_f32', s2, t)
        a(f'v_mul_f32 v{s2}, {hex(f2u(1/512.))}, v{s2}')
        self.bf16r(m, m)
        self.bf16r(s2, s2)
        a(f'v_add_f32 v{s2}, {hex(f2u(1e-5))}, v{s2}')
        self.bf16r(s2, s2)
        a(f'v_sqrt_f32 v{s2}, v{s2}')
        for k in range(8):
            a(f'v_sub_f32 v{vA+k}, v{vA+k}, v{m}')
        self.bf16r(s2, s2)
        a(f'v_rcp_f32 v{s2}, v{s2}')
        for k in range(4):
            a(f'v_cvt_pk_bf16_f32 v{vX+k}, v{vA+2*k}, v{vA+2*k+1}')
        for k in range(4):
            a(f'v_lshlrev_b32 v{vA+2*k}, 16, v{vX+k}')
            a(f'v_and_b32 v{vA+2*k+1}, 0xffff0000, v{vX+k}')
        for k in range(8):
            a(f'v_mul_f32 v{vA+k}, v{vA+k}, v{s2}')
        for k in range(4):
            a(f'v_cvt_pk_bf16_f32 v{vX+k}, v{vA+2*k}, v{vA+2*k+1}')
        a(f'ds_write_b128 v{vT}, v[{vX}:{vX+3}] offset:{L_XN}')
        a('s_waitcnt lgkmcnt(0)')
        a(f'ds_read_b128 v[{vX}:{vX+3}], v{vT+1} offset:{L_XN}')
        a(f'ds_read_b128 v[{vX+4}:{vX+7}], v{vT+1} offset:{L_XN+16}')
        self.make_tag()
        a(f'v_lshrrev_b32 v{vT+4}, v{vT+4}, {sTAG}')
        a(f's_mov_b32 {sSEL}, 0x07060500')
        a('s_waitcnt lgkmcnt(0)')
        self.stamp('_ln')
        for p in range(8):
            self.wait(f't{2*p+1}')
            self.stamp(f'_t{2*p+1}')
            w0, w1 = vW + 8 * p, vW + 8 * p + 4
            for e in range(8):
                a(f'v_perm_b32 v{vB+e}, v{w1+(e>>1)}, v{w0+(e>>1)}, {sPHI if e & 1 else sPLO}')
            for e in range(8):
                a(f'v_dot2_f32_bf16 v{vA+e}, v{vB+e}, v{vX+p}, {"0" if p == 0 else f"v{vA+e}"}')
        a('s_nop 2')
        for e in range(4):
            a(f'v_permlane32_swap_b32 v{vA+e}, v{vA+e+4}')
        for e in range(4):
            a(f'v_add_f32 v{vA+e}, v{vA+e}, v{vA+e+4}')
        a('s_nop 0')
        for e in range(2):
            a(f'v_permlane16_swap_b32 v{vA+e}, v{vA+e+2}')
        for e in range(2):
            a(f'v_add_f32 v{vA+e}, v{vA+e}, v{vA+e+2}')
        a('s_nop 0')
        self.dpp('v_add_f32', vA + 4, vA, vA, 'row_ror:8', 0x3)
        a('s_nop 1')
        self.dpp('v_add_f32', vA + 4, vA + 1, vA + 1, 'row_ror:8', 0xc)
        a(f'v_perm_b32 v{vA+4}, v{vA+4}, v{vT+4}, {sSEL}')
        if 'h_tileonly' in self.exp:
            a('s_branch L_exit')
        a(f'buffer_store_dword v{vA+4}, v{vT+3}, {SRD_WS}, 0 offen sc1')
        self.stamp('tilepub')
        if 'h_pubonly' in self.exp:
            a('s_branch L_exit')
        a(f's_cmp_eq_u32 {sW}, 8')
        a('s_cbranch_scc0 L_h1')

        a(f's_mov_b32 {sSA}, 0x0c0c0400')
        a(f's_mov_b32 {sSB}, 0x04000c0c')
        a(f'v_mov_b32 v{vTag}, {sTAG}')
        a(f's_lshl_b32 {sT0}, {sG}, 13')
        a(f's_add_u32 {sT0}, {sT0}, {hex(QBOX)}')
        a(f'v_lshrrev_b32 v{vT}, 5, v{vLane}')
        a(f'v_and_b32 v{vT+1}, 31, v{vLane}')
        a(f'v_lshlrev_b32 v{vT+2}, 11, v{vT}')
        a(f'v_lshlrev_b32 v{vT+3}, 4, v{vT+1}')
        a(f'v_add3_u32 v{vT+2}, v{vT+2}, v{vT+3}, {sT0}')
        a(f's_movk_i32 {sT2}, 0x1000')
        a(f'v_lshrrev_b32 v{vT+1}, 1, v{vT+1}')
        a(f'v_lshlrev_b32 v{vT+1}, 6, v{vT+1}')
        a(f'v_and_b32 v{vT+3}, 1, v{vLane}')
        a(f'v_lshlrev_b32 v{vT+3}, 3, v{vT+3}')
        a(f'v_lshl_add_u32 v{vT+1}, v{vT}, 2, v{vT+1}')
        a(f'v_add_u32 v{vT+1}, v{vT+1}, v{vT+3}')
        ql = [f'buffer_load_dwordx4 v[{vW+8*h+4*b}:{vW+8*h+4*b+3}], v{vT+2}, {SRD_WS}, {sT2 if b else 0} offen offset:{512*h} sc1'
              for h in range(4) for b in range(2)]
        self.poll(ql, lambda: self.check_quads([vW + 4 * i for i in range(8)], vTag, vT + 4, vT + 5, vT + 6))
        self.stamp('gotq')
        for h in range(4):
            for k in range(4):
                a(f'v_add_f32 v{vW+8*h+k}, v{vW+8*h+k}, v{vW+8*h+4+k}')
        for h in range(4):
            a(f'v_permlane32_swap_b32 v{vW+8*h}, v{vW+8*h+2}')
            a(f'v_permlane32_swap_b32 v{vW+8*h+1}, v{vW+8*h+3}')
        for h in range(4):
            a(f'v_add_f32 v{vW+8*h}, v{vW+8*h}, v{vW+8*h+2}')
            a(f'v_add_f32 v{vW+8*h+1}, v{vW+8*h+1}, v{vW+8*h+3}')
            a(f'v_cvt_pk_bf16_f32 v{vW+8*h}, v{vW+8*h}, v{vW+8*h+1}')
            a(f'ds_write_b32 v{vT+1}, v{vW+8*h} offset:{L_BQ+16*h}')
        self.barrier()
        if 'h_noml' in self.exp:
            a('s_branch L_exit')
        a(f'v_and_b32 v{vT}, 3, v{vLane}')
        a(f'v_lshlrev_b32 v{vT}, 5, v{vT}')
        a(f's_lshl_b32 {sT2}, {sG}, 11')
        a(f's_add_u32 {sT2}, {sT2}, {hex(MLBOX)}')
        a(f's_lshl_b32 {sT1}, {sJ}, 4')
        a(f's_add_u32 {sT0}, {sT2}, {sT1}')
        a(f'v_lshl_add_u32 v{vT+1}, v{vT}, 4, {sT0}')
        a(f's_lshr_b32 {sT1}, {sJ}, 3')
        a(f's_lshl_b32 {sT1}, {sT1}, 9')
        a(f's_add_u32 {sT0}, {sT2}, {sT1}')
        a(f'v_and_b32 v{vT+2}, 31, v{vLane}')
        a(f'v_lshlrev_b32 v{vT+3}, 2, v{vT+2}')
        a(f'v_lshl_add_u32 v{vT+2}, v{vT+2}, 4, {sT0}')
        a(f'v_mov_b32 v{vX+2}, {sTAG}')
        a(f'v_mov_b32 v{vX+3}, {sTAG}')
        a(f's_mov_b32 {sC}, {hex(f2u(math.log2(math.e) / math.sqrt(128.0)))}')
        a('s_barrier')
        a(f'ds_read_b128 v[{vA}:{vA+3}], v{vT} offset:{L_MB}')
        a(f'ds_read_b128 v[{vA+4}:{vA+7}], v{vT} offset:{L_MB+16}')
        a('s_waitcnt lgkmcnt(0)')
        self.max8(vX, vA, vT + 4)
        a('s_barrier')
        a(f'ds_read_b128 v[{vA}:{vA+3}], v{vT} offset:{L_LB}')
        a(f'ds_read_b128 v[{vA+4}:{vA+7}], v{vT} offset:{L_LB+16}')
        a('s_waitcnt lgkmcnt(0)')
        self.sum8(vX + 1, vA)
        a('s_mov_b64 exec, 0xf')
        a(f'buffer_store_dwordx4 v[{vX}:{vX+3}], v{vT+1}, {SRD_WS}, 0 offen sc1')
        a('s_mov_b64 exec, -1')

        def chk_ml():
            a(f'v_xor_b32 v{vT+4}, {sTAG}, v{vB+2}')
            a(f'v_xor_b32 v{vT+5}, {sTAG}, v{vB+3}')
            a(f'v_or_b32 v{vT+4}, v{vT+4}, v{vT+5}')
            a(f'v_cmp_ne_u32 vcc, 0, v{vT+4}')
        self.poll([f'buffer_load_dwordx4 v[{vB}:{vB+3}], v{vT+2}, {SRD_WS}, 0 offen sc1'], chk_ml, sleep=8)
        mx, y, t = vT + 4, vT + 5, vT + 6
        a(f'v_mov_b32 v{mx}, v{vB}')
        self.inrow_allreduce('v_max_f32', mx, (8, 4, 2, 1))
        self.rows_allreduce('v_max_f32', mx, t, do32=False)
        a(f'v_sub_f32 v{mx}, v{vB}, v{mx}')
        a(f'v_mul_f32 v{mx}, {sC}, v{mx}')
        a(f'v_exp_f32 v{mx}, v{mx}')
        a('s_nop 0')
        a(f'v_mul_f32 v{y}, v{mx}, v{vB+1}')
        self.inrow_allreduce('v_add_f32', y, (8, 4, 2, 1))
        self.rows_allreduce('v_add_f32', y, t, do32=False)
        a(f'v_rcp_f32 v{y}, v{y}')
        a('s_nop 0')
        a(f'v_mul_f32 v{mx}, v{mx}, v{y}')
        a(f'ds_write_b32 v{vT+3}, v{mx} offset:{L_WB}')
        self.stamp('mlw')
        a('s_waitcnt lgkmcnt(0)')
        a('s_branch L_exit')

        self.lab('L_h1_notile')
        if 'h_nof' in self.exp or 'h_tileonly' in self.exp or 'h_pubonly' in self.exp:
            a('s_branch L_exit')
        a('s_waitcnt lgkmcnt(0)')
        self.make_tag()
        a('s_barrier')
        a('s_waitcnt vmcnt(0)')
        for e in range(8):
            a(f'v_mov_b32 v{vA+e}, 0')
        a('s_branch L_h1_pub')
        self.lab('L_h1')
        if 'h_nof' in self.exp:
            a('s_branch L_exit')
        self.srd(SRD_B, 20, 1792 * 1024)
        a(f's_mul_i32 {sT1}, {sG}, 28')
        a(f's_add_u32 {sT1}, {sT1}, {sJ}')
        a(f's_lshl_b32 {sT0}, {sT1}, 13')
        a(f'v_lshl_add_u32 v{vT}, v{vLane}, 4, {sT0}')
        a(f's_movk_i32 {sT2}, 0x1000')
        for e in range(8):
            a(f'buffer_load_dwordx4 v[{vW+4*e}:{vW+4*e+3}], v{vT}, {SRD_B}, {sT2 if e >= 4 else 0} offen offset:{(e & 3)*1024} {self.wpol}')
        a(f's_lshl_b32 {sT0}, {sT1}, 5')
        a(f's_add_u32 {sT0}, {sT0}, {hex(HBOX)}')
        a(f'v_lshrrev_b32 v{vT+1}, 4, v{vLane}')
        a(f'v_bfe_u32 v{vT+2}, v{vLane}, 3, 1')
        a(f'v_lshl_add_u32 v{vT+1}, v{vT+2}, 2, v{vT+1}')
        a(f'v_mul_u32_u24 v{vT+1}, 7168, v{vT+1}')
        a(f'v_and_b32 v{vT+2}, 7, v{vLane}')
        a(f'v_lshlrev_b32 v{vT+2}, 2, v{vT+2}')
        a(f'v_add3_u32 v{vT+1}, v{vT+1}, v{vT+2}, {sT0}')
        a(f'v_and_b32 v{vT+2}, 3, v{vLane}')
        a(f'v_lshlrev_b32 v{vT+2}, 3, v{vT+2}')
        a(f'v_lshrrev_b32 v{vTB}, v{vT+2}, {sTAG}')
        a('s_barrier')
        self.poll([f'buffer_load_dword v{vT+3}, v{vT+1}, {SRD_WS}, 0 offen sc1'],
                  lambda: a(f'v_cmp_ne_u32_sdwa vcc, v{vT+3}, v{vTB} src0_sel:BYTE_0 src1_sel:BYTE_0'), sleep=4)
        self.rows_allreduce('v_add_f32', vT + 3, vT + 4)
        self.bf16r(vT + 3, vT + 3)
        self.silu_bf16(vT + 4, vT + 3, vT + 5)
        a('s_nop 1')
        self.dpp('v_mul_f32', vT + 4, vT + 3, vT + 4, 'row_ror:8')
        a('s_nop 1')
        a(f'v_mov_b32_dpp v{vT+5}, v{vT+4} quad_perm:[1,0,3,2] row_mask:0xf bank_mask:0xf')
        a(f'v_cvt_pk_bf16_f32 v{vT+4}, v{vT+4}, v{vT+5}')
        a('s_nop 0')
        hp = ['s8', 's9', 's10', 's11']
        for p in range(4):
            a(f'v_readlane_b32 {hp[p]}, v{vT+4}, {2*p}')
        for p in range(4):
            w0, w1 = vW + 8 * p, vW + 8 * p + 4
            for e in range(8):
                a(f'v_perm_b32 v{vB+e}, v{w1+(e>>1)}, v{w0+(e>>1)}, {sPHI if e & 1 else sPLO}')
            for e in range(8):
                a(f'v_dot2_f32_bf16 v{vA+e}, v{vB+e}, {hp[p]}, {"0" if p == 0 else f"v{vA+e}"}')
        self.lab('L_h1_pub')
        a(f'v_mov_b32 v{vTag}, {sTAG}')
        a(f'v_lshlrev_b32 v{vT}, 3, v{vLane}')
        a(f'v_lshrrev_b32 v{vT+1}, {lg}, v{vT}')
        a(f'v_lshlrev_b32 v{vT+1}, {lg+10}, v{vT+1}')
        a(f'v_and_b32 v{vT}, {CPC-1}, v{vT}')
        a(f'v_lshlrev_b32 v{vT}, 2, v{vT}')
        a(f's_lshl_b32 {sT0}, s2, {lg+2}')
        a(f's_add_u32 {sT0}, {sT0}, {hex(FBOX)}')
        a(f'v_add3_u32 v{vT}, v{vT}, v{vT+1}, {sT0}')
        for k in range(4):
            a(f's_mov_b32 {sT1}, {hex(0x07060500 + k)}')
            a(f'v_perm_b32 v{vA+k}, v{vA+k}, v{vTag}, {sT1}')
            a(f'v_perm_b32 v{vA+4+k}, v{vA+4+k}, v{vTag}, {sT1}')
        a(f'buffer_store_dwordx4 v[{vA}:{vA+3}], v{vT}, {SRD_WS}, 0 offen sc1')
        a(f'buffer_store_dwordx4 v[{vA+4}:{vA+7}], v{vT}, {SRD_WS}, 0 offen offset:16 sc1')
        self.stamp('fpub')
        if 'h_nofg' in self.exp:
            a('s_branch L_exit')
        a(f's_cmp_ge_u32 s2, {NCONS}')
        a('s_cbranch_scc1 L_exit')
        lpp = CPC // 4
        a(f's_mov_b32 {sSA}, 0x0c0c0400')
        a(f's_mov_b32 {sSB}, 0x04000c0c')
        a(f's_lshl_b32 {sT0}, s2, {lg+10}')
        a(f's_add_u32 {sT0}, {sT0}, {hex(FBOX)}')
        a(f'v_lshl_add_u32 v{vT}, v{vLane}, 4, {sT0}')
        a(f'v_and_b32 v{vT+1}, {lpp-1}, v{vLane}')
        a(f'v_lshrrev_b32 v{vT+2}, 4, v{vLane}')
        a(f'v_lshl_add_u32 v{vT+1}, v{vT+1}, 2, v{vT+2}')
        a(f's_lshl_b32 {sT0}, s2, {lg+1}')
        a(f'v_lshl_add_u32 v{vT+2}, v{vT+1}, 1, {sT0}')
        a(f'v_lshlrev_b32 v{vT+1}, 2, v{vT+1}')
        a(f'buffer_load_short_d16_hi v{vT+3}, v{vT+2}, {SRD_X}, 0 offen')
        a('s_barrier')
        a('s_barrier')
        fl = []
        for u in range(CPC):
            if u % 4 == 0 and u:
                fl.append(f's_movk_i32 {sT2}, {hex(u*1024)}')
            fl.append(f'buffer_load_dwordx4 v[{vW+4*u}:{vW+4*u+3}], v{vT}, {SRD_WS}, {sT2 if u >= 4 else 0} offen offset:{(u & 3)*1024} sc1')
        self.poll(fl, lambda: self.check_quads([vW + 4 * u for u in range(CPC)], vTag, vT + 4, vT + 5, vT + 6), sleep=8)
        n = CPC
        while n > 1:
            n //= 2
            for u in range(n):
                for k in range(4):
                    a(f'v_add_f32 v{vW+4*u+k}, v{vW+4*u+k}, v{vW+4*(u+n)+k}')
        self.quad_reduce(vW, lpp)
        self.bf16r(vW, vW)
        self.silu_bf16(vT + 4, vW, vT + 5)
        a(f'ds_write_b32 v{vT+1}, v{vT+4} offset:{L_GB}')
        a(f'ds_write_b32 v{vT+1}, v{vT+3} offset:{L_XB}')
        a('s_waitcnt lgkmcnt(0)')
        a('s_branch L_exit')

        self.lab('L_h2')
        if self.pref:
            a('s_getpc_b64 s[28:29]')
            self.lab('L_pc')
            a(f's_sub_u32 s28, s28, L_pc-{NAME}')
            a('s_subb_u32 s29, s29, 0')
            a(f's_mov_b32 s30, L_codeend-{NAME}')
            a('s_mov_b32 s31, 0x20000')
            a(f'v_lshlrev_b32 v{vT}, 4, v{vLane}')
            a(f's_mov_b32 {sOFF}, 0')
            self.lab('L_pf')
            a(f'buffer_load_dwordx4 v[{vW}:{vW+3}], v{vT}, {SRD_A}, {sOFF} offen')
            a(f's_add_u32 {sOFF}, {sOFF}, 0x400')
            a(f's_cmp_lt_u32 {sOFF}, s30')
            a('s_cbranch_scc1 L_pf')
        if self.warm:
            a('s_barrier')
            a('s_barrier')
            a('s_barrier')
            a('s_waitcnt vmcnt(0) lgkmcnt(0)')
            a('s_mov_b64 exec, 0')
            a('s_branch L_pad_0')
        else:
            a('s_waitcnt vmcnt(0) lgkmcnt(0)')
            a('s_branch L_end')


def gen(**kw):
    g = G(**kw)
    s = g.gen()
    return s, g.stamp_names


if __name__ == '__main__':
    kw = eval('dict(' + (sys.argv[2] if len(sys.argv) > 2 else '') + ')')
    s, _ = gen(**kw)
    open(sys.argv[1], 'w').write(s)
```

```python
import math, struct, sys

NAME = 'recurrent_scan__gqa_block_cached__swiglu_ffn__decode_kernel'

HEADER = """; Kernarg layout for this problem (96 bytes, ptrs only, base s[0:1]):
"""


def f2u(x):
    return struct.unpack('<I', struct.pack('<f', x))[0]


QBOX  = 0x010000
HBOX  = 0x020000
MLBOX = 0x030000
OBOX  = 0x100000
FBOX  = 0x040000
SBOX  = 0x300000
STAMP = 0x800000

L_BQ = 0
L_XN = 1024
L_MB = 3072
L_LB = 3200
L_WB = 3328
L_GB = 3456
L_XB = 3584
L_O2 = 3712
L_S2 = 4224
L_HB = 5248
L_OB = 5376
L_TL = 5376
LDS_BYTES = L_TL + 2 * 16384

SRD_A, SRD_B, SRD_X, SRD_C, SRD_OUT, SRD_WS = [f's[{b}:{b+3}]' for b in range(28, 52, 4)]
sG, sJ, sW, sTAG, sOFF, sT0, sT1, sT2, sPLO, sPHI, sC, sCNT = [f's{i}' for i in range(52, 64)]
sL2E, sSEL, sSA, sSB = 's3', 's64', 's65', 's66'
STAMP_BASE = 68
NVGPR = 168
RING = 24
RING0 = NVGPR - 4 * RING


class G:
    def __init__(self, Ds=((0, 4),), pol='nt', wpol='nt', opol='nt', CPC=32, stamps=False, nA=24, nG=15, nM=54, nT=None,
                 spin=200000, padk=7, warm=True, pref=False, prio=3, kfirst=4, exp=()):
        self.__dict__.update(locals())
        self.L = []
        self.vm = []
        self.nlab = 0
        self.stamp_names = []
        self.padding = False
        self.npad = 0
        self.since_pad = 0

    def a(self, s):
        self.L.append('    ' + s)
        if self.padding:
            self.since_pad += 1
            if self.since_pad >= self.padk:
                self.pad()

    def pad(self):
        self.L.append(f'L_pad_{self.npad}:')
        self.L.append(f'    s_cbranch_execz L_pad_{self.npad+1}')
        self.npad += 1
        self.since_pad = 0

    def lab(self, s):
        self.L.append(s + ':')

    def newlab(self, p):
        self.nlab += 1
        return f'L_{p}_{self.nlab}'

    def load(self, name, text):
        self.a(text)
        self.vm.append(name)

    def wait(self, name):
        n = len(self.vm) - 1 - self.vm.index(name)
        assert n <= 63
        self.a(f's_waitcnt vmcnt({n})')

    def stamp(self, name):
        if not self.stamps:
            return
        if self.stamps is True:
            if name.startswith('_'):
                return
        elif name not in self.stamps and name not in ('start', 'end'):
            return
        i = len(self.stamp_names)
        assert STAMP_BASE + 2 * i + 1 <= 101
        self.a(f's_memrealtime s[{STAMP_BASE+2*i}:{STAMP_BASE+2*i+1}]')
        self.stamp_names.append(name)

    def dpp(self, op, d, s0, s1, ctl, bank=0xf):
        self.a(f'{op}_dpp v{d}, v{s0}, v{s1} {ctl} row_mask:0xf bank_mask:{hex(bank)}')

    def rows_allreduce(self, op, v, t, do16=True, do32=True):
        if do16:
            self.a(f'v_mov_b32 v{t}, v{v}')
            self.a('s_nop 1')
            self.a(f'v_permlane16_swap_b32 v{v}, v{t}')
            self.a(f'{op} v{v}, v{v}, v{t}')
        if do32:
            self.a(f'v_mov_b32 v{t}, v{v}')
            self.a('s_nop 1')
            self.a(f'v_permlane32_swap_b32 v{v}, v{t}')
            self.a(f'{op} v{v}, v{v}, v{t}')

    def inrow_allreduce(self, op, v, rots):
        for r in rots:
            self.a('s_nop 1')
            self.dpp(op, v, v, v, f'row_ror:{r}')

    def bf16r(self, d, s):
        self.a(f'v_cvt_pk_bf16_f32 v{d}, v{s}, v{s}')
        self.a(f'v_and_b32 v{d}, 0xffff0000, v{d}')

    def sum8(self, d, b):
        for k in range(4):
            self.a(f'v_add_f32 v{b+k}, v{b+k}, v{b+4+k}')
        self.a(f'v_add_f32 v{b}, v{b}, v{b+2}')
        self.a(f'v_add_f32 v{b+1}, v{b+1}, v{b+3}')
        self.a(f'v_add_f32 v{d}, v{b}, v{b+1}')

    def max8(self, d, b, t):
        self.a(f'v_max3_f32 v{d}, v{b}, v{b+1}, v{b+2}')
        self.a(f'v_max3_f32 v{t}, v{b+3}, v{b+4}, v{b+5}')
        self.a(f'v_max3_f32 v{d}, v{d}, v{b+6}, v{b+7}')
        self.a(f'v_max_f32 v{d}, v{d}, v{t}')

    def silu_bf16(self, d, x, t):
        self.a(f'v_mul_f32 v{t}, {hex(f2u(math.log2(math.e)))}, v{x}')
        self.a(f'v_exp_f32 v{t}, -v{t}')
        self.a('s_nop 0')
        self.a(f'v_add_f32 v{t}, 1.0, v{t}')
        self.a(f'v_rcp_f32 v{t}, v{t}')
        self.a('s_nop 0')
        self.a(f'v_mul_f32 v{t}, v{x}, v{t}')
        self.bf16r(d, t)

    def make_tag(self):
        self.a(f's_and_b32 {sT0}, {sTAG}, 0x7f7f7f7f')
        self.a(f's_add_u32 {sT0}, {sT0}, 0x47611b35')
        self.a(f's_and_b32 {sTAG}, {sTAG}, 0x80808080')
        self.a(f's_xor_b32 {sTAG}, {sTAG}, {sT0}')

    def check_quads(self, quads, vtag, t0, t1, t2):
        for i, q in enumerate(quads):
            self.a(f'v_perm_b32 v{t0}, v{q+1}, v{q}, {sSA}')
            self.a(f'v_perm_b32 v{t1}, v{q+3}, v{q+2}, {sSB}')
            if i == 0:
                self.a(f'v_bitop3_b32 v{t2}, v{t0}, v{t1}, v{vtag} bitop3:0x56')
            else:
                self.a(f'v_bitop3_b32 v{t0}, v{t0}, v{t1}, v{vtag} bitop3:0x56')
                self.a(f'v_or_b32 v{t2}, v{t2}, v{t0}')
        self.a(f'v_cmp_ne_u32 vcc, 0, v{t2}')

    def poll(self, loads, check, first_issued=False, sleep=0):
        again, done = self.newlab('again'), self.newlab('done')
        self.a(f's_mov_b32 {sCNT}, {self.spin}')
        if first_issued:
            check()
            self.a(f's_cbranch_vccz {done}')
        self.lab(again)
        if sleep:
            self.a(f's_sleep {sleep}')
        for x in loads:
            self.a(x)
        self.a(f's_sub_u32 {sCNT}, {sCNT}, 1')
        self.a('s_waitcnt vmcnt(0)')
        self.a(f's_cbranch_scc1 {done}')
        check()
        self.a(f's_cbranch_vccnz {again}')
        self.lab(done)

    def quad_reduce(self, v, lpp):
        self.a('s_nop 1')
        self.a(f'v_permlane32_swap_b32 v{v}, v{v+2}')
        self.a(f'v_permlane32_swap_b32 v{v+1}, v{v+3}')
        self.a(f'v_add_f32 v{v}, v{v}, v{v+2}')
        self.a(f'v_add_f32 v{v+1}, v{v+1}, v{v+3}')
        self.a('s_nop 1')
        self.a(f'v_permlane16_swap_b32 v{v}, v{v+1}')
        self.a(f'v_add_f32 v{v}, v{v}, v{v+1}')
        self.inrow_allreduce('v_add_f32', v, [r for r in (8, 4, 2) if r >= lpp])

    def tile_dot(self, npairs, vW, vX, vA, vB, waitp):
        a = self.a
        for p in range(npairs):
            waitp(p)
            w0, w1 = vW + 8 * p, vW + 8 * p + 4
            for e in range(8):
                a(f'v_perm_b32 v{vB+e}, v{w1+(e>>1)}, v{w0+(e>>1)}, {sPHI if e & 1 else sPLO}')
            for e in range(8):
                a(f'v_dot2_f32_bf16 v{vA+e}, v{vB+e}, v{vX+p}, {"0" if p == 0 else f"v{vA+e}"}')
        a('s_nop 2')
        for e in range(4):
            a(f'v_permlane32_swap_b32 v{vA+e}, v{vA+e+4}')
        for e in range(4):
            a(f'v_add_f32 v{vA+e}, v{vA+e}, v{vA+e+4}')
        a('s_nop 0')
        for e in range(2):
            a(f'v_permlane16_swap_b32 v{vA+e}, v{vA+e+2}')
        for e in range(2):
            a(f'v_add_f32 v{vA+e}, v{vA+e}, v{vA+e+2}')
        a('s_nop 0')
        self.dpp('v_add_f32', vA + 4, vA, vA, 'row_ror:8', 0x3)
        a('s_nop 1')
        self.dpp('v_add_f32', vA + 4, vA + 1, vA + 1, 'row_ror:8', 0xc)

    def srd(self, srd, p, nbytes):
        b = int(srd[2:srd.index(':')])
        self.a(f's_mov_b64 s[{b}:{b+1}], s[{p}:{p+1}]')
        self.a(f's_mov_b32 s{b+2}, {hex(nbytes)}')
        self.a(f's_mov_b32 s{b+3}, 0x20000')

    def barrier(self):
        self.a('s_waitcnt lgkmcnt(0)')
        if 'nobar' not in self.exp:
            self.a('s_barrier')

    def slot(self, n):
        return RING0 + 4 * (n % RING)

    def issue(self):
        n = self.n
        if n >= RING:
            old = n - RING
            assert (old < 32 and old < 4 * self.beta) or (old >= 32 and old - 32 < 4 * self.tau), (n, self.beta, self.tau)
        r = self.slot(n)
        off = (n % 32) * 8192
        srd, vo = (SRD_A, self.vK) if n < 32 else (SRD_B, self.vV)
        if off == 0:
            so = '0'
        else:
            self.a(f's_mov_b32 {sOFF}, {hex(off)}')
            so = sOFF
        self.load(f'L{n}', f'buffer_load_dwordx4 v[{r}:{r+3}], v{vo}, {srd}, {so} offen {self.pol}')
        self.stamp(f'_L{n}')
        self.n += 1

    def depth(self, n):
        return [d for f, d in self.Ds if n >= f][-1]

    def step(self):
        k = self.n - self.depth(self.n)
        if k > self.landed:
            self.wait(f'L{k}')
            self.landed = k
        self.issue()

    def steps_to(self, n):
        while self.n < n:
            self.step()

    def qk_batch(self):
        beta = self.beta
        half, t = beta >> 2, beta & 3
        Dr = self.vD
        if self.landed < 4 * beta + 3:
            self.wait(f'L{4*beta+3}')
            self.landed = 4 * beta + 3
        if 'noqk' in self.exp:
            self.beta += 1
            return
        for gam in range(4):
            r = self.slot(4 * beta + gam)
            self.a(f'v_mfma_f32_16x16x32_bf16 v[{Dr+4*gam}:{Dr+4*gam+3}], v[{r}:{r+3}], v[{self.vBq}:{self.vBq+3}], 0')
        self.a('s_nop 7')
        for k in (1, 2, 3):
            for gam in range(4):
                P = self.vP + 4 * half + gam
                d = Dr + 4 * gam
                self.dpp('v_add_f32', P, d + ((t + k) & 3), d + t if k == 1 else P, f'row_ror:{16-4*k}', 1 << t)
        self.beta += 1

    def pv_group(self):
        tau = self.tau
        if 'nopv' in self.exp:
            self.wait(f'L{32+4*tau+3}')
            self.tau += 1
            return
        B = self.vD
        for pair in range(2):
            v0 = self.slot(32 + 4 * tau + 2 * pair)
            v1 = self.slot(32 + 4 * tau + 2 * pair + 1)
            if self.landed < 32 + 4 * tau + 2 * pair + 1:
                self.wait(f'L{32+4*tau+2*pair+1}')
                self.landed = 32 + 4 * tau + 2 * pair + 1
            for e in range(8):
                self.a(f'v_perm_b32 v{B+2*e+pair}, v{v1+(e>>1)}, v{v0+(e>>1)}, {sPHI if e & 1 else sPLO}')
        half, t = tau >> 2, tau & 3
        PA = self.vPA + 2 * half
        for e in range(8):
            ac = self.vAcc + 4 * e
            c = '0' if tau == 0 else f'v[{ac}:{ac+3}]'
            self.a(f'v_mfma_f32_4x4x4_16b_bf16 v[{ac}:{ac+3}], v[{PA}:{PA+1}], v[{B+2*e}:{B+2*e+1}], {c} cbsz:2 abid:{t}')
        self.tau += 1

    def gen(self):
        a = self.a
        self.nw = 11 if (self.warm or self.pref) else 10
        self.L.append(f'; @launch grid=(256,1,1) block=({64*self.nw},1,1) lds={LDS_BYTES}')
        self.L.append('.amdgcn_target "amdgcn-amd-amdhsa--gfx950"')
        self.L.append('.text')
        self.L.append(f'.globl {NAME}')
        self.L.append('.p2align 8')
        self.L.append(f'.type {NAME},@function')
        self.lab(NAME)
        a('s_load_dwordx16 s[4:19], s[0:1], 0')
        a('s_load_dwordx8 s[20:27], s[0:1], 64')
        if self.stamps:
            for i in range(STAMP_BASE, 102, 2):
                a(f's_mov_b64 s[{i}:{i+1}], 0')
            self.stamp('start')
        a('s_cmp_ge_u32 s2, 0x100')
        a('s_cbranch_scc1 L_end')
        a('v_lshrrev_b32 v4, 6, v0')
        a('v_and_b32 v1, 63, v0')
        a(f'v_readfirstlane_b32 {sW}, v4')
        a(f's_and_b32 {sG}, s2, 7')
        a(f's_lshr_b32 {sJ}, s2, 3')
        a(f's_cmp_ge_u32 {sW}, 8')
        a('s_cbranch_scc1 L_helper')
        self.stream_wave()
        self.helpers()
        if self.stamps:
            self.lab('L_exit')
            self.stamp('end')
            a('s_waitcnt lgkmcnt(0)')
            a('v_mov_b32 v4, 0')
            for i in range(len(self.stamp_names)):
                a(f'v_writelane_b32 v4, s{STAMP_BASE+2*i}, {i}')
            a(f's_getreg_b32 {sT1}, hwreg(HW_REG_XCC_ID)')
            a(f'v_writelane_b32 v4, {sT1}, 63')
            a(f's_mul_i32 {sT0}, s2, {self.nw}')
            a(f's_add_u32 {sT0}, {sT0}, {sW}')
            a(f's_lshl_b32 {sT0}, {sT0}, 8')
            a(f's_add_u32 {sT0}, {sT0}, {hex(STAMP)}')
            a(f'v_lshl_add_u32 v5, v1, 2, {sT0}')
            a(f'buffer_store_dword v4, v5, {SRD_WS}, 0 offen')
        else:
            self.lab('L_exit')
        self.lab('L_end')
        self.lab(f'L_pad_{self.npad}')
        a('s_endpgm')
        self.lab('L_codeend')
        self.L += ['.section .rodata,"a"', '.p2align 6', f'.amdhsa_kernel {NAME}',
                   f'  .amdhsa_next_free_vgpr {NVGPR}', '  .amdhsa_next_free_sgpr 102', f'  .amdhsa_accum_offset {NVGPR}',
                   '  .amdhsa_group_segment_fixed_size 0', '  .amdhsa_kernarg_size 96',
                   '  .amdhsa_user_sgpr_count 2', '  .amdhsa_user_sgpr_kernarg_segment_ptr 1',
                   '  .amdhsa_system_sgpr_workgroup_id_x 1',
                   '  .amdhsa_float_denorm_mode_32 3', '.end_amdhsa_kernel']
        return HEADER + '\n'.join(self.L) + '\n'

    def stream_wave(self):
        a = self.a
        CPC = self.CPC
        NCONS = 512 // CPC
        lg = int(math.log2(CPC))
        vLane = 1
        self.landed = -1
        self.vK, self.vV = 2, 3
        vAcc = self.vAcc = 4
        vP = self.vP = 4
        vD = self.vD = 36
        vPA = self.vPA = vBq = self.vBq = 52
        vT = 56
        vA0, vA1, vA2, vA3, vA4, vA5, vTB, vWt = range(64, 72)
        assert RING0 == 72
        self.n = self.beta = self.tau = 0
        self.vm = []

        a(f's_lshl_b32 {sT0}, {sG}, 23')
        a(f's_lshl_b32 {sT1}, {sJ}, 18')
        a(f's_add_u32 {sT0}, {sT0}, {sT1}')
        a(f's_lshl_b32 {sT1}, {sW}, 10')
        a(f's_add_u32 {sT0}, {sT0}, {sT1}')
        a(f'v_bfe_u32 v{vT}, v{vLane}, 2, 2')
        a(f'v_lshlrev_b32 v{vT}, 8, v{vT}')
        a(f'v_and_b32 v{vT+1}, 3, v{vLane}')
        a(f'v_lshl_add_u32 v{vT}, v{vT+1}, 4, v{vT}')
        a(f'v_lshrrev_b32 v{vT+2}, 4, v{vLane}')
        a(f'v_lshlrev_b32 v{vT+2}, 6, v{vT+2}')
        a(f'v_add3_u32 v{self.vK}, v{vT}, v{vT+2}, {sT0}')
        a('s_waitcnt lgkmcnt(0)')
        self.srd(SRD_A, 6, 64 << 20)
        self.steps_to(self.kfirst)
        self.stamp('issued0')
        a(f'v_lshl_add_u32 v{self.vV}, v{vLane}, 4, {sT0}')
        self.srd(SRD_X, 10, 4 << 20)
        a(f's_and_b32 {sT0}, {sJ}, 3')
        a(f's_lshl_b32 {sT0}, {sT0}, 7')
        a(f's_lshl_b32 {sT1}, {sW}, 1')
        a(f's_add_u32 {sT0}, {sT0}, {sT1}')
        a(f'v_lshrrev_b32 v{vT}, 3, v{vLane}')
        a(f'v_lshl_add_u32 v{vT}, v{vT}, 4, {sT0}')
        a(f'v_and_b32 v{vT+1}, 7, v{vLane}')
        a(f'v_lshlrev_b32 v{vT+1}, 4, v{vT+1}')
        a(f's_lshr_b32 {sT2}, {sJ}, 2')
        a(f's_lshl_b32 {sT0}, {sG}, 10')
        a(f's_lshl_b32 {sT1}, {sT2}, 7')
        a(f's_add_u32 {sT0}, {sT0}, {sT1}')
        a(f'v_lshlrev_b32 v{vT+2}, 13, v{vT}')
        a(f'v_add3_u32 v{vT+2}, v{vT+2}, v{vT+1}, {sT0}')
        a(f's_lshl_b32 {sT1}, {sW}, 11')
        a(f's_add_u32 m0, {sT1}, {L_TL}')
        a(f's_movk_i32 {sOFF}, {0x2000 - 1024}')
        self.load('tq0', f'buffer_load_dwordx4 v{vT+2}, {SRD_X}, 0 offen {self.wpol} lds')
        self.load('tq1', f'buffer_load_dwordx4 v{vT+2}, {SRD_X}, {sOFF} offen offset:1024 {self.wpol} lds')
        a(f's_lshl_b32 {sT2}, {sT2}, 3')
        a(f's_add_u32 {sT2}, {sT2}, {sG}')
        a(f's_sub_u32 {sT0}, {sT2}, 28')
        a(f's_cmp_ge_u32 {sT2}, 28')
        a(f's_cselect_b32 {sT2}, {sT0}, {sT2}')
        a('s_cselect_b64 s[40:41], s[18:19], s[16:17]')
        a(f's_mov_b32 s42, {hex(512*3584)}')
        a('s_mov_b32 s43, 0x20000')
        a(f's_lshl_b32 {sT2}, {sT2}, 7')
        a(f's_cmp_ge_u32 {sJ}, 28')
        a(f's_cselect_b32 {sT2}, 0x10000000, {sT2}')
        a(f'v_mul_u32_u24 v{vT+3}, 3584, v{vT}')
        a(f'v_add3_u32 v{vT+3}, v{vT+3}, v{vT+1}, {sT2}')
        a(f's_add_u32 m0, {sT1}, {L_TL + 16384}')
        a(f's_movk_i32 {sOFF}, {3584 - 1024}')
        self.load('tf0', f'buffer_load_dwordx4 v{vT+3}, {SRD_C}, 0 offen {self.wpol} lds')
        self.load('tf1', f'buffer_load_dwordx4 v{vT+3}, {SRD_C}, {sOFF} offen offset:1024 {self.wpol} lds')
        a(f's_load_dword {sTAG}, s[26:27], 0')
        self.srd(SRD_B, 8, 64 << 20)
        self.srd(SRD_WS, 26, 256 << 20)
        self.srd(SRD_OUT, 22, 1024)
        a(f's_mov_b32 {sPLO}, 0x05040100')
        a(f's_mov_b32 {sPHI}, 0x07060302')
        a(f's_mov_b32 {sC}, {hex(f2u(math.log2(math.e) / math.sqrt(128.0)))}')
        a(f's_mov_b32 {sSEL}, 0x07060500')
        a(f's_mov_b32 {sSA}, 0x0c0c0400')
        a(f's_mov_b32 {sSB}, 0x04000c0c')
        self.steps_to(self.nT or self.kfirst + self.depth(self.kfirst))
        self.wait('tf1')
        self.landed = max(self.landed, self.kfirst - 1)
        self.stamp('preT')
        a('s_barrier')
        self.srd(SRD_C, 12, 4 << 20)
        self.steps_to(self.nG)
        a('s_barrier')
        self.steps_to(self.nA)
        a(f'v_lshlrev_b32 v{vT}, 4, v{vLane}')
        self.stamp('preA')
        self.barrier()
        a(f'ds_read_b128 v[{vBq}:{vBq+3}], v{vT} offset:{L_BQ}')
        self.stamp('A')
        self.make_tag()
        a(f'v_and_b32 v{vT+6}, 3, v{vLane}')
        a(f'v_lshlrev_b32 v{vT+5}, 3, v{vT+6}')
        a(f'v_lshrrev_b32 v{vTB}, v{vT+5}, {sTAG}')
        a(f'v_lshlrev_b32 v{vT+6}, 5, v{vT+6}')
        a(f's_lshl_b32 {sT0}, {sW}, 2')
        a(f'v_add_u32 v{vT+7}, {sT0}, v{vT+6}')
        a('s_waitcnt lgkmcnt(0)')
        while self.beta < 8:
            if self.n - RING >= 4 * self.beta:
                self.qk_batch()
            self.step()
            if self.beta < 8 and 4 * self.beta + 3 <= self.landed:
                self.qk_batch()
        self.max8(vT, vP, vT + 1)
        self.inrow_allreduce('v_max_f32', vT, (8, 4))
        self.rows_allreduce('v_max_f32', vT, vT + 1)
        a(f'ds_write_b32 v{vT+7}, v{vT} offset:{L_MB}')
        self.step()
        self.stamp('_preB')
        self.barrier()
        a(f'ds_read_b128 v[{vD}:{vD+3}], v{vT+6} offset:{L_MB}')
        a(f'ds_read_b128 v[{vD+4}:{vD+7}], v{vT+6} offset:{L_MB+16}')
        a('s_waitcnt lgkmcnt(0)')
        self.max8(vT, vD, vT + 1)
        a(f'v_mul_f32 v{vT}, {sC}, v{vT}')
        for i in range(8):
            a(f'v_fma_f32 v{vP+i}, v{vP+i}, {sC}, -v{vT}')
        for i in range(8):
            a(f'v_exp_f32 v{vP+i}, v{vP+i}')
        a('s_nop 0')
        for i in range(4):
            a(f'v_cvt_pk_bf16_f32 v{vPA+i}, v{vP+2*i}, v{vP+2*i+1}')
        self.sum8(vT, vP)
        self.inrow_allreduce('v_add_f32', vT, (8, 4))
        self.rows_allreduce('v_add_f32', vT, vT + 1)
        a(f'ds_write_b32 v{vT+7}, v{vT} offset:{L_LB}')
        self.step()
        self.barrier()
        self.stamp('C')
        self.step()

        a(f'v_lshrrev_b32 v{vT}, 4, v{vLane}')
        a(f'v_mul_u32_u24 v{vT}, 160, v{vT}')
        a(f'v_and_b32 v{vT+1}, 15, v{vLane}')
        a(f'v_lshlrev_b32 v{vT+2}, 3, v{vT+1}')
        a(f's_mul_i32 {sT0}, {sW}, 2560')
        a(f'v_add3_u32 v{vA0}, v{vT}, v{vT+2}, {sT0}')
        a(f'v_lshrrev_b32 v{vT}, 7, v0')
        a(f'v_mul_u32_u24 v{vT}, 640, v{vT}')
        a(f'v_bfe_u32 v{vT+2}, v0, 1, 2')
        a(f'v_mul_u32_u24 v{vT+2}, 160, v{vT+2}')
        a(f'v_bfe_u32 v{vT+3}, v0, 3, 4')
        a(f'v_lshlrev_b32 v{vT+3}, 3, v{vT+3}')
        a(f'v_add3_u32 v{vT}, v{vT}, v{vT+2}, v{vT+3}')
        a(f'v_and_b32 v{vT+2}, 1, v0')
        a(f'v_lshl_add_u32 v{vA1}, v{vT+2}, 2, v{vT}')
        a(f'v_add_u32 v{vA1}, {L_OB}, v{vA1}')
        a(f's_lshl_b32 {sT2}, {sG}, 16')
        a(f's_add_u32 {sT2}, {sT2}, {hex(OBOX)}')
        a(f's_lshl_b32 {sT1}, {sJ}, 6')
        a(f's_add_u32 {sT0}, {sT2}, {sT1}')
        a(f'v_lshrrev_b32 v{vT}, 4, v0')
        a(f'v_lshlrev_b32 v{vWt}, 2, v{vT}')
        a(f'v_lshlrev_b32 v{vT}, 11, v{vT}')
        a(f'v_lshlrev_b32 v{vT+2}, 2, v{vT+1}')
        a(f'v_add3_u32 v{vA2}, v{vT}, v{vT+2}, {sT0}')
        a(f's_lshl_b32 {sT1}, {sJ}, 11')
        a(f's_add_u32 {sT0}, {sT2}, {sT1}')
        a(f'v_lshl_add_u32 v{vA3}, v0, 2, {sT0}')
        a(f'v_lshrrev_b32 v{vT}, {lg}, v0')
        a(f'v_lshlrev_b32 v{vT}, {lg+10}, v{vT}')
        a(f'v_and_b32 v{vT+2}, {CPC-1}, v0')
        a(f'v_lshlrev_b32 v{vT+2}, 2, v{vT+2}')
        a(f's_lshl_b32 {sT0}, s2, {lg+2}')
        a(f's_add_u32 {sT0}, {sT0}, {hex(SBOX)}')
        a(f'v_add3_u32 v{vA4}, v{vT}, v{vT+2}, {sT0}')
        a(f'v_lshlrev_b32 v{vA5}, 1, v0')
        a(f'v_lshlrev_b32 v{vT+6}, 5, v{vT+1}')
        a(f's_lshl_b32 {sT0}, {sW}, 2')
        a(f'v_add_u32 v{vT+7}, {sT0}, v{vT+6}')

        while self.n < 64:
            if self.n - RING - 32 >= 4 * self.tau:
                self.pv_group()
            self.step()
            if self.n == self.nM:
                a('s_barrier')
            if 32 + 4 * self.tau + 3 <= self.landed:
                self.pv_group()
        self.stamp('allissued')
        vW = self.slot(40)
        SG = self.slot(44)
        while self.tau < 4:
            self.pv_group()
        assert vW == RING0 + 64
        a(f's_lshl_b32 {sT0}, {sG}, 19')
        a(f's_lshl_b32 {sT1}, {sJ}, 14')
        a(f's_add_u32 {sT0}, {sT0}, {sT1}')
        for e in range(16):
            if e and e % 4 == 0:
                a(f's_add_u32 {sT0}, {sT0}, 0x1000')
            self.load(f'wo{e}', f'buffer_load_short_d16_hi v{vW+e}, v{vA5}, {SRD_C}, {sT0} offen offset:{(e & 3)*1024} {self.opol}')
        while self.tau < 7:
            self.pv_group()
        if self.warm:
            self.padding = True
            self.pad()
        self.pv_group()
        self.stamp('pvdone')
        if 'notail' in self.exp:
            a('s_branch L_exit')
        a('s_nop 1')
        for e in range(4):
            for h in range(4):
                a(f'v_permlane32_swap_b32 v{vAcc+4*e+h}, v{vAcc+4*(e+4)+h}')
        for e in range(4):
            for h in range(4):
                a(f'v_add_f32 v{vAcc+4*e+h}, v{vAcc+4*e+h}, v{vAcc+4*(e+4)+h}')
        for e in range(2):
            for h in range(4):
                a(f'v_permlane16_swap_b32 v{vAcc+4*e+h}, v{vAcc+4*(e+2)+h}')
        for h in range(4):
            a(f'v_add_f32 v{vD+2*h}, v{vAcc+h}, v{vAcc+8+h}')
            a(f'v_add_f32 v{vD+2*h+1}, v{vAcc+4+h}, v{vAcc+12+h}')
            a(f'ds_write_b64 v{vA0}, v[{vD+2*h}:{vD+2*h+1}] offset:{L_OB+640*h}')
        self.barrier()
        for k in range(4):
            a(f'ds_read2st64_b32 v[{vD+2*k}:{vD+2*k+1}], v{vA1} offset0:{20*k} offset1:{20*k+10}')
        a(f'ds_read_b32 v{vWt}, v{vWt} offset:{L_WB}')
        a('s_waitcnt lgkmcnt(1)')
        self.sum8(vT, vD)
        a(f'v_perm_b32 v{vT}, v{vT}, v{vTB}, {sSEL}')
        a(f'buffer_store_dword v{vT}, v{vA2}, {SRD_WS}, 0 offen sc1')
        self.stamp('opub')

        self.poll([f'buffer_load_dword v{vT+1}, v{vA3}, {SRD_WS}, 0 offen sc1'],
                  lambda: a(f'v_cmp_ne_u32_sdwa vcc, v{vT+1}, v{vTB} src0_sel:BYTE_0 src1_sel:BYTE_0'))
        self.stamp('goto')
        a('s_waitcnt lgkmcnt(0)')
        a(f'v_mul_f32 v{vT+1}, v{vT+1}, v{vWt}')
        self.rows_allreduce('v_add_f32', vT + 1, vT + 2)
        a(f'ds_write_b32 v{vT+7}, v{vT+1} offset:{L_O2}')
        self.barrier()
        a(f'ds_read_b128 v[{vD}:{vD+3}], v{vT+6} offset:{L_O2}')
        a(f'ds_read_b128 v[{vD+4}:{vD+7}], v{vT+6} offset:{L_O2+16}')
        a('s_waitcnt lgkmcnt(0)')
        self.sum8(vT, vD)
        a('s_nop 1')
        for e in range(16):
            op = 'v_mul_f32' if e < 4 else 'v_fmac_f32'
            self.dpp(op, vD + (e & 3), vT, vW + e, f'row_newbcast:{e}')
        a(f'v_add_f32 v{vD}, v{vD}, v{vD+2}')
        a(f'v_add_f32 v{vD+1}, v{vD+1}, v{vD+3}')
        a(f'v_add_f32 v{vT}, v{vD}, v{vD+1}')
        a(f'v_perm_b32 v{vT}, v{vT}, v{vTB}, {sSEL}')
        a(f'buffer_store_dword v{vT}, v{vA4}, {SRD_WS}, 0 offen sc1')
        self.stamp('spub')

        a(f's_cmp_ge_u32 s2, {NCONS}')
        a('s_cbranch_scc1 L_exit')
        nl, lpp = CPC // 8, CPC // 4
        a(f's_lshl_b32 {sT0}, s2, {lg+10}')
        a(f's_add_u32 {sT0}, {sT0}, {hex(SBOX)}')
        a(f'v_lshl_add_u32 v{vA0}, v0, 4, {sT0}')
        sl = []
        for u in range(nl):
            if u:
                sl.append(f's_movk_i32 {sT2}, {hex(u*8192)}')
            sl.append(f'buffer_load_dwordx4 v[{SG+4*u}:{SG+4*u+3}], v{vA0}, {SRD_WS}, {sT2 if u else 0} offen sc1')
        for x in sl:
            a(x)
        a(f'v_mov_b32 v{vA1}, {sTAG}')
        a(f'v_and_b32 v{vT+1}, {lpp-1}, v{vLane}')
        a(f'v_lshlrev_b32 v{vT+1}, 7, v{vT+1}')
        a(f'v_lshrrev_b32 v{vT+2}, 4, v{vLane}')
        a(f'v_lshlrev_b32 v{vT+2}, 5, v{vT+2}')
        a(f's_lshl_b32 {sT0}, {sW}, 2')
        a(f'v_add3_u32 v{vA2}, v{vT+1}, v{vT+2}, {sT0}')
        a(f'v_and_b32 v{vT+1}, {CPC-1}, v{vLane}')
        a(f'v_lshlrev_b32 v{vA3}, 5, v{vT+1}')
        a(f'v_lshlrev_b32 v{vT+2}, 2, v{vT+1}')
        a(f'ds_read_b32 v{vA4}, v{vT+2} offset:{L_GB}')
        a(f'ds_read_b32 v{vA5}, v{vT+2} offset:{L_XB}')
        a(f's_lshl_b32 {sT0}, s2, {lg+1}')
        a(f'v_lshl_add_u32 v{vWt}, v{vT+1}, 1, {sT0}')
        a('s_waitcnt vmcnt(0)')
        self.poll(sl, lambda: self.check_quads([SG + 4 * u for u in range(nl)], vA1, vT + 1, vT + 2, vT + 3), True)
        self.stamp('gots')
        for u in range(1, nl):
            for k in range(4):
                a(f'v_add_f32 v{SG+k}, v{SG+k}, v{SG+4*u+k}')
        self.quad_reduce(SG, lpp)
        a(f'ds_write_b32 v{vA2}, v{SG} offset:{L_S2}')
        self.barrier()
        a(f's_cmp_lg_u32 {sW}, 0')
        a('s_cbranch_scc1 L_exit')
        a(f'ds_read_b128 v[{vD}:{vD+3}], v{vA3} offset:{L_S2}')
        a(f'ds_read_b128 v[{vD+4}:{vD+7}], v{vA3} offset:{L_S2+16}')
        a(f's_mov_b32 exec_lo, {hex((1 << CPC) - 1)}')
        a('s_mov_b32 exec_hi, 0')
        a('s_waitcnt lgkmcnt(0)')
        self.sum8(vT, vD)
        self.bf16r(vT, vT)
        a(f'v_mul_f32 v{vT}, v{vT}, v{vA4}')
        self.bf16r(vT, vT)
        a(f'v_add_f32 v{vT}, v{vT}, v{vA5}')
        a(f'v_cvt_pk_bf16_f32 v{vT}, v{vT}, v{vT}')
        a(f'buffer_store_short v{vT}, v{vWt}, {SRD_OUT}, 0 offen')
        self.padding = False
        a('s_mov_b64 exec, -1')
        a('s_cmp_lg_u32 s2, 0')
        a('s_cbranch_scc1 L_exit')
        a(f'v_mov_b32 v{vT}, 0')
        a('s_mov_b64 exec, 1')
        a(f'buffer_store_dword v{vA1}, v{vT}, {SRD_WS}, 0 offen sc1')
        a('s_mov_b64 exec, -1')
        a('s_branch L_exit')

    def helpers(self):
        a = self.a
        CPC = self.CPC
        NCONS = 512 // CPC
        lg = int(math.log2(CPC))
        vLane = 1
        vT = 4
        vX = 16
        vA = 24
        vB = 32
        vW = 40
        vTag, vTB = 2, 3
        vCol, vTC = 166, 167
        sSTR, sPUB = sPLO, sPHI
        self.lab('L_helper')
        if 'nohelp' in self.exp:
            a('s_endpgm')
        if self.prio:
            a(f's_setprio {self.prio}')
        a('s_waitcnt lgkmcnt(0)')
        self.stamp('_hstart')
        a(f's_load_dword {sTAG}, s[26:27], 0')
        self.srd(SRD_WS, 26, 256 << 20)
        if self.nw > 10:
            a(f's_cmp_eq_u32 {sW}, 10')
            a('s_cbranch_scc1 L_h2')
        self.vm = []
        self.srd(SRD_X, 4, 1024)
        a(f'v_lshlrev_b32 v{vT}, 4, v{vLane}')
        self.load('x16', f'buffer_load_dwordx4 v[{vX}:{vX+3}], v{vT}, {SRD_X}, 0 offen')
        sRB, sCB, sPUB = 's60', 's61', 's3'
        a(f's_and_b32 {sRB}, {sJ}, 3')
        a(f's_lshr_b32 {sCB}, {sJ}, 2')
        a(f's_cmp_eq_u32 {sW}, 8')
        a('s_cbranch_scc0 L_h1_setup')
        a(f's_lshl_b32 {sPUB}, {sG}, 13')
        a(f's_lshl_b32 {sT0}, {sRB}, 11')
        a(f's_add_u32 {sPUB}, {sPUB}, {sT0}')
        a(f's_add_u32 {sPUB}, {sPUB}, {hex(QBOX)}')
        a('s_branch L_tile')
        self.lab('L_h1_setup')
        a(f's_cmp_ge_u32 {sJ}, 28')
        a('s_cbranch_scc1 L_h1_notile')
        a(f's_lshl_b32 {sCB}, {sCB}, 3')
        a(f's_add_u32 {sCB}, {sCB}, {sG}')
        a(f's_sub_u32 {sT0}, {sCB}, 28')
        a(f's_cmp_ge_u32 {sCB}, 28')
        a(f's_cselect_b32 {sCB}, {sT0}, {sCB}')
        a(f's_cselect_b32 {sPUB}, {hex(4*7168)}, 0')
        a(f's_add_u32 {sPUB}, {sPUB}, {hex(HBOX)}')
        a(f's_mul_i32 {sT0}, {sRB}, 7168')
        a(f's_add_u32 {sPUB}, {sPUB}, {sT0}')
        self.lab('L_tile')
        a(f's_lshl_b32 {sT0}, {sCB}, 8')
        a(f's_add_u32 {sPUB}, {sPUB}, {sT0}')
        a(f'v_lshrrev_b32 v{vT+4}, 3, v{vLane}')
        a(f'v_lshlrev_b32 v{vT+1}, 4, v{vT+4}')
        a(f's_lshl_b32 {sT0}, {sRB}, 7')
        a(f'v_add_u32 v{vT+1}, {sT0}, v{vT+1}')
        a(f's_sub_u32 {sT0}, {sW}, 8')
        a(f's_lshl_b32 {sT1}, {sT0}, 14')
        a(f'v_add_u32 v{vT+2}, {sT1}, v{vT}')
        a(f's_lshl_b32 {sT0}, {sT0}, 10')
        a(f'v_add_u32 v{vT}, {sT0}, v{vT}')
        a(f'v_lshl_add_u32 v{vT+1}, v{vT+1}, 1, {sT0}')
        a(f'v_and_b32 v{vT+3}, 7, v{vLane}')
        a(f'v_lshlrev_b32 v{vT+3}, 5, v{vT+3}')
        a(f'v_lshl_add_u32 v{vCol}, v{vT+4}, 2, v{vT+3}')
        a(f'v_add_u32 v{vT+3}, {sPUB}, v{vCol}')
        a(f'v_and_b32 v{vT+4}, 3, v{vT+4}')
        a(f'v_lshlrev_b32 v{vT+4}, 3, v{vT+4}')
        a(f's_mov_b32 {sPLO}, 0x05040100')
        a(f's_mov_b32 {sPHI}, 0x07060302')
        self.wait('x16')
        self.stamp('_x16')
        for k in range(4):
            a(f'v_lshlrev_b32 v{vA+2*k}, 16, v{vX+k}')
            a(f'v_and_b32 v{vA+2*k+1}, 0xffff0000, v{vX+k}')
        m, s2, t = vT + 5, vT + 6, vT + 7
        a(f'v_add_f32 v{m}, v{vA}, v{vA+1}')
        for k in range(2, 8):
            a(f'v_add_f32 v{m}, v{m}, v{vA+k}')
        self.inrow_allreduce('v_add_f32', m, (8, 4, 2, 1))
        self.rows_allreduce('v_add_f32', m, t)
        a(f'v_mul_f32 v{m}, {hex(f2u(1/512.))}, v{m}')
        for k in range(8):
            a(f'v_sub_f32 v{vB+k}, v{vA+k}, v{m}')
        a(f'v_mul_f32 v{s2}, v{vB}, v{vB}')
        for k in range(1, 8):
            a(f'v_fmac_f32 v{s2}, v{vB+k}, v{vB+k}')
        self.inrow_allreduce('v_add_f32', s2, (8, 4, 2, 1))
        self.rows_allreduce('v_add_f32', s2, t)
        a(f'v_mul_f32 v{s2}, {hex(f2u(1/512.))}, v{s2}')
        self.bf16r(m, m)
        self.bf16r(s2, s2)
        a(f'v_add_f32 v{s2}, {hex(f2u(1e-5))}, v{s2}')
        self.bf16r(s2, s2)
        a(f'v_sqrt_f32 v{s2}, v{s2}')
        for k in range(8):
            a(f'v_sub_f32 v{vA+k}, v{vA+k}, v{m}')
        self.bf16r(s2, s2)
        a(f'v_rcp_f32 v{s2}, v{s2}')
        for k in range(4):
            a(f'v_cvt_pk_bf16_f32 v{vX+k}, v{vA+2*k}, v{vA+2*k+1}')
        for k in range(4):
            a(f'v_lshlrev_b32 v{vA+2*k}, 16, v{vX+k}')
            a(f'v_and_b32 v{vA+2*k+1}, 0xffff0000, v{vX+k}')
        for k in range(8):
            a(f'v_mul_f32 v{vA+k}, v{vA+k}, v{s2}')
        for k in range(4):
            a(f'v_cvt_pk_bf16_f32 v{vX+k}, v{vA+2*k}, v{vA+2*k+1}')
        a(f'ds_write_b128 v{vT}, v[{vX}:{vX+3}] offset:{L_XN}')
        a('s_waitcnt lgkmcnt(0)')
        a(f'ds_read_b128 v[{vX}:{vX+3}], v{vT+1} offset:{L_XN}')
        a(f'ds_read_b128 v[{vX+4}:{vX+7}], v{vT+1} offset:{L_XN+16}')
        self.make_tag()
        a(f'v_lshrrev_b32 v{vTC}, v{vT+4}, {sTAG}')
        a(f's_mov_b32 {sSEL}, 0x07060500')
        self.stamp('_ln')
        self.barrier()
        for u in range(16):
            a(f'ds_read_b128 v[{vW+4*u}:{vW+4*u+3}], v{vT+2} offset:{L_TL+1024*u}')
        self.tile_dot(8, vW, vX, vA, vB, lambda p: a(f's_waitcnt lgkmcnt({min(15, 14-2*p)})'))
        a(f'v_perm_b32 v{vA+4}, v{vA+4}, v{vTC}, {sSEL}')
        if 'h_tileonly' in self.exp:
            a('s_branch L_exit')
        a(f'buffer_store_dword v{vA+4}, v{vT+3}, {SRD_WS}, 0 offen sc1')
        self.stamp('tilepub')
        if 'h_pubonly' in self.exp:
            a('s_branch L_exit')
        a(f's_cmp_eq_u32 {sW}, 8')
        a('s_cbranch_scc0 L_h1')

        a(f's_mov_b32 {sSA}, 0x0c0c0400')
        a(f's_mov_b32 {sSB}, 0x04000c0c')
        a(f'v_mov_b32 v{vTag}, {sTAG}')
        a(f's_lshl_b32 {sT0}, {sG}, 13')
        a(f's_add_u32 {sT0}, {sT0}, {hex(QBOX)}')
        a(f'v_lshrrev_b32 v{vT}, 5, v{vLane}')
        a(f'v_and_b32 v{vT+1}, 31, v{vLane}')
        a(f'v_lshlrev_b32 v{vT+2}, 11, v{vT}')
        a(f'v_lshlrev_b32 v{vT+3}, 4, v{vT+1}')
        a(f'v_add3_u32 v{vT+2}, v{vT+2}, v{vT+3}, {sT0}')
        a(f's_movk_i32 {sT2}, 0x1000')
        a(f'v_lshrrev_b32 v{vT+1}, 1, v{vT+1}')
        a(f'v_lshlrev_b32 v{vT+1}, 6, v{vT+1}')
        a(f'v_and_b32 v{vT+3}, 1, v{vLane}')
        a(f'v_lshlrev_b32 v{vT+3}, 3, v{vT+3}')
        a(f'v_lshl_add_u32 v{vT+1}, v{vT}, 2, v{vT+1}')
        a(f'v_add_u32 v{vT+1}, v{vT+1}, v{vT+3}')
        ql = [f'buffer_load_dwordx4 v[{vW+8*h+4*b}:{vW+8*h+4*b+3}], v{vT+2}, {SRD_WS}, {sT2 if b else 0} offen offset:{512*h} sc1'
              for h in range(4) for b in range(2)]
        a('s_barrier')
        self.poll(ql, lambda: self.check_quads([vW + 4 * i for i in range(8)], vTag, vT + 4, vT + 5, vT + 6))
        self.stamp('gotq')
        for h in range(4):
            for k in range(4):
                a(f'v_add_f32 v{vW+8*h+k}, v{vW+8*h+k}, v{vW+8*h+4+k}')
        for h in range(4):
            a(f'v_permlane32_swap_b32 v{vW+8*h}, v{vW+8*h+2}')
            a(f'v_permlane32_swap_b32 v{vW+8*h+1}, v{vW+8*h+3}')
        for h in range(4):
            a(f'v_add_f32 v{vW+8*h}, v{vW+8*h}, v{vW+8*h+2}')
            a(f'v_add_f32 v{vW+8*h+1}, v{vW+8*h+1}, v{vW+8*h+3}')
            a(f'v_cvt_pk_bf16_f32 v{vW+8*h}, v{vW+8*h}, v{vW+8*h+1}')
            a(f'ds_write_b32 v{vT+1}, v{vW+8*h} offset:{L_BQ+16*h}')
        self.barrier()
        if 'h_noml' in self.exp:
            a('s_branch L_exit')
        a(f'v_and_b32 v{vT}, 3, v{vLane}')
        a(f'v_lshlrev_b32 v{vT}, 5, v{vT}')
        a(f's_lshl_b32 {sT2}, {sG}, 11')
        a(f's_add_u32 {sT2}, {sT2}, {hex(MLBOX)}')
        a(f's_lshl_b32 {sT1}, {sJ}, 4')
        a(f's_add_u32 {sT0}, {sT2}, {sT1}')
        a(f'v_lshl_add_u32 v{vT+1}, v{vT}, 4, {sT0}')
        a(f's_lshr_b32 {sT1}, {sJ}, 3')
        a(f's_lshl_b32 {sT1}, {sT1}, 9')
        a(f's_add_u32 {sT0}, {sT2}, {sT1}')
        a(f'v_and_b32 v{vT+2}, 31, v{vLane}')
        a(f'v_lshlrev_b32 v{vT+3}, 2, v{vT+2}')
        a(f'v_lshl_add_u32 v{vT+2}, v{vT+2}, 4, {sT0}')
        a(f'v_mov_b32 v{vX+2}, {sTAG}')
        a(f'v_mov_b32 v{vX+3}, {sTAG}')
        a(f's_mov_b32 {sC}, {hex(f2u(math.log2(math.e) / math.sqrt(128.0)))}')
        a('s_barrier')
        a(f'ds_read_b128 v[{vA}:{vA+3}], v{vT} offset:{L_MB}')
        a(f'ds_read_b128 v[{vA+4}:{vA+7}], v{vT} offset:{L_MB+16}')
        a('s_waitcnt lgkmcnt(0)')
        self.max8(vX, vA, vT + 4)
        a('s_barrier')
        a(f'ds_read_b128 v[{vA}:{vA+3}], v{vT} offset:{L_LB}')
        a(f'ds_read_b128 v[{vA+4}:{vA+7}], v{vT} offset:{L_LB+16}')
        a('s_waitcnt lgkmcnt(0)')
        self.sum8(vX + 1, vA)
        if 'ml_nopub' in self.exp:
            a('s_branch L_exit')
        a('s_mov_b64 exec, 0xf')
        a(f'buffer_store_dwordx4 v[{vX}:{vX+3}], v{vT+1}, {SRD_WS}, 0 offen sc1')
        a('s_mov_b64 exec, -1')
        if 'ml_pubonly' in self.exp:
            a('s_branch L_exit')
        a('s_barrier')

        def chk_ml():
            a(f'v_xor_b32 v{vT+4}, {sTAG}, v{vB+2}')
            a(f'v_xor_b32 v{vT+5}, {sTAG}, v{vB+3}')
            a(f'v_or_b32 v{vT+4}, v{vT+4}, v{vT+5}')
            a(f'v_cmp_ne_u32 vcc, 0, v{vT+4}')
        self.poll([f'buffer_load_dwordx4 v[{vB}:{vB+3}], v{vT+2}, {SRD_WS}, 0 offen sc1'], chk_ml, sleep=4)
        mx, y, t = vT + 4, vT + 5, vT + 6
        a(f'v_mov_b32 v{mx}, v{vB}')
        self.inrow_allreduce('v_max_f32', mx, (8, 4, 2, 1))
        self.rows_allreduce('v_max_f32', mx, t, do32=False)
        a(f'v_sub_f32 v{mx}, v{vB}, v{mx}')
        a(f'v_mul_f32 v{mx}, {sC}, v{mx}')
        a(f'v_exp_f32 v{mx}, v{mx}')
        a('s_nop 0')
        a(f'v_mul_f32 v{y}, v{mx}, v{vB+1}')
        self.inrow_allreduce('v_add_f32', y, (8, 4, 2, 1))
        self.rows_allreduce('v_add_f32', y, t, do32=False)
        a(f'v_rcp_f32 v{y}, v{y}')
        a('s_nop 0')
        a(f'v_mul_f32 v{mx}, v{mx}, v{y}')
        a(f'ds_write_b32 v{vT+3}, v{mx} offset:{L_WB}')
        self.stamp('mlw')
        a('s_waitcnt lgkmcnt(0)')
        a('s_branch L_exit')

        self.lab('L_h1_notile')
        a('s_waitcnt vmcnt(0) lgkmcnt(0)')
        a('s_branch L_exit')
        self.lab('L_h1')
        if 'h_nof' in self.exp:
            a('s_branch L_exit')
        self.srd(SRD_B, 20, 1792 * 1024)
        sFI, sRD, sCD = 's8', 's9', 's10'
        a(f's_mul_i32 {sFI}, {sG}, 28')
        a(f's_add_u32 {sFI}, {sFI}, {sJ}')
        a(f's_lshr_b32 {sRD}, {sFI}, 3')
        a(f's_and_b32 {sCD}, {sFI}, 7')
        a(f's_lshl_b32 {sT0}, {sRD}, 16')
        a(f's_lshl_b32 {sT1}, {sCD}, 7')
        a(f's_add_u32 {sT0}, {sT0}, {sT1}')
        a(f'v_lshrrev_b32 v{vT+2}, 3, v{vLane}')
        a(f'v_lshlrev_b32 v{vT}, 13, v{vT+2}')
        a(f'v_lshlrev_b32 v{vT+2}, 4, v{vT+2}')
        a(f'v_and_b32 v{vT+1}, 7, v{vLane}')
        a(f'v_lshlrev_b32 v{vT+1}, 4, v{vT+1}')
        a(f'v_add3_u32 v{vT}, v{vT}, v{vT+1}, {sT0}')
        a(f's_movk_i32 {sT2}, 0x1000')
        a('s_barrier')
        for e in range(8):
            a(f'buffer_load_dwordx4 v[{vW+4*e}:{vW+4*e+3}], v{vT}, {SRD_B}, {sT2 if e >= 4 else 0} offen offset:{(e & 3)*1024} {self.wpol}')
        a(f's_lshl_b32 {sT0}, {sRD}, 8')
        a(f's_add_u32 {sT0}, {sT0}, {hex(HBOX)}')
        a(f'v_lshl_add_u32 v{vT+1}, v{vLane}, 2, {sT0}')
        a(f'v_and_b32 v{vT+3}, 3, v{vLane}')
        a(f'v_lshlrev_b32 v{vT+3}, 3, v{vT+3}')
        a(f'v_lshrrev_b32 v{vTB}, v{vT+3}, {sTAG}')
        a(f'v_lshlrev_b32 v{vT+3}, 1, v{vLane}')
        a(f's_lshl_b32 {sT0}, {sCD}, 13')
        a(f's_lshl_b32 {sT1}, {sRD}, 8')
        a(f's_add_u32 {sT0}, {sT0}, {sT1}')
        a(f's_add_u32 {sT0}, {sT0}, {hex(FBOX)}')
        a(f'v_add_u32 v{vCol}, {sT0}, v{vCol}')
        a('s_barrier')
        hl = []
        for k in range(8):
            if k:
                hl.append(f's_movk_i32 {sT2}, {k*7168 - (0 if k < 4 else 0x7000)}')
            if k == 4:
                hl.append(f'v_add_u32 v{vT+4}, 0x7000, v{vT+1}')
            hl.append(f'buffer_load_dword v{vB+k}, v{vT+1 if k < 4 else vT+4}, {SRD_WS}, {sT2 if k else 0} offen sc1')

        def chk_h():
            a(f'v_xor_b32 v{vT+4}, v{vB}, v{vTB}')
            for k in range(1, 8):
                a(f'v_bitop3_b32 v{vT+4}, v{vB+k}, v{vTB}, v{vT+4} bitop3:0xbe')
            a(f'v_and_b32 v{vT+4}, 0xff, v{vT+4}')
            a(f'v_cmp_ne_u32 vcc, 0, v{vT+4}')
        self.poll(hl, chk_h, sleep=0)
        for b in (vB, vB + 4):
            a(f'v_add_f32 v{b}, v{b}, v{b+1}')
            a(f'v_add_f32 v{b+2}, v{b+2}, v{b+3}')
            a(f'v_add_f32 v{b}, v{b}, v{b+2}')
            self.bf16r(b, b)
        self.silu_bf16(vB + 1, vB, vB + 2)
        a(f'v_mul_f32 v{vB+1}, v{vB+1}, v{vB+4}')
        a(f'v_cvt_pk_bf16_f32 v{vB+1}, v{vB+1}, v{vB+1}')
        a(f'ds_write_b16 v{vT+3}, v{vB+1} offset:{L_HB}')
        a('s_waitcnt lgkmcnt(0)')
        a(f'ds_read_b128 v[{vX}:{vX+3}], v{vT+2} offset:{L_HB}')
        a('s_waitcnt lgkmcnt(0)')
        self.tile_dot(4, vW, vX, vA, vB, lambda p: None)
        a(f'v_perm_b32 v{vA+4}, v{vA+4}, v{vTC}, {sSEL}')
        a(f'buffer_store_dword v{vA+4}, v{vCol}, {SRD_WS}, 0 offen sc1')
        self.stamp('fpub')
        if 'h_nofg' in self.exp:
            a('s_branch L_exit')
        a(f's_cmp_ge_u32 s2, {NCONS}')
        a('s_cbranch_scc1 L_exit')
        lpp = CPC // 4
        ppl = 64 // lpp
        nl = -(-28 // ppl)
        last = (28 - (nl - 1) * ppl) * lpp
        a(f'v_mov_b32 v{vTag}, {sTAG}')
        a(f's_mov_b32 {sSA}, 0x0c0c0400')
        a(f's_mov_b32 {sSB}, 0x04000c0c')
        a(f's_lshr_b32 {sT0}, s2, {6-lg}')
        a(f's_lshl_b32 {sT0}, {sT0}, 13')
        a(f's_and_b32 {sT1}, s2, {64//CPC - 1}')
        a(f's_lshl_b32 {sT1}, {sT1}, {lg+2}')
        a(f's_add_u32 {sT0}, {sT0}, {sT1}')
        a(f's_add_u32 {sT0}, {sT0}, {hex(FBOX)}')
        a(f'v_and_b32 v{vT+1}, {lpp-1}, v{vLane}')
        a(f'v_lshlrev_b32 v{vT+2}, 4, v{vT+1}')
        a(f'v_lshrrev_b32 v{vT}, {lg-2}, v{vLane}')
        a(f'v_lshlrev_b32 v{vT}, 8, v{vT}')
        a(f'v_add3_u32 v{vT}, v{vT}, v{vT+2}, {sT0}')
        a(f'v_lshrrev_b32 v{vT+2}, 4, v{vLane}')
        a(f'v_lshl_add_u32 v{vT+1}, v{vT+1}, 2, v{vT+2}')
        a(f's_lshl_b32 {sT0}, s2, {lg+1}')
        a(f'v_lshl_add_u32 v{vT+2}, v{vT+1}, 1, {sT0}')
        a(f'v_lshlrev_b32 v{vT+1}, 2, v{vT+1}')
        a(f'buffer_load_short_d16_hi v{vT+3}, v{vT+2}, {SRD_X}, 0 offen')
        for k in range(4):
            a(f'v_bfe_u32 v{vW+4*(nl-1)+k}, v{vTag}, {8*k}, 8')
        a('s_barrier')
        a('s_barrier')
        a('s_barrier')
        fl = []
        for u in range(nl):
            off = u * ppl * 256
            if u == nl - 1 and last < 64:
                fl.append(f's_mov_b32 exec_lo, {hex(((1 << last) - 1) & 0xffffffff)}')
                fl.append(f's_mov_b32 exec_hi, {hex(((1 << last) - 1) >> 32)}')
            if off >= 4096:
                fl.append(f's_movk_i32 {sT2}, {hex(off & ~4095)}')
            fl.append(f'buffer_load_dwordx4 v[{vW+4*u}:{vW+4*u+3}], v{vT}, {SRD_WS}, {sT2 if off >= 4096 else 0} offen offset:{off & 4095} sc1')
        fl.append('s_mov_b64 exec, -1')
        self.poll(fl, lambda: self.check_quads([vW + 4 * u for u in range(nl)], vTag, vT + 4, vT + 5, vT + 6), sleep=0)
        for u in range(1, nl):
            for k in range(4):
                a(f'v_add_f32 v{vW+k}, v{vW+k}, v{vW+4*u+k}')
        self.quad_reduce(vW, lpp)
        self.bf16r(vW, vW)
        self.silu_bf16(vT + 4, vW, vT + 5)
        a(f'ds_write_b32 v{vT+1}, v{vT+4} offset:{L_GB}')
        a(f'ds_write_b32 v{vT+1}, v{vT+3} offset:{L_XB}')
        a('s_waitcnt lgkmcnt(0)')
        a('s_branch L_exit')

        if self.nw == 10:
            return
        self.lab('L_h2')
        if self.pref:
            a('s_getpc_b64 s[28:29]')
            self.lab('L_pc')
            a(f's_sub_u32 s28, s28, L_pc-{NAME}')
            a('s_subb_u32 s29, s29, 0')
            a(f's_mov_b32 s30, L_codeend-{NAME}')
            a('s_mov_b32 s31, 0x20000')
            a(f'v_lshlrev_b32 v{vT}, 4, v{vLane}')
            a(f's_mov_b32 {sOFF}, 0')
            self.lab('L_pf')
            a(f'buffer_load_dwordx4 v[{vW}:{vW+3}], v{vT}, {SRD_A}, {sOFF} offen')
            a(f's_add_u32 {sOFF}, {sOFF}, 0x400')
            a(f's_cmp_lt_u32 {sOFF}, s30')
            a('s_cbranch_scc1 L_pf')
        if self.warm:
            for b in 'TGABC':
                a('s_barrier')
            a('s_waitcnt vmcnt(0) lgkmcnt(0)')
            a('s_mov_b64 exec, 0')
            a('s_branch L_pad_0')
        else:
            a('s_waitcnt vmcnt(0) lgkmcnt(0)')
            a('s_branch L_end')


def gen(**kw):
    g = G(**kw)
    s = g.gen()
    return s, g.stamp_names


if __name__ == '__main__':
    kw = eval('dict(' + (sys.argv[2] if len(sys.argv) > 2 else '') + ')')
    s, _ = gen(**kw)
    open(sys.argv[1], 'w').write(s)
```

```python
import math, struct, sys

NAME = 'recurrent_scan__gqa_block_cached__swiglu_ffn__decode_kernel'

HEADER = """; Kernarg layout for this problem (96 bytes, ptrs only, base s[0:1]):
"""


def f2u(x):
    return struct.unpack('<I', struct.pack('<f', x))[0]


QBOX  = 0x010000
HBOX  = 0x020000
MLBOX = 0x030000
OBOX  = 0x100000
FBOX  = 0x040000
SBOX  = 0x300000
STAMP = 0x800000

L_BQ = 0
L_XN = 1024
L_MB = 3072
L_LB = 3200
L_WB = 3328
L_GB = 3456
L_XB = 3584
L_O2 = 3712
L_S2 = 4224
L_HB = 5248
L_OB = 5376
L_TL = 5376
LDS_BYTES = L_TL + 2 * 16384

SRD_A, SRD_B, SRD_X, SRD_C, SRD_OUT, SRD_WS = [f's[{b}:{b+3}]' for b in range(28, 52, 4)]
sG, sJ, sW, sTAG, sOFF, sT0, sT1, sT2, sPLO, sPHI, sC, sCNT = [f's{i}' for i in range(52, 64)]
sL2E, sSEL, sSA, sSB = 's3', 's64', 's65', 's66'
STAMP_BASE = 68
NVGPR = 168
RING = 24
RING0 = NVGPR - 4 * RING


class G:
    def __init__(self, Ds=((0, 4),), pol='nt', wpol='nt', opol='nt', CPC=32, stamps=False, nA=24, nG=15, nM=54, nT=None,
                 spin=200000, padk=7, warm=True, pref=False, prio=3, kfirst=4, exp=()):
        self.__dict__.update(locals())
        self.L = []
        self.vm = []
        self.nlab = 0
        self.stamp_names = []
        self.padding = False
        self.npad = 0
        self.since_pad = 0

    def a(self, s):
        self.L.append('    ' + s)
        if self.padding:
            self.since_pad += 1
            if self.since_pad >= self.padk:
                self.pad()

    def pad(self):
        self.L.append(f'L_pad_{self.npad}:')
        self.L.append(f'    s_cbranch_execz L_pad_{self.npad+1}')
        self.npad += 1
        self.since_pad = 0

    def lab(self, s):
        self.L.append(s + ':')

    def newlab(self, p):
        self.nlab += 1
        return f'L_{p}_{self.nlab}'

    def load(self, name, text):
        self.a(text)
        self.vm.append(name)

    def wait(self, name):
        n = len(self.vm) - 1 - self.vm.index(name)
        assert n <= 63
        self.a(f's_waitcnt vmcnt({n})')

    def stamp(self, name):
        if not self.stamps:
            return
        if self.stamps is True:
            if name.startswith('_'):
                return
        elif name not in self.stamps and name not in ('start', 'end'):
            return
        i = len(self.stamp_names)
        assert STAMP_BASE + 2 * i + 1 <= 101
        self.a(f's_memrealtime s[{STAMP_BASE+2*i}:{STAMP_BASE+2*i+1}]')
        self.stamp_names.append(name)

    def dpp(self, op, d, s0, s1, ctl, bank=0xf):
        self.a(f'{op}_dpp v{d}, v{s0}, v{s1} {ctl} row_mask:0xf bank_mask:{hex(bank)}')

    def rows_allreduce(self, op, v, t, do16=True, do32=True):
        if do16:
            self.a(f'v_mov_b32 v{t}, v{v}')
            self.a('s_nop 1')
            self.a(f'v_permlane16_swap_b32 v{v}, v{t}')
            self.a(f'{op} v{v}, v{v}, v{t}')
        if do32:
            self.a(f'v_mov_b32 v{t}, v{v}')
            self.a('s_nop 1')
            self.a(f'v_permlane32_swap_b32 v{v}, v{t}')
            self.a(f'{op} v{v}, v{v}, v{t}')

    def inrow_allreduce(self, op, v, rots):
        for r in rots:
            self.a('s_nop 1')
            self.dpp(op, v, v, v, f'row_ror:{r}')

    def bf16r(self, d, s):
        self.a(f'v_cvt_pk_bf16_f32 v{d}, v{s}, v{s}')
        self.a(f'v_and_b32 v{d}, 0xffff0000, v{d}')

    def sum8(self, d, b):
        for k in range(4):
            self.a(f'v_add_f32 v{b+k}, v{b+k}, v{b+4+k}')
        self.a(f'v_add_f32 v{b}, v{b}, v{b+2}')
        self.a(f'v_add_f32 v{b+1}, v{b+1}, v{b+3}')
        self.a(f'v_add_f32 v{d}, v{b}, v{b+1}')

    def max8(self, d, b, t):
        self.a(f'v_max3_f32 v{d}, v{b}, v{b+1}, v{b+2}')
        self.a(f'v_max3_f32 v{t}, v{b+3}, v{b+4}, v{b+5}')
        self.a(f'v_max3_f32 v{d}, v{d}, v{b+6}, v{b+7}')
        self.a(f'v_max_f32 v{d}, v{d}, v{t}')

    def silu_bf16(self, d, x, t):
        self.a(f'v_mul_f32 v{t}, {hex(f2u(math.log2(math.e)))}, v{x}')
        self.a(f'v_exp_f32 v{t}, -v{t}')
        self.a('s_nop 0')
        self.a(f'v_add_f32 v{t}, 1.0, v{t}')
        self.a(f'v_rcp_f32 v{t}, v{t}')
        self.a('s_nop 0')
        self.a(f'v_mul_f32 v{t}, v{x}, v{t}')
        self.bf16r(d, t)

    def make_tag(self):
        self.a(f's_and_b32 {sT0}, {sTAG}, 0x7f7f7f7f')
        self.a(f's_add_u32 {sT0}, {sT0}, 0x47611b35')
        self.a(f's_and_b32 {sTAG}, {sTAG}, 0x80808080')
        self.a(f's_xor_b32 {sTAG}, {sTAG}, {sT0}')

    def check_quads(self, quads, vtag, t0, t1, t2):
        for i, q in enumerate(quads):
            self.a(f'v_perm_b32 v{t0}, v{q+1}, v{q}, {sSA}')
            self.a(f'v_perm_b32 v{t1}, v{q+3}, v{q+2}, {sSB}')
            if i == 0:
                self.a(f'v_bitop3_b32 v{t2}, v{t0}, v{t1}, v{vtag} bitop3:0x56')
            else:
                self.a(f'v_bitop3_b32 v{t0}, v{t0}, v{t1}, v{vtag} bitop3:0x56')
                self.a(f'v_or_b32 v{t2}, v{t2}, v{t0}')
        self.a(f'v_cmp_ne_u32 vcc, 0, v{t2}')

    def poll(self, loads, check, first_issued=False, sleep=0):
        again, done = self.newlab('again'), self.newlab('done')
        self.a(f's_mov_b32 {sCNT}, {self.spin}')
        if first_issued:
            check()
            self.a(f's_cbranch_vccz {done}')
        self.lab(again)
        if sleep:
            self.a(f's_sleep {sleep}')
        for x in loads:
            self.a(x)
        self.a(f's_sub_u32 {sCNT}, {sCNT}, 1')
        self.a('s_waitcnt vmcnt(0)')
        self.a(f's_cbranch_scc1 {done}')
        check()
        self.a(f's_cbranch_vccnz {again}')
        self.lab(done)

    def quad_reduce(self, v, lpp):
        self.a('s_nop 1')
        self.a(f'v_permlane32_swap_b32 v{v}, v{v+2}')
        self.a(f'v_permlane32_swap_b32 v{v+1}, v{v+3}')
        self.a(f'v_add_f32 v{v}, v{v}, v{v+2}')
        self.a(f'v_add_f32 v{v+1}, v{v+1}, v{v+3}')
        self.a('s_nop 1')
        self.a(f'v_permlane16_swap_b32 v{v}, v{v+1}')
        self.a(f'v_add_f32 v{v}, v{v}, v{v+1}')
        self.inrow_allreduce('v_add_f32', v, [r for r in (8, 4, 2) if r >= lpp])

    def tile_dot(self, npairs, vW, vX, vA, vB, waitp):
        a = self.a
        for p in range(npairs):
            waitp(p)
            w0, w1 = vW + 8 * p, vW + 8 * p + 4
            for e in range(8):
                a(f'v_perm_b32 v{vB+e}, v{w1+(e>>1)}, v{w0+(e>>1)}, {sPHI if e & 1 else sPLO}')
            for e in range(8):
                a(f'v_dot2_f32_bf16 v{vA+e}, v{vB+e}, v{vX+p}, {"0" if p == 0 else f"v{vA+e}"}')
        a('s_nop 2')
        for e in range(4):
            a(f'v_permlane32_swap_b32 v{vA+e}, v{vA+e+4}')
        for e in range(4):
            a(f'v_add_f32 v{vA+e}, v{vA+e}, v{vA+e+4}')
        a('s_nop 0')
        for e in range(2):
            a(f'v_permlane16_swap_b32 v{vA+e}, v{vA+e+2}')
        for e in range(2):
            a(f'v_add_f32 v{vA+e}, v{vA+e}, v{vA+e+2}')
        a('s_nop 0')
        self.dpp('v_add_f32', vA + 4, vA, vA, 'row_ror:8', 0x3)
        a('s_nop 1')
        self.dpp('v_add_f32', vA + 4, vA + 1, vA + 1, 'row_ror:8', 0xc)

    def srd(self, srd, p, nbytes):
        b = int(srd[2:srd.index(':')])
        self.a(f's_mov_b64 s[{b}:{b+1}], s[{p}:{p+1}]')
        self.a(f's_mov_b32 s{b+2}, {hex(nbytes)}')
        self.a(f's_mov_b32 s{b+3}, 0x20000')

    def barrier(self):
        self.a('s_waitcnt lgkmcnt(0)')
        if 'nobar' not in self.exp:
            self.a('s_barrier')

    def slot(self, n):
        return RING0 + 4 * (n % RING)

    def issue(self):
        n = self.n
        if n >= RING:
            old = n - RING
            assert (old < 32 and old < 4 * self.beta) or (old >= 32 and old - 32 < 4 * self.tau), (n, self.beta, self.tau)
        r = self.slot(n)
        off = (n % 32) * 8192
        srd, vo = (SRD_A, self.vK) if n < 32 else (SRD_B, self.vV)
        if off == 0:
            so = '0'
        else:
            self.a(f's_mov_b32 {sOFF}, {hex(off)}')
            so = sOFF
        self.load(f'L{n}', f'buffer_load_dwordx4 v[{r}:{r+3}], v{vo}, {srd}, {so} offen {self.pol}')
        self.stamp(f'_L{n}')
        self.n += 1

    def depth(self, n):
        return [d for f, d in self.Ds if n >= f][-1]

    def step(self):
        k = self.n - self.depth(self.n)
        if k > self.landed:
            self.wait(f'L{k}')
            self.landed = k
        self.issue()

    def steps_to(self, n):
        while self.n < n:
            self.step()

    def qk_batch(self):
        beta = self.beta
        half, t = beta >> 2, beta & 3
        Dr = self.vD
        if self.landed < 4 * beta + 3:
            self.wait(f'L{4*beta+3}')
            self.landed = 4 * beta + 3
        if 'noqk' in self.exp:
            self.beta += 1
            return
        for gam in range(4):
            r = self.slot(4 * beta + gam)
            self.a(f'v_mfma_f32_16x16x32_bf16 v[{Dr+4*gam}:{Dr+4*gam+3}], v[{r}:{r+3}], v[{self.vBq}:{self.vBq+3}], 0')
        self.a('s_nop 7')
        for k in (1, 2, 3):
            for gam in range(4):
                P = self.vP + 4 * half + gam
                d = Dr + 4 * gam
                self.dpp('v_add_f32', P, d + ((t + k) & 3), d + t if k == 1 else P, f'row_ror:{16-4*k}', 1 << t)
        self.beta += 1

    def pv_group(self):
        tau = self.tau
        if 'nopv' in self.exp:
            self.wait(f'L{32+4*tau+3}')
            self.tau += 1
            return
        B = self.vD
        for pair in range(2):
            v0 = self.slot(32 + 4 * tau + 2 * pair)
            v1 = self.slot(32 + 4 * tau + 2 * pair + 1)
            if self.landed < 32 + 4 * tau + 2 * pair + 1:
                self.wait(f'L{32+4*tau+2*pair+1}')
                self.landed = 32 + 4 * tau + 2 * pair + 1
            for e in range(8):
                self.a(f'v_perm_b32 v{B+2*e+pair}, v{v1+(e>>1)}, v{v0+(e>>1)}, {sPHI if e & 1 else sPLO}')
        half, t = tau >> 2, tau & 3
        PA = self.vPA + 2 * half
        for e in range(8):
            ac = self.vAcc + 4 * e
            c = '0' if tau == 0 else f'v[{ac}:{ac+3}]'
            self.a(f'v_mfma_f32_4x4x4_16b_bf16 v[{ac}:{ac+3}], v[{PA}:{PA+1}], v[{B+2*e}:{B+2*e+1}], {c} cbsz:2 abid:{t}')
        self.tau += 1

    def gen(self):
        a = self.a
        self.nw = 11 if (self.warm or self.pref) else 10
        self.L.append(f'; @launch grid=(256,1,1) block=({64*self.nw},1,1) lds={LDS_BYTES}')
        self.L.append('.amdgcn_target "amdgcn-amd-amdhsa--gfx950"')
        self.L.append('.text')
        self.L.append(f'.globl {NAME}')
        self.L.append('.p2align 8')
        self.L.append(f'.type {NAME},@function')
        self.lab(NAME)
        a('s_load_dwordx16 s[4:19], s[0:1], 0')
        a('s_load_dwordx8 s[20:27], s[0:1], 64')
        if self.stamps:
            for i in range(STAMP_BASE, 102, 2):
                a(f's_mov_b64 s[{i}:{i+1}], 0')
            self.stamp('start')
        a('s_cmp_ge_u32 s2, 0x100')
        a('s_cbranch_scc1 L_end')
        a('v_lshrrev_b32 v4, 6, v0')
        a('v_and_b32 v1, 63, v0')
        a(f'v_readfirstlane_b32 {sW}, v4')
        a(f's_and_b32 {sG}, s2, 7')
        a(f's_lshr_b32 {sJ}, s2, 3')
        a(f's_cmp_ge_u32 {sW}, 8')
        a('s_cbranch_scc1 L_helper')
        self.stream_wave()
        self.helpers()
        if self.stamps:
            self.lab('L_exit')
            self.stamp('end')
            a('s_waitcnt lgkmcnt(0)')
            a('v_mov_b32 v4, 0')
            for i in range(len(self.stamp_names)):
                a(f'v_writelane_b32 v4, s{STAMP_BASE+2*i}, {i}')
            if 'dbg' in self.exp:
                a(f's_not_b32 {sT1}, s{STAMP_BASE}')
                a(f'v_writelane_b32 v4, {sT1}, 15')
                a('v_lshlrev_b32 v5, 2, v1')
                a('s_mov_b64 exec, 0xffff')
                a('global_atomic_umax v5, v4, s[24:25]')
                a('s_endpgm')
            a(f's_getreg_b32 {sT1}, hwreg(HW_REG_XCC_ID)')
            a(f'v_writelane_b32 v4, {sT1}, 63')
            a(f's_mul_i32 {sT0}, s2, {self.nw}')
            a(f's_add_u32 {sT0}, {sT0}, {sW}')
            a(f's_lshl_b32 {sT0}, {sT0}, 8')
            a(f's_add_u32 {sT0}, {sT0}, {hex(STAMP)}')
            a(f'v_lshl_add_u32 v5, v1, 2, {sT0}')
            a(f'buffer_store_dword v4, v5, {SRD_WS}, 0 offen')
        else:
            self.lab('L_exit')
        self.lab('L_end')
        self.lab(f'L_pad_{self.npad}')
        a('s_endpgm')
        self.lab('L_codeend')
        self.L += ['.section .rodata,"a"', '.p2align 6', f'.amdhsa_kernel {NAME}',
                   f'  .amdhsa_next_free_vgpr {NVGPR}', '  .amdhsa_next_free_sgpr 102', f'  .amdhsa_accum_offset {NVGPR}',
                   '  .amdhsa_group_segment_fixed_size 0', '  .amdhsa_kernarg_size 96',
                   '  .amdhsa_user_sgpr_count 2', '  .amdhsa_user_sgpr_kernarg_segment_ptr 1',
                   '  .amdhsa_system_sgpr_workgroup_id_x 1',
                   '  .amdhsa_float_denorm_mode_32 3', '.end_amdhsa_kernel']
        return HEADER + '\n'.join(self.L) + '\n'

    def stream_wave(self):
        a = self.a
        CPC = self.CPC
        NCONS = 512 // CPC
        lg = int(math.log2(CPC))
        vLane = 1
        self.landed = -1
        self.vK, self.vV = 2, 3
        vAcc = self.vAcc = 4
        vP = self.vP = 4
        vD = self.vD = 36
        vPA = self.vPA = vBq = self.vBq = 52
        vT = 56
        vA0, vA1, vA2, vA3, vA4, vA5, vTB, vWt = range(64, 72)
        assert RING0 == 72
        self.n = self.beta = self.tau = 0
        self.vm = []

        a(f's_lshl_b32 {sT0}, {sG}, 23')
        a(f's_lshl_b32 {sT1}, {sJ}, 18')
        a(f's_add_u32 {sT0}, {sT0}, {sT1}')
        a(f's_lshl_b32 {sT1}, {sW}, 10')
        a(f's_add_u32 {sT0}, {sT0}, {sT1}')
        a(f'v_bfe_u32 v{vT}, v{vLane}, 2, 2')
        a(f'v_lshlrev_b32 v{vT}, 8, v{vT}')
        a(f'v_and_b32 v{vT+1}, 3, v{vLane}')
        a(f'v_lshl_add_u32 v{vT}, v{vT+1}, 4, v{vT}')
        a(f'v_lshrrev_b32 v{vT+2}, 4, v{vLane}')
        a(f'v_lshlrev_b32 v{vT+2}, 6, v{vT+2}')
        a(f'v_add3_u32 v{self.vK}, v{vT}, v{vT+2}, {sT0}')
        a('s_waitcnt lgkmcnt(0)')
        self.srd(SRD_A, 6, 64 << 20)
        self.steps_to(self.kfirst)
        self.stamp('issued0')
        a(f'v_lshl_add_u32 v{self.vV}, v{vLane}, 4, {sT0}')
        self.srd(SRD_X, 10, 4 << 20)
        a(f's_and_b32 {sT0}, {sJ}, 3')
        a(f's_lshl_b32 {sT0}, {sT0}, 7')
        a(f's_lshl_b32 {sT1}, {sW}, 1')
        a(f's_add_u32 {sT0}, {sT0}, {sT1}')
        a(f'v_lshrrev_b32 v{vT}, 3, v{vLane}')
        a(f'v_lshl_add_u32 v{vT}, v{vT}, 4, {sT0}')
        a(f'v_and_b32 v{vT+1}, 7, v{vLane}')
        a(f'v_lshlrev_b32 v{vT+1}, 4, v{vT+1}')
        a(f's_lshr_b32 {sT2}, {sJ}, 2')
        a(f's_lshl_b32 {sT0}, {sG}, 10')
        a(f's_lshl_b32 {sT1}, {sT2}, 7')
        a(f's_add_u32 {sT0}, {sT0}, {sT1}')
        a(f'v_lshlrev_b32 v{vT+2}, 13, v{vT}')
        a(f'v_add3_u32 v{vT+2}, v{vT+2}, v{vT+1}, {sT0}')
        a(f's_lshl_b32 {sT1}, {sW}, 11')
        a(f's_add_u32 m0, {sT1}, {L_TL}')
        a(f's_movk_i32 {sOFF}, {0x2000 - 1024}')
        self.load('tq0', f'buffer_load_dwordx4 v{vT+2}, {SRD_X}, 0 offen {self.wpol} lds')
        self.load('tq1', f'buffer_load_dwordx4 v{vT+2}, {SRD_X}, {sOFF} offen offset:1024 {self.wpol} lds')
        a(f's_lshl_b32 {sT2}, {sT2}, 3')
        a(f's_add_u32 {sT2}, {sT2}, {sG}')
        a(f's_sub_u32 {sT0}, {sT2}, 28')
        a(f's_cmp_ge_u32 {sT2}, 28')
        a(f's_cselect_b32 {sT2}, {sT0}, {sT2}')
        a('s_cselect_b64 s[40:41], s[18:19], s[16:17]')
        a(f's_mov_b32 s42, {hex(512*3584)}')
        a('s_mov_b32 s43, 0x20000')
        a(f's_lshl_b32 {sT2}, {sT2}, 7')
        a(f's_cmp_ge_u32 {sJ}, 28')
        a(f's_cselect_b32 {sT2}, 0x10000000, {sT2}')
        a(f'v_mul_u32_u24 v{vT+3}, 3584, v{vT}')
        a(f'v_add3_u32 v{vT+3}, v{vT+3}, v{vT+1}, {sT2}')
        a(f's_add_u32 m0, {sT1}, {L_TL + 16384}')
        a(f's_movk_i32 {sOFF}, {3584 - 1024}')
        self.load('tf0', f'buffer_load_dwordx4 v{vT+3}, {SRD_C}, 0 offen {self.wpol} lds')
        self.load('tf1', f'buffer_load_dwordx4 v{vT+3}, {SRD_C}, {sOFF} offen offset:1024 {self.wpol} lds')
        a(f's_load_dword {sTAG}, s[26:27], 0')
        self.srd(SRD_B, 8, 64 << 20)
        self.srd(SRD_WS, 26, 256 << 20)
        self.srd(SRD_OUT, 22, 1024)
        a(f's_mov_b32 {sPLO}, 0x05040100')
        a(f's_mov_b32 {sPHI}, 0x07060302')
        a(f's_mov_b32 {sC}, {hex(f2u(math.log2(math.e) / math.sqrt(128.0)))}')
        a(f's_mov_b32 {sSEL}, 0x07060500')
        a(f's_mov_b32 {sSA}, 0x0c0c0400')
        a(f's_mov_b32 {sSB}, 0x04000c0c')
        self.steps_to(self.nT or self.kfirst + self.depth(self.kfirst))
        self.wait('tf1')
        self.landed = max(self.landed, self.kfirst - 1)
        self.stamp('preT')
        a('s_barrier')
        self.srd(SRD_C, 12, 4 << 20)
        self.steps_to(self.nG)
        a('s_barrier')
        self.steps_to(self.nA)
        a(f'v_lshlrev_b32 v{vT}, 4, v{vLane}')
        self.stamp('preA')
        self.barrier()
        a(f'ds_read_b128 v[{vBq}:{vBq+3}], v{vT} offset:{L_BQ}')
        self.stamp('A')
        self.make_tag()
        a(f'v_and_b32 v{vT+6}, 3, v{vLane}')
        a(f'v_lshlrev_b32 v{vT+5}, 3, v{vT+6}')
        a(f'v_lshrrev_b32 v{vTB}, v{vT+5}, {sTAG}')
        a(f'v_lshlrev_b32 v{vT+6}, 5, v{vT+6}')
        a(f's_lshl_b32 {sT0}, {sW}, 2')
        a(f'v_add_u32 v{vT+7}, {sT0}, v{vT+6}')
        a('s_waitcnt lgkmcnt(0)')
        while self.beta < 8:
            if self.n - RING >= 4 * self.beta:
                self.qk_batch()
            self.step()
            if self.beta < 8 and 4 * self.beta + 3 <= self.landed:
                self.qk_batch()
        self.max8(vT, vP, vT + 1)
        self.inrow_allreduce('v_max_f32', vT, (8, 4))
        self.rows_allreduce('v_max_f32', vT, vT + 1)
        a(f'ds_write_b32 v{vT+7}, v{vT} offset:{L_MB}')
        self.step()
        self.stamp('_preB')
        self.barrier()
        a(f'ds_read_b128 v[{vD}:{vD+3}], v{vT+6} offset:{L_MB}')
        a(f'ds_read_b128 v[{vD+4}:{vD+7}], v{vT+6} offset:{L_MB+16}')
        a('s_waitcnt lgkmcnt(0)')
        self.max8(vT, vD, vT + 1)
        a(f'v_mul_f32 v{vT}, {sC}, v{vT}')
        for i in range(8):
            a(f'v_fma_f32 v{vP+i}, v{vP+i}, {sC}, -v{vT}')
        for i in range(8):
            a(f'v_exp_f32 v{vP+i}, v{vP+i}')
        a('s_nop 0')
        for i in range(4):
            a(f'v_cvt_pk_bf16_f32 v{vPA+i}, v{vP+2*i}, v{vP+2*i+1}')
        self.sum8(vT, vP)
        self.inrow_allreduce('v_add_f32', vT, (8, 4))
        self.rows_allreduce('v_add_f32', vT, vT + 1)
        a(f'ds_write_b32 v{vT+7}, v{vT} offset:{L_LB}')
        self.step()
        self.barrier()
        self.stamp('C')
        self.step()

        a(f'v_lshrrev_b32 v{vT}, 4, v{vLane}')
        a(f'v_mul_u32_u24 v{vT}, 160, v{vT}')
        a(f'v_and_b32 v{vT+1}, 15, v{vLane}')
        a(f'v_lshlrev_b32 v{vT+2}, 3, v{vT+1}')
        a(f's_mul_i32 {sT0}, {sW}, 2560')
        a(f'v_add3_u32 v{vA0}, v{vT}, v{vT+2}, {sT0}')
        a(f'v_lshrrev_b32 v{vT}, 7, v0')
        a(f'v_mul_u32_u24 v{vT}, 640, v{vT}')
        a(f'v_bfe_u32 v{vT+2}, v0, 1, 2')
        a(f'v_mul_u32_u24 v{vT+2}, 160, v{vT+2}')
        a(f'v_bfe_u32 v{vT+3}, v0, 3, 4')
        a(f'v_lshlrev_b32 v{vT+3}, 3, v{vT+3}')
        a(f'v_add3_u32 v{vT}, v{vT}, v{vT+2}, v{vT+3}')
        a(f'v_and_b32 v{vT+2}, 1, v0')
        a(f'v_lshl_add_u32 v{vA1}, v{vT+2}, 2, v{vT}')
        a(f'v_add_u32 v{vA1}, {L_OB}, v{vA1}')
        a(f's_lshl_b32 {sT2}, {sG}, 16')
        a(f's_add_u32 {sT2}, {sT2}, {hex(OBOX)}')
        a(f's_lshl_b32 {sT1}, {sJ}, 6')
        a(f's_add_u32 {sT0}, {sT2}, {sT1}')
        a(f'v_lshrrev_b32 v{vT}, 4, v0')
        a(f'v_lshlrev_b32 v{vWt}, 2, v{vT}')
        a(f'v_lshlrev_b32 v{vT}, 11, v{vT}')
        a(f'v_lshlrev_b32 v{vT+2}, 2, v{vT+1}')
        a(f'v_add3_u32 v{vA2}, v{vT}, v{vT+2}, {sT0}')
        a(f's_lshl_b32 {sT1}, {sJ}, 11')
        a(f's_add_u32 {sT0}, {sT2}, {sT1}')
        a(f'v_lshl_add_u32 v{vA3}, v0, 2, {sT0}')
        a(f'v_lshrrev_b32 v{vT}, {lg}, v0')
        a(f'v_lshlrev_b32 v{vT}, {lg+10}, v{vT}')
        a(f'v_and_b32 v{vT+2}, {CPC-1}, v0')
        a(f'v_lshlrev_b32 v{vT+2}, 2, v{vT+2}')
        a(f's_lshl_b32 {sT0}, s2, {lg+2}')
        a(f's_add_u32 {sT0}, {sT0}, {hex(SBOX)}')
        a(f'v_add3_u32 v{vA4}, v{vT}, v{vT+2}, {sT0}')
        a(f'v_lshlrev_b32 v{vA5}, 1, v0')
        a(f'v_lshlrev_b32 v{vT+6}, 5, v{vT+1}')
        a(f's_lshl_b32 {sT0}, {sW}, 2')
        a(f'v_add_u32 v{vT+7}, {sT0}, v{vT+6}')

        while self.n < 64:
            if self.n - RING - 32 >= 4 * self.tau:
                self.pv_group()
            self.step()
            if self.n == self.nM:
                a('s_barrier')
            if 32 + 4 * self.tau + 3 <= self.landed:
                self.pv_group()
        self.stamp('allissued')
        vW = self.slot(40)
        SG = self.slot(44)
        while self.tau < 4:
            self.pv_group()
        assert vW == RING0 + 64
        a(f's_lshl_b32 {sT0}, {sG}, 19')
        a(f's_lshl_b32 {sT1}, {sJ}, 14')
        a(f's_add_u32 {sT0}, {sT0}, {sT1}')
        for e in range(16):
            if e and e % 4 == 0:
                a(f's_add_u32 {sT0}, {sT0}, 0x1000')
            self.load(f'wo{e}', f'buffer_load_short_d16_hi v{vW+e}, v{vA5}, {SRD_C}, {sT0} offen offset:{(e & 3)*1024} {self.opol}')
        while self.tau < 7:
            self.pv_group()
        if self.warm:
            self.padding = True
            self.pad()
        self.pv_group()
        self.stamp('pvdone')
        if 'notail' in self.exp:
            a('s_branch L_exit')
        a('s_nop 1')
        for e in range(4):
            for h in range(4):
                a(f'v_permlane32_swap_b32 v{vAcc+4*e+h}, v{vAcc+4*(e+4)+h}')
        for e in range(4):
            for h in range(4):
                a(f'v_add_f32 v{vAcc+4*e+h}, v{vAcc+4*e+h}, v{vAcc+4*(e+4)+h}')
        for e in range(2):
            for h in range(4):
                a(f'v_permlane16_swap_b32 v{vAcc+4*e+h}, v{vAcc+4*(e+2)+h}')
        for h in range(4):
            a(f'v_add_f32 v{vD+2*h}, v{vAcc+h}, v{vAcc+8+h}')
            a(f'v_add_f32 v{vD+2*h+1}, v{vAcc+4+h}, v{vAcc+12+h}')
            a(f'ds_write_b64 v{vA0}, v[{vD+2*h}:{vD+2*h+1}] offset:{L_OB+640*h}')
        self.barrier()
        for k in range(4):
            a(f'ds_read2st64_b32 v[{vD+2*k}:{vD+2*k+1}], v{vA1} offset0:{20*k} offset1:{20*k+10}')
        a(f'ds_read_b32 v{vWt}, v{vWt} offset:{L_WB}')
        a('s_waitcnt lgkmcnt(1)')
        self.sum8(vT, vD)
        a(f'v_perm_b32 v{vT}, v{vT}, v{vTB}, {sSEL}')
        a(f'buffer_store_dword v{vT}, v{vA2}, {SRD_WS}, 0 offen sc1')
        self.stamp('opub')

        self.poll([f'buffer_load_dword v{vT+1}, v{vA3}, {SRD_WS}, 0 offen sc1'],
                  lambda: a(f'v_cmp_ne_u32_sdwa vcc, v{vT+1}, v{vTB} src0_sel:BYTE_0 src1_sel:BYTE_0'))
        self.stamp('goto')
        a('s_waitcnt lgkmcnt(0)')
        a(f'v_mul_f32 v{vT+1}, v{vT+1}, v{vWt}')
        self.rows_allreduce('v_add_f32', vT + 1, vT + 2)
        a(f'ds_write_b32 v{vT+7}, v{vT+1} offset:{L_O2}')
        self.barrier()
        a(f'ds_read_b128 v[{vD}:{vD+3}], v{vT+6} offset:{L_O2}')
        a(f'ds_read_b128 v[{vD+4}:{vD+7}], v{vT+6} offset:{L_O2+16}')
        a('s_waitcnt lgkmcnt(0)')
        self.sum8(vT, vD)
        a('s_nop 1')
        for e in range(16):
            op = 'v_mul_f32' if e < 4 else 'v_fmac_f32'
            self.dpp(op, vD + (e & 3), vT, vW + e, f'row_newbcast:{e}')
        a(f'v_add_f32 v{vD}, v{vD}, v{vD+2}')
        a(f'v_add_f32 v{vD+1}, v{vD+1}, v{vD+3}')
        a(f'v_add_f32 v{vT}, v{vD}, v{vD+1}')
        a(f'v_perm_b32 v{vT}, v{vT}, v{vTB}, {sSEL}')
        a(f'buffer_store_dword v{vT}, v{vA4}, {SRD_WS}, 0 offen sc1')
        self.stamp('spub')

        a(f's_cmp_ge_u32 s2, {NCONS}')
        a('s_cbranch_scc1 L_exit')
        nl, lpp = CPC // 8, CPC // 4
        a(f's_lshl_b32 {sT0}, s2, {lg+10}')
        a(f's_add_u32 {sT0}, {sT0}, {hex(SBOX)}')
        a(f'v_lshl_add_u32 v{vA0}, v0, 4, {sT0}')
        sl = []
        for u in range(nl):
            if u:
                sl.append(f's_movk_i32 {sT2}, {hex(u*8192)}')
            sl.append(f'buffer_load_dwordx4 v[{SG+4*u}:{SG+4*u+3}], v{vA0}, {SRD_WS}, {sT2 if u else 0} offen sc1')
        for x in sl:
            a(x)
        a(f'v_mov_b32 v{vA1}, {sTAG}')
        a(f'v_and_b32 v{vT+1}, {lpp-1}, v{vLane}')
        a(f'v_lshlrev_b32 v{vT+1}, 7, v{vT+1}')
        a(f'v_lshrrev_b32 v{vT+2}, 4, v{vLane}')
        a(f'v_lshlrev_b32 v{vT+2}, 5, v{vT+2}')
        a(f's_lshl_b32 {sT0}, {sW}, 2')
        a(f'v_add3_u32 v{vA2}, v{vT+1}, v{vT+2}, {sT0}')
        a(f'v_and_b32 v{vT+1}, {CPC-1}, v{vLane}')
        a(f'v_lshlrev_b32 v{vA3}, 5, v{vT+1}')
        a(f'v_lshlrev_b32 v{vT+2}, 2, v{vT+1}')
        a(f'ds_read_b32 v{vA4}, v{vT+2} offset:{L_GB}')
        a(f'ds_read_b32 v{vA5}, v{vT+2} offset:{L_XB}')
        a(f's_lshl_b32 {sT0}, s2, {lg+1}')
        a(f'v_lshl_add_u32 v{vWt}, v{vT+1}, 1, {sT0}')
        a('s_waitcnt vmcnt(0)')
        self.poll(sl, lambda: self.check_quads([SG + 4 * u for u in range(nl)], vA1, vT + 1, vT + 2, vT + 3), True)
        self.stamp('gots')
        for u in range(1, nl):
            for k in range(4):
                a(f'v_add_f32 v{SG+k}, v{SG+k}, v{SG+4*u+k}')
        self.quad_reduce(SG, lpp)
        a(f'ds_write_b32 v{vA2}, v{SG} offset:{L_S2}')
        self.barrier()
        a(f's_cmp_lg_u32 {sW}, 0')
        a('s_cbranch_scc1 L_exit')
        a(f'ds_read_b128 v[{vD}:{vD+3}], v{vA3} offset:{L_S2}')
        a(f'ds_read_b128 v[{vD+4}:{vD+7}], v{vA3} offset:{L_S2+16}')
        a(f's_mov_b32 exec_lo, {hex((1 << CPC) - 1)}')
        a('s_mov_b32 exec_hi, 0')
        a('s_waitcnt lgkmcnt(0)')
        self.sum8(vT, vD)
        self.bf16r(vT, vT)
        a(f'v_mul_f32 v{vT}, v{vT}, v{vA4}')
        self.bf16r(vT, vT)
        a(f'v_add_f32 v{vT}, v{vT}, v{vA5}')
        a(f'v_cvt_pk_bf16_f32 v{vT}, v{vT}, v{vT}')
        a(f'buffer_store_short v{vT}, v{vWt}, {SRD_OUT}, 0 offen')
        self.padding = False
        a('s_mov_b64 exec, -1')
        a('s_cmp_lg_u32 s2, 0')
        a('s_cbranch_scc1 L_exit')
        a(f'v_mov_b32 v{vT}, 0')
        a('s_mov_b64 exec, 1')
        a(f'buffer_store_dword v{vA1}, v{vT}, {SRD_WS}, 0 offen sc1')
        a('s_mov_b64 exec, -1')
        a('s_branch L_exit')

    def helpers(self):
        a = self.a
        CPC = self.CPC
        NCONS = 512 // CPC
        lg = int(math.log2(CPC))
        vLane = 1
        vT = 4
        vX = 16
        vA = 24
        vB = 32
        vW = 40
        vTag, vTB = 2, 3
        vCol, vTC = 166, 167
        sSTR, sPUB = sPLO, sPHI
        self.lab('L_helper')
        if 'nohelp' in self.exp:
            a('s_endpgm')
        if self.prio:
            a(f's_setprio {self.prio}')
        a('s_waitcnt lgkmcnt(0)')
        self.stamp('_hstart')
        a(f's_load_dword {sTAG}, s[26:27], 0')
        self.srd(SRD_WS, 26, 256 << 20)
        if self.nw > 10:
            a(f's_cmp_eq_u32 {sW}, 10')
            a('s_cbranch_scc1 L_h2')
        self.vm = []
        self.srd(SRD_X, 4, 1024)
        a(f'v_lshlrev_b32 v{vT}, 4, v{vLane}')
        self.load('x16', f'buffer_load_dwordx4 v[{vX}:{vX+3}], v{vT}, {SRD_X}, 0 offen')
        sRB, sCB, sPUB = 's60', 's61', 's3'
        a(f's_and_b32 {sRB}, {sJ}, 3')
        a(f's_lshr_b32 {sCB}, {sJ}, 2')
        a(f's_cmp_eq_u32 {sW}, 8')
        a('s_cbranch_scc0 L_h1_setup')
        a(f's_lshl_b32 {sPUB}, {sG}, 13')
        a(f's_lshl_b32 {sT0}, {sRB}, 11')
        a(f's_add_u32 {sPUB}, {sPUB}, {sT0}')
        a(f's_add_u32 {sPUB}, {sPUB}, {hex(QBOX)}')
        a('s_branch L_tile')
        self.lab('L_h1_setup')
        a(f's_cmp_ge_u32 {sJ}, 28')
        a('s_cbranch_scc1 L_h1_notile')
        a(f's_lshl_b32 {sCB}, {sCB}, 3')
        a(f's_add_u32 {sCB}, {sCB}, {sG}')
        a(f's_sub_u32 {sT0}, {sCB}, 28')
        a(f's_cmp_ge_u32 {sCB}, 28')
        a(f's_cselect_b32 {sCB}, {sT0}, {sCB}')
        a(f's_cselect_b32 {sPUB}, {hex(4*7168)}, 0')
        a(f's_add_u32 {sPUB}, {sPUB}, {hex(HBOX)}')
        a(f's_mul_i32 {sT0}, {sRB}, 7168')
        a(f's_add_u32 {sPUB}, {sPUB}, {sT0}')
        self.lab('L_tile')
        a(f's_lshl_b32 {sT0}, {sCB}, 8')
        a(f's_add_u32 {sPUB}, {sPUB}, {sT0}')
        a(f'v_lshrrev_b32 v{vT+4}, 3, v{vLane}')
        a(f'v_lshlrev_b32 v{vT+1}, 4, v{vT+4}')
        a(f's_lshl_b32 {sT0}, {sRB}, 7')
        a(f'v_add_u32 v{vT+1}, {sT0}, v{vT+1}')
        a(f's_sub_u32 {sT0}, {sW}, 8')
        a(f's_lshl_b32 {sT1}, {sT0}, 14')
        a(f'v_add_u32 v{vT+2}, {sT1}, v{vT}')
        a(f's_lshl_b32 {sT0}, {sT0}, 10')
        a(f'v_add_u32 v{vT}, {sT0}, v{vT}')
        a(f'v_lshl_add_u32 v{vT+1}, v{vT+1}, 1, {sT0}')
        a(f'v_and_b32 v{vT+3}, 7, v{vLane}')
        a(f'v_lshlrev_b32 v{vT+3}, 5, v{vT+3}')
        a(f'v_lshl_add_u32 v{vCol}, v{vT+4}, 2, v{vT+3}')
        a(f'v_add_u32 v{vT+3}, {sPUB}, v{vCol}')
        a(f'v_and_b32 v{vT+4}, 3, v{vT+4}')
        a(f'v_lshlrev_b32 v{vT+4}, 3, v{vT+4}')
        a(f's_mov_b32 {sPLO}, 0x05040100')
        a(f's_mov_b32 {sPHI}, 0x07060302')
        self.wait('x16')
        self.stamp('_x16')
        for k in range(4):
            a(f'v_lshlrev_b32 v{vA+2*k}, 16, v{vX+k}')
            a(f'v_and_b32 v{vA+2*k+1}, 0xffff0000, v{vX+k}')
        m, s2, t = vT + 5, vT + 6, vT + 7
        a(f'v_add_f32 v{m}, v{vA}, v{vA+1}')
        for k in range(2, 8):
            a(f'v_add_f32 v{m}, v{m}, v{vA+k}')
        self.inrow_allreduce('v_add_f32', m, (8, 4, 2, 1))
        self.rows_allreduce('v_add_f32', m, t)
        a(f'v_mul_f32 v{m}, {hex(f2u(1/512.))}, v{m}')
        for k in range(8):
            a(f'v_sub_f32 v{vB+k}, v{vA+k}, v{m}')
        a(f'v_mul_f32 v{s2}, v{vB}, v{vB}')
        for k in range(1, 8):
            a(f'v_fmac_f32 v{s2}, v{vB+k}, v{vB+k}')
        self.inrow_allreduce('v_add_f32', s2, (8, 4, 2, 1))
        self.rows_allreduce('v_add_f32', s2, t)
        a(f'v_mul_f32 v{s2}, {hex(f2u(1/512.))}, v{s2}')
        self.bf16r(m, m)
        self.bf16r(s2, s2)
        a(f'v_add_f32 v{s2}, {hex(f2u(1e-5))}, v{s2}')
        self.bf16r(s2, s2)
        a(f'v_sqrt_f32 v{s2}, v{s2}')
        for k in range(8):
            a(f'v_sub_f32 v{vA+k}, v{vA+k}, v{m}')
        self.bf16r(s2, s2)
        a(f'v_rcp_f32 v{s2}, v{s2}')
        for k in range(4):
            a(f'v_cvt_pk_bf16_f32 v{vX+k}, v{vA+2*k}, v{vA+2*k+1}')
        for k in range(4):
            a(f'v_lshlrev_b32 v{vA+2*k}, 16, v{vX+k}')
            a(f'v_and_b32 v{vA+2*k+1}, 0xffff0000, v{vX+k}')
        for k in range(8):
            a(f'v_mul_f32 v{vA+k}, v{vA+k}, v{s2}')
        for k in range(4):
            a(f'v_cvt_pk_bf16_f32 v{vX+k}, v{vA+2*k}, v{vA+2*k+1}')
        a(f'ds_write_b128 v{vT}, v[{vX}:{vX+3}] offset:{L_XN}')
        a('s_waitcnt lgkmcnt(0)')
        a(f'ds_read_b128 v[{vX}:{vX+3}], v{vT+1} offset:{L_XN}')
        a(f'ds_read_b128 v[{vX+4}:{vX+7}], v{vT+1} offset:{L_XN+16}')
        self.make_tag()
        a(f'v_lshrrev_b32 v{vTC}, v{vT+4}, {sTAG}')
        a(f's_mov_b32 {sSEL}, 0x07060500')
        self.stamp('_ln')
        self.barrier()
        for u in range(16):
            a(f'ds_read_b128 v[{vW+4*u}:{vW+4*u+3}], v{vT+2} offset:{L_TL+1024*u}')
        self.tile_dot(8, vW, vX, vA, vB, lambda p: a(f's_waitcnt lgkmcnt({min(15, 14-2*p)})'))
        a(f'v_perm_b32 v{vA+4}, v{vA+4}, v{vTC}, {sSEL}')
        if 'h_tileonly' in self.exp:
            a('s_branch L_exit')
        a(f'buffer_store_dword v{vA+4}, v{vT+3}, {SRD_WS}, 0 offen sc1')
        self.stamp('tilepub')
        if 'h_pubonly' in self.exp:
            a('s_branch L_exit')
        a(f's_cmp_eq_u32 {sW}, 8')
        a('s_cbranch_scc0 L_h1')

        a(f's_mov_b32 {sSA}, 0x0c0c0400')
        a(f's_mov_b32 {sSB}, 0x04000c0c')
        a(f'v_mov_b32 v{vTag}, {sTAG}')
        a(f's_lshl_b32 {sT0}, {sG}, 13')
        a(f's_add_u32 {sT0}, {sT0}, {hex(QBOX)}')
        a(f'v_lshrrev_b32 v{vT}, 5, v{vLane}')
        a(f'v_and_b32 v{vT+1}, 31, v{vLane}')
        a(f'v_lshlrev_b32 v{vT+2}, 11, v{vT}')
        a(f'v_lshlrev_b32 v{vT+3}, 4, v{vT+1}')
        a(f'v_add3_u32 v{vT+2}, v{vT+2}, v{vT+3}, {sT0}')
        a(f's_movk_i32 {sT2}, 0x1000')
        a(f'v_lshrrev_b32 v{vT+1}, 1, v{vT+1}')
        a(f'v_lshlrev_b32 v{vT+1}, 6, v{vT+1}')
        a(f'v_and_b32 v{vT+3}, 1, v{vLane}')
        a(f'v_lshlrev_b32 v{vT+3}, 3, v{vT+3}')
        a(f'v_lshl_add_u32 v{vT+1}, v{vT}, 2, v{vT+1}')
        a(f'v_add_u32 v{vT+1}, v{vT+1}, v{vT+3}')
        ql = [f'buffer_load_dwordx4 v[{vW+8*h+4*b}:{vW+8*h+4*b+3}], v{vT+2}, {SRD_WS}, {sT2 if b else 0} offen offset:{512*h} sc1'
              for h in range(4) for b in range(2)]
        a('s_barrier')
        self.poll(ql, lambda: self.check_quads([vW + 4 * i for i in range(8)], vTag, vT + 4, vT + 5, vT + 6))
        self.stamp('gotq')
        for h in range(4):
            for k in range(4):
                a(f'v_add_f32 v{vW+8*h+k}, v{vW+8*h+k}, v{vW+8*h+4+k}')
        for h in range(4):
            a(f'v_permlane32_swap_b32 v{vW+8*h}, v{vW+8*h+2}')
            a(f'v_permlane32_swap_b32 v{vW+8*h+1}, v{vW+8*h+3}')
        for h in range(4):
            a(f'v_add_f32 v{vW+8*h}, v{vW+8*h}, v{vW+8*h+2}')
            a(f'v_add_f32 v{vW+8*h+1}, v{vW+8*h+1}, v{vW+8*h+3}')
            a(f'v_cvt_pk_bf16_f32 v{vW+8*h}, v{vW+8*h}, v{vW+8*h+1}')
            a(f'ds_write_b32 v{vT+1}, v{vW+8*h} offset:{L_BQ+16*h}')
        self.barrier()
        if 'h_noml' in self.exp:
            a('s_branch L_exit')
        a(f'v_and_b32 v{vT}, 3, v{vLane}')
        a(f'v_lshlrev_b32 v{vT}, 5, v{vT}')
        a(f's_lshl_b32 {sT2}, {sG}, 11')
        a(f's_add_u32 {sT2}, {sT2}, {hex(MLBOX)}')
        a(f's_lshl_b32 {sT1}, {sJ}, 4')
        a(f's_add_u32 {sT0}, {sT2}, {sT1}')
        a(f'v_lshl_add_u32 v{vT+1}, v{vT}, 4, {sT0}')
        a(f's_lshr_b32 {sT1}, {sJ}, 3')
        a(f's_lshl_b32 {sT1}, {sT1}, 9')
        a(f's_add_u32 {sT0}, {sT2}, {sT1}')
        a(f'v_and_b32 v{vT+2}, 31, v{vLane}')
        a(f'v_lshlrev_b32 v{vT+3}, 2, v{vT+2}')
        a(f'v_lshl_add_u32 v{vT+2}, v{vT+2}, 4, {sT0}')
        a(f'v_mov_b32 v{vX+2}, {sTAG}')
        a(f'v_mov_b32 v{vX+3}, {sTAG}')
        a(f's_mov_b32 {sC}, {hex(f2u(math.log2(math.e) / math.sqrt(128.0)))}')
        a('s_barrier')
        a(f'ds_read_b128 v[{vA}:{vA+3}], v{vT} offset:{L_MB}')
        a(f'ds_read_b128 v[{vA+4}:{vA+7}], v{vT} offset:{L_MB+16}')
        a('s_waitcnt lgkmcnt(0)')
        self.max8(vX, vA, vT + 4)
        a('s_barrier')
        a(f'ds_read_b128 v[{vA}:{vA+3}], v{vT} offset:{L_LB}')
        a(f'ds_read_b128 v[{vA+4}:{vA+7}], v{vT} offset:{L_LB+16}')
        a('s_waitcnt lgkmcnt(0)')
        self.sum8(vX + 1, vA)
        if 'ml_nopub' in self.exp:
            a('s_branch L_exit')
        a('s_mov_b64 exec, 0xf')
        a(f'buffer_store_dwordx4 v[{vX}:{vX+3}], v{vT+1}, {SRD_WS}, 0 offen sc1')
        a('s_mov_b64 exec, -1')
        if 'ml_pubonly' in self.exp:
            a('s_branch L_exit')
        a('s_barrier')

        def chk_ml():
            a(f'v_xor_b32 v{vT+4}, {sTAG}, v{vB+2}')
            a(f'v_xor_b32 v{vT+5}, {sTAG}, v{vB+3}')
            a(f'v_or_b32 v{vT+4}, v{vT+4}, v{vT+5}')
            a(f'v_cmp_ne_u32 vcc, 0, v{vT+4}')
        self.poll([f'buffer_load_dwordx4 v[{vB}:{vB+3}], v{vT+2}, {SRD_WS}, 0 offen sc1'], chk_ml, sleep=4)
        mx, y, t = vT + 4, vT + 5, vT + 6
        a(f'v_mov_b32 v{mx}, v{vB}')
        self.inrow_allreduce('v_max_f32', mx, (8, 4, 2, 1))
        self.rows_allreduce('v_max_f32', mx, t, do32=False)
        a(f'v_sub_f32 v{mx}, v{vB}, v{mx}')
        a(f'v_mul_f32 v{mx}, {sC}, v{mx}')
        a(f'v_exp_f32 v{mx}, v{mx}')
        a('s_nop 0')
        a(f'v_mul_f32 v{y}, v{mx}, v{vB+1}')
        self.inrow_allreduce('v_add_f32', y, (8, 4, 2, 1))
        self.rows_allreduce('v_add_f32', y, t, do32=False)
        a(f'v_rcp_f32 v{y}, v{y}')
        a('s_nop 0')
        a(f'v_mul_f32 v{mx}, v{mx}, v{y}')
        a(f'ds_write_b32 v{vT+3}, v{mx} offset:{L_WB}')
        self.stamp('mlw')
        a('s_waitcnt lgkmcnt(0)')
        a('s_branch L_exit')

        self.lab('L_h1_notile')
        a('s_waitcnt vmcnt(0) lgkmcnt(0)')
        a('s_branch L_exit')
        self.lab('L_h1')
        if 'h_nof' in self.exp:
            a('s_branch L_exit')
        self.srd(SRD_B, 20, 1792 * 1024)
        sFI, sRD, sCD = 's8', 's9', 's10'
        a(f's_mul_i32 {sFI}, {sG}, 28')
        a(f's_add_u32 {sFI}, {sFI}, {sJ}')
        a(f's_lshr_b32 {sRD}, {sFI}, 3')
        a(f's_and_b32 {sCD}, {sFI}, 7')
        a(f's_lshl_b32 {sT0}, {sRD}, 16')
        a(f's_lshl_b32 {sT1}, {sCD}, 7')
        a(f's_add_u32 {sT0}, {sT0}, {sT1}')
        a(f'v_lshrrev_b32 v{vT+2}, 3, v{vLane}')
        a(f'v_lshlrev_b32 v{vT}, 13, v{vT+2}')
        a(f'v_lshlrev_b32 v{vT+2}, 4, v{vT+2}')
        a(f'v_and_b32 v{vT+1}, 7, v{vLane}')
        a(f'v_lshlrev_b32 v{vT+1}, 4, v{vT+1}')
        a(f'v_add3_u32 v{vT}, v{vT}, v{vT+1}, {sT0}')
        a(f's_movk_i32 {sT2}, 0x1000')
        a('s_barrier')
        for e in range(8):
            a(f'buffer_load_dwordx4 v[{vW+4*e}:{vW+4*e+3}], v{vT}, {SRD_B}, {sT2 if e >= 4 else 0} offen offset:{(e & 3)*1024} {self.wpol}')
        a(f's_lshl_b32 {sT0}, {sRD}, 8')
        a(f's_add_u32 {sT0}, {sT0}, {hex(HBOX)}')
        a(f'v_lshl_add_u32 v{vT+1}, v{vLane}, 2, {sT0}')
        a(f'v_and_b32 v{vT+3}, 3, v{vLane}')
        a(f'v_lshlrev_b32 v{vT+3}, 3, v{vT+3}')
        a(f'v_lshrrev_b32 v{vTB}, v{vT+3}, {sTAG}')
        a(f'v_lshlrev_b32 v{vT+3}, 1, v{vLane}')
        a(f's_lshl_b32 {sT0}, {sCD}, 13')
        a(f's_lshl_b32 {sT1}, {sRD}, 8')
        a(f's_add_u32 {sT0}, {sT0}, {sT1}')
        a(f's_add_u32 {sT0}, {sT0}, {hex(FBOX)}')
        a(f'v_add_u32 v{vCol}, {sT0}, v{vCol}')
        a('s_barrier')
        hl = []
        for k in range(8):
            if k:
                hl.append(f's_movk_i32 {sT2}, {k*7168 - (0 if k < 4 else 0x7000)}')
            if k == 4:
                hl.append(f'v_add_u32 v{vT+4}, 0x7000, v{vT+1}')
            hl.append(f'buffer_load_dword v{vB+k}, v{vT+1 if k < 4 else vT+4}, {SRD_WS}, {sT2 if k else 0} offen sc1')

        def chk_h():
            a(f'v_xor_b32 v{vT+4}, v{vB}, v{vTB}')
            for k in range(1, 8):
                a(f'v_bitop3_b32 v{vT+4}, v{vB+k}, v{vTB}, v{vT+4} bitop3:0xbe')
            a(f'v_and_b32 v{vT+4}, 0xff, v{vT+4}')
            a(f'v_cmp_ne_u32 vcc, 0, v{vT+4}')
        self.poll(hl, chk_h, sleep=0)
        for b in (vB, vB + 4):
            a(f'v_add_f32 v{b}, v{b}, v{b+1}')
            a(f'v_add_f32 v{b+2}, v{b+2}, v{b+3}')
            a(f'v_add_f32 v{b}, v{b}, v{b+2}')
            self.bf16r(b, b)
        self.silu_bf16(vB + 1, vB, vB + 2)
        a(f'v_mul_f32 v{vB+1}, v{vB+1}, v{vB+4}')
        a(f'v_cvt_pk_bf16_f32 v{vB+1}, v{vB+1}, v{vB+1}')
        a(f'ds_write_b16 v{vT+3}, v{vB+1} offset:{L_HB}')
        a('s_waitcnt lgkmcnt(0)')
        a(f'ds_read_b128 v[{vX}:{vX+3}], v{vT+2} offset:{L_HB}')
        a('s_waitcnt lgkmcnt(0)')
        self.tile_dot(4, vW, vX, vA, vB, lambda p: None)
        a(f'v_perm_b32 v{vA+4}, v{vA+4}, v{vTC}, {sSEL}')
        a(f'buffer_store_dword v{vA+4}, v{vCol}, {SRD_WS}, 0 offen sc1')
        self.stamp('fpub')
        if 'h_nofg' in self.exp:
            a('s_branch L_exit')
        a(f's_cmp_ge_u32 s2, {NCONS}')
        a('s_cbranch_scc1 L_exit')
        lpp = CPC // 4
        ppl = 64 // lpp
        nl = -(-28 // ppl)
        last = (28 - (nl - 1) * ppl) * lpp
        a(f'v_mov_b32 v{vTag}, {sTAG}')
        a(f's_mov_b32 {sSA}, 0x0c0c0400')
        a(f's_mov_b32 {sSB}, 0x04000c0c')
        a(f's_lshr_b32 {sT0}, s2, {6-lg}')
        a(f's_lshl_b32 {sT0}, {sT0}, 13')
        a(f's_and_b32 {sT1}, s2, {64//CPC - 1}')
        a(f's_lshl_b32 {sT1}, {sT1}, {lg+2}')
        a(f's_add_u32 {sT0}, {sT0}, {sT1}')
        a(f's_add_u32 {sT0}, {sT0}, {hex(FBOX)}')
        a(f'v_and_b32 v{vT+1}, {lpp-1}, v{vLane}')
        a(f'v_lshlrev_b32 v{vT+2}, 4, v{vT+1}')
        a(f'v_lshrrev_b32 v{vT}, {lg-2}, v{vLane}')
        a(f'v_lshlrev_b32 v{vT}, 8, v{vT}')
        a(f'v_add3_u32 v{vT}, v{vT}, v{vT+2}, {sT0}')
        a(f'v_lshrrev_b32 v{vT+2}, 4, v{vLane}')
        a(f'v_lshl_add_u32 v{vT+1}, v{vT+1}, 2, v{vT+2}')
        a(f's_lshl_b32 {sT0}, s2, {lg+1}')
        a(f'v_lshl_add_u32 v{vT+2}, v{vT+1}, 1, {sT0}')
        a(f'v_lshlrev_b32 v{vT+1}, 2, v{vT+1}')
        a(f'buffer_load_short_d16_hi v{vT+3}, v{vT+2}, {SRD_X}, 0 offen')
        for k in range(4):
            a(f'v_bfe_u32 v{vW+4*(nl-1)+k}, v{vTag}, {8*k}, 8')
        a('s_barrier')
        a('s_barrier')
        a('s_barrier')
        fl = []
        for u in range(nl):
            off = u * ppl * 256
            if u == nl - 1 and last < 64:
                fl.append(f's_mov_b32 exec_lo, {hex(((1 << last) - 1) & 0xffffffff)}')
                fl.append(f's_mov_b32 exec_hi, {hex(((1 << last) - 1) >> 32)}')
            if off >= 4096:
                fl.append(f's_movk_i32 {sT2}, {hex(off & ~4095)}')
            fl.append(f'buffer_load_dwordx4 v[{vW+4*u}:{vW+4*u+3}], v{vT}, {SRD_WS}, {sT2 if off >= 4096 else 0} offen offset:{off & 4095} sc1')
        fl.append('s_mov_b64 exec, -1')
        self.poll(fl, lambda: self.check_quads([vW + 4 * u for u in range(nl)], vTag, vT + 4, vT + 5, vT + 6), sleep=0)
        for u in range(1, nl):
            for k in range(4):
                a(f'v_add_f32 v{vW+k}, v{vW+k}, v{vW+4*u+k}')
        self.quad_reduce(vW, lpp)
        self.bf16r(vW, vW)
        self.silu_bf16(vT + 4, vW, vT + 5)
        a(f'ds_write_b32 v{vT+1}, v{vT+4} offset:{L_GB}')
        a(f'ds_write_b32 v{vT+1}, v{vT+3} offset:{L_XB}')
        a('s_waitcnt lgkmcnt(0)')
        a('s_branch L_exit')

        if self.nw == 10:
            return
        self.lab('L_h2')
        if self.pref:
            a('s_getpc_b64 s[28:29]')
            self.lab('L_pc')
            a(f's_sub_u32 s28, s28, L_pc-{NAME}')
            a('s_subb_u32 s29, s29, 0')
            a(f's_mov_b32 s30, L_codeend-{NAME}')
            a('s_mov_b32 s31, 0x20000')
            a(f'v_lshlrev_b32 v{vT}, 4, v{vLane}')
            a(f's_mov_b32 {sOFF}, 0')
            self.lab('L_pf')
            a(f'buffer_load_dwordx4 v[{vW}:{vW+3}], v{vT}, {SRD_A}, {sOFF} offen')
            a(f's_add_u32 {sOFF}, {sOFF}, 0x400')
            a(f's_cmp_lt_u32 {sOFF}, s30')
            a('s_cbranch_scc1 L_pf')
        if self.warm:
            for b in 'TGABC':
                a('s_barrier')
            a('s_waitcnt vmcnt(0) lgkmcnt(0)')
            a('s_mov_b64 exec, 0')
            a('s_branch L_pad_0')
        else:
            a('s_waitcnt vmcnt(0) lgkmcnt(0)')
            a('s_branch L_end')


def gen(**kw):
    g = G(**kw)
    s = g.gen()
    return s, g.stamp_names


if __name__ == '__main__':
    kw = eval('dict(' + (sys.argv[2] if len(sys.argv) > 2 else '') + ')')
    s, _ = gen(**kw)
    open(sys.argv[1], 'w').write(s)
```

```python
import math, struct, sys

NAME = 'recurrent_scan__gqa_block_cached__swiglu_ffn__decode_kernel'

HEADER = """; Kernarg layout for this problem (96 bytes, ptrs only, base s[0:1]):
"""


def f2u(x):
    return struct.unpack('<I', struct.pack('<f', x))[0]


QBOX  = 0x010000
HBOX  = 0x020000
MLBOX = 0x030000
OBOX  = 0x100000
FBOX  = 0x040000
SBOX  = 0x300000
STAMP = 0x800000

L_BQ = 0
L_XN = 1024
L_MB = 3072
L_LB = 3200
L_WB = 3328
L_GB = 3456
L_XB = 3584
L_O2 = 3712
L_S2 = 4224
L_HB = 5248
L_OB = 5376
L_TL = 5376
LDS_BYTES = L_TL + 2 * 16384

SRD_A, SRD_B, SRD_X, SRD_C, SRD_OUT, SRD_WS = [f's[{b}:{b+3}]' for b in range(28, 52, 4)]
sG, sJ, sW, sTAG, sOFF, sT0, sT1, sT2, sPLO, sPHI, sC, sCNT = [f's{i}' for i in range(52, 64)]
sL2E, sSEL, sSA, sSB = 's3', 's64', 's65', 's66'
STAMP_BASE = 68
NVGPR = 168
RING = 24
RING0 = NVGPR - 4 * RING


class G:
    def __init__(self, Ds=((0, 4),), pol='nt', wpol='nt', opol='nt', CPC=32, stamps=False, nA=24, nG=15, nM=54, nT=None,
                 spin=200000, padk=7, warm=True, pref=False, prio=3, kfirst=4, exp=()):
        self.__dict__.update(locals())
        self.L = []
        self.vm = []
        self.nlab = 0
        self.stamp_names = []
        self.padding = False
        self.npad = 0
        self.since_pad = 0

    def a(self, s):
        self.L.append('    ' + s)
        if self.padding:
            self.since_pad += 1
            if self.since_pad >= self.padk:
                self.pad()

    def pad(self):
        self.L.append(f'L_pad_{self.npad}:')
        self.L.append(f'    s_cbranch_execz L_pad_{self.npad+1}')
        self.npad += 1
        self.since_pad = 0

    def lab(self, s):
        self.L.append(s + ':')

    def newlab(self, p):
        self.nlab += 1
        return f'L_{p}_{self.nlab}'

    def load(self, name, text):
        self.a(text)
        self.vm.append(name)

    def wait(self, name):
        n = len(self.vm) - 1 - self.vm.index(name)
        assert n <= 63
        self.a(f's_waitcnt vmcnt({n})')

    def stamp(self, name):
        if not self.stamps:
            return
        if self.stamps is True:
            if name.startswith('_'):
                return
        elif name not in self.stamps and name not in ('start', 'end'):
            return
        i = len(self.stamp_names)
        assert STAMP_BASE + 2 * i + 1 <= 101
        self.a(f's_memrealtime s[{STAMP_BASE+2*i}:{STAMP_BASE+2*i+1}]')
        self.stamp_names.append(name)

    def dpp(self, op, d, s0, s1, ctl, bank=0xf):
        self.a(f'{op}_dpp v{d}, v{s0}, v{s1} {ctl} row_mask:0xf bank_mask:{hex(bank)}')

    def rows_allreduce(self, op, v, t, do16=True, do32=True):
        if do16:
            self.a(f'v_mov_b32 v{t}, v{v}')
            self.a('s_nop 1')
            self.a(f'v_permlane16_swap_b32 v{v}, v{t}')
            self.a(f'{op} v{v}, v{v}, v{t}')
        if do32:
            self.a(f'v_mov_b32 v{t}, v{v}')
            self.a('s_nop 1')
            self.a(f'v_permlane32_swap_b32 v{v}, v{t}')
            self.a(f'{op} v{v}, v{v}, v{t}')

    def inrow_allreduce(self, op, v, rots):
        for r in rots:
            self.a('s_nop 1')
            self.dpp(op, v, v, v, f'row_ror:{r}')

    def bf16r(self, d, s):
        self.a(f'v_cvt_pk_bf16_f32 v{d}, v{s}, v{s}')
        self.a(f'v_and_b32 v{d}, 0xffff0000, v{d}')

    def sum8(self, d, b):
        for k in range(4):
            self.a(f'v_add_f32 v{b+k}, v{b+k}, v{b+4+k}')
        self.a(f'v_add_f32 v{b}, v{b}, v{b+2}')
        self.a(f'v_add_f32 v{b+1}, v{b+1}, v{b+3}')
        self.a(f'v_add_f32 v{d}, v{b}, v{b+1}')

    def max8(self, d, b, t):
        self.a(f'v_max3_f32 v{d}, v{b}, v{b+1}, v{b+2}')
        self.a(f'v_max3_f32 v{t}, v{b+3}, v{b+4}, v{b+5}')
        self.a(f'v_max3_f32 v{d}, v{d}, v{b+6}, v{b+7}')
        self.a(f'v_max_f32 v{d}, v{d}, v{t}')

    def silu_bf16(self, d, x, t):
        self.a(f'v_mul_f32 v{t}, {hex(f2u(math.log2(math.e)))}, v{x}')
        self.a(f'v_exp_f32 v{t}, -v{t}')
        self.a('s_nop 0')
        self.a(f'v_add_f32 v{t}, 1.0, v{t}')
        self.a(f'v_rcp_f32 v{t}, v{t}')
        self.a('s_nop 0')
        self.a(f'v_mul_f32 v{t}, v{x}, v{t}')
        self.bf16r(d, t)

    def make_tag(self):
        self.a(f's_and_b32 {sT0}, {sTAG}, 0x7f7f7f7f')
        self.a(f's_add_u32 {sT0}, {sT0}, 0x47611b35')
        self.a(f's_and_b32 {sTAG}, {sTAG}, 0x80808080')
        self.a(f's_xor_b32 {sTAG}, {sTAG}, {sT0}')

    def check_quads(self, quads, vtag, t0, t1, t2):
        for i, q in enumerate(quads):
            self.a(f'v_perm_b32 v{t0}, v{q+1}, v{q}, {sSA}')
            self.a(f'v_perm_b32 v{t1}, v{q+3}, v{q+2}, {sSB}')
            if i == 0:
                self.a(f'v_bitop3_b32 v{t2}, v{t0}, v{t1}, v{vtag} bitop3:0x56')
            else:
                self.a(f'v_bitop3_b32 v{t0}, v{t0}, v{t1}, v{vtag} bitop3:0x56')
                self.a(f'v_or_b32 v{t2}, v{t2}, v{t0}')
        self.a(f'v_cmp_ne_u32 vcc, 0, v{t2}')

    def poll(self, loads, check, first_issued=False, sleep=0):
        again, done = self.newlab('again'), self.newlab('done')
        self.a(f's_mov_b32 {sCNT}, {self.spin}')
        if first_issued:
            check()
            self.a(f's_cbranch_vccz {done}')
        self.lab(again)
        if sleep:
            self.a(f's_sleep {sleep}')
        for x in loads:
            self.a(x)
        self.a(f's_sub_u32 {sCNT}, {sCNT}, 1')
        self.a('s_waitcnt vmcnt(0)')
        self.a(f's_cbranch_scc1 {done}')
        check()
        self.a(f's_cbranch_vccnz {again}')
        self.lab(done)

    def quad_reduce(self, v, lpp):
        self.a('s_nop 1')
        self.a(f'v_permlane32_swap_b32 v{v}, v{v+2}')
        self.a(f'v_permlane32_swap_b32 v{v+1}, v{v+3}')
        self.a(f'v_add_f32 v{v}, v{v}, v{v+2}')
        self.a(f'v_add_f32 v{v+1}, v{v+1}, v{v+3}')
        self.a('s_nop 1')
        self.a(f'v_permlane16_swap_b32 v{v}, v{v+1}')
        self.a(f'v_add_f32 v{v}, v{v}, v{v+1}')
        self.inrow_allreduce('v_add_f32', v, [r for r in (8, 4, 2) if r >= lpp])

    def tile_dot(self, npairs, vW, vX, vA, vB, waitp):
        a = self.a
        for p in range(npairs):
            waitp(p)
            w0, w1 = vW + 8 * p, vW + 8 * p + 4
            for e in range(8):
                a(f'v_perm_b32 v{vB+e}, v{w1+(e>>1)}, v{w0+(e>>1)}, {sPHI if e & 1 else sPLO}')
            for e in range(8):
                a(f'v_dot2_f32_bf16 v{vA+e}, v{vB+e}, v{vX+p}, {"0" if p == 0 else f"v{vA+e}"}')
        a('s_nop 2')
        for e in range(4):
            a(f'v_permlane32_swap_b32 v{vA+e}, v{vA+e+4}')
        for e in range(4):
            a(f'v_add_f32 v{vA+e}, v{vA+e}, v{vA+e+4}')
        a('s_nop 0')
        for e in range(2):
            a(f'v_permlane16_swap_b32 v{vA+e}, v{vA+e+2}')
        for e in range(2):
            a(f'v_add_f32 v{vA+e}, v{vA+e}, v{vA+e+2}')
        a('s_nop 0')
        self.dpp('v_add_f32', vA + 4, vA, vA, 'row_ror:8', 0x3)
        a('s_nop 1')
        self.dpp('v_add_f32', vA + 4, vA + 1, vA + 1, 'row_ror:8', 0xc)

    def srd(self, srd, p, nbytes):
        b = int(srd[2:srd.index(':')])
        self.a(f's_mov_b64 s[{b}:{b+1}], s[{p}:{p+1}]')
        self.a(f's_mov_b32 s{b+2}, {hex(nbytes)}')
        self.a(f's_mov_b32 s{b+3}, 0x20000')

    def barrier(self):
        self.a('s_waitcnt lgkmcnt(0)')
        if 'nobar' not in self.exp:
            self.a('s_barrier')

    def slot(self, n):
        return RING0 + 4 * (n % RING)

    def issue(self):
        n = self.n
        if n >= RING:
            old = n - RING
            assert (old < 32 and old < 4 * self.beta) or (old >= 32 and old - 32 < 4 * self.tau), (n, self.beta, self.tau)
        r = self.slot(n)
        off = (n % 32) * 8192
        srd, vo = (SRD_A, self.vK) if n < 32 else (SRD_B, self.vV)
        if off == 0:
            so = '0'
        else:
            self.a(f's_mov_b32 {sOFF}, {hex(off)}')
            so = sOFF
        self.load(f'L{n}', f'buffer_load_dwordx4 v[{r}:{r+3}], v{vo}, {srd}, {so} offen {self.pol}')
        self.stamp(f'_L{n}')
        self.n += 1

    def depth(self, n):
        return [d for f, d in self.Ds if n >= f][-1]

    def step(self):
        k = self.n - self.depth(self.n)
        if k > self.landed:
            self.wait(f'L{k}')
            self.landed = k
        self.issue()

    def steps_to(self, n):
        while self.n < n:
            self.step()

    def qk_batch(self):
        beta = self.beta
        half, t = beta >> 2, beta & 3
        Dr = self.vD
        if self.landed < 4 * beta + 3:
            self.wait(f'L{4*beta+3}')
            self.landed = 4 * beta + 3
        if 'noqk' in self.exp:
            self.beta += 1
            return
        for gam in range(4):
            r = self.slot(4 * beta + gam)
            self.a(f'v_mfma_f32_16x16x32_bf16 v[{Dr+4*gam}:{Dr+4*gam+3}], v[{r}:{r+3}], v[{self.vBq}:{self.vBq+3}], 0')
        self.a('s_nop 7')
        for k in (1, 2, 3):
            for gam in range(4):
                P = self.vP + 4 * half + gam
                d = Dr + 4 * gam
                self.dpp('v_add_f32', P, d + ((t + k) & 3), d + t if k == 1 else P, f'row_ror:{16-4*k}', 1 << t)
        self.beta += 1

    def pv_group(self):
        tau = self.tau
        if 'nopv' in self.exp:
            self.wait(f'L{32+4*tau+3}')
            self.tau += 1
            return
        B = self.vD
        for pair in range(2):
            v0 = self.slot(32 + 4 * tau + 2 * pair)
            v1 = self.slot(32 + 4 * tau + 2 * pair + 1)
            if self.landed < 32 + 4 * tau + 2 * pair + 1:
                self.wait(f'L{32+4*tau+2*pair+1}')
                self.landed = 32 + 4 * tau + 2 * pair + 1
            for e in range(8):
                self.a(f'v_perm_b32 v{B+2*e+pair}, v{v1+(e>>1)}, v{v0+(e>>1)}, {sPHI if e & 1 else sPLO}')
        half, t = tau >> 2, tau & 3
        PA = self.vPA + 2 * half
        for e in range(8):
            ac = self.vAcc + 4 * e
            c = '0' if tau == 0 else f'v[{ac}:{ac+3}]'
            self.a(f'v_mfma_f32_4x4x4_16b_bf16 v[{ac}:{ac+3}], v[{PA}:{PA+1}], v[{B+2*e}:{B+2*e+1}], {c} cbsz:2 abid:{t}')
        self.tau += 1

    def gen(self):
        a = self.a
        self.nw = 11 if (self.warm or self.pref) else 10
        self.L.append(f'; @launch grid=(256,1,1) block=({64*self.nw},1,1) lds={LDS_BYTES}')
        self.L.append('.amdgcn_target "amdgcn-amd-amdhsa--gfx950"')
        self.L.append('.text')
        self.L.append(f'.globl {NAME}')
        self.L.append('.p2align 8')
        self.L.append(f'.type {NAME},@function')
        self.lab(NAME)
        a('s_load_dwordx16 s[4:19], s[0:1], 0')
        a('s_load_dwordx8 s[20:27], s[0:1], 64')
        if self.stamps:
            for i in range(STAMP_BASE, 102, 2):
                a(f's_mov_b64 s[{i}:{i+1}], 0')
            self.stamp('start')
        a('s_cmp_ge_u32 s2, 0x100')
        a('s_cbranch_scc1 L_end')
        a('v_lshrrev_b32 v4, 6, v0')
        a('v_and_b32 v1, 63, v0')
        a(f'v_readfirstlane_b32 {sW}, v4')
        a(f's_and_b32 {sG}, s2, 7')
        a(f's_lshr_b32 {sJ}, s2, 3')
        a(f's_cmp_ge_u32 {sW}, 8')
        a('s_cbranch_scc1 L_helper')
        self.stream_wave()
        self.helpers()
        if self.stamps:
            self.lab('L_exit')
            self.stamp('end')
            a('s_waitcnt lgkmcnt(0)')
            a('v_mov_b32 v4, 0')
            for i in range(len(self.stamp_names)):
                a(f'v_writelane_b32 v4, s{STAMP_BASE+2*i}, {i}')
            if 'dbg' in self.exp:
                a(f's_not_b32 {sT1}, s{STAMP_BASE}')
                a(f'v_writelane_b32 v4, {sT1}, 15')
                a('v_lshlrev_b32 v5, 2, v1')
                a('s_mov_b64 exec, 0xffff')
                a('global_atomic_umax v5, v4, s[24:25]')
                a('s_endpgm')
            a(f's_getreg_b32 {sT1}, hwreg(HW_REG_XCC_ID)')
            a(f'v_writelane_b32 v4, {sT1}, 63')
            a(f's_mul_i32 {sT0}, s2, {self.nw}')
            a(f's_add_u32 {sT0}, {sT0}, {sW}')
            a(f's_lshl_b32 {sT0}, {sT0}, 8')
            a(f's_add_u32 {sT0}, {sT0}, {hex(STAMP)}')
            a(f'v_lshl_add_u32 v5, v1, 2, {sT0}')
            a(f'buffer_store_dword v4, v5, {SRD_WS}, 0 offen')
        else:
            self.lab('L_exit')
        self.lab('L_end')
        self.lab(f'L_pad_{self.npad}')
        a('s_endpgm')
        self.lab('L_codeend')
        self.L += ['.section .rodata,"a"', '.p2align 6', f'.amdhsa_kernel {NAME}',
                   f'  .amdhsa_next_free_vgpr {NVGPR}', '  .amdhsa_next_free_sgpr 102', f'  .amdhsa_accum_offset {NVGPR}',
                   '  .amdhsa_group_segment_fixed_size 0', '  .amdhsa_kernarg_size 96',
                   '  .amdhsa_user_sgpr_count 2', '  .amdhsa_user_sgpr_kernarg_segment_ptr 1',
                   '  .amdhsa_system_sgpr_workgroup_id_x 1',
                   '  .amdhsa_float_denorm_mode_32 3', '.end_amdhsa_kernel']
        return HEADER + '\n'.join(self.L) + '\n'

    def stream_wave(self):
        a = self.a
        CPC = self.CPC
        NCONS = 512 // CPC
        lg = int(math.log2(CPC))
        vLane = 1
        self.landed = -1
        self.vK, self.vV = 2, 3
        vAcc = self.vAcc = 4
        vP = self.vP = 4
        vD = self.vD = 36
        vPA = self.vPA = vBq = self.vBq = 52
        vT = 56
        vA0, vA1, vA2, vA3, vA4, vA5, vTB, vWt = range(64, 72)
        assert RING0 == 72
        self.n = self.beta = self.tau = 0
        self.vm = []

        a(f's_lshl_b32 {sT0}, {sG}, 23')
        a(f's_lshl_b32 {sT1}, {sJ}, 18')
        a(f's_add_u32 {sT0}, {sT0}, {sT1}')
        a(f's_lshl_b32 {sT1}, {sW}, 10')
        a(f's_add_u32 {sT0}, {sT0}, {sT1}')
        a(f'v_bfe_u32 v{vT}, v{vLane}, 2, 2')
        a(f'v_lshlrev_b32 v{vT}, 8, v{vT}')
        a(f'v_and_b32 v{vT+1}, 3, v{vLane}')
        a(f'v_lshl_add_u32 v{vT}, v{vT+1}, 4, v{vT}')
        a(f'v_lshrrev_b32 v{vT+2}, 4, v{vLane}')
        a(f'v_lshlrev_b32 v{vT+2}, 6, v{vT+2}')
        a(f'v_add3_u32 v{self.vK}, v{vT}, v{vT+2}, {sT0}')
        a('s_waitcnt lgkmcnt(0)')
        self.srd(SRD_A, 6, 64 << 20)
        if 'extra' in self.exp:
            self.srd(SRD_B, 8, 64 << 20)
            for i in range(32):
                a(f's_mov_b32 {sOFF}, {hex(i*8192)}')
                a(f'buffer_load_dwordx4 v[{self.slot(i)}:{self.slot(i)+3}], v{self.vK}, {SRD_B}, {sOFF} offen nt')
                a('s_waitcnt vmcnt(2)')
            a('s_waitcnt vmcnt(0)')
        self.steps_to(self.kfirst)
        self.stamp('issued0')
        a(f'v_lshl_add_u32 v{self.vV}, v{vLane}, 4, {sT0}')
        self.srd(SRD_X, 10, 4 << 20)
        a(f's_and_b32 {sT0}, {sJ}, 3')
        a(f's_lshl_b32 {sT0}, {sT0}, 7')
        a(f's_lshl_b32 {sT1}, {sW}, 1')
        a(f's_add_u32 {sT0}, {sT0}, {sT1}')
        a(f'v_lshrrev_b32 v{vT}, 3, v{vLane}')
        a(f'v_lshl_add_u32 v{vT}, v{vT}, 4, {sT0}')
        a(f'v_and_b32 v{vT+1}, 7, v{vLane}')
        a(f'v_lshlrev_b32 v{vT+1}, 4, v{vT+1}')
        a(f's_lshr_b32 {sT2}, {sJ}, 2')
        a(f's_lshl_b32 {sT0}, {sG}, 10')
        a(f's_lshl_b32 {sT1}, {sT2}, 7')
        a(f's_add_u32 {sT0}, {sT0}, {sT1}')
        a(f'v_lshlrev_b32 v{vT+2}, 13, v{vT}')
        a(f'v_add3_u32 v{vT+2}, v{vT+2}, v{vT+1}, {sT0}')
        a(f's_lshl_b32 {sT1}, {sW}, 11')
        a(f's_add_u32 m0, {sT1}, {L_TL}')
        a(f's_movk_i32 {sOFF}, {0x2000 - 1024}')
        self.load('tq0', f'buffer_load_dwordx4 v{vT+2}, {SRD_X}, 0 offen {self.wpol} lds')
        self.load('tq1', f'buffer_load_dwordx4 v{vT+2}, {SRD_X}, {sOFF} offen offset:1024 {self.wpol} lds')
        a(f's_lshl_b32 {sT2}, {sT2}, 3')
        a(f's_add_u32 {sT2}, {sT2}, {sG}')
        a(f's_sub_u32 {sT0}, {sT2}, 28')
        a(f's_cmp_ge_u32 {sT2}, 28')
        a(f's_cselect_b32 {sT2}, {sT0}, {sT2}')
        a('s_cselect_b64 s[40:41], s[18:19], s[16:17]')
        a(f's_mov_b32 s42, {hex(512*3584)}')
        a('s_mov_b32 s43, 0x20000')
        a(f's_lshl_b32 {sT2}, {sT2}, 7')
        a(f's_cmp_ge_u32 {sJ}, 28')
        a(f's_cselect_b32 {sT2}, 0x10000000, {sT2}')
        a(f'v_mul_u32_u24 v{vT+3}, 3584, v{vT}')
        a(f'v_add3_u32 v{vT+3}, v{vT+3}, v{vT+1}, {sT2}')
        a(f's_add_u32 m0, {sT1}, {L_TL + 16384}')
        a(f's_movk_i32 {sOFF}, {3584 - 1024}')
        self.load('tf0', f'buffer_load_dwordx4 v{vT+3}, {SRD_C}, 0 offen {self.wpol} lds')
        self.load('tf1', f'buffer_load_dwordx4 v{vT+3}, {SRD_C}, {sOFF} offen offset:1024 {self.wpol} lds')
        a(f's_load_dword {sTAG}, s[26:27], 0')
        self.srd(SRD_B, 8, 64 << 20)
        self.srd(SRD_WS, 26, 256 << 20)
        self.srd(SRD_OUT, 22, 1024)
        a(f's_mov_b32 {sPLO}, 0x05040100')
        a(f's_mov_b32 {sPHI}, 0x07060302')
        a(f's_mov_b32 {sC}, {hex(f2u(math.log2(math.e) / math.sqrt(128.0)))}')
        a(f's_mov_b32 {sSEL}, 0x07060500')
        a(f's_mov_b32 {sSA}, 0x0c0c0400')
        a(f's_mov_b32 {sSB}, 0x04000c0c')
        self.steps_to(self.nT or self.kfirst + self.depth(self.kfirst))
        self.wait('tf1')
        self.landed = max(self.landed, self.kfirst - 1)
        self.stamp('preT')
        a('s_barrier')
        self.srd(SRD_C, 12, 4 << 20)
        self.steps_to(self.nG)
        a('s_barrier')
        self.steps_to(self.nA)
        a(f'v_lshlrev_b32 v{vT}, 4, v{vLane}')
        self.stamp('preA')
        self.barrier()
        a(f'ds_read_b128 v[{vBq}:{vBq+3}], v{vT} offset:{L_BQ}')
        self.stamp('A')
        self.make_tag()
        a(f'v_and_b32 v{vT+6}, 3, v{vLane}')
        a(f'v_lshlrev_b32 v{vT+5}, 3, v{vT+6}')
        a(f'v_lshrrev_b32 v{vTB}, v{vT+5}, {sTAG}')
        a(f'v_lshlrev_b32 v{vT+6}, 5, v{vT+6}')
        a(f's_lshl_b32 {sT0}, {sW}, 2')
        a(f'v_add_u32 v{vT+7}, {sT0}, v{vT+6}')
        a('s_waitcnt lgkmcnt(0)')
        while self.beta < 8:
            if self.n - RING >= 4 * self.beta:
                self.qk_batch()
            self.step()
            if self.beta < 8 and 4 * self.beta + 3 <= self.landed:
                self.qk_batch()
        self.max8(vT, vP, vT + 1)
        self.inrow_allreduce('v_max_f32', vT, (8, 4))
        self.rows_allreduce('v_max_f32', vT, vT + 1)
        a(f'ds_write_b32 v{vT+7}, v{vT} offset:{L_MB}')
        self.step()
        self.stamp('_preB')
        self.barrier()
        a(f'ds_read_b128 v[{vD}:{vD+3}], v{vT+6} offset:{L_MB}')
        a(f'ds_read_b128 v[{vD+4}:{vD+7}], v{vT+6} offset:{L_MB+16}')
        a('s_waitcnt lgkmcnt(0)')
        self.max8(vT, vD, vT + 1)
        a(f'v_mul_f32 v{vT}, {sC}, v{vT}')
        for i in range(8):
            a(f'v_fma_f32 v{vP+i}, v{vP+i}, {sC}, -v{vT}')
        for i in range(8):
            a(f'v_exp_f32 v{vP+i}, v{vP+i}')
        a('s_nop 0')
        for i in range(4):
            a(f'v_cvt_pk_bf16_f32 v{vPA+i}, v{vP+2*i}, v{vP+2*i+1}')
        self.sum8(vT, vP)
        self.inrow_allreduce('v_add_f32', vT, (8, 4))
        self.rows_allreduce('v_add_f32', vT, vT + 1)
        a(f'ds_write_b32 v{vT+7}, v{vT} offset:{L_LB}')
        self.step()
        self.barrier()
        self.stamp('C')
        self.step()

        a(f'v_lshrrev_b32 v{vT}, 4, v{vLane}')
        a(f'v_mul_u32_u24 v{vT}, 160, v{vT}')
        a(f'v_and_b32 v{vT+1}, 15, v{vLane}')
        a(f'v_lshlrev_b32 v{vT+2}, 3, v{vT+1}')
        a(f's_mul_i32 {sT0}, {sW}, 2560')
        a(f'v_add3_u32 v{vA0}, v{vT}, v{vT+2}, {sT0}')
        a(f'v_lshrrev_b32 v{vT}, 7, v0')
        a(f'v_mul_u32_u24 v{vT}, 640, v{vT}')
        a(f'v_bfe_u32 v{vT+2}, v0, 1, 2')
        a(f'v_mul_u32_u24 v{vT+2}, 160, v{vT+2}')
        a(f'v_bfe_u32 v{vT+3}, v0, 3, 4')
        a(f'v_lshlrev_b32 v{vT+3}, 3, v{vT+3}')
        a(f'v_add3_u32 v{vT}, v{vT}, v{vT+2}, v{vT+3}')
        a(f'v_and_b32 v{vT+2}, 1, v0')
        a(f'v_lshl_add_u32 v{vA1}, v{vT+2}, 2, v{vT}')
        a(f'v_add_u32 v{vA1}, {L_OB}, v{vA1}')
        a(f's_lshl_b32 {sT2}, {sG}, 16')
        a(f's_add_u32 {sT2}, {sT2}, {hex(OBOX)}')
        a(f's_lshl_b32 {sT1}, {sJ}, 6')
        a(f's_add_u32 {sT0}, {sT2}, {sT1}')
        a(f'v_lshrrev_b32 v{vT}, 4, v0')
        a(f'v_lshlrev_b32 v{vWt}, 2, v{vT}')
        a(f'v_lshlrev_b32 v{vT}, 11, v{vT}')
        a(f'v_lshlrev_b32 v{vT+2}, 2, v{vT+1}')
        a(f'v_add3_u32 v{vA2}, v{vT}, v{vT+2}, {sT0}')
        a(f's_lshl_b32 {sT1}, {sJ}, 11')
        a(f's_add_u32 {sT0}, {sT2}, {sT1}')
        a(f'v_lshl_add_u32 v{vA3}, v0, 2, {sT0}')
        a(f'v_lshrrev_b32 v{vT}, {lg}, v0')
        a(f'v_lshlrev_b32 v{vT}, {lg+10}, v{vT}')
        a(f'v_and_b32 v{vT+2}, {CPC-1}, v0')
        a(f'v_lshlrev_b32 v{vT+2}, 2, v{vT+2}')
        a(f's_lshl_b32 {sT0}, s2, {lg+2}')
        a(f's_add_u32 {sT0}, {sT0}, {hex(SBOX)}')
        a(f'v_add3_u32 v{vA4}, v{vT}, v{vT+2}, {sT0}')
        a(f'v_lshlrev_b32 v{vA5}, 1, v0')
        a(f'v_lshlrev_b32 v{vT+6}, 5, v{vT+1}')
        a(f's_lshl_b32 {sT0}, {sW}, 2')
        a(f'v_add_u32 v{vT+7}, {sT0}, v{vT+6}')

        while self.n < 64:
            if self.n - RING - 32 >= 4 * self.tau:
                self.pv_group()
            self.step()
            if self.n == self.nM:
                a('s_barrier')
            if 32 + 4 * self.tau + 3 <= self.landed:
                self.pv_group()
        self.stamp('allissued')
        vW = self.slot(40)
        SG = self.slot(44)
        while self.tau < 4:
            self.pv_group()
        assert vW == RING0 + 64
        a(f's_lshl_b32 {sT0}, {sG}, 19')
        a(f's_lshl_b32 {sT1}, {sJ}, 14')
        a(f's_add_u32 {sT0}, {sT0}, {sT1}')
        for e in range(16):
            if e and e % 4 == 0:
                a(f's_add_u32 {sT0}, {sT0}, 0x1000')
            self.load(f'wo{e}', f'buffer_load_short_d16_hi v{vW+e}, v{vA5}, {SRD_C}, {sT0} offen offset:{(e & 3)*1024} {self.opol}')
        while self.tau < 7:
            self.pv_group()
        if self.warm:
            self.padding = True
            self.pad()
        self.pv_group()
        self.stamp('pvdone')
        if 'notail' in self.exp:
            a('s_branch L_exit')
        a('s_nop 1')
        for e in range(4):
            for h in range(4):
                a(f'v_permlane32_swap_b32 v{vAcc+4*e+h}, v{vAcc+4*(e+4)+h}')
        for e in range(4):
            for h in range(4):
                a(f'v_add_f32 v{vAcc+4*e+h}, v{vAcc+4*e+h}, v{vAcc+4*(e+4)+h}')
        for e in range(2):
            for h in range(4):
                a(f'v_permlane16_swap_b32 v{vAcc+4*e+h}, v{vAcc+4*(e+2)+h}')
        for h in range(4):
            a(f'v_add_f32 v{vD+2*h}, v{vAcc+h}, v{vAcc+8+h}')
            a(f'v_add_f32 v{vD+2*h+1}, v{vAcc+4+h}, v{vAcc+12+h}')
            a(f'ds_write_b64 v{vA0}, v[{vD+2*h}:{vD+2*h+1}] offset:{L_OB+640*h}')
        self.barrier()
        for k in range(4):
            a(f'ds_read2st64_b32 v[{vD+2*k}:{vD+2*k+1}], v{vA1} offset0:{20*k} offset1:{20*k+10}')
        a(f'ds_read_b32 v{vWt}, v{vWt} offset:{L_WB}')
        a('s_waitcnt lgkmcnt(1)')
        self.sum8(vT, vD)
        a(f'v_perm_b32 v{vT}, v{vT}, v{vTB}, {sSEL}')
        a(f'buffer_store_dword v{vT}, v{vA2}, {SRD_WS}, 0 offen sc1')
        self.stamp('opub')

        self.poll([f'buffer_load_dword v{vT+1}, v{vA3}, {SRD_WS}, 0 offen sc1'],
                  lambda: a(f'v_cmp_ne_u32_sdwa vcc, v{vT+1}, v{vTB} src0_sel:BYTE_0 src1_sel:BYTE_0'))
        self.stamp('goto')
        a('s_waitcnt lgkmcnt(0)')
        a(f'v_mul_f32 v{vT+1}, v{vT+1}, v{vWt}')
        self.rows_allreduce('v_add_f32', vT + 1, vT + 2)
        a(f'ds_write_b32 v{vT+7}, v{vT+1} offset:{L_O2}')
        self.barrier()
        a(f'ds_read_b128 v[{vD}:{vD+3}], v{vT+6} offset:{L_O2}')
        a(f'ds_read_b128 v[{vD+4}:{vD+7}], v{vT+6} offset:{L_O2+16}')
        a('s_waitcnt lgkmcnt(0)')
        self.sum8(vT, vD)
        a('s_nop 1')
        for e in range(16):
            op = 'v_mul_f32' if e < 4 else 'v_fmac_f32'
            self.dpp(op, vD + (e & 3), vT, vW + e, f'row_newbcast:{e}')
        a(f'v_add_f32 v{vD}, v{vD}, v{vD+2}')
        a(f'v_add_f32 v{vD+1}, v{vD+1}, v{vD+3}')
        a(f'v_add_f32 v{vT}, v{vD}, v{vD+1}')
        a(f'v_perm_b32 v{vT}, v{vT}, v{vTB}, {sSEL}')
        a(f'buffer_store_dword v{vT}, v{vA4}, {SRD_WS}, 0 offen sc1')
        self.stamp('spub')

        a(f's_cmp_ge_u32 s2, {NCONS}')
        a('s_cbranch_scc1 L_exit')
        nl, lpp = CPC // 8, CPC // 4
        a(f's_lshl_b32 {sT0}, s2, {lg+10}')
        a(f's_add_u32 {sT0}, {sT0}, {hex(SBOX)}')
        a(f'v_lshl_add_u32 v{vA0}, v0, 4, {sT0}')
        sl = []
        for u in range(nl):
            if u:
                sl.append(f's_movk_i32 {sT2}, {hex(u*8192)}')
            sl.append(f'buffer_load_dwordx4 v[{SG+4*u}:{SG+4*u+3}], v{vA0}, {SRD_WS}, {sT2 if u else 0} offen sc1')
        for x in sl:
            a(x)
        a(f'v_mov_b32 v{vA1}, {sTAG}')
        a(f'v_and_b32 v{vT+1}, {lpp-1}, v{vLane}')
        a(f'v_lshlrev_b32 v{vT+1}, 7, v{vT+1}')
        a(f'v_lshrrev_b32 v{vT+2}, 4, v{vLane}')
        a(f'v_lshlrev_b32 v{vT+2}, 5, v{vT+2}')
        a(f's_lshl_b32 {sT0}, {sW}, 2')
        a(f'v_add3_u32 v{vA2}, v{vT+1}, v{vT+2}, {sT0}')
        a(f'v_and_b32 v{vT+1}, {CPC-1}, v{vLane}')
        a(f'v_lshlrev_b32 v{vA3}, 5, v{vT+1}')
        a(f'v_lshlrev_b32 v{vT+2}, 2, v{vT+1}')
        a(f'ds_read_b32 v{vA4}, v{vT+2} offset:{L_GB}')
        a(f'ds_read_b32 v{vA5}, v{vT+2} offset:{L_XB}')
        a(f's_lshl_b32 {sT0}, s2, {lg+1}')
        a(f'v_lshl_add_u32 v{vWt}, v{vT+1}, 1, {sT0}')
        a('s_waitcnt vmcnt(0)')
        self.poll(sl, lambda: self.check_quads([SG + 4 * u for u in range(nl)], vA1, vT + 1, vT + 2, vT + 3), True)
        self.stamp('gots')
        for u in range(1, nl):
            for k in range(4):
                a(f'v_add_f32 v{SG+k}, v{SG+k}, v{SG+4*u+k}')
        self.quad_reduce(SG, lpp)
        a(f'ds_write_b32 v{vA2}, v{SG} offset:{L_S2}')
        self.barrier()
        a(f's_cmp_lg_u32 {sW}, 0')
        a('s_cbranch_scc1 L_exit')
        a(f'ds_read_b128 v[{vD}:{vD+3}], v{vA3} offset:{L_S2}')
        a(f'ds_read_b128 v[{vD+4}:{vD+7}], v{vA3} offset:{L_S2+16}')
        a(f's_mov_b32 exec_lo, {hex((1 << CPC) - 1)}')
        a('s_mov_b32 exec_hi, 0')
        a('s_waitcnt lgkmcnt(0)')
        self.sum8(vT, vD)
        self.bf16r(vT, vT)
        a(f'v_mul_f32 v{vT}, v{vT}, v{vA4}')
        self.bf16r(vT, vT)
        a(f'v_add_f32 v{vT}, v{vT}, v{vA5}')
        a(f'v_cvt_pk_bf16_f32 v{vT}, v{vT}, v{vT}')
        a(f'buffer_store_short v{vT}, v{vWt}, {SRD_OUT}, 0 offen')
        self.padding = False
        a('s_mov_b64 exec, -1')
        a('s_cmp_lg_u32 s2, 0')
        a('s_cbranch_scc1 L_exit')
        a(f'v_mov_b32 v{vT}, 0')
        a('s_mov_b64 exec, 1')
        a(f'buffer_store_dword v{vA1}, v{vT}, {SRD_WS}, 0 offen sc1')
        a('s_mov_b64 exec, -1')
        a('s_branch L_exit')

    def helpers(self):
        a = self.a
        CPC = self.CPC
        NCONS = 512 // CPC
        lg = int(math.log2(CPC))
        vLane = 1
        vT = 4
        vX = 16
        vA = 24
        vB = 32
        vW = 40
        vTag, vTB = 2, 3
        vCol, vTC = 166, 167
        sSTR, sPUB = sPLO, sPHI
        self.lab('L_helper')
        if 'nohelp' in self.exp:
            a('s_endpgm')
        if self.prio:
            a(f's_setprio {self.prio}')
        a('s_waitcnt lgkmcnt(0)')
        self.stamp('_hstart')
        a(f's_load_dword {sTAG}, s[26:27], 0')
        self.srd(SRD_WS, 26, 256 << 20)
        if self.nw > 10:
            a(f's_cmp_eq_u32 {sW}, 10')
            a('s_cbranch_scc1 L_h2')
        self.vm = []
        self.srd(SRD_X, 4, 1024)
        a(f'v_lshlrev_b32 v{vT}, 4, v{vLane}')
        self.load('x16', f'buffer_load_dwordx4 v[{vX}:{vX+3}], v{vT}, {SRD_X}, 0 offen')
        sRB, sCB, sPUB = 's60', 's61', 's3'
        a(f's_and_b32 {sRB}, {sJ}, 3')
        a(f's_lshr_b32 {sCB}, {sJ}, 2')
        a(f's_cmp_eq_u32 {sW}, 8')
        a('s_cbranch_scc0 L_h1_setup')
        a(f's_lshl_b32 {sPUB}, {sG}, 13')
        a(f's_lshl_b32 {sT0}, {sRB}, 11')
        a(f's_add_u32 {sPUB}, {sPUB}, {sT0}')
        a(f's_add_u32 {sPUB}, {sPUB}, {hex(QBOX)}')
        a('s_branch L_tile')
        self.lab('L_h1_setup')
        a(f's_cmp_ge_u32 {sJ}, 28')
        a('s_cbranch_scc1 L_h1_notile')
        a(f's_lshl_b32 {sCB}, {sCB}, 3')
        a(f's_add_u32 {sCB}, {sCB}, {sG}')
        a(f's_sub_u32 {sT0}, {sCB}, 28')
        a(f's_cmp_ge_u32 {sCB}, 28')
        a(f's_cselect_b32 {sCB}, {sT0}, {sCB}')
        a(f's_cselect_b32 {sPUB}, {hex(4*7168)}, 0')
        a(f's_add_u32 {sPUB}, {sPUB}, {hex(HBOX)}')
        a(f's_mul_i32 {sT0}, {sRB}, 7168')
        a(f's_add_u32 {sPUB}, {sPUB}, {sT0}')
        self.lab('L_tile')
        a(f's_lshl_b32 {sT0}, {sCB}, 8')
        a(f's_add_u32 {sPUB}, {sPUB}, {sT0}')
        a(f'v_lshrrev_b32 v{vT+4}, 3, v{vLane}')
        a(f'v_lshlrev_b32 v{vT+1}, 4, v{vT+4}')
        a(f's_lshl_b32 {sT0}, {sRB}, 7')
        a(f'v_add_u32 v{vT+1}, {sT0}, v{vT+1}')
        a(f's_sub_u32 {sT0}, {sW}, 8')
        a(f's_lshl_b32 {sT1}, {sT0}, 14')
        a(f'v_add_u32 v{vT+2}, {sT1}, v{vT}')
        a(f's_lshl_b32 {sT0}, {sT0}, 10')
        a(f'v_add_u32 v{vT}, {sT0}, v{vT}')
        a(f'v_lshl_add_u32 v{vT+1}, v{vT+1}, 1, {sT0}')
        a(f'v_and_b32 v{vT+3}, 7, v{vLane}')
        a(f'v_lshlrev_b32 v{vT+3}, 5, v{vT+3}')
        a(f'v_lshl_add_u32 v{vCol}, v{vT+4}, 2, v{vT+3}')
        a(f'v_add_u32 v{vT+3}, {sPUB}, v{vCol}')
        a(f'v_and_b32 v{vT+4}, 3, v{vT+4}')
        a(f'v_lshlrev_b32 v{vT+4}, 3, v{vT+4}')
        a(f's_mov_b32 {sPLO}, 0x05040100')
        a(f's_mov_b32 {sPHI}, 0x07060302')
        self.wait('x16')
        self.stamp('_x16')
        for k in range(4):
            a(f'v_lshlrev_b32 v{vA+2*k}, 16, v{vX+k}')
            a(f'v_and_b32 v{vA+2*k+1}, 0xffff0000, v{vX+k}')
        m, s2, t = vT + 5, vT + 6, vT + 7
        a(f'v_add_f32 v{m}, v{vA}, v{vA+1}')
        for k in range(2, 8):
            a(f'v_add_f32 v{m}, v{m}, v{vA+k}')
        self.inrow_allreduce('v_add_f32', m, (8, 4, 2, 1))
        self.rows_allreduce('v_add_f32', m, t)
        a(f'v_mul_f32 v{m}, {hex(f2u(1/512.))}, v{m}')
        for k in range(8):
            a(f'v_sub_f32 v{vB+k}, v{vA+k}, v{m}')
        a(f'v_mul_f32 v{s2}, v{vB}, v{vB}')
        for k in range(1, 8):
            a(f'v_fmac_f32 v{s2}, v{vB+k}, v{vB+k}')
        self.inrow_allreduce('v_add_f32', s2, (8, 4, 2, 1))
        self.rows_allreduce('v_add_f32', s2, t)
        a(f'v_mul_f32 v{s2}, {hex(f2u(1/512.))}, v{s2}')
        self.bf16r(m, m)
        self.bf16r(s2, s2)
        a(f'v_add_f32 v{s2}, {hex(f2u(1e-5))}, v{s2}')
        self.bf16r(s2, s2)
        a(f'v_sqrt_f32 v{s2}, v{s2}')
        for k in range(8):
            a(f'v_sub_f32 v{vA+k}, v{vA+k}, v{m}')
        self.bf16r(s2, s2)
        a(f'v_rcp_f32 v{s2}, v{s2}')
        for k in range(4):
            a(f'v_cvt_pk_bf16_f32 v{vX+k}, v{vA+2*k}, v{vA+2*k+1}')
        for k in range(4):
            a(f'v_lshlrev_b32 v{vA+2*k}, 16, v{vX+k}')
            a(f'v_and_b32 v{vA+2*k+1}, 0xffff0000, v{vX+k}')
        for k in range(8):
            a(f'v_mul_f32 v{vA+k}, v{vA+k}, v{s2}')
        for k in range(4):
            a(f'v_cvt_pk_bf16_f32 v{vX+k}, v{vA+2*k}, v{vA+2*k+1}')
        a(f'ds_write_b128 v{vT}, v[{vX}:{vX+3}] offset:{L_XN}')
        a('s_waitcnt lgkmcnt(0)')
        a(f'ds_read_b128 v[{vX}:{vX+3}], v{vT+1} offset:{L_XN}')
        a(f'ds_read_b128 v[{vX+4}:{vX+7}], v{vT+1} offset:{L_XN+16}')
        self.make_tag()
        a(f'v_lshrrev_b32 v{vTC}, v{vT+4}, {sTAG}')
        a(f's_mov_b32 {sSEL}, 0x07060500')
        self.stamp('_ln')
        self.barrier()
        for u in range(16):
            a(f'ds_read_b128 v[{vW+4*u}:{vW+4*u+3}], v{vT+2} offset:{L_TL+1024*u}')
        self.tile_dot(8, vW, vX, vA, vB, lambda p: a(f's_waitcnt lgkmcnt({min(15, 14-2*p)})'))
        a(f'v_perm_b32 v{vA+4}, v{vA+4}, v{vTC}, {sSEL}')
        if 'h_tileonly' in self.exp:
            a('s_branch L_exit')
        a(f'buffer_store_dword v{vA+4}, v{vT+3}, {SRD_WS}, 0 offen sc1')
        self.stamp('tilepub')
        if 'h_pubonly' in self.exp:
            a('s_branch L_exit')
        a(f's_cmp_eq_u32 {sW}, 8')
        a('s_cbranch_scc0 L_h1')

        a(f's_mov_b32 {sSA}, 0x0c0c0400')
        a(f's_mov_b32 {sSB}, 0x04000c0c')
        a(f'v_mov_b32 v{vTag}, {sTAG}')
        a(f's_lshl_b32 {sT0}, {sG}, 13')
        a(f's_add_u32 {sT0}, {sT0}, {hex(QBOX)}')
        a(f'v_lshrrev_b32 v{vT}, 5, v{vLane}')
        a(f'v_and_b32 v{vT+1}, 31, v{vLane}')
        a(f'v_lshlrev_b32 v{vT+2}, 11, v{vT}')
        a(f'v_lshlrev_b32 v{vT+3}, 4, v{vT+1}')
        a(f'v_add3_u32 v{vT+2}, v{vT+2}, v{vT+3}, {sT0}')
        a(f's_movk_i32 {sT2}, 0x1000')
        a(f'v_lshrrev_b32 v{vT+1}, 1, v{vT+1}')
        a(f'v_lshlrev_b32 v{vT+1}, 6, v{vT+1}')
        a(f'v_and_b32 v{vT+3}, 1, v{vLane}')
        a(f'v_lshlrev_b32 v{vT+3}, 3, v{vT+3}')
        a(f'v_lshl_add_u32 v{vT+1}, v{vT}, 2, v{vT+1}')
        a(f'v_add_u32 v{vT+1}, v{vT+1}, v{vT+3}')
        ql = [f'buffer_load_dwordx4 v[{vW+8*h+4*b}:{vW+8*h+4*b+3}], v{vT+2}, {SRD_WS}, {sT2 if b else 0} offen offset:{512*h} sc1'
              for h in range(4) for b in range(2)]
        a('s_barrier')
        self.poll(ql, lambda: self.check_quads([vW + 4 * i for i in range(8)], vTag, vT + 4, vT + 5, vT + 6))
        self.stamp('gotq')
        for h in range(4):
            for k in range(4):
                a(f'v_add_f32 v{vW+8*h+k}, v{vW+8*h+k}, v{vW+8*h+4+k}')
        for h in range(4):
            a(f'v_permlane32_swap_b32 v{vW+8*h}, v{vW+8*h+2}')
            a(f'v_permlane32_swap_b32 v{vW+8*h+1}, v{vW+8*h+3}')
        for h in range(4):
            a(f'v_add_f32 v{vW+8*h}, v{vW+8*h}, v{vW+8*h+2}')
            a(f'v_add_f32 v{vW+8*h+1}, v{vW+8*h+1}, v{vW+8*h+3}')
            a(f'v_cvt_pk_bf16_f32 v{vW+8*h}, v{vW+8*h}, v{vW+8*h+1}')
            a(f'ds_write_b32 v{vT+1}, v{vW+8*h} offset:{L_BQ+16*h}')
        self.barrier()
        if 'h_noml' in self.exp:
            a('s_branch L_exit')
        a(f'v_and_b32 v{vT}, 3, v{vLane}')
        a(f'v_lshlrev_b32 v{vT}, 5, v{vT}')
        a(f's_lshl_b32 {sT2}, {sG}, 11')
        a(f's_add_u32 {sT2}, {sT2}, {hex(MLBOX)}')
        a(f's_lshl_b32 {sT1}, {sJ}, 4')
        a(f's_add_u32 {sT0}, {sT2}, {sT1}')
        a(f'v_lshl_add_u32 v{vT+1}, v{vT}, 4, {sT0}')
        a(f's_lshr_b32 {sT1}, {sJ}, 3')
        a(f's_lshl_b32 {sT1}, {sT1}, 9')
        a(f's_add_u32 {sT0}, {sT2}, {sT1}')
        a(f'v_and_b32 v{vT+2}, 31, v{vLane}')
        a(f'v_lshlrev_b32 v{vT+3}, 2, v{vT+2}')
        a(f'v_lshl_add_u32 v{vT+2}, v{vT+2}, 4, {sT0}')
        a(f'v_mov_b32 v{vX+2}, {sTAG}')
        a(f'v_mov_b32 v{vX+3}, {sTAG}')
        a(f's_mov_b32 {sC}, {hex(f2u(math.log2(math.e) / math.sqrt(128.0)))}')
        a('s_barrier')
        a(f'ds_read_b128 v[{vA}:{vA+3}], v{vT} offset:{L_MB}')
        a(f'ds_read_b128 v[{vA+4}:{vA+7}], v{vT} offset:{L_MB+16}')
        a('s_waitcnt lgkmcnt(0)')
        self.max8(vX, vA, vT + 4)
        a('s_barrier')
        a(f'ds_read_b128 v[{vA}:{vA+3}], v{vT} offset:{L_LB}')
        a(f'ds_read_b128 v[{vA+4}:{vA+7}], v{vT} offset:{L_LB+16}')
        a('s_waitcnt lgkmcnt(0)')
        self.sum8(vX + 1, vA)
        if 'ml_nopub' in self.exp:
            a('s_branch L_exit')
        a('s_mov_b64 exec, 0xf')
        a(f'buffer_store_dwordx4 v[{vX}:{vX+3}], v{vT+1}, {SRD_WS}, 0 offen sc1')
        a('s_mov_b64 exec, -1')
        if 'ml_pubonly' in self.exp:
            a('s_branch L_exit')
        a('s_barrier')

        def chk_ml():
            a(f'v_xor_b32 v{vT+4}, {sTAG}, v{vB+2}')
            a(f'v_xor_b32 v{vT+5}, {sTAG}, v{vB+3}')
            a(f'v_or_b32 v{vT+4}, v{vT+4}, v{vT+5}')
            a(f'v_cmp_ne_u32 vcc, 0, v{vT+4}')
        self.poll([f'buffer_load_dwordx4 v[{vB}:{vB+3}], v{vT+2}, {SRD_WS}, 0 offen sc1'], chk_ml, sleep=4)
        mx, y, t = vT + 4, vT + 5, vT + 6
        a(f'v_mov_b32 v{mx}, v{vB}')
        self.inrow_allreduce('v_max_f32', mx, (8, 4, 2, 1))
        self.rows_allreduce('v_max_f32', mx, t, do32=False)
        a(f'v_sub_f32 v{mx}, v{vB}, v{mx}')
        a(f'v_mul_f32 v{mx}, {sC}, v{mx}')
        a(f'v_exp_f32 v{mx}, v{mx}')
        a('s_nop 0')
        a(f'v_mul_f32 v{y}, v{mx}, v{vB+1}')
        self.inrow_allreduce('v_add_f32', y, (8, 4, 2, 1))
        self.rows_allreduce('v_add_f32', y, t, do32=False)
        a(f'v_rcp_f32 v{y}, v{y}')
        a('s_nop 0')
        a(f'v_mul_f32 v{mx}, v{mx}, v{y}')
        a(f'ds_write_b32 v{vT+3}, v{mx} offset:{L_WB}')
        self.stamp('mlw')
        a('s_waitcnt lgkmcnt(0)')
        a('s_branch L_exit')

        self.lab('L_h1_notile')
        a('s_waitcnt vmcnt(0) lgkmcnt(0)')
        a('s_branch L_exit')
        self.lab('L_h1')
        if 'h_nof' in self.exp:
            a('s_branch L_exit')
        self.srd(SRD_B, 20, 1792 * 1024)
        sFI, sRD, sCD = 's8', 's9', 's10'
        a(f's_mul_i32 {sFI}, {sG}, 28')
        a(f's_add_u32 {sFI}, {sFI}, {sJ}')
        a(f's_lshr_b32 {sRD}, {sFI}, 3')
        a(f's_and_b32 {sCD}, {sFI}, 7')
        a(f's_lshl_b32 {sT0}, {sRD}, 16')
        a(f's_lshl_b32 {sT1}, {sCD}, 7')
        a(f's_add_u32 {sT0}, {sT0}, {sT1}')
        a(f'v_lshrrev_b32 v{vT+2}, 3, v{vLane}')
        a(f'v_lshlrev_b32 v{vT}, 13, v{vT+2}')
        a(f'v_lshlrev_b32 v{vT+2}, 4, v{vT+2}')
        a(f'v_and_b32 v{vT+1}, 7, v{vLane}')
        a(f'v_lshlrev_b32 v{vT+1}, 4, v{vT+1}')
        a(f'v_add3_u32 v{vT}, v{vT}, v{vT+1}, {sT0}')
        a(f's_movk_i32 {sT2}, 0x1000')
        a('s_barrier')
        for e in range(8):
            a(f'buffer_load_dwordx4 v[{vW+4*e}:{vW+4*e+3}], v{vT}, {SRD_B}, {sT2 if e >= 4 else 0} offen offset:{(e & 3)*1024} {self.wpol}')
        a(f's_lshl_b32 {sT0}, {sRD}, 8')
        a(f's_add_u32 {sT0}, {sT0}, {hex(HBOX)}')
        a(f'v_lshl_add_u32 v{vT+1}, v{vLane}, 2, {sT0}')
        a(f'v_and_b32 v{vT+3}, 3, v{vLane}')
        a(f'v_lshlrev_b32 v{vT+3}, 3, v{vT+3}')
        a(f'v_lshrrev_b32 v{vTB}, v{vT+3}, {sTAG}')
        a(f'v_lshlrev_b32 v{vT+3}, 1, v{vLane}')
        a(f's_lshl_b32 {sT0}, {sCD}, 13')
        a(f's_lshl_b32 {sT1}, {sRD}, 8')
        a(f's_add_u32 {sT0}, {sT0}, {sT1}')
        a(f's_add_u32 {sT0}, {sT0}, {hex(FBOX)}')
        a(f'v_add_u32 v{vCol}, {sT0}, v{vCol}')
        a('s_barrier')
        hl = []
        for k in range(8):
            if k:
                hl.append(f's_movk_i32 {sT2}, {k*7168 - (0 if k < 4 else 0x7000)}')
            if k == 4:
                hl.append(f'v_add_u32 v{vT+4}, 0x7000, v{vT+1}')
            hl.append(f'buffer_load_dword v{vB+k}, v{vT+1 if k < 4 else vT+4}, {SRD_WS}, {sT2 if k else 0} offen sc1')

        def chk_h():
            a(f'v_xor_b32 v{vT+4}, v{vB}, v{vTB}')
            for k in range(1, 8):
                a(f'v_bitop3_b32 v{vT+4}, v{vB+k}, v{vTB}, v{vT+4} bitop3:0xbe')
            a(f'v_and_b32 v{vT+4}, 0xff, v{vT+4}')
            a(f'v_cmp_ne_u32 vcc, 0, v{vT+4}')
        self.poll(hl, chk_h, sleep=0)
        for b in (vB, vB + 4):
            a(f'v_add_f32 v{b}, v{b}, v{b+1}')
            a(f'v_add_f32 v{b+2}, v{b+2}, v{b+3}')
            a(f'v_add_f32 v{b}, v{b}, v{b+2}')
            self.bf16r(b, b)
        self.silu_bf16(vB + 1, vB, vB + 2)
        a(f'v_mul_f32 v{vB+1}, v{vB+1}, v{vB+4}')
        a(f'v_cvt_pk_bf16_f32 v{vB+1}, v{vB+1}, v{vB+1}')
        a(f'ds_write_b16 v{vT+3}, v{vB+1} offset:{L_HB}')
        a('s_waitcnt lgkmcnt(0)')
        a(f'ds_read_b128 v[{vX}:{vX+3}], v{vT+2} offset:{L_HB}')
        a('s_waitcnt lgkmcnt(0)')
        self.tile_dot(4, vW, vX, vA, vB, lambda p: None)
        a(f'v_perm_b32 v{vA+4}, v{vA+4}, v{vTC}, {sSEL}')
        a(f'buffer_store_dword v{vA+4}, v{vCol}, {SRD_WS}, 0 offen sc1')
        self.stamp('fpub')
        if 'h_nofg' in self.exp:
            a('s_branch L_exit')
        a(f's_cmp_ge_u32 s2, {NCONS}')
        a('s_cbranch_scc1 L_exit')
        lpp = CPC // 4
        ppl = 64 // lpp
        nl = -(-28 // ppl)
        last = (28 - (nl - 1) * ppl) * lpp
        a(f'v_mov_b32 v{vTag}, {sTAG}')
        a(f's_mov_b32 {sSA}, 0x0c0c0400')
        a(f's_mov_b32 {sSB}, 0x04000c0c')
        a(f's_lshr_b32 {sT0}, s2, {6-lg}')
        a(f's_lshl_b32 {sT0}, {sT0}, 13')
        a(f's_and_b32 {sT1}, s2, {64//CPC - 1}')
        a(f's_lshl_b32 {sT1}, {sT1}, {lg+2}')
        a(f's_add_u32 {sT0}, {sT0}, {sT1}')
        a(f's_add_u32 {sT0}, {sT0}, {hex(FBOX)}')
        a(f'v_and_b32 v{vT+1}, {lpp-1}, v{vLane}')
        a(f'v_lshlrev_b32 v{vT+2}, 4, v{vT+1}')
        a(f'v_lshrrev_b32 v{vT}, {lg-2}, v{vLane}')
        a(f'v_lshlrev_b32 v{vT}, 8, v{vT}')
        a(f'v_add3_u32 v{vT}, v{vT}, v{vT+2}, {sT0}')
        a(f'v_lshrrev_b32 v{vT+2}, 4, v{vLane}')
        a(f'v_lshl_add_u32 v{vT+1}, v{vT+1}, 2, v{vT+2}')
        a(f's_lshl_b32 {sT0}, s2, {lg+1}')
        a(f'v_lshl_add_u32 v{vT+2}, v{vT+1}, 1, {sT0}')
        a(f'v_lshlrev_b32 v{vT+1}, 2, v{vT+1}')
        a(f'buffer_load_short_d16_hi v{vT+3}, v{vT+2}, {SRD_X}, 0 offen')
        for k in range(4):
            a(f'v_bfe_u32 v{vW+4*(nl-1)+k}, v{vTag}, {8*k}, 8')
        a('s_barrier')
        a('s_barrier')
        a('s_barrier')
        fl = []
        for u in range(nl):
            off = u * ppl * 256
            if u == nl - 1 and last < 64:
                fl.append(f's_mov_b32 exec_lo, {hex(((1 << last) - 1) & 0xffffffff)}')
                fl.append(f's_mov_b32 exec_hi, {hex(((1 << last) - 1) >> 32)}')
            if off >= 4096:
                fl.append(f's_movk_i32 {sT2}, {hex(off & ~4095)}')
            fl.append(f'buffer_load_dwordx4 v[{vW+4*u}:{vW+4*u+3}], v{vT}, {SRD_WS}, {sT2 if off >= 4096 else 0} offen offset:{off & 4095} sc1')
        fl.append('s_mov_b64 exec, -1')
        self.poll(fl, lambda: self.check_quads([vW + 4 * u for u in range(nl)], vTag, vT + 4, vT + 5, vT + 6), sleep=0)
        for u in range(1, nl):
            for k in range(4):
                a(f'v_add_f32 v{vW+k}, v{vW+k}, v{vW+4*u+k}')
        self.quad_reduce(vW, lpp)
        self.bf16r(vW, vW)
        self.silu_bf16(vT + 4, vW, vT + 5)
        a(f'ds_write_b32 v{vT+1}, v{vT+4} offset:{L_GB}')
        a(f'ds_write_b32 v{vT+1}, v{vT+3} offset:{L_XB}')
        a('s_waitcnt lgkmcnt(0)')
        a('s_branch L_exit')

        if self.nw == 10:
            return
        self.lab('L_h2')
        if self.pref:
            a('s_getpc_b64 s[28:29]')
            self.lab('L_pc')
            a(f's_sub_u32 s28, s28, L_pc-{NAME}')
            a('s_subb_u32 s29, s29, 0')
            a(f's_mov_b32 s30, L_codeend-{NAME}')
            a('s_mov_b32 s31, 0x20000')
            a(f'v_lshlrev_b32 v{vT}, 4, v{vLane}')
            a(f's_mov_b32 {sOFF}, 0')
            self.lab('L_pf')
            a(f'buffer_load_dwordx4 v[{vW}:{vW+3}], v{vT}, {SRD_A}, {sOFF} offen')
            a(f's_add_u32 {sOFF}, {sOFF}, 0x400')
            a(f's_cmp_lt_u32 {sOFF}, s30')
            a('s_cbranch_scc1 L_pf')
        if self.warm:
            for b in 'TGABC':
                a('s_barrier')
            a('s_waitcnt vmcnt(0) lgkmcnt(0)')
            a('s_mov_b64 exec, 0')
            a('s_branch L_pad_0')
        else:
            a('s_waitcnt vmcnt(0) lgkmcnt(0)')
            a('s_branch L_end')


def gen(**kw):
    g = G(**kw)
    s = g.gen()
    return s, g.stamp_names


if __name__ == '__main__':
    kw = eval('dict(' + (sys.argv[2] if len(sys.argv) > 2 else '') + ')')
    s, _ = gen(**kw)
    open(sys.argv[1], 'w').write(s)
```

```python
import math, struct, sys

NAME = 'recurrent_scan__gqa_block_cached__swiglu_ffn__decode_kernel'

HEADER = """; Kernarg layout for this problem (96 bytes, ptrs only, base s[0:1]):
"""


def f2u(x):
    return struct.unpack('<I', struct.pack('<f', x))[0]


QBOX  = 0x010000
HBOX  = 0x020000
MLBOX = 0x030000
OBOX  = 0x100000
FBOX  = 0x040000
SBOX  = 0x300000
STAMP = 0x800000

L_BQ = 0
L_XN = 1024
L_MB = 3072
L_LB = 3200
L_WB = 3312
L_GB = 3440
L_XB = 3568
L_O2 = 3696
L_S2 = 4208
L_FL = 5244
L_HB = 5248
L_OB = 5376
L_TL = 5376
LDS_BYTES = L_TL + 2 * 16384

SRD_A, SRD_B, SRD_X, SRD_C, SRD_OUT, SRD_WS = [f's[{b}:{b+3}]' for b in range(28, 52, 4)]
sG, sJ, sW, sTAG, sOFF, sT0, sT1, sT2, sPLO, sPHI, sC, sCNT = [f's{i}' for i in range(52, 64)]
sL2E, sSEL, sSA, sSB, sLOC = 's3', 's64', 's65', 's66', 's67'
STAMP_BASE = 68
NVGPR = 256
RING = 44
RING0 = NVGPR - 4 * RING


class G:
    def __init__(self, Ds=((0, 5),), pol='nt', wpol='nt', opol='nt', CPC=32, stamps=False, kfirst=2, nG=18, nA=44, nM=44,
                 spin=200000, padk=7, prio=0, sl1=0, sl2=0, sorder=False, spol='sc1', lpol='sc1', ospol='nt', olpol='sc1', local=True, qspol='sc1', mspol='sc1', exp=()):
        self.__dict__.update(locals())
        self.L = []
        self.vm = []
        self.nlab = 0
        self.stamp_names = []
        self.padding = False
        self.npad = 0
        self.since_pad = 0

    def a(self, s):
        self.L.append('    ' + s)
        if self.padding:
            self.since_pad += 1
            if self.since_pad >= self.padk:
                self.pad()

    def pad(self):
        self.L.append(f'L_pad_{self.npad}:')
        self.L.append(f'    s_cbranch_execz L_pad_{self.npad+1}')
        self.npad += 1
        self.since_pad = 0

    def lab(self, s):
        self.L.append(s + ':')

    def newlab(self, p):
        self.nlab += 1
        return f'L_{p}_{self.nlab}'

    def load(self, name, text):
        self.a(text)
        self.vm.append(name)

    def wait(self, name):
        n = len(self.vm) - 1 - self.vm.index(name)
        assert n <= 63
        self.a(f's_waitcnt vmcnt({n})')

    def stamp(self, name):
        if not self.stamps:
            return
        if self.stamps is True:
            if name.startswith('_'):
                return
        elif name not in self.stamps and name not in ('start', 'end'):
            return
        i = len(self.stamp_names)
        assert STAMP_BASE + 2 * i + 1 <= 101
        self.a(f's_memrealtime s[{STAMP_BASE+2*i}:{STAMP_BASE+2*i+1}]')
        self.stamp_names.append(name)

    def dpp(self, op, d, s0, s1, ctl, bank=0xf):
        self.a(f'{op}_dpp v{d}, v{s0}, v{s1} {ctl} row_mask:0xf bank_mask:{hex(bank)}')

    def rows_allreduce(self, op, v, t, do16=True, do32=True):
        if do16:
            self.a(f'v_mov_b32 v{t}, v{v}')
            self.a('s_nop 1')
            self.a(f'v_permlane16_swap_b32 v{v}, v{t}')
            self.a(f'{op} v{v}, v{v}, v{t}')
        if do32:
            self.a(f'v_mov_b32 v{t}, v{v}')
            self.a('s_nop 1')
            self.a(f'v_permlane32_swap_b32 v{v}, v{t}')
            self.a(f'{op} v{v}, v{v}, v{t}')

    def inrow_allreduce(self, op, v, rots):
        for r in rots:
            self.a('s_nop 1')
            self.dpp(op, v, v, v, f'row_ror:{r}')

    def bf16r(self, d, s):
        self.a(f'v_cvt_pk_bf16_f32 v{d}, v{s}, v{s}')
        self.a(f'v_and_b32 v{d}, 0xffff0000, v{d}')

    def sum8(self, d, b):
        for k in range(4):
            self.a(f'v_add_f32 v{b+k}, v{b+k}, v{b+4+k}')
        self.a(f'v_add_f32 v{b}, v{b}, v{b+2}')
        self.a(f'v_add_f32 v{b+1}, v{b+1}, v{b+3}')
        self.a(f'v_add_f32 v{d}, v{b}, v{b+1}')

    def max8(self, d, b, t):
        self.a(f'v_max3_f32 v{d}, v{b}, v{b+1}, v{b+2}')
        self.a(f'v_max3_f32 v{t}, v{b+3}, v{b+4}, v{b+5}')
        self.a(f'v_max3_f32 v{d}, v{d}, v{b+6}, v{b+7}')
        self.a(f'v_max_f32 v{d}, v{d}, v{t}')

    def silu_bf16(self, d, x, t):
        self.a(f'v_mul_f32 v{t}, {hex(f2u(math.log2(math.e)))}, v{x}')
        self.a(f'v_exp_f32 v{t}, -v{t}')
        self.a('s_nop 0')
        self.a(f'v_add_f32 v{t}, 1.0, v{t}')
        self.a(f'v_rcp_f32 v{t}, v{t}')
        self.a('s_nop 0')
        self.a(f'v_mul_f32 v{t}, v{x}, v{t}')
        self.bf16r(d, t)

    def make_tag(self):
        self.a(f's_and_b32 {sT0}, {sTAG}, 0x7f7f7f7f')
        self.a(f's_add_u32 {sT0}, {sT0}, 0x47611b35')
        self.a(f's_and_b32 {sTAG}, {sTAG}, 0x80808080')
        self.a(f's_xor_b32 {sTAG}, {sTAG}, {sT0}')

    def check_quads(self, quads, vtag, t0, t1, t2):
        for i, q in enumerate(quads):
            self.a(f'v_perm_b32 v{t0}, v{q+1}, v{q}, {sSA}')
            self.a(f'v_perm_b32 v{t1}, v{q+3}, v{q+2}, {sSB}')
            if i == 0:
                self.a(f'v_bitop3_b32 v{t2}, v{t0}, v{t1}, v{vtag} bitop3:0x56')
            else:
                self.a(f'v_bitop3_b32 v{t0}, v{t0}, v{t1}, v{vtag} bitop3:0x56')
                self.a(f'v_or_b32 v{t2}, v{t2}, v{t0}')
        self.a(f'v_cmp_ne_u32 vcc, 0, v{t2}')

    def poll(self, loads, check, first_issued=False, sleep=0):
        again, done = self.newlab('again'), self.newlab('done')
        self.a(f's_mov_b32 {sCNT}, {self.spin}')
        if first_issued:
            check()
            self.a(f's_cbranch_vccz {done}')
        first = None
        if sleep and not first_issued:
            first = self.newlab('first')
            self.a(f's_branch {first}')
        self.lab(again)
        if sleep:
            self.a(f's_sleep {sleep}')
        if first:
            self.lab(first)
        for x in loads:
            self.a(x)
        self.a(f's_sub_u32 {sCNT}, {sCNT}, 1')
        self.a('s_waitcnt vmcnt(0)')
        self.a(f's_cbranch_scc1 {done}')
        check()
        self.a(f's_cbranch_vccnz {again}')
        self.lab(done)

    def quad_reduce(self, v, lpp):
        self.a('s_nop 1')
        self.a(f'v_permlane32_swap_b32 v{v}, v{v+2}')
        self.a(f'v_permlane32_swap_b32 v{v+1}, v{v+3}')
        self.a(f'v_add_f32 v{v}, v{v}, v{v+2}')
        self.a(f'v_add_f32 v{v+1}, v{v+1}, v{v+3}')
        self.a('s_nop 1')
        self.a(f'v_permlane16_swap_b32 v{v}, v{v+1}')
        self.a(f'v_add_f32 v{v}, v{v}, v{v+1}')
        self.inrow_allreduce('v_add_f32', v, [r for r in (8, 4, 2) if r >= lpp])

    def tile_dot(self, npairs, vW, vX, vA, vB, waitp):
        a = self.a
        for p in range(npairs):
            waitp(p)
            w0, w1 = vW + 8 * p, vW + 8 * p + 4
            for e in range(8):
                a(f'v_perm_b32 v{vB+e}, v{w1+(e>>1)}, v{w0+(e>>1)}, {sPHI if e & 1 else sPLO}')
            for e in range(8):
                a(f'v_dot2_f32_bf16 v{vA+e}, v{vB+e}, v{vX+p}, {"0" if p == 0 else f"v{vA+e}"}')
        a('s_nop 2')
        for e in range(4):
            a(f'v_permlane32_swap_b32 v{vA+e}, v{vA+e+4}')
        for e in range(4):
            a(f'v_add_f32 v{vA+e}, v{vA+e}, v{vA+e+4}')
        a('s_nop 0')
        for e in range(2):
            a(f'v_permlane16_swap_b32 v{vA+e}, v{vA+e+2}')
        for e in range(2):
            a(f'v_add_f32 v{vA+e}, v{vA+e}, v{vA+e+2}')
        a('s_nop 0')
        self.dpp('v_add_f32', vA + 4, vA, vA, 'row_ror:8', 0x3)
        a('s_nop 1')
        self.dpp('v_add_f32', vA + 4, vA + 1, vA + 1, 'row_ror:8', 0xc)

    def srd(self, srd, p, nbytes):
        b = int(srd[2:srd.index(':')])
        self.a(f's_mov_b64 s[{b}:{b+1}], s[{p}:{p+1}]')
        self.a(f's_mov_b32 s{b+2}, {hex(nbytes)}')
        self.a(f's_mov_b32 s{b+3}, 0x20000')

    def barrier(self):
        self.a('s_waitcnt lgkmcnt(0)')
        if 'nobar' not in self.exp:
            self.a('s_barrier')

    def slot(self, n):
        return RING0 + 4 * (n % RING)

    def depth(self, m):
        return [d for f, d in self.Ds if m >= f][-1]

    def need(self, name):
        k = self.seq.index(name)
        assert k < self.m, name
        if k > self.landed:
            self.wait(name)
            self.landed = k

    def has(self, name):
        return self.seq.index(name) <= self.landed

    def step(self):
        if self.m >= len(self.seq):
            return
        k = self.m - self.depth(self.m)
        if k > self.landed:
            self.wait(self.seq[k])
            self.landed = k
        name = self.seq[self.m]
        kind, i = name[0], int(name[1:])
        if kind in 'KV':
            n = i + (64 if kind == 'V' else 0)
            old = n - RING
            assert old < 0 or (old < 64 and old < 4 * self.beta) or (old >= 64 and old - 64 < 4 * self.tau), name
            r = self.slot(n)
            srd, vo, off, dst, tailtxt = (SRD_A if kind == 'K' else SRD_B), (2 if kind == 'K' else 3), i * 4096, f'v[{r}:{r+3}], ', self.pol
        else:
            if i == 0:
                self.tile_setup(kind)
            srd, vo = (SRD_X, 76) if kind == 'Q' else (SRD_C, 77)
            off, dst, tailtxt = i * ((8192 if kind == 'Q' else 3584) - 1024), '', f'offset:{i*1024} {self.wpol} lds'
        so = '0'
        if off:
            self.a(f's_mov_b32 {sOFF}, {hex(off)}')
            so = sOFF
        self.load(name, f'buffer_load_dwordx4 {dst}v{vo}, {srd}, {so} offen {tailtxt}')
        self.stamp('_' + name)
        self.m += 1

    def steps_until(self, name):
        while self.seq[self.m] != name:
            self.step()

    def tile_setup(self, kind):
        a, vT = self.a, 60
        if kind == 'Q':
            self.srd(SRD_X, 10, 4 << 20)
            a(f's_and_b32 {sT0}, {sJ}, 3')
            a(f's_lshl_b32 {sT0}, {sT0}, 7')
            a(f's_lshl_b32 {sT1}, {sW}, 2')
            a(f's_add_u32 {sT0}, {sT0}, {sT1}')
            a(f'v_lshrrev_b32 v{vT}, 3, v1')
            a(f'v_lshl_add_u32 v{vT}, v{vT}, 4, {sT0}')
            a(f'v_and_b32 v{vT+1}, 7, v1')
            a(f'v_lshlrev_b32 v{vT+1}, 4, v{vT+1}')
            a(f's_lshr_b32 {sT2}, {sJ}, 2')
            a(f's_lshl_b32 {sT0}, {sG}, 10')
            a(f's_lshl_b32 {sT1}, {sT2}, 7')
            a(f's_add_u32 {sT0}, {sT0}, {sT1}')
            a(f'v_lshlrev_b32 v76, 13, v{vT}')
            a(f'v_add3_u32 v76, v76, v{vT+1}, {sT0}')
            a(f's_lshl_b32 {sT1}, {sW}, 12')
            a(f's_add_u32 m0, {sT1}, {L_TL}')
            a('s_nop 0')
        else:
            a(f's_lshl_b32 {sT2}, {sT2}, 3')
            a(f's_add_u32 {sT2}, {sT2}, {sG}')
            a(f's_sub_u32 {sT0}, {sT2}, 28')
            a(f's_cmp_ge_u32 {sT2}, 28')
            a(f's_cselect_b32 {sT2}, {sT0}, {sT2}')
            a('s_cselect_b64 s[40:41], s[18:19], s[16:17]')
            a(f's_mov_b32 s42, {hex(512*3584)}')
            a('s_mov_b32 s43, 0x20000')
            a(f's_lshl_b32 {sT2}, {sT2}, 7')
            a(f's_cmp_ge_u32 {sJ}, 28')
            a(f's_cselect_b32 {sT2}, 0x10000000, {sT2}')
            a(f's_add_u32 m0, {sT1}, {L_TL + 16384}')
            a(f'v_mul_u32_u24 v77, 3584, v{vT}')
            a(f'v_add3_u32 v77, v77, v{vT+1}, {sT2}')

    def qk_batch(self):
        beta = self.beta
        half, t = beta >> 2, beta & 3
        Dr, P0, Bq = 36, 4, 52
        self.need(f'K{4*beta+3}')
        self.beta += 1
        if 'noqk' in self.exp:
            return
        for gam in range(4):
            r = self.slot(4 * beta + gam)
            self.a(f'v_mfma_f32_16x16x32_bf16 v[{Dr+4*gam}:{Dr+4*gam+3}], v[{r}:{r+3}], v[{Bq}:{Bq+3}], 0')
        self.a('s_nop 5')
        for k in (1, 2, 3):
            for gam in range(4):
                P = P0 + 4 * half + gam
                d = Dr + 4 * gam
                self.dpp('v_add_f32', P, d + ((t + k) & 3), d + t if k == 1 else P, f'row_ror:{16-4*k}', 1 << t)

    def pv_group(self):
        tau = self.tau
        B = 36
        self.tau += 1
        for pair in range(2):
            v0 = self.slot(64 + 4 * tau + 2 * pair)
            v1 = self.slot(64 + 4 * tau + 2 * pair + 1)
            self.need(f'V{4*tau+2*pair+1}')
            if 'nopv' in self.exp:
                continue
            for e in range(8):
                self.a(f'v_perm_b32 v{B+2*e+pair}, v{v1+(e>>1)}, v{v0+(e>>1)}, {sPHI if e & 1 else sPLO}')
        if 'nopv' in self.exp:
            return
        PA = 52 + 2 * (tau >> 2)
        for e in range(8):
            ac = 4 + 4 * e
            c = '0' if tau == 0 else f'v[{ac}:{ac+3}]'
            self.a(f'v_mfma_f32_4x4x4_16b_bf16 v[{ac}:{ac+3}], v[{PA}:{PA+1}], v[{B+2*e}:{B+2*e+1}], {c} cbsz:2 abid:{tau & 3}')

    def gen(self):
        a = self.a
        self.L.append(f'; @launch grid=(256,1,1) block=(512,1,1) lds={LDS_BYTES}')
        self.L.append('.amdgcn_target "amdgcn-amd-amdhsa--gfx950"')
        self.L.append('.text')
        self.L.append(f'.globl {NAME}')
        self.L.append('.p2align 8')
        self.L.append(f'.type {NAME},@function')
        self.lab(NAME)
        a('s_load_dwordx16 s[4:19], s[0:1], 0')
        a('s_load_dwordx8 s[20:27], s[0:1], 64')
        if self.stamps:
            for i in range(STAMP_BASE, 102, 2):
                a(f's_mov_b64 s[{i}:{i+1}], 0')
            self.stamp('start')
        a('s_cmp_ge_u32 s2, 0x100')
        a('s_cbranch_scc1 L_end')
        a('v_lshrrev_b32 v4, 6, v0')
        a('v_and_b32 v1, 63, v0')
        a(f'v_readfirstlane_b32 {sW}, v4')
        a(f's_and_b32 {sG}, s2, 7')
        a(f's_lshr_b32 {sJ}, s2, 3')
        a(f's_cmp_ge_u32 {sW}, 4')
        a('s_cbranch_scc1 L_helper')
        self.stream_wave()
        self.tail()
        if self.local:
            self.far_store()
        self.helpers()
        self.lab('L_exit')
        if self.stamps:
            self.stamp('end')
            a('s_waitcnt lgkmcnt(0)')
            a('v_mov_b32 v4, 0')
            for i in range(len(self.stamp_names)):
                a(f'v_writelane_b32 v4, s{STAMP_BASE+2*i}, {i}')
            a(f's_getreg_b32 {sT1}, hwreg(HW_REG_XCC_ID)')
            a(f'v_writelane_b32 v4, {sT1}, 63')
            a(f's_lshl_b32 {sT0}, s2, 3')
            a(f's_add_u32 {sT0}, {sT0}, {sW}')
            a(f's_lshl_b32 {sT0}, {sT0}, 8')
            a(f's_add_u32 {sT0}, {sT0}, {hex(STAMP)}')
            a(f'v_lshl_add_u32 v5, v1, 2, {sT0}')
            a(f'buffer_store_dword v4, v5, {SRD_WS}, 0 offen')
        self.lab('L_end')
        a('s_endpgm')
        self.L += ['.section .rodata,"a"', '.p2align 6', f'.amdhsa_kernel {NAME}',
                   f'  .amdhsa_next_free_vgpr {NVGPR}', '  .amdhsa_next_free_sgpr 102', f'  .amdhsa_accum_offset {NVGPR}',
                   '  .amdhsa_group_segment_fixed_size 0', '  .amdhsa_kernarg_size 96',
                   '  .amdhsa_user_sgpr_count 2', '  .amdhsa_user_sgpr_kernarg_segment_ptr 1',
                   '  .amdhsa_system_sgpr_workgroup_id_x 1',
                   '  .amdhsa_float_denorm_mode_32 3', '.end_amdhsa_kernel']
        return HEADER + '\n'.join(self.L) + '\n'

    def stream_wave(self):
        a = self.a
        vP, vD, vPA, vBq, vT = 4, 36, 52, 52, 60
        assert RING0 == 80
        kf = self.kfirst
        self.seq = [f'K{i}' for i in range(kf)] + [f'Q{i}' for i in range(4)] + [f'F{i}' for i in range(4)] + \
                   [f'K{i}' for i in range(kf, 64)] + [f'V{i}' for i in range(64)]
        self.m = self.beta = self.tau = 0
        self.landed = -1
        self.vm = []
        a(f's_lshl_b32 {sT0}, {sG}, 23')
        a(f's_lshl_b32 {sT1}, {sJ}, 18')
        a(f's_add_u32 {sT0}, {sT0}, {sT1}')
        a(f's_lshl_b32 {sT1}, {sW}, 10')
        a(f's_add_u32 {sT0}, {sT0}, {sT1}')
        a(f'v_bfe_u32 v{vT}, v1, 2, 2')
        a(f'v_lshlrev_b32 v{vT}, 8, v{vT}')
        a(f'v_and_b32 v{vT+1}, 3, v1')
        a(f'v_lshl_add_u32 v{vT}, v{vT+1}, 4, v{vT}')
        a(f'v_lshrrev_b32 v{vT+2}, 4, v1')
        a(f'v_lshlrev_b32 v{vT+2}, 6, v{vT+2}')
        a(f'v_add3_u32 v2, v{vT}, v{vT+2}, {sT0}')
        a(f'v_lshl_add_u32 v3, v1, 4, {sT0}')
        a('s_waitcnt lgkmcnt(0)')
        self.srd(SRD_A, 6, 64 << 20)
        self.steps_until('F0')
        self.stamp('issued0')
        a(f's_load_dword {sTAG}, s[26:27], 0')
        self.srd(SRD_B, 8, 64 << 20)
        self.srd(SRD_WS, 26, 256 << 20)
        a(f's_mov_b32 {sPLO}, 0x05040100')
        a(f's_mov_b32 {sPHI}, 0x07060302')
        a(f's_mov_b32 {sC}, {hex(f2u(math.log2(math.e) / math.sqrt(128.0)))}')
        while not self.has('Q3'):
            self.step()
        self.stamp('preT')
        a('s_barrier')
        self.steps_until(f'K{self.nG}')
        assert self.has('F3')
        a('s_barrier')
        self.steps_until(f'K{self.nA}')
        a(f'v_lshlrev_b32 v{vT}, 4, v1')
        self.stamp('preA')
        self.barrier()
        a(f'ds_read_b128 v[{vBq}:{vBq+3}], v{vT} offset:{L_BQ}')
        self.stamp('A')
        self.make_tag()
        a(f'v_and_b32 v{vT+6}, 3, v1')
        a(f'v_lshlrev_b32 v{vT+6}, 4, v{vT+6}')
        a(f's_lshl_b32 {sT0}, {sW}, 2')
        a(f'v_add_u32 v{vT+7}, {sT0}, v{vT+6}')
        a('s_waitcnt lgkmcnt(0)')
        while self.beta < 16:
            nxt = self.seq[self.m]
            if int(nxt[1:]) + (64 if nxt[0] == 'V' else 0) - RING >= 4 * self.beta:
                self.qk_batch()
            self.step()
            if self.beta < 16 and self.has(f'K{4*self.beta+3}'):
                self.qk_batch()
        self.max8(vT, vP, vT + 1)
        self.max8(vT + 2, vP + 8, vT + 1)
        a(f'v_max_f32 v{vT}, v{vT}, v{vT+2}')
        self.inrow_allreduce('v_max_f32', vT, (8, 4))
        self.rows_allreduce('v_max_f32', vT, vT + 1)
        a(f'ds_write_b32 v{vT+7}, v{vT} offset:{L_MB}')
        self.step()
        self.stamp('_preB')
        self.barrier()
        a(f'ds_read_b128 v[{vD}:{vD+3}], v{vT+6} offset:{L_MB}')
        a('s_waitcnt lgkmcnt(0)')
        a(f'v_max3_f32 v{vT}, v{vD}, v{vD+1}, v{vD+2}')
        a(f'v_max_f32 v{vT}, v{vT}, v{vD+3}')
        a(f'v_mul_f32 v{vT}, {sC}, v{vT}')
        for i in range(16):
            a(f'v_fma_f32 v{vP+i}, v{vP+i}, {sC}, -v{vT}')
        self.step()
        for i in range(16):
            a(f'v_exp_f32 v{vP+i}, v{vP+i}')
        self.step()
        for i in range(8):
            a(f'v_cvt_pk_bf16_f32 v{vPA+i}, v{vP+2*i}, v{vP+2*i+1}')
        for i in range(8):
            a(f'v_add_f32 v{vP+i}, v{vP+i}, v{vP+8+i}')
        self.sum8(vT, vP)
        self.inrow_allreduce('v_add_f32', vT, (8, 4))
        self.rows_allreduce('v_add_f32', vT, vT + 1)
        a(f'ds_write_b32 v{vT+7}, v{vT} offset:{L_LB}')
        self.step()
        self.barrier()
        self.stamp('C')
        while self.m < len(self.seq):
            if self.seq[self.m] == f'V{self.nM}':
                a('s_barrier')
            if int(self.seq[self.m][1:]) - RING >= 4 * self.tau:
                self.pv_group()
            self.step()
            if self.has(f'V{4*self.tau+3}'):
                self.pv_group()
        self.stamp('allissued')

    def tail(self):
        a = self.a
        CPC = self.CPC
        NCONS = 512 // CPC
        lg = int(math.log2(CPC))
        vAcc, vD, vT = 4, 36, 60
        vA0, vA1, vA2, vA3, vA4, vA5, vTB, vWt = range(68, 76)
        vW, SG = 80, 96
        assert self.tau >= 8
        self.lab('L_Z')
        self.srd(SRD_C, 12, 4 << 20)
        a(f'v_lshlrev_b32 v{vA5}, 1, v0')
        a(f's_lshl_b32 {sT0}, {sG}, 19')
        a(f's_lshl_b32 {sT1}, {sJ}, 14')
        a(f's_add_u32 {sT0}, {sT0}, {sT1}')
        a('s_barrier')
        for e in range(16):
            if e and e % 4 == 0:
                a(f's_add_u32 {sT0}, {sT0}, 0x1000')
            self.load(f'wo{e}', f'buffer_load_short_d16_hi v{vW+e}, v{vA5}, {SRD_C}, {sT0} offen offset:{(e & 3)*1024} {self.opol}')
        self.srd(SRD_OUT, 22, 1024)
        a(f's_mov_b32 {sSEL}, 0x07060500')
        a(f's_mov_b32 {sSA}, 0x0c0c0400')
        a(f's_mov_b32 {sSB}, 0x04000c0c')
        a(f'v_and_b32 v{vT}, 3, v1')
        a(f'v_lshlrev_b32 v{vT}, 3, v{vT}')
        a(f'v_lshrrev_b32 v{vTB}, v{vT}, {sTAG}')
        a(f'v_lshrrev_b32 v{vT}, 4, v1')
        a(f'v_mul_u32_u24 v{vT}, 160, v{vT}')
        a(f'v_and_b32 v{vT+1}, 15, v1')
        a(f'v_lshlrev_b32 v{vT+2}, 3, v{vT+1}')
        a(f's_mul_i32 {sT0}, {sW}, 2560')
        a(f'v_add3_u32 v{vA0}, v{vT}, v{vT+2}, {sT0}')
        a(f'v_lshrrev_b32 v{vT}, 7, v0')
        a(f'v_mul_u32_u24 v{vT}, 640, v{vT}')
        a(f'v_bfe_u32 v{vT+2}, v0, 1, 2')
        a(f'v_mul_u32_u24 v{vT+2}, 160, v{vT+2}')
        a(f'v_bfe_u32 v{vT+3}, v0, 3, 4')
        a(f'v_lshlrev_b32 v{vT+3}, 3, v{vT+3}')
        a(f'v_add3_u32 v{vT}, v{vT}, v{vT+2}, v{vT+3}')
        a(f'v_and_b32 v{vT+2}, 1, v0')
        a(f'v_lshl_add_u32 v{vA1}, v{vT+2}, 2, v{vT}')
        a(f'v_add_u32 v{vA1}, {L_OB}, v{vA1}')
        a(f's_lshl_b32 {sT2}, {sG}, 16')
        a(f's_add_u32 {sT2}, {sT2}, {hex(OBOX)}')
        a(f's_lshl_b32 {sT1}, {sJ}, 6')
        a(f's_add_u32 {sT0}, {sT2}, {sT1}')
        a(f'v_lshrrev_b32 v{vT}, 4, v0')
        a(f'v_lshlrev_b32 v{vWt}, 2, v{vT}')
        a(f'ds_read_b32 v{vWt}, v{vWt} offset:{L_WB}')
        a(f'v_mov_b32 v{vT+5}, {L_FL}')
        a(f'ds_read_b32 v{vT+5}, v{vT+5}')
        a(f'v_lshlrev_b32 v{vT}, 11, v{vT}')
        a(f'v_lshlrev_b32 v{vT+2}, 2, v{vT+1}')
        a(f'v_add3_u32 v{vA2}, v{vT}, v{vT+2}, {sT0}')
        a(f's_lshl_b32 {sT1}, {sJ}, 11')
        a(f's_add_u32 {sT0}, {sT2}, {sT1}')
        a(f'v_lshl_add_u32 v{vA3}, v0, 2, {sT0}')
        a(f'v_lshrrev_b32 v{vT}, {lg}, v0')
        a(f'v_lshlrev_b32 v{vT}, {lg+10}, v{vT}')
        a(f'v_and_b32 v{vT+2}, {CPC-1}, v0')
        a(f'v_lshlrev_b32 v{vT+2}, 2, v{vT+2}')
        if self.sorder:
            a(f's_and_b32 {sT0}, {sJ}, 7')
            a(f's_lshl_b32 {sT1}, {sG}, 3')
            a(f's_add_u32 {sT0}, {sT0}, {sT1}')
            a(f's_lshr_b32 {sT1}, {sJ}, 3')
            a(f's_lshl_b32 {sT1}, {sT1}, 6')
            a(f's_add_u32 {sT0}, {sT0}, {sT1}')
            a(f's_lshl_b32 {sT0}, {sT0}, {lg+2}')
        else:
            a(f's_lshl_b32 {sT0}, s2, {lg+2}')
        a(f's_add_u32 {sT0}, {sT0}, {hex(SBOX)}')
        a(f'v_add3_u32 v{vA4}, v{vT}, v{vT+2}, {sT0}')
        a(f'v_lshlrev_b32 v{vT+6}, 5, v{vT+1}')
        a(f's_lshl_b32 {sT0}, {sW}, 2')
        a(f'v_add_u32 v{vT+7}, {sT0}, v{vT+6}')
        a('s_waitcnt lgkmcnt(0)')
        a(f'v_readfirstlane_b32 {sLOC}, v{vT+5}')
        a(f's_cmp_ge_u32 {sW}, 4')
        a('s_cbranch_scc1 L_D')
        while self.tau < 16:
            self.pv_group()
        self.stamp('pvdone')
        if 'notail' in self.exp:
            a('s_branch L_exit')
        a('s_nop 1')
        for e in range(4):
            for h in range(4):
                a(f'v_permlane32_swap_b32 v{vAcc+4*e+h}, v{vAcc+4*(e+4)+h}')
        for e in range(4):
            for h in range(4):
                a(f'v_add_f32 v{vAcc+4*e+h}, v{vAcc+4*e+h}, v{vAcc+4*(e+4)+h}')
        for e in range(2):
            for h in range(4):
                a(f'v_permlane16_swap_b32 v{vAcc+4*e+h}, v{vAcc+4*(e+2)+h}')
        for h in range(4):
            a(f'v_add_f32 v{vD+2*h}, v{vAcc+h}, v{vAcc+8+h}')
            a(f'v_add_f32 v{vD+2*h+1}, v{vAcc+4+h}, v{vAcc+12+h}')
            a(f'ds_write_b64 v{vA0}, v[{vD+2*h}:{vD+2*h+1}] offset:{L_OB+640*h}')
        self.lab('L_D')
        if 'notail' in self.exp:
            a('s_branch L_exit')
        self.barrier()
        for k in range(2):
            a(f'ds_read2st64_b32 v[{vD+2*k}:{vD+2*k+1}], v{vA1} offset0:{20*k} offset1:{20*k+10}')
        a(f's_cmp_eq_u32 {sLOC}, 1')
        a('s_waitcnt lgkmcnt(0)')
        a(f'v_add_f32 v{vD}, v{vD}, v{vD+2}')
        a(f'v_add_f32 v{vD+1}, v{vD+1}, v{vD+3}')
        a(f'v_add_f32 v{vT}, v{vD}, v{vD+1}')
        a(f'v_perm_b32 v{vT}, v{vT}, v{vTB}, {sSEL}')
        if 't_none' in self.exp:
            a('s_branch L_exit')
        if self.local:
            a('s_cbranch_scc0 L_far')
            a(f'buffer_store_dword v{vT}, v{vA2}, {SRD_WS}, 0 offen {self.ospol}')
            self.lab('L_near')
        else:
            a(f'buffer_store_dword v{vT}, v{vA2}, {SRD_WS}, 0 offen sc1')
        self.stamp('opub')
        if 't_opubsleep' in self.exp:
            a('s_sleep 127')
            a('s_branch L_exit')
        if 't_otherpoll' in self.exp:
            a(f'v_add_u32 v{vA3}, 0x400000, v{vA3}')
            for i in range(5):
                a(f'buffer_load_dword v{vT+1}, v{vA3}, {SRD_WS}, 0 offen {self.lpol}')
                a('s_waitcnt vmcnt(0)')
            a('s_branch L_exit')
        if 't_opub' in self.exp:
            a('s_branch L_exit')

        self.poll([f'buffer_load_dword v{vT+1}, v{vA3}, {SRD_WS}, 0 offen {self.olpol}'],
                  lambda: a(f'v_cmp_ne_u32_sdwa vcc, v{vT+1}, v{vTB} src0_sel:BYTE_0 src1_sel:BYTE_0'), sleep=self.sl1)
        self.stamp('goto')
        a(f'v_mul_f32 v{vT+1}, v{vT+1}, v{vWt}')
        self.rows_allreduce('v_add_f32', vT + 1, vT + 2)
        a(f'ds_write_b32 v{vT+7}, v{vT+1} offset:{L_O2}')
        self.barrier()
        a(f'ds_read_b128 v[{vD}:{vD+3}], v{vT+6} offset:{L_O2}')
        a(f'ds_read_b128 v[{vD+4}:{vD+7}], v{vT+6} offset:{L_O2+16}')
        a('s_waitcnt lgkmcnt(0)')
        self.sum8(vT, vD)
        a('s_nop 1')
        for e in range(16):
            op = 'v_mul_f32' if e < 4 else 'v_fmac_f32'
            self.dpp(op, vD + (e & 3), vT, vW + e, f'row_newbcast:{e}')
        a(f'v_add_f32 v{vD}, v{vD}, v{vD+2}')
        a(f'v_add_f32 v{vD+1}, v{vD+1}, v{vD+3}')
        a(f'v_add_f32 v{vT}, v{vD}, v{vD+1}')
        a(f'v_perm_b32 v{vT}, v{vT}, v{vTB}, {sSEL}')
        if 't_hop1' in self.exp:
            a('s_branch L_exit')
        a(f'buffer_store_dword v{vT}, v{vA4}, {SRD_WS}, 0 offen {self.spol}')
        self.stamp('spub')
        if 't_spub' in self.exp:
            a('s_branch L_exit')

        a(f's_cmp_ge_u32 s2, {NCONS}')
        a('s_cbranch_scc1 L_exit')
        nl, lpp = CPC // 8, CPC // 4
        a(f's_lshl_b32 {sT0}, s2, {lg+10}')
        a(f's_add_u32 {sT0}, {sT0}, {hex(SBOX)}')
        a(f'v_lshl_add_u32 v{vA0}, v0, 4, {sT0}')
        sl = []
        for u in range(nl):
            if u:
                sl.append(f's_movk_i32 {sT2}, {hex(u*8192)}')
            sl.append(f'buffer_load_dwordx4 v[{SG+4*u}:{SG+4*u+3}], v{vA0}, {SRD_WS}, {sT2 if u else 0} offen {self.lpol}')
        for x in sl:
            a(x)
        a(f'v_mov_b32 v{vA1}, {sTAG}')
        a(f'v_and_b32 v{vT+1}, {lpp-1}, v1')
        a(f'v_lshlrev_b32 v{vT+1}, 7, v{vT+1}')
        a(f'v_lshrrev_b32 v{vT+2}, 4, v1')
        a(f'v_lshlrev_b32 v{vT+2}, 5, v{vT+2}')
        a(f's_lshl_b32 {sT0}, {sW}, 2')
        a(f'v_add3_u32 v{vA2}, v{vT+1}, v{vT+2}, {sT0}')
        a(f'v_and_b32 v{vT+1}, {CPC-1}, v1')
        a(f'v_lshlrev_b32 v{vA3}, 5, v{vT+1}')
        a(f'v_lshlrev_b32 v{vT+2}, 2, v{vT+1}')
        a(f'ds_read_b32 v{vA4}, v{vT+2} offset:{L_GB}')
        a(f'ds_read_b32 v{vA5}, v{vT+2} offset:{L_XB}')
        a(f's_lshl_b32 {sT0}, s2, {lg+1}')
        a(f'v_lshl_add_u32 v{vWt}, v{vT+1}, 1, {sT0}')
        a('s_waitcnt vmcnt(0)')
        self.poll(sl, lambda: self.check_quads([SG + 4 * u for u in range(nl)], vA1, vT + 1, vT + 2, vT + 3), True, sleep=self.sl2)
        self.stamp('gots')
        for u in range(1, nl):
            for k in range(4):
                a(f'v_add_f32 v{SG+k}, v{SG+k}, v{SG+4*u+k}')
        self.quad_reduce(SG, lpp)
        a(f'ds_write_b32 v{vA2}, v{SG} offset:{L_S2}')
        self.barrier()
        a(f's_cmp_lg_u32 {sW}, 0')
        a('s_cbranch_scc1 L_exit')
        a(f'ds_read_b128 v[{vD}:{vD+3}], v{vA3} offset:{L_S2}')
        a(f'ds_read_b128 v[{vD+4}:{vD+7}], v{vA3} offset:{L_S2+16}')
        a(f's_mov_b32 exec_lo, {hex((1 << CPC) - 1)}')
        a('s_mov_b32 exec_hi, 0')
        a('s_waitcnt lgkmcnt(0)')
        self.sum8(vT, vD)
        self.bf16r(vT, vT)
        a(f'v_mul_f32 v{vT}, v{vT}, v{vA4}')
        self.bf16r(vT, vT)
        a(f'v_add_f32 v{vT}, v{vT}, v{vA5}')
        a(f'v_cvt_pk_bf16_f32 v{vT}, v{vT}, v{vT}')
        a(f'buffer_store_short v{vT}, v{vWt}, {SRD_OUT}, 0 offen')
        a('s_mov_b64 exec, -1')
        a('s_cmp_lg_u32 s2, 0')
        a('s_cbranch_scc1 L_exit')
        a(f'v_mov_b32 v{vT}, 0')
        a('s_mov_b64 exec, 1')
        a(f'buffer_store_dword v{vA1}, v{vT}, {SRD_WS}, 0 offen sc1')
        a('s_mov_b64 exec, -1')
        a('s_branch L_exit')

    def far_store(self):
        self.lab('L_far')
        self.a(f'buffer_store_dword v60, v70, {SRD_WS}, 0 offen sc1')
        self.a('s_branch L_near')

    def helpers(self):
        a = self.a
        CPC = self.CPC
        NCONS = 512 // CPC
        lg = int(math.log2(CPC))
        vLane = 1
        vT = 4
        vX = 16
        vA = 24
        vB = 32
        vCol, vTC = 40, 41
        vW = 112
        vTag, vTB = 2, 3
        self.lab('L_helper')
        if self.prio:
            a(f's_setprio {self.prio}')
        a('s_waitcnt lgkmcnt(0)')
        self.stamp('_hstart')
        a(f's_load_dword {sTAG}, s[26:27], 0')
        self.srd(SRD_WS, 26, 256 << 20)
        self.srd(SRD_X, 4, 1024)
        a(f's_cmp_ge_u32 {sW}, 6')
        a('s_cbranch_scc1 L_h23')
        self.vm = []
        sRB, sCB, sPUB = 's60', 's61', 's3'
        a(f's_and_b32 {sRB}, {sJ}, 3')
        a(f's_lshr_b32 {sCB}, {sJ}, 2')
        a(f's_cmp_eq_u32 {sW}, 4')
        a('s_cbranch_scc0 L_h1_setup')
        a(f's_lshl_b32 {sPUB}, {sG}, 13')
        a(f's_lshl_b32 {sT0}, {sRB}, 11')
        a(f's_add_u32 {sPUB}, {sPUB}, {sT0}')
        a(f's_add_u32 {sPUB}, {sPUB}, {hex(QBOX)}')
        a('s_branch L_tile')
        self.lab('L_h1_setup')
        a(f's_cmp_ge_u32 {sJ}, 28')
        a('s_cbranch_scc1 L_h23')
        a(f's_lshl_b32 {sCB}, {sCB}, 3')
        a(f's_add_u32 {sCB}, {sCB}, {sG}')
        a(f's_sub_u32 {sT0}, {sCB}, 28')
        a(f's_cmp_ge_u32 {sCB}, 28')
        a(f's_cselect_b32 {sCB}, {sT0}, {sCB}')
        a(f's_cselect_b32 {sPUB}, {hex(4*7168)}, 0')
        a(f's_add_u32 {sPUB}, {sPUB}, {hex(HBOX)}')
        a(f's_mul_i32 {sT0}, {sRB}, 7168')
        a(f's_add_u32 {sPUB}, {sPUB}, {sT0}')
        self.lab('L_tile')
        a(f'v_lshlrev_b32 v{vT}, 4, v{vLane}')
        self.load('x16', f'buffer_load_dwordx4 v[{vX}:{vX+3}], v{vT}, {SRD_X}, 0 offen')
        a(f's_lshl_b32 {sT0}, {sCB}, 8')
        a(f's_add_u32 {sPUB}, {sPUB}, {sT0}')
        a(f'v_lshrrev_b32 v{vT+4}, 3, v{vLane}')
        a(f'v_lshlrev_b32 v{vT+1}, 4, v{vT+4}')
        a(f's_lshl_b32 {sT0}, {sRB}, 7')
        a(f'v_add_u32 v{vT+1}, {sT0}, v{vT+1}')
        a(f's_sub_u32 {sT0}, {sW}, 4')
        a(f's_lshl_b32 {sT1}, {sT0}, 14')
        a(f'v_add_u32 v{vT+2}, {sT1}, v{vT}')
        a(f's_lshl_b32 {sT0}, {sT0}, 10')
        a(f'v_add_u32 v{vT}, {sT0}, v{vT}')
        a(f'v_lshl_add_u32 v{vT+1}, v{vT+1}, 1, {sT0}')
        a(f'v_and_b32 v{vT+3}, 7, v{vLane}')
        a(f'v_lshlrev_b32 v{vT+3}, 5, v{vT+3}')
        a(f'v_lshl_add_u32 v{vCol}, v{vT+4}, 2, v{vT+3}')
        a(f'v_add_u32 v{vT+3}, {sPUB}, v{vCol}')
        a(f'v_and_b32 v{vT+4}, 3, v{vT+4}')
        a(f'v_lshlrev_b32 v{vT+4}, 3, v{vT+4}')
        a(f's_mov_b32 {sPLO}, 0x05040100')
        a(f's_mov_b32 {sPHI}, 0x07060302')
        self.wait('x16')
        self.stamp('_x16')
        for k in range(4):
            a(f'v_lshlrev_b32 v{vA+2*k}, 16, v{vX+k}')
            a(f'v_and_b32 v{vA+2*k+1}, 0xffff0000, v{vX+k}')
        m, s2, t = vT + 5, vT + 6, vT + 7
        a(f'v_add_f32 v{m}, v{vA}, v{vA+1}')
        for k in range(2, 8):
            a(f'v_add_f32 v{m}, v{m}, v{vA+k}')
        self.inrow_allreduce('v_add_f32', m, (8, 4, 2, 1))
        self.rows_allreduce('v_add_f32', m, t)
        a(f'v_mul_f32 v{m}, {hex(f2u(1/512.))}, v{m}')
        for k in range(8):
            a(f'v_sub_f32 v{vB+k}, v{vA+k}, v{m}')
        a(f'v_mul_f32 v{s2}, v{vB}, v{vB}')
        for k in range(1, 8):
            a(f'v_fmac_f32 v{s2}, v{vB+k}, v{vB+k}')
        self.inrow_allreduce('v_add_f32', s2, (8, 4, 2, 1))
        self.rows_allreduce('v_add_f32', s2, t)
        a(f'v_mul_f32 v{s2}, {hex(f2u(1/512.))}, v{s2}')
        self.bf16r(m, m)
        self.bf16r(s2, s2)
        a(f'v_add_f32 v{s2}, {hex(f2u(1e-5))}, v{s2}')
        self.bf16r(s2, s2)
        a(f'v_sqrt_f32 v{s2}, v{s2}')
        for k in range(8):
            a(f'v_sub_f32 v{vA+k}, v{vA+k}, v{m}')
        self.bf16r(s2, s2)
        a(f'v_rcp_f32 v{s2}, v{s2}')
        for k in range(4):
            a(f'v_cvt_pk_bf16_f32 v{vX+k}, v{vA+2*k}, v{vA+2*k+1}')
        for k in range(4):
            a(f'v_lshlrev_b32 v{vA+2*k}, 16, v{vX+k}')
            a(f'v_and_b32 v{vA+2*k+1}, 0xffff0000, v{vX+k}')
        for k in range(8):
            a(f'v_mul_f32 v{vA+k}, v{vA+k}, v{s2}')
        for k in range(4):
            a(f'v_cvt_pk_bf16_f32 v{vX+k}, v{vA+2*k}, v{vA+2*k+1}')
        a(f'ds_write_b128 v{vT}, v[{vX}:{vX+3}] offset:{L_XN}')
        a('s_waitcnt lgkmcnt(0)')
        a(f'ds_read_b128 v[{vX}:{vX+3}], v{vT+1} offset:{L_XN}')
        a(f'ds_read_b128 v[{vX+4}:{vX+7}], v{vT+1} offset:{L_XN+16}')
        self.make_tag()
        a(f'v_lshrrev_b32 v{vTC}, v{vT+4}, {sTAG}')
        a(f's_mov_b32 {sSEL}, 0x07060500')
        self.stamp('_ln')
        self.barrier()
        a(f's_cmp_eq_u32 {sW}, 4')
        a('s_cbranch_scc1 L_tile2')
        a('s_barrier')
        self.lab('L_tile2')
        for u in range(16):
            a(f'ds_read_b128 v[{vW+4*u}:{vW+4*u+3}], v{vT+2} offset:{L_TL+1024*u}')
        self.tile_dot(8, vW, vX, vA, vB, lambda p: a(f's_waitcnt lgkmcnt({min(15, 14-2*p)})'))
        a(f'v_perm_b32 v{vA+4}, v{vA+4}, v{vTC}, {sSEL}')
        self.stamp('tilepub')
        a(f's_cmp_eq_u32 {sW}, 4')
        a('s_cbranch_scc0 L_h1')
        a(f'buffer_store_dword v{vA+4}, v{vT+3}, {SRD_WS}, 0 offen {self.qspol}')

        a(f's_mov_b32 {sSA}, 0x0c0c0400')
        a(f's_mov_b32 {sSB}, 0x04000c0c')
        a(f'v_mov_b32 v{vTag}, {sTAG}')
        a(f's_lshl_b32 {sT0}, {sG}, 13')
        a(f's_add_u32 {sT0}, {sT0}, {hex(QBOX)}')
        a(f'v_lshrrev_b32 v{vT}, 5, v{vLane}')
        a(f'v_and_b32 v{vT+1}, 31, v{vLane}')
        a(f'v_lshlrev_b32 v{vT+2}, 11, v{vT}')
        a(f'v_lshlrev_b32 v{vT+3}, 4, v{vT+1}')
        a(f'v_add3_u32 v{vT+2}, v{vT+2}, v{vT+3}, {sT0}')
        a(f's_movk_i32 {sT2}, 0x1000')
        a(f'v_lshrrev_b32 v{vT+1}, 1, v{vT+1}')
        a(f'v_lshlrev_b32 v{vT+1}, 6, v{vT+1}')
        a(f'v_and_b32 v{vT+3}, 1, v{vLane}')
        a(f'v_lshlrev_b32 v{vT+3}, 3, v{vT+3}')
        a(f'v_lshl_add_u32 v{vT+1}, v{vT}, 2, v{vT+1}')
        a(f'v_add_u32 v{vT+1}, v{vT+1}, v{vT+3}')
        ql = [f'buffer_load_dwordx4 v[{vW+8*h+4*b}:{vW+8*h+4*b+3}], v{vT+2}, {SRD_WS}, {sT2 if b else 0} offen offset:{512*h} sc1'
              for h in range(4) for b in range(2)]
        a('s_barrier')
        self.poll(ql, lambda: self.check_quads([vW + 4 * i for i in range(8)], vTag, vT + 4, vT + 5, vT + 6))
        self.stamp('gotq')
        for h in range(4):
            for k in range(4):
                a(f'v_add_f32 v{vW+8*h+k}, v{vW+8*h+k}, v{vW+8*h+4+k}')
        for h in range(4):
            a(f'v_permlane32_swap_b32 v{vW+8*h}, v{vW+8*h+2}')
            a(f'v_permlane32_swap_b32 v{vW+8*h+1}, v{vW+8*h+3}')
        for h in range(4):
            a(f'v_add_f32 v{vW+8*h}, v{vW+8*h}, v{vW+8*h+2}')
            a(f'v_add_f32 v{vW+8*h+1}, v{vW+8*h+1}, v{vW+8*h+3}')
            a(f'v_cvt_pk_bf16_f32 v{vW+8*h}, v{vW+8*h}, v{vW+8*h+1}')
            a(f'ds_write_b32 v{vT+1}, v{vW+8*h} offset:{L_BQ+16*h}')
        self.barrier()
        a(f'v_and_b32 v{vT}, 3, v{vLane}')
        a(f'v_lshlrev_b32 v{vT}, 4, v{vT}')
        a(f's_lshl_b32 {sT2}, {sG}, 11')
        a(f's_add_u32 {sT2}, {sT2}, {hex(MLBOX)}')
        a(f's_lshl_b32 {sT1}, {sJ}, 4')
        a(f's_add_u32 {sT0}, {sT2}, {sT1}')
        a(f'v_lshl_add_u32 v{vT+1}, v{vT}, 5, {sT0}')
        a(f's_lshr_b32 {sT1}, {sJ}, 3')
        a(f's_lshl_b32 {sT1}, {sT1}, 9')
        a(f's_add_u32 {sT0}, {sT2}, {sT1}')
        a(f'v_and_b32 v{vT+2}, 31, v{vLane}')
        a(f'v_lshlrev_b32 v{vT+3}, 2, v{vT+2}')
        a(f'v_lshl_add_u32 v{vT+2}, v{vT+2}, 4, {sT0}')
        sXC = 's11'
        a(f's_getreg_b32 {sXC}, hwreg(HW_REG_XCC_ID, 0, 4)')
        a(f's_and_b32 {sT0}, {sTAG}, 0xfffffff0')
        a(f's_or_b32 {sXC}, {sXC}, {sT0}')
        a(f'v_mov_b32 v{vX+2}, {sXC}')
        a(f'v_mov_b32 v{vX+3}, {sTAG}')
        a(f's_mov_b32 {sC}, {hex(f2u(math.log2(math.e) / math.sqrt(128.0)))}')
        a('s_barrier')
        a(f'ds_read_b128 v[{vA}:{vA+3}], v{vT} offset:{L_MB}')
        a('s_waitcnt lgkmcnt(0)')
        a(f'v_max3_f32 v{vX}, v{vA}, v{vA+1}, v{vA+2}')
        a(f'v_max_f32 v{vX}, v{vX}, v{vA+3}')
        a('s_barrier')
        a(f'ds_read_b128 v[{vA}:{vA+3}], v{vT} offset:{L_LB}')
        a('s_waitcnt lgkmcnt(0)')
        a(f'v_add_f32 v{vA}, v{vA}, v{vA+2}')
        a(f'v_add_f32 v{vA+1}, v{vA+1}, v{vA+3}')
        a(f'v_add_f32 v{vX+1}, v{vA}, v{vA+1}')
        a('s_mov_b64 exec, 0xf')
        a(f'buffer_store_dwordx4 v[{vX}:{vX+3}], v{vT+1}, {SRD_WS}, 0 offen {self.mspol}')
        a('s_mov_b64 exec, -1')
        a('s_barrier')

        def chk_ml():
            a(f'v_xor_b32 v{vT+4}, {sTAG}, v{vB+2}')
            a(f'v_lshrrev_b32 v{vT+4}, 4, v{vT+4}')
            a(f'v_xor_b32 v{vT+5}, {sTAG}, v{vB+3}')
            a(f'v_or_b32 v{vT+4}, v{vT+4}, v{vT+5}')
            a(f'v_cmp_ne_u32 vcc, 0, v{vT+4}')
        self.poll([f'buffer_load_dwordx4 v[{vB}:{vB+3}], v{vT+2}, {SRD_WS}, 0 offen sc1'], chk_ml, sleep=4)
        mx, y, t = vT + 4, vT + 5, vT + 6
        a(f'v_cmp_ne_u32 vcc, {sXC}, v{vB+2}')
        a(f'v_mov_b32 v{t}, {L_FL}')
        a('s_cmp_eq_u64 vcc, 0')
        a(f's_cselect_b32 {sT0}, 1, 0')
        a(f'v_mov_b32 v{y}, {sT0}')
        a(f'ds_write_b32 v{t}, v{y}')
        a(f'v_mov_b32 v{mx}, v{vB}')
        self.inrow_allreduce('v_max_f32', mx, (8, 4, 2, 1))
        self.rows_allreduce('v_max_f32', mx, t, do32=False)
        a(f'v_sub_f32 v{mx}, v{vB}, v{mx}')
        a(f'v_mul_f32 v{mx}, {sC}, v{mx}')
        a(f'v_exp_f32 v{mx}, v{mx}')
        a('s_nop 0')
        a(f'v_mul_f32 v{y}, v{mx}, v{vB+1}')
        self.inrow_allreduce('v_add_f32', y, (8, 4, 2, 1))
        self.rows_allreduce('v_add_f32', y, t, do32=False)
        a(f'v_rcp_f32 v{y}, v{y}')
        a('s_nop 0')
        a(f'v_mul_f32 v{mx}, v{mx}, v{y}')
        a(f'ds_write_b32 v{vT+3}, v{mx} offset:{L_WB}')
        self.stamp('mlw')
        a('s_waitcnt lgkmcnt(0)')
        a('s_branch L_Z')

        self.lab('L_h1')
        a(f'buffer_store_dword v{vA+4}, v{vT+3}, {SRD_WS}, 0 offen sc1')
        self.srd(SRD_B, 20, 1792 * 1024)
        sFI, sRD, sCD = 's8', 's9', 's10'
        a(f's_mul_i32 {sFI}, {sG}, 28')
        a(f's_add_u32 {sFI}, {sFI}, {sJ}')
        a(f's_lshr_b32 {sRD}, {sFI}, 3')
        a(f's_and_b32 {sCD}, {sFI}, 7')
        a(f's_lshl_b32 {sT0}, {sRD}, 16')
        a(f's_lshl_b32 {sT1}, {sCD}, 7')
        a(f's_add_u32 {sT0}, {sT0}, {sT1}')
        a(f'v_lshrrev_b32 v{vT+2}, 3, v{vLane}')
        a(f'v_lshlrev_b32 v{vT}, 13, v{vT+2}')
        a(f'v_lshlrev_b32 v{vT+2}, 4, v{vT+2}')
        a(f'v_and_b32 v{vT+1}, 7, v{vLane}')
        a(f'v_lshlrev_b32 v{vT+1}, 4, v{vT+1}')
        a(f'v_add3_u32 v{vT}, v{vT}, v{vT+1}, {sT0}')
        a(f's_movk_i32 {sT2}, 0x1000')
        for e in range(8):
            a(f'buffer_load_dwordx4 v[{vW+4*e}:{vW+4*e+3}], v{vT}, {SRD_B}, {sT2 if e >= 4 else 0} offen offset:{(e & 3)*1024} {self.wpol}')
        a(f's_lshl_b32 {sT0}, {sRD}, 8')
        a(f's_add_u32 {sT0}, {sT0}, {hex(HBOX)}')
        a(f'v_lshl_add_u32 v{vT+1}, v{vLane}, 2, {sT0}')
        a(f'v_and_b32 v{vT+3}, 3, v{vLane}')
        a(f'v_lshlrev_b32 v{vT+3}, 3, v{vT+3}')
        a(f'v_lshrrev_b32 v{vTB}, v{vT+3}, {sTAG}')
        a(f'v_lshlrev_b32 v{vT+3}, 1, v{vLane}')
        a(f's_lshl_b32 {sT0}, {sCD}, 13')
        a(f's_lshl_b32 {sT1}, {sRD}, 8')
        a(f's_add_u32 {sT0}, {sT0}, {sT1}')
        a(f's_add_u32 {sT0}, {sT0}, {hex(FBOX)}')
        a(f'v_add_u32 v{vCol}, {sT0}, v{vCol}')
        for b in 'ABC':
            a('s_barrier')
        hl = []
        for k in range(8):
            if k:
                hl.append(f's_movk_i32 {sT2}, {k*7168 - (0 if k < 4 else 0x7000)}')
            if k == 4:
                hl.append(f'v_add_u32 v{vT+4}, 0x7000, v{vT+1}')
            hl.append(f'buffer_load_dword v{vB+k}, v{vT+1 if k < 4 else vT+4}, {SRD_WS}, {sT2 if k else 0} offen sc1')

        def chk_h():
            a(f'v_xor_b32 v{vT+4}, v{vB}, v{vTB}')
            for k in range(1, 8):
                a(f'v_bitop3_b32 v{vT+4}, v{vB+k}, v{vTB}, v{vT+4} bitop3:0xbe')
            a(f'v_and_b32 v{vT+4}, 0xff, v{vT+4}')
            a(f'v_cmp_ne_u32 vcc, 0, v{vT+4}')
        self.poll(hl, chk_h, sleep=0)
        for b in (vB, vB + 4):
            a(f'v_add_f32 v{b}, v{b}, v{b+1}')
            a(f'v_add_f32 v{b+2}, v{b+2}, v{b+3}')
            a(f'v_add_f32 v{b}, v{b}, v{b+2}')
            self.bf16r(b, b)
        self.silu_bf16(vB + 1, vB, vB + 2)
        a(f'v_mul_f32 v{vB+1}, v{vB+1}, v{vB+4}')
        a(f'v_cvt_pk_bf16_f32 v{vB+1}, v{vB+1}, v{vB+1}')
        a(f'ds_write_b16 v{vT+3}, v{vB+1} offset:{L_HB}')
        a('s_waitcnt lgkmcnt(0)')
        a(f'ds_read_b128 v[{vX}:{vX+3}], v{vT+2} offset:{L_HB}')
        a('s_waitcnt lgkmcnt(0)')
        self.tile_dot(4, vW, vX, vA, vB, lambda p: None)
        a(f'v_perm_b32 v{vA+4}, v{vA+4}, v{vTC}, {sSEL}')
        a(f'buffer_store_dword v{vA+4}, v{vCol}, {SRD_WS}, 0 offen sc1')
        self.stamp('fpub')
        a('s_barrier')
        a('s_branch L_Z')

        self.lab('L_h23')
        a('s_waitcnt lgkmcnt(0)')
        self.make_tag()
        for b in 'TGABCM':
            a('s_barrier')
        a(f's_cmp_lg_u32 {sW}, 6')
        a('s_cbranch_scc1 L_Z')
        a(f's_cmp_ge_u32 s2, {NCONS}')
        a('s_cbranch_scc1 L_Z')
        lpp = CPC // 4
        ppl = 64 // lpp
        nl = -(-28 // ppl)
        last = (28 - (nl - 1) * ppl) * lpp
        a(f'v_mov_b32 v{vTag}, {sTAG}')
        a(f's_mov_b32 {sSA}, 0x0c0c0400')
        a(f's_mov_b32 {sSB}, 0x04000c0c')
        a(f's_lshr_b32 {sT0}, s2, {6-lg}')
        a(f's_lshl_b32 {sT0}, {sT0}, 13')
        a(f's_and_b32 {sT1}, s2, {64//CPC - 1}')
        a(f's_lshl_b32 {sT1}, {sT1}, {lg+2}')
        a(f's_add_u32 {sT0}, {sT0}, {sT1}')
        a(f's_add_u32 {sT0}, {sT0}, {hex(FBOX)}')
        a(f'v_and_b32 v{vT+1}, {lpp-1}, v{vLane}')
        a(f'v_lshlrev_b32 v{vT+2}, 4, v{vT+1}')
        a(f'v_lshrrev_b32 v{vT}, {lg-2}, v{vLane}')
        a(f'v_lshlrev_b32 v{vT}, 8, v{vT}')
        a(f'v_add3_u32 v{vT}, v{vT}, v{vT+2}, {sT0}')
        a(f'v_lshrrev_b32 v{vT+2}, 4, v{vLane}')
        a(f'v_lshl_add_u32 v{vT+1}, v{vT+1}, 2, v{vT+2}')
        a(f's_lshl_b32 {sT0}, s2, {lg+1}')
        a(f'v_lshl_add_u32 v{vT+2}, v{vT+1}, 1, {sT0}')
        a(f'v_lshlrev_b32 v{vT+1}, 2, v{vT+1}')
        a(f'buffer_load_short_d16_hi v{vT+3}, v{vT+2}, {SRD_X}, 0 offen')
        for k in range(4):
            a(f'v_bfe_u32 v{vW+4*(nl-1)+k}, v{vTag}, {8*k}, 8')
        fl = []
        for u in range(nl):
            off = u * ppl * 256
            if u == nl - 1 and last < 64:
                fl.append(f's_mov_b32 exec_lo, {hex(((1 << last) - 1) & 0xffffffff)}')
                fl.append(f's_mov_b32 exec_hi, {hex(((1 << last) - 1) >> 32)}')
            if off >= 4096:
                fl.append(f's_movk_i32 {sT2}, {hex(off & ~4095)}')
            fl.append(f'buffer_load_dwordx4 v[{vW+4*u}:{vW+4*u+3}], v{vT}, {SRD_WS}, {sT2 if off >= 4096 else 0} offen offset:{off & 4095} sc1')
        fl.append('s_mov_b64 exec, -1')
        self.poll(fl, lambda: self.check_quads([vW + 4 * u for u in range(nl)], vTag, vT + 4, vT + 5, vT + 6), sleep=0)
        for u in range(1, nl):
            for k in range(4):
                a(f'v_add_f32 v{vW+k}, v{vW+k}, v{vW+4*u+k}')
        self.quad_reduce(vW, lpp)
        self.bf16r(vW, vW)
        self.silu_bf16(vT + 4, vW, vT + 5)
        a(f'ds_write_b32 v{vT+1}, v{vT+4} offset:{L_GB}')
        a(f'ds_write_b32 v{vT+1}, v{vT+3} offset:{L_XB}')
        a('s_branch L_Z')


def gen(**kw):
    g = G(**kw)
    s = g.gen()
    return s, g.stamp_names


if __name__ == '__main__':
    kw = eval('dict(' + (sys.argv[2] if len(sys.argv) > 2 else '') + ')')
    s, _ = gen(**kw)
    open(sys.argv[1], 'w').write(s)
```

```python
import math, struct, sys

NAME = 'recurrent_scan__gqa_block_cached__swiglu_ffn__decode_kernel'

HEADER = """; Kernarg layout for this problem (96 bytes, ptrs only, base s[0:1]):
"""


def f2u(x):
    return struct.unpack('<I', struct.pack('<f', x))[0]


QBOX  = 0x010000
HBOX  = 0x020000
MLBOX = 0x030000
OBOX  = 0x080000
FBOX  = 0x040000
SBOX  = 0x100000
STAMP = 0x800000

L_BQ = 0
L_XN = 1024
L_MB = 3072
L_LB = 3200
L_WB = 3312
L_GB = 3440
L_XB = 3568
L_O2 = 3696
L_S2 = 4208
L_FL = 5244
L_HB = 5248
L_OB = 5376
L_TL = 5376
LDS_BYTES = L_TL + 2 * 16384

SRD_A, SRD_B, SRD_X, SRD_C, SRD_OUT, SRD_WS = [f's[{b}:{b+3}]' for b in range(28, 52, 4)]
sG, sJ, sW, sTAG, sOFF, sT0, sT1, sT2, sPLO, sPHI, sC, sCNT = [f's{i}' for i in range(52, 64)]
sL2E, sSEL, sSA, sSB, sLOC = 's3', 's64', 's65', 's66', 's67'
STAMP_BASE = 68
NVGPR = 256
RING = 44
RING0 = NVGPR - 4 * RING


class G:
    def __init__(self, Ds=((0, 5),), pol='nt', wpol='nt', opol='nt', CPC=32, stamps=False, kfirst=2, nG=18, nA=44, nM=44,
                 spin=200000, padk=7, prio=0, sl1=0, sl2=0, sorder=False, spol='sc1', lpol='sc1', ospol='', olpol='sc1', local=True, touch=False, tlb=True, qspol='sc1', mspol='sc1', exp=()):
        self.__dict__.update(locals())
        self.L = []
        self.vm = []
        self.nlab = 0
        self.stamp_names = []
        self.padding = False
        self.npad = 0
        self.since_pad = 0

    def a(self, s):
        self.L.append('    ' + s)
        if self.padding:
            self.since_pad += 1
            if self.since_pad >= self.padk:
                self.pad()

    def pad(self):
        self.L.append(f'L_pad_{self.npad}:')
        self.L.append(f'    s_cbranch_execz L_pad_{self.npad+1}')
        self.npad += 1
        self.since_pad = 0

    def lab(self, s):
        self.L.append(s + ':')

    def newlab(self, p):
        self.nlab += 1
        return f'L_{p}_{self.nlab}'

    def load(self, name, text):
        self.a(text)
        self.vm.append(name)

    def wait(self, name):
        n = len(self.vm) - 1 - self.vm.index(name)
        assert n <= 63
        self.a(f's_waitcnt vmcnt({n})')

    def stamp(self, name):
        if not self.stamps:
            return
        if self.stamps is True:
            if name.startswith('_'):
                return
        elif name not in self.stamps and name not in ('start', 'end'):
            return
        i = len(self.stamp_names)
        assert STAMP_BASE + 2 * i + 1 <= 101
        self.a(f's_memrealtime s[{STAMP_BASE+2*i}:{STAMP_BASE+2*i+1}]')
        self.stamp_names.append(name)

    def dpp(self, op, d, s0, s1, ctl, bank=0xf):
        self.a(f'{op}_dpp v{d}, v{s0}, v{s1} {ctl} row_mask:0xf bank_mask:{hex(bank)}')

    def rows_allreduce(self, op, v, t, do16=True, do32=True):
        if do16:
            self.a(f'v_mov_b32 v{t}, v{v}')
            self.a('s_nop 1')
            self.a(f'v_permlane16_swap_b32 v{v}, v{t}')
            self.a(f'{op} v{v}, v{v}, v{t}')
        if do32:
            self.a(f'v_mov_b32 v{t}, v{v}')
            self.a('s_nop 1')
            self.a(f'v_permlane32_swap_b32 v{v}, v{t}')
            self.a(f'{op} v{v}, v{v}, v{t}')

    def inrow_allreduce(self, op, v, rots):
        for r in rots:
            self.a('s_nop 1')
            self.dpp(op, v, v, v, f'row_ror:{r}')

    def bf16r(self, d, s):
        self.a(f'v_cvt_pk_bf16_f32 v{d}, v{s}, v{s}')
        self.a(f'v_and_b32 v{d}, 0xffff0000, v{d}')

    def sum8(self, d, b):
        for k in range(4):
            self.a(f'v_add_f32 v{b+k}, v{b+k}, v{b+4+k}')
        self.a(f'v_add_f32 v{b}, v{b}, v{b+2}')
        self.a(f'v_add_f32 v{b+1}, v{b+1}, v{b+3}')
        self.a(f'v_add_f32 v{d}, v{b}, v{b+1}')

    def max8(self, d, b, t):
        self.a(f'v_max3_f32 v{d}, v{b}, v{b+1}, v{b+2}')
        self.a(f'v_max3_f32 v{t}, v{b+3}, v{b+4}, v{b+5}')
        self.a(f'v_max3_f32 v{d}, v{d}, v{b+6}, v{b+7}')
        self.a(f'v_max_f32 v{d}, v{d}, v{t}')

    def silu_bf16(self, d, x, t):
        self.a(f'v_mul_f32 v{t}, {hex(f2u(math.log2(math.e)))}, v{x}')
        self.a(f'v_exp_f32 v{t}, -v{t}')
        self.a('s_nop 0')
        self.a(f'v_add_f32 v{t}, 1.0, v{t}')
        self.a(f'v_rcp_f32 v{t}, v{t}')
        self.a('s_nop 0')
        self.a(f'v_mul_f32 v{t}, v{x}, v{t}')
        self.bf16r(d, t)

    def make_tag(self):
        self.a(f's_and_b32 {sT0}, {sTAG}, 0x7f7f7f7f')
        self.a(f's_add_u32 {sT0}, {sT0}, 0x47611b35')
        self.a(f's_and_b32 {sTAG}, {sTAG}, 0x80808080')
        self.a(f's_xor_b32 {sTAG}, {sTAG}, {sT0}')

    def check_quads(self, quads, vtag, t0, t1, t2):
        for i, q in enumerate(quads):
            self.a(f'v_perm_b32 v{t0}, v{q+1}, v{q}, {sSA}')
            self.a(f'v_perm_b32 v{t1}, v{q+3}, v{q+2}, {sSB}')
            if i == 0:
                self.a(f'v_bitop3_b32 v{t2}, v{t0}, v{t1}, v{vtag} bitop3:0x56')
            else:
                self.a(f'v_bitop3_b32 v{t0}, v{t0}, v{t1}, v{vtag} bitop3:0x56')
                self.a(f'v_or_b32 v{t2}, v{t2}, v{t0}')
        self.a(f'v_cmp_ne_u32 vcc, 0, v{t2}')

    def poll(self, loads, check, first_issued=False, sleep=0):
        again, done = self.newlab('again'), self.newlab('done')
        self.a(f's_mov_b32 {sCNT}, {self.spin}')
        if first_issued:
            check()
            self.a(f's_cbranch_vccz {done}')
        first = None
        if sleep and not first_issued:
            first = self.newlab('first')
            self.a(f's_branch {first}')
        self.lab(again)
        if sleep:
            self.a(f's_sleep {sleep}')
        if first:
            self.lab(first)
        for x in loads:
            self.a(x)
        self.a(f's_sub_u32 {sCNT}, {sCNT}, 1')
        self.a('s_waitcnt vmcnt(0)')
        self.a(f's_cbranch_scc1 {done}')
        check()
        self.a(f's_cbranch_vccnz {again}')
        self.lab(done)

    def quad_reduce(self, v, lpp):
        self.a('s_nop 1')
        self.a(f'v_permlane32_swap_b32 v{v}, v{v+2}')
        self.a(f'v_permlane32_swap_b32 v{v+1}, v{v+3}')
        self.a(f'v_add_f32 v{v}, v{v}, v{v+2}')
        self.a(f'v_add_f32 v{v+1}, v{v+1}, v{v+3}')
        self.a('s_nop 1')
        self.a(f'v_permlane16_swap_b32 v{v}, v{v+1}')
        self.a(f'v_add_f32 v{v}, v{v}, v{v+1}')
        self.inrow_allreduce('v_add_f32', v, [r for r in (8, 4, 2) if r >= lpp])

    def tile_dot(self, npairs, vW, vX, vA, vB, waitp):
        a = self.a
        for p in range(npairs):
            waitp(p)
            w0, w1 = vW + 8 * p, vW + 8 * p + 4
            for e in range(8):
                a(f'v_perm_b32 v{vB+e}, v{w1+(e>>1)}, v{w0+(e>>1)}, {sPHI if e & 1 else sPLO}')
            for e in range(8):
                a(f'v_dot2_f32_bf16 v{vA+e}, v{vB+e}, v{vX+p}, {"0" if p == 0 else f"v{vA+e}"}')
        a('s_nop 2')
        for e in range(4):
            a(f'v_permlane32_swap_b32 v{vA+e}, v{vA+e+4}')
        for e in range(4):
            a(f'v_add_f32 v{vA+e}, v{vA+e}, v{vA+e+4}')
        a('s_nop 0')
        for e in range(2):
            a(f'v_permlane16_swap_b32 v{vA+e}, v{vA+e+2}')
        for e in range(2):
            a(f'v_add_f32 v{vA+e}, v{vA+e}, v{vA+e+2}')
        a('s_nop 0')
        self.dpp('v_add_f32', vA + 4, vA, vA, 'row_ror:8', 0x3)
        a('s_nop 1')
        self.dpp('v_add_f32', vA + 4, vA + 1, vA + 1, 'row_ror:8', 0xc)

    def srd(self, srd, p, nbytes):
        b = int(srd[2:srd.index(':')])
        self.a(f's_mov_b64 s[{b}:{b+1}], s[{p}:{p+1}]')
        self.a(f's_mov_b32 s{b+2}, {hex(nbytes)}')
        self.a(f's_mov_b32 s{b+3}, 0x20000')

    def barrier(self):
        self.a('s_waitcnt lgkmcnt(0)')
        if 'nobar' not in self.exp:
            self.a('s_barrier')

    def slot(self, n):
        return RING0 + 4 * (n % RING)

    def depth(self, m):
        return [d for f, d in self.Ds if m >= f][-1]

    def need(self, name):
        k = self.seq.index(name)
        assert k < self.m, name
        if k > self.landed:
            self.wait(name)
            self.landed = k

    def has(self, name):
        return self.seq.index(name) <= self.landed

    def step(self):
        if self.m >= len(self.seq):
            return
        k = self.m - self.depth(self.m)
        if k > self.landed:
            self.wait(self.seq[k])
            self.landed = k
        name = self.seq[self.m]
        kind, i = name[0], int(name[1:])
        if kind in 'KV':
            n = i + (64 if kind == 'V' else 0)
            old = n - RING
            assert old < 0 or (old < 64 and old < 4 * self.beta) or (old >= 64 and old - 64 < 4 * self.tau), name
            r = self.slot(n)
            srd, vo, off, dst, tailtxt = (SRD_A if kind == 'K' else SRD_B), (2 if kind == 'K' else 3), i * 4096, f'v[{r}:{r+3}], ', self.pol
        else:
            if i == 0:
                self.tile_setup(kind)
            srd, vo = (SRD_X, 76) if kind == 'Q' else (SRD_C, 77)
            off, dst, tailtxt = i * ((8192 if kind == 'Q' else 3584) - 1024), '', f'offset:{i*1024} {self.wpol} lds'
        so = '0'
        if off:
            self.a(f's_mov_b32 {sOFF}, {hex(off)}')
            so = sOFF
        self.load(name, f'buffer_load_dwordx4 {dst}v{vo}, {srd}, {so} offen {tailtxt}')
        self.stamp('_' + name)
        self.m += 1

    def steps_until(self, name):
        while self.seq[self.m] != name:
            self.step()

    def tile_setup(self, kind):
        a, vT = self.a, 60
        if kind == 'Q':
            self.srd(SRD_X, 10, 4 << 20)
            a(f's_and_b32 {sT0}, {sJ}, 3')
            a(f's_lshl_b32 {sT0}, {sT0}, 7')
            a(f's_lshl_b32 {sT1}, {sW}, 2')
            a(f's_add_u32 {sT0}, {sT0}, {sT1}')
            a(f'v_lshrrev_b32 v{vT}, 3, v1')
            a(f'v_lshl_add_u32 v{vT}, v{vT}, 4, {sT0}')
            a(f'v_and_b32 v{vT+1}, 7, v1')
            a(f'v_lshlrev_b32 v{vT+1}, 4, v{vT+1}')
            a(f's_lshr_b32 {sT2}, {sJ}, 2')
            a(f's_lshl_b32 {sT0}, {sG}, 10')
            a(f's_lshl_b32 {sT1}, {sT2}, 7')
            a(f's_add_u32 {sT0}, {sT0}, {sT1}')
            a(f'v_lshlrev_b32 v76, 13, v{vT}')
            a(f'v_add3_u32 v76, v76, v{vT+1}, {sT0}')
            a(f's_lshl_b32 {sT1}, {sW}, 12')
            a(f's_add_u32 m0, {sT1}, {L_TL}')
            a('s_nop 0')
        else:
            a(f's_lshl_b32 {sT2}, {sT2}, 3')
            a(f's_add_u32 {sT2}, {sT2}, {sG}')
            a(f's_sub_u32 {sT0}, {sT2}, 28')
            a(f's_cmp_ge_u32 {sT2}, 28')
            a(f's_cselect_b32 {sT2}, {sT0}, {sT2}')
            a('s_cselect_b64 s[40:41], s[18:19], s[16:17]')
            a(f's_mov_b32 s42, {hex(512*3584)}')
            a('s_mov_b32 s43, 0x20000')
            a(f's_lshl_b32 {sT2}, {sT2}, 7')
            a(f's_cmp_ge_u32 {sJ}, 28')
            a(f's_cselect_b32 {sT2}, 0x10000000, {sT2}')
            a(f's_add_u32 m0, {sT1}, {L_TL + 16384}')
            a(f'v_mul_u32_u24 v77, 3584, v{vT}')
            a(f'v_add3_u32 v77, v77, v{vT+1}, {sT2}')

    def qk_batch(self):
        beta = self.beta
        half, t = beta >> 2, beta & 3
        Dr, P0, Bq = 36, 4, 52
        self.need(f'K{4*beta+3}')
        self.beta += 1
        if 'noqk' in self.exp:
            return
        for gam in range(4):
            r = self.slot(4 * beta + gam)
            self.a(f'v_mfma_f32_16x16x32_bf16 v[{Dr+4*gam}:{Dr+4*gam+3}], v[{r}:{r+3}], v[{Bq}:{Bq+3}], 0')
        self.a('s_nop 5')
        for k in (1, 2, 3):
            for gam in range(4):
                P = P0 + 4 * half + gam
                d = Dr + 4 * gam
                self.dpp('v_add_f32', P, d + ((t + k) & 3), d + t if k == 1 else P, f'row_ror:{16-4*k}', 1 << t)

    def pv_group(self):
        tau = self.tau
        B = 36
        self.tau += 1
        for pair in range(2):
            v0 = self.slot(64 + 4 * tau + 2 * pair)
            v1 = self.slot(64 + 4 * tau + 2 * pair + 1)
            self.need(f'V{4*tau+2*pair+1}')
            if 'nopv' in self.exp:
                continue
            for e in range(8):
                self.a(f'v_perm_b32 v{B+2*e+pair}, v{v1+(e>>1)}, v{v0+(e>>1)}, {sPHI if e & 1 else sPLO}')
        if 'nopv' in self.exp:
            return
        PA = 52 + 2 * (tau >> 2)
        for e in range(8):
            ac = 4 + 4 * e
            c = '0' if tau == 0 else f'v[{ac}:{ac+3}]'
            self.a(f'v_mfma_f32_4x4x4_16b_bf16 v[{ac}:{ac+3}], v[{PA}:{PA+1}], v[{B+2*e}:{B+2*e+1}], {c} cbsz:2 abid:{tau & 3}')

    def gen(self):
        a = self.a
        self.L.append(f'; @launch grid=(256,1,1) block=(512,1,1) lds={LDS_BYTES}')
        self.L.append('.amdgcn_target "amdgcn-amd-amdhsa--gfx950"')
        self.L.append('.text')
        self.L.append(f'.globl {NAME}')
        self.L.append('.p2align 8')
        self.L.append(f'.type {NAME},@function')
        self.lab(NAME)
        a('s_load_dwordx16 s[4:19], s[0:1], 0')
        a('s_load_dwordx8 s[20:27], s[0:1], 64')
        if self.stamps:
            for i in range(STAMP_BASE, 102, 2):
                a(f's_mov_b64 s[{i}:{i+1}], 0')
            self.stamp('start')
        if any(e.startswith('diag') for e in self.exp):
            a('s_memrealtime s[100:101]')
        a('s_cmp_ge_u32 s2, 0x100')
        a('s_cbranch_scc1 L_end')
        a('v_lshrrev_b32 v4, 6, v0')
        a('v_and_b32 v1, 63, v0')
        a(f'v_readfirstlane_b32 {sW}, v4')
        a(f's_and_b32 {sG}, s2, 7')
        a(f's_lshr_b32 {sJ}, s2, 3')
        a(f's_cmp_ge_u32 {sW}, 4')
        a('s_cbranch_scc1 L_helper')
        self.stream_wave()
        self.tail()
        if self.local:
            self.far_store()
        self.helpers()
        self.lab('L_exit')
        if self.stamps:
            self.stamp('end')
            a('s_waitcnt lgkmcnt(0)')
            a('v_mov_b32 v4, 0')
            for i in range(len(self.stamp_names)):
                a(f'v_writelane_b32 v4, s{STAMP_BASE+2*i}, {i}')
            a(f's_getreg_b32 {sT1}, hwreg(HW_REG_XCC_ID)')
            a(f'v_writelane_b32 v4, {sT1}, 63')
            a(f's_getreg_b32 {sT1}, hwreg(HW_REG_HW_ID)')
            a(f'v_writelane_b32 v4, {sT1}, 62')
            a(f's_lshl_b32 {sT0}, s2, 3')
            a(f's_add_u32 {sT0}, {sT0}, {sW}')
            a(f's_lshl_b32 {sT0}, {sT0}, 8')
            a(f's_add_u32 {sT0}, {sT0}, {hex(STAMP)}')
            a(f'v_lshl_add_u32 v5, v1, 2, {sT0}')
            a(f'buffer_store_dword v4, v5, {SRD_WS}, 0 offen')
        self.lab('L_end')
        a('s_endpgm')
        self.L += ['.section .rodata,"a"', '.p2align 6', f'.amdhsa_kernel {NAME}',
                   f'  .amdhsa_next_free_vgpr {NVGPR}', '  .amdhsa_next_free_sgpr 102', f'  .amdhsa_accum_offset {NVGPR}',
                   '  .amdhsa_group_segment_fixed_size 0', '  .amdhsa_kernarg_size 96',
                   '  .amdhsa_user_sgpr_count 2', '  .amdhsa_user_sgpr_kernarg_segment_ptr 1',
                   '  .amdhsa_system_sgpr_workgroup_id_x 1',
                   '  .amdhsa_float_denorm_mode_32 3', '.end_amdhsa_kernel']
        return HEADER + '\n'.join(self.L) + '\n'

    def stream_wave(self):
        a = self.a
        vP, vD, vPA, vBq, vT = 4, 36, 52, 52, 60
        assert RING0 == 80
        kf = self.kfirst
        self.seq = [f'K{i}' for i in range(kf)] + [f'Q{i}' for i in range(4)] + [f'F{i}' for i in range(4)] + \
                   [f'K{i}' for i in range(kf, 64)] + [f'V{i}' for i in range(64)]
        self.m = self.beta = self.tau = 0
        self.landed = -1
        self.vm = []
        a(f's_lshl_b32 {sT0}, {sG}, 23')
        a(f's_lshl_b32 {sT1}, {sJ}, 18')
        a(f's_add_u32 {sT0}, {sT0}, {sT1}')
        a(f's_lshl_b32 {sT1}, {sW}, 10')
        a(f's_add_u32 {sT0}, {sT0}, {sT1}')
        a(f'v_bfe_u32 v{vT}, v1, 2, 2')
        a(f'v_lshlrev_b32 v{vT}, 8, v{vT}')
        a(f'v_and_b32 v{vT+1}, 3, v1')
        a(f'v_lshl_add_u32 v{vT}, v{vT+1}, 4, v{vT}')
        a(f'v_lshrrev_b32 v{vT+2}, 4, v1')
        a(f'v_lshlrev_b32 v{vT+2}, 6, v{vT+2}')
        a(f'v_add3_u32 v2, v{vT}, v{vT+2}, {sT0}')
        a(f'v_lshl_add_u32 v3, v1, 4, {sT0}')
        a('s_waitcnt lgkmcnt(0)')
        self.srd(SRD_A, 6, 64 << 20)
        self.steps_until('F0')
        self.stamp('issued0')
        a(f's_load_dword {sTAG}, s[26:27], 0')
        self.srd(SRD_B, 8, 64 << 20)
        self.srd(SRD_WS, 26, 256 << 20)
        a(f's_mov_b32 {sPLO}, 0x05040100')
        a(f's_mov_b32 {sPHI}, 0x07060302')
        a(f's_mov_b32 {sC}, {hex(f2u(math.log2(math.e) / math.sqrt(128.0)))}')
        while not self.has('Q3'):
            self.step()
        self.stamp('preT')
        a('s_barrier')
        self.steps_until(f'K{self.nG}')
        assert self.has('F3')
        a('s_barrier')
        self.steps_until(f'K{self.nA}')
        a(f'v_lshlrev_b32 v{vT}, 4, v1')
        self.stamp('preA')
        self.barrier()
        a(f'ds_read_b128 v[{vBq}:{vBq+3}], v{vT} offset:{L_BQ}')
        self.stamp('A')
        self.make_tag()
        a(f'v_and_b32 v{vT+6}, 3, v1')
        a(f'v_lshlrev_b32 v{vT+6}, 4, v{vT+6}')
        a(f's_lshl_b32 {sT0}, {sW}, 2')
        a(f'v_add_u32 v{vT+7}, {sT0}, v{vT+6}')
        a('s_waitcnt lgkmcnt(0)')
        while self.beta < 16:
            nxt = self.seq[self.m]
            if int(nxt[1:]) + (64 if nxt[0] == 'V' else 0) - RING >= 4 * self.beta:
                self.qk_batch()
            self.step()
            if self.beta < 16 and self.has(f'K{4*self.beta+3}'):
                self.qk_batch()
        self.max8(vT, vP, vT + 1)
        self.max8(vT + 2, vP + 8, vT + 1)
        a(f'v_max_f32 v{vT}, v{vT}, v{vT+2}')
        self.inrow_allreduce('v_max_f32', vT, (8, 4))
        self.rows_allreduce('v_max_f32', vT, vT + 1)
        a(f'ds_write_b32 v{vT+7}, v{vT} offset:{L_MB}')
        self.step()
        self.stamp('_preB')
        self.barrier()
        a(f'ds_read_b128 v[{vD}:{vD+3}], v{vT+6} offset:{L_MB}')
        a('s_waitcnt lgkmcnt(0)')
        a(f'v_max3_f32 v{vT}, v{vD}, v{vD+1}, v{vD+2}')
        a(f'v_max_f32 v{vT}, v{vT}, v{vD+3}')
        a(f'v_mul_f32 v{vT}, {sC}, v{vT}')
        for i in range(16):
            a(f'v_fma_f32 v{vP+i}, v{vP+i}, {sC}, -v{vT}')
        self.step()
        for i in range(16):
            a(f'v_exp_f32 v{vP+i}, v{vP+i}')
        self.step()
        for i in range(8):
            a(f'v_cvt_pk_bf16_f32 v{vPA+i}, v{vP+2*i}, v{vP+2*i+1}')
        for i in range(8):
            a(f'v_add_f32 v{vP+i}, v{vP+i}, v{vP+8+i}')
        self.sum8(vT, vP)
        self.inrow_allreduce('v_add_f32', vT, (8, 4))
        self.rows_allreduce('v_add_f32', vT, vT + 1)
        a(f'ds_write_b32 v{vT+7}, v{vT} offset:{L_LB}')
        self.step()
        self.barrier()
        self.stamp('C')
        while self.m < len(self.seq):
            if self.seq[self.m] == f'V{self.nM}':
                a('s_barrier')
            if int(self.seq[self.m][1:]) - RING >= 4 * self.tau:
                self.pv_group()
            self.step()
            if self.has(f'V{4*self.tau+3}'):
                self.pv_group()
        self.stamp('allissued')

    def tail(self):
        a = self.a
        CPC = self.CPC
        NCONS = 512 // CPC
        lg = int(math.log2(CPC))
        vAcc, vD, vT = 4, 36, 60
        vA0, vA1, vA2, vA3, vA4, vA5, vTB, vWt = range(68, 76)
        vW, SG = 80, 96
        assert self.tau >= 8
        self.lab('L_Z')
        self.srd(SRD_C, 12, 4 << 20)
        a(f'v_lshlrev_b32 v{vA5}, 1, v0')
        a(f's_lshl_b32 {sT0}, {sG}, 19')
        a(f's_lshl_b32 {sT1}, {sJ}, 14')
        a(f's_add_u32 {sT0}, {sT0}, {sT1}')
        a('s_barrier')
        for e in range(16):
            if e and e % 4 == 0:
                a(f's_add_u32 {sT0}, {sT0}, 0x1000')
            self.load(f'wo{e}', f'buffer_load_short_d16_hi v{vW+e}, v{vA5}, {SRD_C}, {sT0} offen offset:{(e & 3)*1024} {self.opol}')
        self.srd(SRD_OUT, 22, 1024)
        a(f's_mov_b32 {sSEL}, 0x07060500')
        a(f's_mov_b32 {sSA}, 0x0c0c0400')
        a(f's_mov_b32 {sSB}, 0x04000c0c')
        a(f'v_and_b32 v{vT}, 3, v1')
        a(f'v_lshlrev_b32 v{vT}, 3, v{vT}')
        a(f'v_lshrrev_b32 v{vTB}, v{vT}, {sTAG}')
        a(f'v_lshrrev_b32 v{vT}, 4, v1')
        a(f'v_mul_u32_u24 v{vT}, 160, v{vT}')
        a(f'v_and_b32 v{vT+1}, 15, v1')
        a(f'v_lshlrev_b32 v{vT+2}, 3, v{vT+1}')
        a(f's_mul_i32 {sT0}, {sW}, 2560')
        a(f'v_add3_u32 v{vA0}, v{vT}, v{vT+2}, {sT0}')
        a(f'v_lshrrev_b32 v{vT}, 7, v0')
        a(f'v_mul_u32_u24 v{vT}, 640, v{vT}')
        a(f'v_bfe_u32 v{vT+2}, v0, 1, 2')
        a(f'v_mul_u32_u24 v{vT+2}, 160, v{vT+2}')
        a(f'v_bfe_u32 v{vT+3}, v0, 3, 4')
        a(f'v_lshlrev_b32 v{vT+3}, 3, v{vT+3}')
        a(f'v_add3_u32 v{vT}, v{vT}, v{vT+2}, v{vT+3}')
        a(f'v_and_b32 v{vT+2}, 1, v0')
        a(f'v_lshl_add_u32 v{vA1}, v{vT+2}, 2, v{vT}')
        a(f'v_add_u32 v{vA1}, {L_OB}, v{vA1}')
        a(f's_lshl_b32 {sT2}, {sG}, 16')
        a(f's_add_u32 {sT2}, {sT2}, {hex(OBOX)}')
        a(f's_lshl_b32 {sT1}, {sJ}, 6')
        a(f's_add_u32 {sT0}, {sT2}, {sT1}')
        a(f'v_lshrrev_b32 v{vT}, 4, v0')
        a(f'v_lshlrev_b32 v{vWt}, 2, v{vT}')
        a(f'ds_read_b32 v{vWt}, v{vWt} offset:{L_WB}')
        a(f'v_mov_b32 v{vT+5}, {L_FL}')
        a(f'ds_read_b32 v{vT+5}, v{vT+5}')
        a(f'v_lshlrev_b32 v{vT}, 11, v{vT}')
        a(f'v_lshlrev_b32 v{vT+2}, 2, v{vT+1}')
        a(f'v_add3_u32 v{vA2}, v{vT}, v{vT+2}, {sT0}')
        a(f's_lshl_b32 {sT1}, {sJ}, 11')
        a(f's_add_u32 {sT0}, {sT2}, {sT1}')
        a(f'v_lshl_add_u32 v{vA3}, v0, 2, {sT0}')
        a(f'v_lshrrev_b32 v{vT}, {lg}, v0')
        a(f'v_lshlrev_b32 v{vT}, {lg+10}, v{vT}')
        a(f'v_and_b32 v{vT+2}, {CPC-1}, v0')
        a(f'v_lshlrev_b32 v{vT+2}, 2, v{vT+2}')
        if self.sorder:
            a(f's_and_b32 {sT0}, {sJ}, 7')
            a(f's_lshl_b32 {sT1}, {sG}, 3')
            a(f's_add_u32 {sT0}, {sT0}, {sT1}')
            a(f's_lshr_b32 {sT1}, {sJ}, 3')
            a(f's_lshl_b32 {sT1}, {sT1}, 6')
            a(f's_add_u32 {sT0}, {sT0}, {sT1}')
            a(f's_lshl_b32 {sT0}, {sT0}, {lg+2}')
        else:
            a(f's_lshl_b32 {sT0}, s2, {lg+2}')
        a(f's_add_u32 {sT0}, {sT0}, {hex(SBOX)}')
        a(f'v_add3_u32 v{vA4}, v{vT}, v{vT+2}, {sT0}')
        emu = [e for e in self.exp if e.startswith('h2_')]
        if emu:
            npw = int(emu[0][3:])
            nprod = 32 * npw
            a(f's_lshr_b32 {sT0}, {sJ}, {2 + npw - 1}')
            a(f's_mul_i32 {sT0}, {sT0}, {2 * npw * nprod * 128}')
            a(f's_and_b32 {sT1}, {sJ}, {4 * npw - 1}')
            a(f's_mul_i32 {sT2}, {sG}, {4 * npw}')
            a(f's_add_u32 {sT1}, {sT1}, {sT2}')
            a(f's_lshl_b32 {sT1}, {sT1}, 7')
            a(f's_add_u32 {sT0}, {sT0}, {sT1}')
            a(f's_add_u32 {sT0}, {sT0}, {hex(SBOX)}')
            a(f'v_lshrrev_b32 v{vT}, 5, v0')
            a(f'v_mul_u32_u24 v{vT}, {nprod * 128}, v{vT}')
            a(f'v_add3_u32 v{vA4}, v{vT}, v{vT+2}, {sT0}')
            a(f's_cmp_ge_u32 {sW}, {npw}')
            a(f's_cselect_b32 {sT0}, 0x20000000, 0')
            a(f'v_add_u32 v{vA4}, {sT0}, v{vA4}')
        a(f'v_lshlrev_b32 v{vT+6}, 5, v{vT+1}')
        a(f's_lshl_b32 {sT0}, {sW}, 2')
        a(f'v_add_u32 v{vT+7}, {sT0}, v{vT+6}')
        a('s_waitcnt lgkmcnt(0)')
        a(f'v_readfirstlane_b32 {sLOC}, v{vT+5}')
        a(f's_cmp_ge_u32 {sW}, 4')
        a('s_cbranch_scc1 L_D')
        while self.tau < 16:
            self.pv_group()
        self.stamp('pvdone')
        if 'notail' in self.exp:
            a('s_branch L_exit')
        a('s_nop 1')
        for e in range(4):
            for h in range(4):
                a(f'v_permlane32_swap_b32 v{vAcc+4*e+h}, v{vAcc+4*(e+4)+h}')
        for e in range(4):
            for h in range(4):
                a(f'v_add_f32 v{vAcc+4*e+h}, v{vAcc+4*e+h}, v{vAcc+4*(e+4)+h}')
        for e in range(2):
            for h in range(4):
                a(f'v_permlane16_swap_b32 v{vAcc+4*e+h}, v{vAcc+4*(e+2)+h}')
        for h in range(4):
            a(f'v_add_f32 v{vD+2*h}, v{vAcc+h}, v{vAcc+8+h}')
            a(f'v_add_f32 v{vD+2*h+1}, v{vAcc+4+h}, v{vAcc+12+h}')
            a(f'ds_write_b64 v{vA0}, v[{vD+2*h}:{vD+2*h+1}] offset:{L_OB+640*h}')
        self.lab('L_D')
        if 'notail' in self.exp:
            a('s_branch L_exit')
        self.barrier()
        for k in range(2):
            a(f'ds_read2st64_b32 v[{vD+2*k}:{vD+2*k+1}], v{vA1} offset0:{20*k} offset1:{20*k+10}')
        a(f's_cmp_eq_u32 {sLOC}, 1')
        a('s_waitcnt lgkmcnt(0)')
        a(f'v_add_f32 v{vD}, v{vD}, v{vD+2}')
        a(f'v_add_f32 v{vD+1}, v{vD+1}, v{vD+3}')
        a(f'v_add_f32 v{vT}, v{vD}, v{vD+1}')
        a(f'v_perm_b32 v{vT}, v{vT}, v{vTB}, {sSEL}')
        if 't_none' in self.exp:
            a('s_branch L_exit')
        if self.local:
            a('s_cbranch_scc0 L_far')
            a(f'buffer_store_dword v{vT}, v{vA2}, {SRD_WS}, 0 offen {self.ospol}')
            self.lab('L_near')
        else:
            a(f'buffer_store_dword v{vT}, v{vA2}, {SRD_WS}, 0 offen sc1')
        self.stamp('opub')
        if 't_opubsleep' in self.exp:
            a('s_sleep 127')
            a('s_branch L_exit')
        if 't_otherpoll' in self.exp:
            a(f'v_add_u32 v{vA3}, 0x400000, v{vA3}')
            for i in range(5):
                a(f'buffer_load_dword v{vT+1}, v{vA3}, {SRD_WS}, 0 offen {self.lpol}')
                a('s_waitcnt vmcnt(0)')
            a('s_branch L_exit')
        if 't_opub' in self.exp:
            a('s_branch L_exit')

        self.poll([f'buffer_load_dword v{vT+1}, v{vA3}, {SRD_WS}, 0 offen {self.olpol}'],
                  lambda: a(f'v_cmp_ne_u32_sdwa vcc, v{vT+1}, v{vTB} src0_sel:BYTE_0 src1_sel:BYTE_0'), sleep=self.sl1)
        self.stamp('goto')
        a(f'v_mul_f32 v{vT+1}, v{vT+1}, v{vWt}')
        self.rows_allreduce('v_add_f32', vT + 1, vT + 2)
        a(f'ds_write_b32 v{vT+7}, v{vT+1} offset:{L_O2}')
        self.barrier()
        a(f'ds_read_b128 v[{vD}:{vD+3}], v{vT+6} offset:{L_O2}')
        a(f'ds_read_b128 v[{vD+4}:{vD+7}], v{vT+6} offset:{L_O2+16}')
        a('s_waitcnt lgkmcnt(0)')
        self.sum8(vT, vD)
        a('s_nop 1')
        for e in range(16):
            op = 'v_mul_f32' if e < 4 else 'v_fmac_f32'
            self.dpp(op, vD + (e & 3), vT, vW + e, f'row_newbcast:{e}')
        a(f'v_add_f32 v{vD}, v{vD}, v{vD+2}')
        a(f'v_add_f32 v{vD+1}, v{vD+1}, v{vD+3}')
        a(f'v_add_f32 v{vT}, v{vD}, v{vD+1}')
        a(f'v_perm_b32 v{vT}, v{vT}, v{vTB}, {sSEL}')
        if 't_hop1' in self.exp:
            a('s_branch L_exit')
        a(f'buffer_store_dword v{vT}, v{vA4}, {SRD_WS}, 0 offen {self.spol}')
        self.stamp('spub')
        if 't_spub' in self.exp:
            a('s_branch L_exit')

        a(f's_cmp_ge_u32 s2, {NCONS}')
        a('s_cbranch_scc1 L_exit')
        nl, lpp = CPC // 8, CPC // 4
        a(f's_lshl_b32 {sT0}, s2, {lg+10}')
        if emu:
            nl = 1
            a(f's_mul_i32 {sT0}, s2, {nprod * 128}')
        a(f's_add_u32 {sT0}, {sT0}, {hex(SBOX)}')
        a(f'v_lshl_add_u32 v{vA0}, v0, 4, {sT0}')
        if emu and npw == 1:
            a(f'v_and_b32 v{vA0}, 255, v0')
            a(f'v_lshl_add_u32 v{vA0}, v{vA0}, 4, {sT0}')
        sl = []
        for u in range(nl):
            if u:
                sl.append(f's_movk_i32 {sT2}, {hex(u*8192)}')
            sl.append(f'buffer_load_dwordx4 v[{SG+4*u}:{SG+4*u+3}], v{vA0}, {SRD_WS}, {sT2 if u else 0} offen {self.lpol}')
        for x in sl:
            a(x)
        a(f'v_mov_b32 v{vA1}, {sTAG}')
        a(f'v_and_b32 v{vT+1}, {lpp-1}, v1')
        a(f'v_lshlrev_b32 v{vT+1}, 7, v{vT+1}')
        a(f'v_lshrrev_b32 v{vT+2}, 4, v1')
        a(f'v_lshlrev_b32 v{vT+2}, 5, v{vT+2}')
        a(f's_lshl_b32 {sT0}, {sW}, 2')
        a(f'v_add3_u32 v{vA2}, v{vT+1}, v{vT+2}, {sT0}')
        a(f'v_and_b32 v{vT+1}, {CPC-1}, v1')
        a(f'v_lshlrev_b32 v{vA3}, 5, v{vT+1}')
        a(f'v_lshlrev_b32 v{vT+2}, 2, v{vT+1}')
        a(f'ds_read_b32 v{vA4}, v{vT+2} offset:{L_GB}')
        a(f'ds_read_b32 v{vA5}, v{vT+2} offset:{L_XB}')
        a(f's_lshl_b32 {sT0}, s2, {lg+1}')
        a(f'v_lshl_add_u32 v{vWt}, v{vT+1}, 1, {sT0}')
        a('s_waitcnt vmcnt(0)')
        self.poll(sl, lambda: self.check_quads([SG + 4 * u for u in range(nl)], vA1, vT + 1, vT + 2, vT + 3), True, sleep=self.sl2)
        self.stamp('gots')
        for u in range(1, nl):
            for k in range(4):
                a(f'v_add_f32 v{SG+k}, v{SG+k}, v{SG+4*u+k}')
        self.quad_reduce(SG, lpp)
        a(f'ds_write_b32 v{vA2}, v{SG} offset:{L_S2}')
        self.barrier()
        a(f's_cmp_lg_u32 {sW}, 0')
        a('s_cbranch_scc1 L_exit')
        a(f'ds_read_b128 v[{vD}:{vD+3}], v{vA3} offset:{L_S2}')
        a(f'ds_read_b128 v[{vD+4}:{vD+7}], v{vA3} offset:{L_S2+16}')
        a(f's_mov_b32 exec_lo, {hex((1 << CPC) - 1)}')
        a('s_mov_b32 exec_hi, 0')
        a('s_waitcnt lgkmcnt(0)')
        self.sum8(vT, vD)
        self.bf16r(vT, vT)
        a(f'v_mul_f32 v{vT}, v{vT}, v{vA4}')
        self.bf16r(vT, vT)
        a(f'v_add_f32 v{vT}, v{vT}, v{vA5}')
        a(f'v_cvt_pk_bf16_f32 v{vT}, v{vT}, v{vT}')
        a(f'buffer_store_short v{vT}, v{vWt}, {SRD_OUT}, 0 offen')
        a('s_mov_b64 exec, -1')
        a('s_cmp_lg_u32 s2, 0')
        a('s_cbranch_scc1 L_exit')
        dg = [e for e in self.exp if e.startswith('diag')]
        if dg:
            a(f'v_mov_b32 v{vT}, 0')
            a(f'global_load_dwordx2 v[{vT+2}:{vT+3}], v{vT}, s[24:25] sc1')
            a('s_memrealtime s[98:99]')
            a('s_waitcnt vmcnt(0) lgkmcnt(0)')
            a(f'v_readfirstlane_b32 s96, v{vT+2}')
            a(f'v_readfirstlane_b32 s97, v{vT+3}')
            a('s_not_b32 s96, s96')
            if dg[0] == 'diag_span':
                a('s_sub_u32 s96, s98, s96')
            elif dg[0] == 'diag_skew':
                a('s_sub_u32 s96, s97, s96')
            else:
                a('s_mov_b32 s96, 0')
            a('s_min_u32 s96, s96, 20000')
            a('s_lshl_b32 s96, s96, 2')
            self.lab('L_spin')
            a('s_memrealtime s[94:95]')
            a('s_waitcnt lgkmcnt(0)')
            a('s_sub_u32 s94, s94, s98')
            a('s_cmp_lt_u32 s94, s96')
            a('s_cbranch_scc1 L_spin')
        a(f'v_mov_b32 v{vT}, 0')
        a('s_mov_b64 exec, 1')
        a(f'buffer_store_dword v{vA1}, v{vT}, {SRD_WS}, 0 offen sc1')
        a('s_mov_b64 exec, -1')
        a('s_branch L_exit')

    def far_store(self):
        self.lab('L_far')
        self.a(f'buffer_store_dword v60, v70, {SRD_WS}, 0 offen sc1')
        self.a('s_branch L_near')

    def helpers(self):
        a = self.a
        CPC = self.CPC
        NCONS = 512 // CPC
        lg = int(math.log2(CPC))
        vLane = 1
        vT = 4
        vX = 16
        vA = 24
        vB = 32
        vCol, vTC = 40, 41
        vW = 112
        vTag, vTB = 2, 3
        self.lab('L_helper')
        if self.prio:
            a(f's_setprio {self.prio}')
        a('s_waitcnt lgkmcnt(0)')
        self.stamp('_hstart')
        a(f's_load_dword {sTAG}, s[26:27], 0')
        self.srd(SRD_WS, 26, 256 << 20)
        self.srd(SRD_X, 4, 1024)
        a(f's_cmp_ge_u32 {sW}, 6')
        a('s_cbranch_scc1 L_h23')
        self.vm = []
        sRB, sCB, sPUB = 's60', 's61', 's3'
        a(f's_and_b32 {sRB}, {sJ}, 3')
        a(f's_lshr_b32 {sCB}, {sJ}, 2')
        a(f's_cmp_eq_u32 {sW}, 4')
        a('s_cbranch_scc0 L_h1_setup')
        a(f's_lshl_b32 {sPUB}, {sG}, 13')
        a(f's_lshl_b32 {sT0}, {sRB}, 11')
        a(f's_add_u32 {sPUB}, {sPUB}, {sT0}')
        a(f's_add_u32 {sPUB}, {sPUB}, {hex(QBOX)}')
        a('s_branch L_tile')
        self.lab('L_h1_setup')
        a(f's_cmp_ge_u32 {sJ}, 28')
        a('s_cbranch_scc1 L_h23')
        a(f's_lshl_b32 {sCB}, {sCB}, 3')
        a(f's_add_u32 {sCB}, {sCB}, {sG}')
        a(f's_sub_u32 {sT0}, {sCB}, 28')
        a(f's_cmp_ge_u32 {sCB}, 28')
        a(f's_cselect_b32 {sCB}, {sT0}, {sCB}')
        a(f's_cselect_b32 {sPUB}, {hex(4*7168)}, 0')
        a(f's_add_u32 {sPUB}, {sPUB}, {hex(HBOX)}')
        a(f's_mul_i32 {sT0}, {sRB}, 7168')
        a(f's_add_u32 {sPUB}, {sPUB}, {sT0}')
        self.lab('L_tile')
        a(f'v_lshlrev_b32 v{vT}, 4, v{vLane}')
        self.load('x16', f'buffer_load_dwordx4 v[{vX}:{vX+3}], v{vT}, {SRD_X}, 0 offen')
        a(f's_lshl_b32 {sT0}, {sCB}, 8')
        a(f's_add_u32 {sPUB}, {sPUB}, {sT0}')
        a(f'v_lshrrev_b32 v{vT+4}, 3, v{vLane}')
        a(f'v_lshlrev_b32 v{vT+1}, 4, v{vT+4}')
        a(f's_lshl_b32 {sT0}, {sRB}, 7')
        a(f'v_add_u32 v{vT+1}, {sT0}, v{vT+1}')
        a(f's_sub_u32 {sT0}, {sW}, 4')
        a(f's_lshl_b32 {sT1}, {sT0}, 14')
        a(f'v_add_u32 v{vT+2}, {sT1}, v{vT}')
        a(f's_lshl_b32 {sT0}, {sT0}, 10')
        a(f'v_add_u32 v{vT}, {sT0}, v{vT}')
        a(f'v_lshl_add_u32 v{vT+1}, v{vT+1}, 1, {sT0}')
        a(f'v_and_b32 v{vT+3}, 7, v{vLane}')
        a(f'v_lshlrev_b32 v{vT+3}, 5, v{vT+3}')
        a(f'v_lshl_add_u32 v{vCol}, v{vT+4}, 2, v{vT+3}')
        a(f'v_add_u32 v{vT+3}, {sPUB}, v{vCol}')
        a(f'v_and_b32 v{vT+4}, 3, v{vT+4}')
        a(f'v_lshlrev_b32 v{vT+4}, 3, v{vT+4}')
        a(f's_mov_b32 {sPLO}, 0x05040100')
        a(f's_mov_b32 {sPHI}, 0x07060302')
        self.wait('x16')
        self.stamp('_x16')
        for k in range(4):
            a(f'v_lshlrev_b32 v{vA+2*k}, 16, v{vX+k}')
            a(f'v_and_b32 v{vA+2*k+1}, 0xffff0000, v{vX+k}')
        m, s2, t = vT + 5, vT + 6, vT + 7
        a(f'v_add_f32 v{m}, v{vA}, v{vA+1}')
        for k in range(2, 8):
            a(f'v_add_f32 v{m}, v{m}, v{vA+k}')
        self.inrow_allreduce('v_add_f32', m, (8, 4, 2, 1))
        self.rows_allreduce('v_add_f32', m, t)
        a(f'v_mul_f32 v{m}, {hex(f2u(1/512.))}, v{m}')
        for k in range(8):
            a(f'v_sub_f32 v{vB+k}, v{vA+k}, v{m}')
        a(f'v_mul_f32 v{s2}, v{vB}, v{vB}')
        for k in range(1, 8):
            a(f'v_fmac_f32 v{s2}, v{vB+k}, v{vB+k}')
        self.inrow_allreduce('v_add_f32', s2, (8, 4, 2, 1))
        self.rows_allreduce('v_add_f32', s2, t)
        a(f'v_mul_f32 v{s2}, {hex(f2u(1/512.))}, v{s2}')
        self.bf16r(m, m)
        self.bf16r(s2, s2)
        a(f'v_add_f32 v{s2}, {hex(f2u(1e-5))}, v{s2}')
        self.bf16r(s2, s2)
        a(f'v_sqrt_f32 v{s2}, v{s2}')
        for k in range(8):
            a(f'v_sub_f32 v{vA+k}, v{vA+k}, v{m}')
        self.bf16r(s2, s2)
        a(f'v_rcp_f32 v{s2}, v{s2}')
        for k in range(4):
            a(f'v_cvt_pk_bf16_f32 v{vX+k}, v{vA+2*k}, v{vA+2*k+1}')
        for k in range(4):
            a(f'v_lshlrev_b32 v{vA+2*k}, 16, v{vX+k}')
            a(f'v_and_b32 v{vA+2*k+1}, 0xffff0000, v{vX+k}')
        for k in range(8):
            a(f'v_mul_f32 v{vA+k}, v{vA+k}, v{s2}')
        for k in range(4):
            a(f'v_cvt_pk_bf16_f32 v{vX+k}, v{vA+2*k}, v{vA+2*k+1}')
        a(f'ds_write_b128 v{vT}, v[{vX}:{vX+3}] offset:{L_XN}')
        a('s_waitcnt lgkmcnt(0)')
        a(f'ds_read_b128 v[{vX}:{vX+3}], v{vT+1} offset:{L_XN}')
        a(f'ds_read_b128 v[{vX+4}:{vX+7}], v{vT+1} offset:{L_XN+16}')
        self.make_tag()
        a(f'v_lshrrev_b32 v{vTC}, v{vT+4}, {sTAG}')
        a(f's_mov_b32 {sSEL}, 0x07060500')
        self.stamp('_ln')
        self.barrier()
        a(f's_cmp_eq_u32 {sW}, 4')
        a('s_cbranch_scc1 L_tile2')
        a('s_barrier')
        self.lab('L_tile2')
        for u in range(16):
            a(f'ds_read_b128 v[{vW+4*u}:{vW+4*u+3}], v{vT+2} offset:{L_TL+1024*u}')
        self.tile_dot(8, vW, vX, vA, vB, lambda p: a(f's_waitcnt lgkmcnt({min(15, 14-2*p)})'))
        a(f'v_perm_b32 v{vA+4}, v{vA+4}, v{vTC}, {sSEL}')
        self.stamp('tilepub')
        a(f's_cmp_eq_u32 {sW}, 4')
        a('s_cbranch_scc0 L_h1')
        a(f'buffer_store_dword v{vA+4}, v{vT+3}, {SRD_WS}, 0 offen {self.qspol}')

        a(f's_mov_b32 {sSA}, 0x0c0c0400')
        a(f's_mov_b32 {sSB}, 0x04000c0c')
        a(f'v_mov_b32 v{vTag}, {sTAG}')
        a(f's_lshl_b32 {sT0}, {sG}, 13')
        a(f's_add_u32 {sT0}, {sT0}, {hex(QBOX)}')
        a(f'v_lshrrev_b32 v{vT}, 5, v{vLane}')
        a(f'v_and_b32 v{vT+1}, 31, v{vLane}')
        a(f'v_lshlrev_b32 v{vT+2}, 11, v{vT}')
        a(f'v_lshlrev_b32 v{vT+3}, 4, v{vT+1}')
        a(f'v_add3_u32 v{vT+2}, v{vT+2}, v{vT+3}, {sT0}')
        a(f's_movk_i32 {sT2}, 0x1000')
        a(f'v_lshrrev_b32 v{vT+1}, 1, v{vT+1}')
        a(f'v_lshlrev_b32 v{vT+1}, 6, v{vT+1}')
        a(f'v_and_b32 v{vT+3}, 1, v{vLane}')
        a(f'v_lshlrev_b32 v{vT+3}, 3, v{vT+3}')
        a(f'v_lshl_add_u32 v{vT+1}, v{vT}, 2, v{vT+1}')
        a(f'v_add_u32 v{vT+1}, v{vT+1}, v{vT+3}')
        ql = [f'buffer_load_dwordx4 v[{vW+8*h+4*b}:{vW+8*h+4*b+3}], v{vT+2}, {SRD_WS}, {sT2 if b else 0} offen offset:{512*h} sc1'
              for h in range(4) for b in range(2)]
        a('s_barrier')
        self.poll(ql, lambda: self.check_quads([vW + 4 * i for i in range(8)], vTag, vT + 4, vT + 5, vT + 6))
        self.stamp('gotq')
        for h in range(4):
            for k in range(4):
                a(f'v_add_f32 v{vW+8*h+k}, v{vW+8*h+k}, v{vW+8*h+4+k}')
        for h in range(4):
            a(f'v_permlane32_swap_b32 v{vW+8*h}, v{vW+8*h+2}')
            a(f'v_permlane32_swap_b32 v{vW+8*h+1}, v{vW+8*h+3}')
        for h in range(4):
            a(f'v_add_f32 v{vW+8*h}, v{vW+8*h}, v{vW+8*h+2}')
            a(f'v_add_f32 v{vW+8*h+1}, v{vW+8*h+1}, v{vW+8*h+3}')
            a(f'v_cvt_pk_bf16_f32 v{vW+8*h}, v{vW+8*h}, v{vW+8*h+1}')
            a(f'ds_write_b32 v{vT+1}, v{vW+8*h} offset:{L_BQ+16*h}')
        self.barrier()
        a(f'v_and_b32 v{vT}, 3, v{vLane}')
        a(f'v_lshlrev_b32 v{vT}, 4, v{vT}')
        a(f's_lshl_b32 {sT2}, {sG}, 11')
        a(f's_add_u32 {sT2}, {sT2}, {hex(MLBOX)}')
        a(f's_lshl_b32 {sT1}, {sJ}, 4')
        a(f's_add_u32 {sT0}, {sT2}, {sT1}')
        a(f'v_lshl_add_u32 v{vT+1}, v{vT}, 5, {sT0}')
        a(f's_lshr_b32 {sT1}, {sJ}, 3')
        a(f's_lshl_b32 {sT1}, {sT1}, 9')
        a(f's_add_u32 {sT0}, {sT2}, {sT1}')
        a(f'v_and_b32 v{vT+2}, 31, v{vLane}')
        a(f'v_lshlrev_b32 v{vT+3}, 2, v{vT+2}')
        a(f'v_lshl_add_u32 v{vT+2}, v{vT+2}, 4, {sT0}')
        sXC = 's11'
        a(f's_getreg_b32 {sXC}, hwreg(HW_REG_XCC_ID, 0, 4)')
        a(f's_and_b32 {sT0}, {sTAG}, 0xfffffff0')
        a(f's_or_b32 {sXC}, {sXC}, {sT0}')
        a(f'v_mov_b32 v{vX+2}, {sXC}')
        a(f'v_mov_b32 v{vX+3}, {sTAG}')
        a(f's_mov_b32 {sC}, {hex(f2u(math.log2(math.e) / math.sqrt(128.0)))}')
        a('s_barrier')
        a(f'ds_read_b128 v[{vA}:{vA+3}], v{vT} offset:{L_MB}')
        a('s_waitcnt lgkmcnt(0)')
        a(f'v_max3_f32 v{vX}, v{vA}, v{vA+1}, v{vA+2}')
        a(f'v_max_f32 v{vX}, v{vX}, v{vA+3}')
        a('s_barrier')
        a(f'ds_read_b128 v[{vA}:{vA+3}], v{vT} offset:{L_LB}')
        a('s_waitcnt lgkmcnt(0)')
        a(f'v_add_f32 v{vA}, v{vA}, v{vA+2}')
        a(f'v_add_f32 v{vA+1}, v{vA+1}, v{vA+3}')
        a(f'v_add_f32 v{vX+1}, v{vA}, v{vA+1}')
        a('s_mov_b64 exec, 0xf')
        a(f'buffer_store_dwordx4 v[{vX}:{vX+3}], v{vT+1}, {SRD_WS}, 0 offen {self.mspol}')
        a('s_mov_b64 exec, -1')
        a('s_barrier')

        def chk_ml():
            a(f'v_xor_b32 v{vT+4}, {sTAG}, v{vB+2}')
            a(f'v_lshrrev_b32 v{vT+4}, 4, v{vT+4}')
            a(f'v_xor_b32 v{vT+5}, {sTAG}, v{vB+3}')
            a(f'v_or_b32 v{vT+4}, v{vT+4}, v{vT+5}')
            a(f'v_cmp_ne_u32 vcc, 0, v{vT+4}')
        self.poll([f'buffer_load_dwordx4 v[{vB}:{vB+3}], v{vT+2}, {SRD_WS}, 0 offen sc1'], chk_ml, sleep=4)
        mx, y, t = vT + 4, vT + 5, vT + 6
        a(f'v_cmp_ne_u32 vcc, {sXC}, v{vB+2}')
        a(f'v_mov_b32 v{t}, {L_FL}')
        a('s_cmp_eq_u64 vcc, 0')
        a(f's_cselect_b32 {sT0}, 1, 0')
        a(f'v_mov_b32 v{y}, {sT0}')
        a(f'ds_write_b32 v{t}, v{y}')
        a(f'v_mov_b32 v{mx}, v{vB}')
        self.inrow_allreduce('v_max_f32', mx, (8, 4, 2, 1))
        self.rows_allreduce('v_max_f32', mx, t, do32=False)
        a(f'v_sub_f32 v{mx}, v{vB}, v{mx}')
        a(f'v_mul_f32 v{mx}, {sC}, v{mx}')
        a(f'v_exp_f32 v{mx}, v{mx}')
        a('s_nop 0')
        a(f'v_mul_f32 v{y}, v{mx}, v{vB+1}')
        self.inrow_allreduce('v_add_f32', y, (8, 4, 2, 1))
        self.rows_allreduce('v_add_f32', y, t, do32=False)
        a(f'v_rcp_f32 v{y}, v{y}')
        a('s_nop 0')
        a(f'v_mul_f32 v{mx}, v{mx}, v{y}')
        a(f'ds_write_b32 v{vT+3}, v{mx} offset:{L_WB}')
        self.stamp('mlw')
        a('s_waitcnt lgkmcnt(0)')
        a('s_branch L_Z')

        self.lab('L_h1')
        a(f'buffer_store_dword v{vA+4}, v{vT+3}, {SRD_WS}, 0 offen sc1')
        self.srd(SRD_B, 20, 1792 * 1024)
        sFI, sRD, sCD = 's8', 's9', 's10'
        a(f's_mul_i32 {sFI}, {sG}, 28')
        a(f's_add_u32 {sFI}, {sFI}, {sJ}')
        a(f's_lshr_b32 {sRD}, {sFI}, 3')
        a(f's_and_b32 {sCD}, {sFI}, 7')
        a(f's_lshl_b32 {sT0}, {sRD}, 16')
        a(f's_lshl_b32 {sT1}, {sCD}, 7')
        a(f's_add_u32 {sT0}, {sT0}, {sT1}')
        a(f'v_lshrrev_b32 v{vT+2}, 3, v{vLane}')
        a(f'v_lshlrev_b32 v{vT}, 13, v{vT+2}')
        a(f'v_lshlrev_b32 v{vT+2}, 4, v{vT+2}')
        a(f'v_and_b32 v{vT+1}, 7, v{vLane}')
        a(f'v_lshlrev_b32 v{vT+1}, 4, v{vT+1}')
        a(f'v_add3_u32 v{vT}, v{vT}, v{vT+1}, {sT0}')
        a(f's_movk_i32 {sT2}, 0x1000')
        for e in range(8):
            a(f'buffer_load_dwordx4 v[{vW+4*e}:{vW+4*e+3}], v{vT}, {SRD_B}, {sT2 if e >= 4 else 0} offen offset:{(e & 3)*1024} {self.wpol}')
        a(f's_lshl_b32 {sT0}, {sRD}, 8')
        a(f's_add_u32 {sT0}, {sT0}, {hex(HBOX)}')
        a(f'v_lshl_add_u32 v{vT+1}, v{vLane}, 2, {sT0}')
        a(f'v_and_b32 v{vT+3}, 3, v{vLane}')
        a(f'v_lshlrev_b32 v{vT+3}, 3, v{vT+3}')
        a(f'v_lshrrev_b32 v{vTB}, v{vT+3}, {sTAG}')
        a(f'v_lshlrev_b32 v{vT+3}, 1, v{vLane}')
        a(f's_lshl_b32 {sT0}, {sCD}, 13')
        a(f's_lshl_b32 {sT1}, {sRD}, 8')
        a(f's_add_u32 {sT0}, {sT0}, {sT1}')
        a(f's_add_u32 {sT0}, {sT0}, {hex(FBOX)}')
        a(f'v_add_u32 v{vCol}, {sT0}, v{vCol}')
        for b in 'ABC':
            a('s_barrier')
        hl = []
        for k in range(8):
            if k:
                hl.append(f's_movk_i32 {sT2}, {k*7168 - (0 if k < 4 else 0x7000)}')
            if k == 4:
                hl.append(f'v_add_u32 v{vT+4}, 0x7000, v{vT+1}')
            hl.append(f'buffer_load_dword v{vB+k}, v{vT+1 if k < 4 else vT+4}, {SRD_WS}, {sT2 if k else 0} offen sc1')

        def chk_h():
            a(f'v_xor_b32 v{vT+4}, v{vB}, v{vTB}')
            for k in range(1, 8):
                a(f'v_bitop3_b32 v{vT+4}, v{vB+k}, v{vTB}, v{vT+4} bitop3:0xbe')
            a(f'v_and_b32 v{vT+4}, 0xff, v{vT+4}')
            a(f'v_cmp_ne_u32 vcc, 0, v{vT+4}')
        self.poll(hl, chk_h, sleep=0)
        for b in (vB, vB + 4):
            a(f'v_add_f32 v{b}, v{b}, v{b+1}')
            a(f'v_add_f32 v{b+2}, v{b+2}, v{b+3}')
            a(f'v_add_f32 v{b}, v{b}, v{b+2}')
            self.bf16r(b, b)
        self.silu_bf16(vB + 1, vB, vB + 2)
        a(f'v_mul_f32 v{vB+1}, v{vB+1}, v{vB+4}')
        a(f'v_cvt_pk_bf16_f32 v{vB+1}, v{vB+1}, v{vB+1}')
        a(f'ds_write_b16 v{vT+3}, v{vB+1} offset:{L_HB}')
        a('s_waitcnt lgkmcnt(0)')
        a(f'ds_read_b128 v[{vX}:{vX+3}], v{vT+2} offset:{L_HB}')
        a('s_waitcnt lgkmcnt(0)')
        self.tile_dot(4, vW, vX, vA, vB, lambda p: None)
        a(f'v_perm_b32 v{vA+4}, v{vA+4}, v{vTC}, {sSEL}')
        a(f'buffer_store_dword v{vA+4}, v{vCol}, {SRD_WS}, 0 offen sc1')
        self.stamp('fpub')
        a('s_barrier')
        a('s_branch L_Z')

        self.lab('L_h23')
        if any(e.startswith('diag') for e in self.exp):
            a(f's_cmp_lg_u32 {sW}, 6')
            a('s_cbranch_scc1 L_nodiag')
            a('s_not_b32 s99, s100')
            a('v_mov_b32 v10, s99')
            a('v_writelane_b32 v10, s100, 1')
            a('v_lshlrev_b32 v11, 2, v1')
            a('s_mov_b64 exec, 3')
            a('global_atomic_umax v11, v10, s[24:25]')
            a('s_mov_b64 exec, -1')
            self.lab('L_nodiag')
        if self.tlb:
            a(f's_cmp_lg_u32 {sW}, 7')
            a('s_cbranch_scc1 L_h23b')
            a(f's_and_b32 {sT0}, {sJ}, 3')
            a(f's_lshl_b32 {sT1}, {sT0}, 20')
            a(f's_load_dword s28, s[10:11], {sT1}')
            a(f's_mul_i32 {sT1}, {sT0}, {128*3584}')
            a(f's_load_dword s29, s[16:17], {sT1}')
            a(f's_load_dword s30, s[18:19], {sT1}')
            a(f's_lshl_b32 {sT0}, {sG}, 23')
            a(f's_lshl_b32 {sT1}, {sJ}, 18')
            a(f's_add_u32 {sT0}, {sT0}, {sT1}')
            a(f's_load_dword s31, s[8:9], {sT0}')
            a(f's_lshr_b32 {sT0}, {sT0}, 4')
            a(f's_load_dword s32, s[12:13], {sT0}')
            a('s_load_dword s33, s[20:21], 0')
            a('s_load_dword s34, s[20:21], 0xffffc')
            a('s_load_dword s35, s[22:23], 0')
            self.lab('L_h23b')
        a('s_waitcnt lgkmcnt(0)')
        self.make_tag()
        for b in 'TGABCM':
            a('s_barrier')
        a(f's_cmp_lg_u32 {sW}, 6')
        a('s_cbranch_scc1 L_Z')
        a(f's_cmp_ge_u32 s2, {NCONS}')
        a('s_cbranch_scc1 L_Z')
        lpp = CPC // 4
        ppl = 64 // lpp
        nl = -(-28 // ppl)
        last = (28 - (nl - 1) * ppl) * lpp
        a(f'v_mov_b32 v{vTag}, {sTAG}')
        a(f's_mov_b32 {sSA}, 0x0c0c0400')
        a(f's_mov_b32 {sSB}, 0x04000c0c')
        a(f's_lshr_b32 {sT0}, s2, {6-lg}')
        a(f's_lshl_b32 {sT0}, {sT0}, 13')
        a(f's_and_b32 {sT1}, s2, {64//CPC - 1}')
        a(f's_lshl_b32 {sT1}, {sT1}, {lg+2}')
        a(f's_add_u32 {sT0}, {sT0}, {sT1}')
        a(f's_add_u32 {sT0}, {sT0}, {hex(FBOX)}')
        a(f'v_and_b32 v{vT+1}, {lpp-1}, v{vLane}')
        a(f'v_lshlrev_b32 v{vT+2}, 4, v{vT+1}')
        a(f'v_lshrrev_b32 v{vT}, {lg-2}, v{vLane}')
        a(f'v_lshlrev_b32 v{vT}, 8, v{vT}')
        a(f'v_add3_u32 v{vT}, v{vT}, v{vT+2}, {sT0}')
        a(f'v_lshrrev_b32 v{vT+2}, 4, v{vLane}')
        a(f'v_lshl_add_u32 v{vT+1}, v{vT+1}, 2, v{vT+2}')
        a(f's_lshl_b32 {sT0}, s2, {lg+1}')
        a(f'v_lshl_add_u32 v{vT+2}, v{vT+1}, 1, {sT0}')
        a(f'v_lshlrev_b32 v{vT+1}, 2, v{vT+1}')
        a(f'buffer_load_short_d16_hi v{vT+3}, v{vT+2}, {SRD_X}, 0 offen')
        if self.touch:
            self.srd(SRD_OUT, 22, 1024)
            a(f'buffer_load_short_d16_hi v{vT+7}, v{vT+2}, {SRD_OUT}, 0 offen')
        for k in range(4):
            a(f'v_bfe_u32 v{vW+4*(nl-1)+k}, v{vTag}, {8*k}, 8')
        fl = []
        for u in range(nl):
            off = u * ppl * 256
            if u == nl - 1 and last < 64:
                fl.append(f's_mov_b32 exec_lo, {hex(((1 << last) - 1) & 0xffffffff)}')
                fl.append(f's_mov_b32 exec_hi, {hex(((1 << last) - 1) >> 32)}')
            if off >= 4096:
                fl.append(f's_movk_i32 {sT2}, {hex(off & ~4095)}')
            fl.append(f'buffer_load_dwordx4 v[{vW+4*u}:{vW+4*u+3}], v{vT}, {SRD_WS}, {sT2 if off >= 4096 else 0} offen offset:{off & 4095} sc1')
        fl.append('s_mov_b64 exec, -1')
        self.poll(fl, lambda: self.check_quads([vW + 4 * u for u in range(nl)], vTag, vT + 4, vT + 5, vT + 6), sleep=0)
        for u in range(1, nl):
            for k in range(4):
                a(f'v_add_f32 v{vW+k}, v{vW+k}, v{vW+4*u+k}')
        self.quad_reduce(vW, lpp)
        self.bf16r(vW, vW)
        self.silu_bf16(vT + 4, vW, vT + 5)
        a(f'ds_write_b32 v{vT+1}, v{vT+4} offset:{L_GB}')
        a(f'ds_write_b32 v{vT+1}, v{vT+3} offset:{L_XB}')
        a('s_branch L_Z')


def gen(**kw):
    g = G(**kw)
    s = g.gen()
    return s, g.stamp_names


if __name__ == '__main__':
    kw = eval('dict(' + (sys.argv[2] if len(sys.argv) > 2 else '') + ')')
    s, _ = gen(**kw)
    open(sys.argv[1], 'w').write(s)
```

```python
import math, struct, sys

NAME = 'recurrent_scan__gqa_block_cached__swiglu_ffn__decode_kernel'

HEADER = """; Kernarg layout for this problem (96 bytes, ptrs only, base s[0:1]):
"""


def f2u(x):
    return struct.unpack('<I', struct.pack('<f', x))[0]


QBOX  = 0x010000
HBOX  = 0x020000
MLBOX = 0x030000
OBOX  = 0x080000
FBOX  = 0x040000
SBOX  = 0x100000
STAMP = 0x800000

L_BQ = 0
L_XN = 1024
L_MB = 3072
L_LB = 3200
L_WB = 3312
L_GB = 3440
L_XB = 3568
L_O2 = 3696
L_S2 = 4208
L_FL = 5244
L_HB = 5248
L_OB = 5376
L_TL = 5376
LDS_BYTES = L_TL + 2 * 16384

SRD_A, SRD_B, SRD_X, SRD_C, SRD_OUT, SRD_WS = [f's[{b}:{b+3}]' for b in range(28, 52, 4)]
sG, sJ, sW, sTAG, sOFF, sT0, sT1, sT2, sPLO, sPHI, sC, sCNT = [f's{i}' for i in range(52, 64)]
sL2E, sSEL, sSA, sSB, sLOC = 's3', 's64', 's65', 's66', 's67'
STAMP_BASE = 68
NVGPR = 256
RING = 44
RING0 = NVGPR - 4 * RING


class G:
    def __init__(self, Ds=((0, 5),), pol='nt', wpol='nt', opol='nt', CPC=32, stamps=False, kfirst=2, nG=18, nA=44, nM=44,
                 spin=200000, padk=7, prio=0, sl1=0, sl2=0, sorder=False, spol='sc1', lpol='sc1', ospol='', olpol='sc1', local=True, touch=False, tlb=True, diag=None, qspol='sc1', mspol='sc1', exp=()):
        self.__dict__.update(locals())
        if diag:
            self.stamps = (diag[0],)
        self.L = []
        self.vm = []
        self.nlab = 0
        self.stamp_names = []
        self.padding = False
        self.npad = 0
        self.since_pad = 0

    def a(self, s):
        self.L.append('    ' + s)
        if self.padding:
            self.since_pad += 1
            if self.since_pad >= self.padk:
                self.pad()

    def pad(self):
        self.L.append(f'L_pad_{self.npad}:')
        self.L.append(f'    s_cbranch_execz L_pad_{self.npad+1}')
        self.npad += 1
        self.since_pad = 0

    def lab(self, s):
        self.L.append(s + ':')

    def newlab(self, p):
        self.nlab += 1
        return f'L_{p}_{self.nlab}'

    def load(self, name, text):
        self.a(text)
        self.vm.append(name)

    def wait(self, name):
        n = len(self.vm) - 1 - self.vm.index(name)
        assert n <= 63
        self.a(f's_waitcnt vmcnt({n})')

    def stamp(self, name):
        if not self.stamps:
            return
        if self.stamps is True:
            if name.startswith('_'):
                return
        elif name not in self.stamps and name not in ('start', 'end'):
            return
        i = len(self.stamp_names)
        assert STAMP_BASE + 2 * i + 1 <= 101
        self.a(f's_memrealtime s[{STAMP_BASE+2*i}:{STAMP_BASE+2*i+1}]')
        self.stamp_names.append(name)

    def dpp(self, op, d, s0, s1, ctl, bank=0xf):
        self.a(f'{op}_dpp v{d}, v{s0}, v{s1} {ctl} row_mask:0xf bank_mask:{hex(bank)}')

    def rows_allreduce(self, op, v, t, do16=True, do32=True):
        if do16:
            self.a(f'v_mov_b32 v{t}, v{v}')
            self.a('s_nop 1')
            self.a(f'v_permlane16_swap_b32 v{v}, v{t}')
            self.a(f'{op} v{v}, v{v}, v{t}')
        if do32:
            self.a(f'v_mov_b32 v{t}, v{v}')
            self.a('s_nop 1')
            self.a(f'v_permlane32_swap_b32 v{v}, v{t}')
            self.a(f'{op} v{v}, v{v}, v{t}')

    def inrow_allreduce(self, op, v, rots):
        for r in rots:
            self.a('s_nop 1')
            self.dpp(op, v, v, v, f'row_ror:{r}')

    def bf16r(self, d, s):
        self.a(f'v_cvt_pk_bf16_f32 v{d}, v{s}, v{s}')
        self.a(f'v_and_b32 v{d}, 0xffff0000, v{d}')

    def sum8(self, d, b):
        for k in range(4):
            self.a(f'v_add_f32 v{b+k}, v{b+k}, v{b+4+k}')
        self.a(f'v_add_f32 v{b}, v{b}, v{b+2}')
        self.a(f'v_add_f32 v{b+1}, v{b+1}, v{b+3}')
        self.a(f'v_add_f32 v{d}, v{b}, v{b+1}')

    def max8(self, d, b, t):
        self.a(f'v_max3_f32 v{d}, v{b}, v{b+1}, v{b+2}')
        self.a(f'v_max3_f32 v{t}, v{b+3}, v{b+4}, v{b+5}')
        self.a(f'v_max3_f32 v{d}, v{d}, v{b+6}, v{b+7}')
        self.a(f'v_max_f32 v{d}, v{d}, v{t}')

    def silu_bf16(self, d, x, t):
        self.a(f'v_mul_f32 v{t}, {hex(f2u(math.log2(math.e)))}, v{x}')
        self.a(f'v_exp_f32 v{t}, -v{t}')
        self.a('s_nop 0')
        self.a(f'v_add_f32 v{t}, 1.0, v{t}')
        self.a(f'v_rcp_f32 v{t}, v{t}')
        self.a('s_nop 0')
        self.a(f'v_mul_f32 v{t}, v{x}, v{t}')
        self.bf16r(d, t)

    def make_tag(self):
        self.a(f's_and_b32 {sT0}, {sTAG}, 0x7f7f7f7f')
        self.a(f's_add_u32 {sT0}, {sT0}, 0x47611b35')
        self.a(f's_and_b32 {sTAG}, {sTAG}, 0x80808080')
        self.a(f's_xor_b32 {sTAG}, {sTAG}, {sT0}')

    def check_quads(self, quads, vtag, t0, t1, t2):
        for i, q in enumerate(quads):
            self.a(f'v_perm_b32 v{t0}, v{q+1}, v{q}, {sSA}')
            self.a(f'v_perm_b32 v{t1}, v{q+3}, v{q+2}, {sSB}')
            if i == 0:
                self.a(f'v_bitop3_b32 v{t2}, v{t0}, v{t1}, v{vtag} bitop3:0x56')
            else:
                self.a(f'v_bitop3_b32 v{t0}, v{t0}, v{t1}, v{vtag} bitop3:0x56')
                self.a(f'v_or_b32 v{t2}, v{t2}, v{t0}')
        self.a(f'v_cmp_ne_u32 vcc, 0, v{t2}')

    def poll(self, loads, check, first_issued=False, sleep=0):
        again, done = self.newlab('again'), self.newlab('done')
        self.a(f's_mov_b32 {sCNT}, {self.spin}')
        if first_issued:
            check()
            self.a(f's_cbranch_vccz {done}')
        first = None
        if sleep and not first_issued:
            first = self.newlab('first')
            self.a(f's_branch {first}')
        self.lab(again)
        if sleep:
            self.a(f's_sleep {sleep}')
        if first:
            self.lab(first)
        for x in loads:
            self.a(x)
        self.a(f's_sub_u32 {sCNT}, {sCNT}, 1')
        self.a('s_waitcnt vmcnt(0)')
        self.a(f's_cbranch_scc1 {done}')
        check()
        self.a(f's_cbranch_vccnz {again}')
        self.lab(done)

    def quad_reduce(self, v, lpp):
        self.a('s_nop 1')
        self.a(f'v_permlane32_swap_b32 v{v}, v{v+2}')
        self.a(f'v_permlane32_swap_b32 v{v+1}, v{v+3}')
        self.a(f'v_add_f32 v{v}, v{v}, v{v+2}')
        self.a(f'v_add_f32 v{v+1}, v{v+1}, v{v+3}')
        self.a('s_nop 1')
        self.a(f'v_permlane16_swap_b32 v{v}, v{v+1}')
        self.a(f'v_add_f32 v{v}, v{v}, v{v+1}')
        self.inrow_allreduce('v_add_f32', v, [r for r in (8, 4, 2) if r >= lpp])

    def tile_dot(self, npairs, vW, vX, vA, vB, waitp):
        a = self.a
        for p in range(npairs):
            waitp(p)
            w0, w1 = vW + 8 * p, vW + 8 * p + 4
            for e in range(8):
                a(f'v_perm_b32 v{vB+e}, v{w1+(e>>1)}, v{w0+(e>>1)}, {sPHI if e & 1 else sPLO}')
            for e in range(8):
                a(f'v_dot2_f32_bf16 v{vA+e}, v{vB+e}, v{vX+p}, {"0" if p == 0 else f"v{vA+e}"}')
        a('s_nop 2')
        for e in range(4):
            a(f'v_permlane32_swap_b32 v{vA+e}, v{vA+e+4}')
        for e in range(4):
            a(f'v_add_f32 v{vA+e}, v{vA+e}, v{vA+e+4}')
        a('s_nop 0')
        for e in range(2):
            a(f'v_permlane16_swap_b32 v{vA+e}, v{vA+e+2}')
        for e in range(2):
            a(f'v_add_f32 v{vA+e}, v{vA+e}, v{vA+e+2}')
        a('s_nop 0')
        self.dpp('v_add_f32', vA + 4, vA, vA, 'row_ror:8', 0x3)
        a('s_nop 1')
        self.dpp('v_add_f32', vA + 4, vA + 1, vA + 1, 'row_ror:8', 0xc)

    def srd(self, srd, p, nbytes):
        b = int(srd[2:srd.index(':')])
        self.a(f's_mov_b64 s[{b}:{b+1}], s[{p}:{p+1}]')
        self.a(f's_mov_b32 s{b+2}, {hex(nbytes)}')
        self.a(f's_mov_b32 s{b+3}, 0x20000')

    def barrier(self):
        self.a('s_waitcnt lgkmcnt(0)')
        if 'nobar' not in self.exp:
            self.a('s_barrier')

    def slot(self, n):
        return RING0 + 4 * (n % RING)

    def depth(self, m):
        return [d for f, d in self.Ds if m >= f][-1]

    def need(self, name):
        k = self.seq.index(name)
        assert k < self.m, name
        if k > self.landed:
            self.wait(name)
            self.landed = k

    def has(self, name):
        return self.seq.index(name) <= self.landed

    def step(self):
        if self.m >= len(self.seq):
            return
        k = self.m - self.depth(self.m)
        if k > self.landed:
            self.wait(self.seq[k])
            self.landed = k
        name = self.seq[self.m]
        kind, i = name[0], int(name[1:])
        if kind in 'KV':
            n = i + (64 if kind == 'V' else 0)
            old = n - RING
            assert old < 0 or (old < 64 and old < 4 * self.beta) or (old >= 64 and old - 64 < 4 * self.tau), name
            r = self.slot(n)
            srd, vo, off, dst, tailtxt = (SRD_A if kind == 'K' else SRD_B), (2 if kind == 'K' else 3), i * 4096, f'v[{r}:{r+3}], ', self.pol
        else:
            if i == 0:
                self.tile_setup(kind)
            srd, vo = (SRD_X, 76) if kind == 'Q' else (SRD_C, 77)
            off, dst, tailtxt = i * ((8192 if kind == 'Q' else 3584) - 1024), '', f'offset:{i*1024} {self.wpol} lds'
        so = '0'
        if off:
            self.a(f's_mov_b32 {sOFF}, {hex(off)}')
            so = sOFF
        self.load(name, f'buffer_load_dwordx4 {dst}v{vo}, {srd}, {so} offen {tailtxt}')
        self.stamp('_' + name)
        self.m += 1

    def steps_until(self, name):
        while self.seq[self.m] != name:
            self.step()

    def tile_setup(self, kind):
        a, vT = self.a, 60
        if kind == 'Q':
            self.srd(SRD_X, 10, 4 << 20)
            a(f's_and_b32 {sT0}, {sJ}, 3')
            a(f's_lshl_b32 {sT0}, {sT0}, 7')
            a(f's_lshl_b32 {sT1}, {sW}, 2')
            a(f's_add_u32 {sT0}, {sT0}, {sT1}')
            a(f'v_lshrrev_b32 v{vT}, 3, v1')
            a(f'v_lshl_add_u32 v{vT}, v{vT}, 4, {sT0}')
            a(f'v_and_b32 v{vT+1}, 7, v1')
            a(f'v_lshlrev_b32 v{vT+1}, 4, v{vT+1}')
            a(f's_lshr_b32 {sT2}, {sJ}, 2')
            a(f's_lshl_b32 {sT0}, {sG}, 10')
            a(f's_lshl_b32 {sT1}, {sT2}, 7')
            a(f's_add_u32 {sT0}, {sT0}, {sT1}')
            a(f'v_lshlrev_b32 v76, 13, v{vT}')
            a(f'v_add3_u32 v76, v76, v{vT+1}, {sT0}')
            a(f's_lshl_b32 {sT1}, {sW}, 12')
            a(f's_add_u32 m0, {sT1}, {L_TL}')
            a('s_nop 0')
        else:
            a(f's_lshl_b32 {sT2}, {sT2}, 3')
            a(f's_add_u32 {sT2}, {sT2}, {sG}')
            a(f's_sub_u32 {sT0}, {sT2}, 28')
            a(f's_cmp_ge_u32 {sT2}, 28')
            a(f's_cselect_b32 {sT2}, {sT0}, {sT2}')
            a('s_cselect_b64 s[40:41], s[18:19], s[16:17]')
            a(f's_mov_b32 s42, {hex(512*3584)}')
            a('s_mov_b32 s43, 0x20000')
            a(f's_lshl_b32 {sT2}, {sT2}, 7')
            a(f's_cmp_ge_u32 {sJ}, 28')
            a(f's_cselect_b32 {sT2}, 0x10000000, {sT2}')
            a(f's_add_u32 m0, {sT1}, {L_TL + 16384}')
            a(f'v_mul_u32_u24 v77, 3584, v{vT}')
            a(f'v_add3_u32 v77, v77, v{vT+1}, {sT2}')

    def qk_batch(self):
        beta = self.beta
        half, t = beta >> 2, beta & 3
        Dr, P0, Bq = 36, 4, 52
        self.need(f'K{4*beta+3}')
        self.beta += 1
        if 'noqk' in self.exp:
            return
        for gam in range(4):
            r = self.slot(4 * beta + gam)
            self.a(f'v_mfma_f32_16x16x32_bf16 v[{Dr+4*gam}:{Dr+4*gam+3}], v[{r}:{r+3}], v[{Bq}:{Bq+3}], 0')
        self.a('s_nop 5')
        for k in (1, 2, 3):
            for gam in range(4):
                P = P0 + 4 * half + gam
                d = Dr + 4 * gam
                self.dpp('v_add_f32', P, d + ((t + k) & 3), d + t if k == 1 else P, f'row_ror:{16-4*k}', 1 << t)

    def pv_group(self):
        tau = self.tau
        B = 36
        self.tau += 1
        for pair in range(2):
            v0 = self.slot(64 + 4 * tau + 2 * pair)
            v1 = self.slot(64 + 4 * tau + 2 * pair + 1)
            self.need(f'V{4*tau+2*pair+1}')
            if 'nopv' in self.exp:
                continue
            for e in range(8):
                self.a(f'v_perm_b32 v{B+2*e+pair}, v{v1+(e>>1)}, v{v0+(e>>1)}, {sPHI if e & 1 else sPLO}')
        if 'nopv' in self.exp:
            return
        PA = 52 + 2 * (tau >> 2)
        for e in range(8):
            ac = 4 + 4 * e
            c = '0' if tau == 0 else f'v[{ac}:{ac+3}]'
            self.a(f'v_mfma_f32_4x4x4_16b_bf16 v[{ac}:{ac+3}], v[{PA}:{PA+1}], v[{B+2*e}:{B+2*e+1}], {c} cbsz:2 abid:{tau & 3}')

    def gen(self):
        a = self.a
        self.L.append(f'; @launch grid=(256,1,1) block=(512,1,1) lds={LDS_BYTES}')
        self.L.append('.amdgcn_target "amdgcn-amd-amdhsa--gfx950"')
        self.L.append('.text')
        self.L.append(f'.globl {NAME}')
        self.L.append('.p2align 8')
        self.L.append(f'.type {NAME},@function')
        self.lab(NAME)
        a('s_load_dwordx16 s[4:19], s[0:1], 0')
        a('s_load_dwordx8 s[20:27], s[0:1], 64')
        if self.stamps:
            for i in range(STAMP_BASE, 102, 2):
                if not self.diag:
                    a(f's_mov_b64 s[{i}:{i+1}], 0')
            self.stamp('start')
        a('s_cmp_ge_u32 s2, 0x100')
        a('s_cbranch_scc1 L_end')
        a('v_lshrrev_b32 v4, 6, v0')
        a('v_and_b32 v1, 63, v0')
        a(f'v_readfirstlane_b32 {sW}, v4')
        a(f's_and_b32 {sG}, s2, 7')
        a(f's_lshr_b32 {sJ}, s2, 3')
        a(f's_cmp_ge_u32 {sW}, 4')
        a('s_cbranch_scc1 L_helper')
        self.stream_wave()
        self.tail()
        if self.local:
            self.far_store()
        self.helpers()
        self.lab('L_exit')
        if self.stamps and not self.diag:
            self.stamp('end')
            a('s_waitcnt lgkmcnt(0)')
            a('v_mov_b32 v4, 0')
            for i in range(len(self.stamp_names)):
                a(f'v_writelane_b32 v4, s{STAMP_BASE+2*i}, {i}')
            a(f's_getreg_b32 {sT1}, hwreg(HW_REG_XCC_ID)')
            a(f'v_writelane_b32 v4, {sT1}, 63')
            a(f's_getreg_b32 {sT1}, hwreg(HW_REG_HW_ID)')
            a(f'v_writelane_b32 v4, {sT1}, 62')
            a(f's_lshl_b32 {sT0}, s2, 3')
            a(f's_add_u32 {sT0}, {sT0}, {sW}')
            a(f's_lshl_b32 {sT0}, {sT0}, 8')
            a(f's_add_u32 {sT0}, {sT0}, {hex(STAMP)}')
            a(f'v_lshl_add_u32 v5, v1, 2, {sT0}')
            a(f'buffer_store_dword v4, v5, {SRD_WS}, 0 offen')
        self.lab('L_end')
        a('s_endpgm')
        self.L += ['.section .rodata,"a"', '.p2align 6', f'.amdhsa_kernel {NAME}',
                   f'  .amdhsa_next_free_vgpr {NVGPR}', '  .amdhsa_next_free_sgpr 102', f'  .amdhsa_accum_offset {NVGPR}',
                   '  .amdhsa_group_segment_fixed_size 0', '  .amdhsa_kernarg_size 96',
                   '  .amdhsa_user_sgpr_count 2', '  .amdhsa_user_sgpr_kernarg_segment_ptr 1',
                   '  .amdhsa_system_sgpr_workgroup_id_x 1',
                   '  .amdhsa_float_denorm_mode_32 3', '.end_amdhsa_kernel']
        return HEADER + '\n'.join(self.L) + '\n'

    def stream_wave(self):
        a = self.a
        vP, vD, vPA, vBq, vT = 4, 36, 52, 52, 60
        assert RING0 == 80
        kf = self.kfirst
        self.seq = [f'K{i}' for i in range(kf)] + [f'Q{i}' for i in range(4)] + [f'F{i}' for i in range(4)] + \
                   [f'K{i}' for i in range(kf, 64)] + [f'V{i}' for i in range(64)]
        self.m = self.beta = self.tau = 0
        self.landed = -1
        self.vm = []
        a(f's_lshl_b32 {sT0}, {sG}, 23')
        a(f's_lshl_b32 {sT1}, {sJ}, 18')
        a(f's_add_u32 {sT0}, {sT0}, {sT1}')
        a(f's_lshl_b32 {sT1}, {sW}, 10')
        a(f's_add_u32 {sT0}, {sT0}, {sT1}')
        a(f'v_bfe_u32 v{vT}, v1, 2, 2')
        a(f'v_lshlrev_b32 v{vT}, 8, v{vT}')
        a(f'v_and_b32 v{vT+1}, 3, v1')
        a(f'v_lshl_add_u32 v{vT}, v{vT+1}, 4, v{vT}')
        a(f'v_lshrrev_b32 v{vT+2}, 4, v1')
        a(f'v_lshlrev_b32 v{vT+2}, 6, v{vT+2}')
        a(f'v_add3_u32 v2, v{vT}, v{vT+2}, {sT0}')
        a(f'v_lshl_add_u32 v3, v1, 4, {sT0}')
        a('s_waitcnt lgkmcnt(0)')
        self.srd(SRD_A, 6, 64 << 20)
        self.steps_until('F0')
        self.stamp('issued0')
        a(f's_load_dword {sTAG}, s[26:27], 0')
        self.srd(SRD_B, 8, 64 << 20)
        self.srd(SRD_WS, 26, 256 << 20)
        a(f's_mov_b32 {sPLO}, 0x05040100')
        a(f's_mov_b32 {sPHI}, 0x07060302')
        a(f's_mov_b32 {sC}, {hex(f2u(math.log2(math.e) / math.sqrt(128.0)))}')
        while not self.has('Q3'):
            self.step()
        self.stamp('preT')
        a('s_barrier')
        self.steps_until(f'K{self.nG}')
        assert self.has('F3')
        a('s_barrier')
        self.steps_until(f'K{self.nA}')
        a(f'v_lshlrev_b32 v{vT}, 4, v1')
        self.stamp('preA')
        self.barrier()
        a(f'ds_read_b128 v[{vBq}:{vBq+3}], v{vT} offset:{L_BQ}')
        self.stamp('A')
        self.make_tag()
        a(f'v_and_b32 v{vT+6}, 3, v1')
        a(f'v_lshlrev_b32 v{vT+6}, 4, v{vT+6}')
        a(f's_lshl_b32 {sT0}, {sW}, 2')
        a(f'v_add_u32 v{vT+7}, {sT0}, v{vT+6}')
        a('s_waitcnt lgkmcnt(0)')
        while self.beta < 16:
            nxt = self.seq[self.m]
            if int(nxt[1:]) + (64 if nxt[0] == 'V' else 0) - RING >= 4 * self.beta:
                self.qk_batch()
            self.step()
            if self.beta < 16 and self.has(f'K{4*self.beta+3}'):
                self.qk_batch()
        self.max8(vT, vP, vT + 1)
        self.max8(vT + 2, vP + 8, vT + 1)
        a(f'v_max_f32 v{vT}, v{vT}, v{vT+2}')
        self.inrow_allreduce('v_max_f32', vT, (8, 4))
        self.rows_allreduce('v_max_f32', vT, vT + 1)
        a(f'ds_write_b32 v{vT+7}, v{vT} offset:{L_MB}')
        self.step()
        self.stamp('_preB')
        self.barrier()
        a(f'ds_read_b128 v[{vD}:{vD+3}], v{vT+6} offset:{L_MB}')
        a('s_waitcnt lgkmcnt(0)')
        a(f'v_max3_f32 v{vT}, v{vD}, v{vD+1}, v{vD+2}')
        a(f'v_max_f32 v{vT}, v{vT}, v{vD+3}')
        a(f'v_mul_f32 v{vT}, {sC}, v{vT}')
        for i in range(16):
            a(f'v_fma_f32 v{vP+i}, v{vP+i}, {sC}, -v{vT}')
        self.step()
        for i in range(16):
            a(f'v_exp_f32 v{vP+i}, v{vP+i}')
        self.step()
        for i in range(8):
            a(f'v_cvt_pk_bf16_f32 v{vPA+i}, v{vP+2*i}, v{vP+2*i+1}')
        for i in range(8):
            a(f'v_add_f32 v{vP+i}, v{vP+i}, v{vP+8+i}')
        self.sum8(vT, vP)
        self.inrow_allreduce('v_add_f32', vT, (8, 4))
        self.rows_allreduce('v_add_f32', vT, vT + 1)
        a(f'ds_write_b32 v{vT+7}, v{vT} offset:{L_LB}')
        self.step()
        self.barrier()
        self.stamp('C')
        while self.m < len(self.seq):
            if self.seq[self.m] == f'V{self.nM}':
                a('s_barrier')
            if int(self.seq[self.m][1:]) - RING >= 4 * self.tau:
                self.pv_group()
            self.step()
            if self.has(f'V{4*self.tau+3}'):
                self.pv_group()
        self.stamp('allissued')

    def tail(self):
        a = self.a
        CPC = self.CPC
        NCONS = 512 // CPC
        lg = int(math.log2(CPC))
        vAcc, vD, vT = 4, 36, 60
        vA0, vA1, vA2, vA3, vA4, vA5, vTB, vWt = range(68, 76)
        vW, SG = 80, 96
        assert self.tau >= 8
        self.lab('L_Z')
        self.srd(SRD_C, 12, 4 << 20)
        a(f'v_lshlrev_b32 v{vA5}, 1, v0')
        a(f's_lshl_b32 {sT0}, {sG}, 19')
        a(f's_lshl_b32 {sT1}, {sJ}, 14')
        a(f's_add_u32 {sT0}, {sT0}, {sT1}')
        a('s_barrier')
        for e in range(16):
            if e and e % 4 == 0:
                a(f's_add_u32 {sT0}, {sT0}, 0x1000')
            self.load(f'wo{e}', f'buffer_load_short_d16_hi v{vW+e}, v{vA5}, {SRD_C}, {sT0} offen offset:{(e & 3)*1024} {self.opol}')
        self.srd(SRD_OUT, 22, 1024)
        a(f's_mov_b32 {sSEL}, 0x07060500')
        a(f's_mov_b32 {sSA}, 0x0c0c0400')
        a(f's_mov_b32 {sSB}, 0x04000c0c')
        a(f'v_and_b32 v{vT}, 3, v1')
        a(f'v_lshlrev_b32 v{vT}, 3, v{vT}')
        a(f'v_lshrrev_b32 v{vTB}, v{vT}, {sTAG}')
        a(f'v_lshrrev_b32 v{vT}, 4, v1')
        a(f'v_mul_u32_u24 v{vT}, 160, v{vT}')
        a(f'v_and_b32 v{vT+1}, 15, v1')
        a(f'v_lshlrev_b32 v{vT+2}, 3, v{vT+1}')
        a(f's_mul_i32 {sT0}, {sW}, 2560')
        a(f'v_add3_u32 v{vA0}, v{vT}, v{vT+2}, {sT0}')
        a(f'v_lshrrev_b32 v{vT}, 7, v0')
        a(f'v_mul_u32_u24 v{vT}, 640, v{vT}')
        a(f'v_bfe_u32 v{vT+2}, v0, 1, 2')
        a(f'v_mul_u32_u24 v{vT+2}, 160, v{vT+2}')
        a(f'v_bfe_u32 v{vT+3}, v0, 3, 4')
        a(f'v_lshlrev_b32 v{vT+3}, 3, v{vT+3}')
        a(f'v_add3_u32 v{vT}, v{vT}, v{vT+2}, v{vT+3}')
        a(f'v_and_b32 v{vT+2}, 1, v0')
        a(f'v_lshl_add_u32 v{vA1}, v{vT+2}, 2, v{vT}')
        a(f'v_add_u32 v{vA1}, {L_OB}, v{vA1}')
        a(f's_lshl_b32 {sT2}, {sG}, 16')
        a(f's_add_u32 {sT2}, {sT2}, {hex(OBOX)}')
        a(f's_lshl_b32 {sT1}, {sJ}, 6')
        a(f's_add_u32 {sT0}, {sT2}, {sT1}')
        a(f'v_lshrrev_b32 v{vT}, 4, v0')
        a(f'v_lshlrev_b32 v{vWt}, 2, v{vT}')
        a(f'ds_read_b32 v{vWt}, v{vWt} offset:{L_WB}')
        a(f'v_mov_b32 v{vT+5}, {L_FL}')
        a(f'ds_read_b32 v{vT+5}, v{vT+5}')
        a(f'v_lshlrev_b32 v{vT}, 11, v{vT}')
        a(f'v_lshlrev_b32 v{vT+2}, 2, v{vT+1}')
        a(f'v_add3_u32 v{vA2}, v{vT}, v{vT+2}, {sT0}')
        a(f's_lshl_b32 {sT1}, {sJ}, 11')
        a(f's_add_u32 {sT0}, {sT2}, {sT1}')
        a(f'v_lshl_add_u32 v{vA3}, v0, 2, {sT0}')
        a(f'v_lshrrev_b32 v{vT}, {lg}, v0')
        a(f'v_lshlrev_b32 v{vT}, {lg+10}, v{vT}')
        a(f'v_and_b32 v{vT+2}, {CPC-1}, v0')
        a(f'v_lshlrev_b32 v{vT+2}, 2, v{vT+2}')
        if self.sorder:
            a(f's_and_b32 {sT0}, {sJ}, 7')
            a(f's_lshl_b32 {sT1}, {sG}, 3')
            a(f's_add_u32 {sT0}, {sT0}, {sT1}')
            a(f's_lshr_b32 {sT1}, {sJ}, 3')
            a(f's_lshl_b32 {sT1}, {sT1}, 6')
            a(f's_add_u32 {sT0}, {sT0}, {sT1}')
            a(f's_lshl_b32 {sT0}, {sT0}, {lg+2}')
        else:
            a(f's_lshl_b32 {sT0}, s2, {lg+2}')
        a(f's_add_u32 {sT0}, {sT0}, {hex(SBOX)}')
        a(f'v_add3_u32 v{vA4}, v{vT}, v{vT+2}, {sT0}')
        emu = [e for e in self.exp if e.startswith('h2_')]
        if emu:
            npw = int(emu[0][3:])
            nprod = 32 * npw
            a(f's_lshr_b32 {sT0}, {sJ}, {2 + npw - 1}')
            a(f's_mul_i32 {sT0}, {sT0}, {2 * npw * nprod * 128}')
            a(f's_and_b32 {sT1}, {sJ}, {4 * npw - 1}')
            a(f's_mul_i32 {sT2}, {sG}, {4 * npw}')
            a(f's_add_u32 {sT1}, {sT1}, {sT2}')
            a(f's_lshl_b32 {sT1}, {sT1}, 7')
            a(f's_add_u32 {sT0}, {sT0}, {sT1}')
            a(f's_add_u32 {sT0}, {sT0}, {hex(SBOX)}')
            a(f'v_lshrrev_b32 v{vT}, 5, v0')
            a(f'v_mul_u32_u24 v{vT}, {nprod * 128}, v{vT}')
            a(f'v_add3_u32 v{vA4}, v{vT}, v{vT+2}, {sT0}')
            a(f's_cmp_ge_u32 {sW}, {npw}')
            a(f's_cselect_b32 {sT0}, 0x20000000, 0')
            a(f'v_add_u32 v{vA4}, {sT0}, v{vA4}')
        a(f'v_lshlrev_b32 v{vT+6}, 5, v{vT+1}')
        a(f's_lshl_b32 {sT0}, {sW}, 2')
        a(f'v_add_u32 v{vT+7}, {sT0}, v{vT+6}')
        a('s_waitcnt lgkmcnt(0)')
        a(f'v_readfirstlane_b32 {sLOC}, v{vT+5}')
        a(f's_cmp_ge_u32 {sW}, 4')
        a('s_cbranch_scc1 L_D')
        while self.tau < 16:
            self.pv_group()
        self.stamp('pvdone')
        if 'notail' in self.exp:
            a('s_branch L_exit')
        a('s_nop 1')
        for e in range(4):
            for h in range(4):
                a(f'v_permlane32_swap_b32 v{vAcc+4*e+h}, v{vAcc+4*(e+4)+h}')
        for e in range(4):
            for h in range(4):
                a(f'v_add_f32 v{vAcc+4*e+h}, v{vAcc+4*e+h}, v{vAcc+4*(e+4)+h}')
        for e in range(2):
            for h in range(4):
                a(f'v_permlane16_swap_b32 v{vAcc+4*e+h}, v{vAcc+4*(e+2)+h}')
        for h in range(4):
            a(f'v_add_f32 v{vD+2*h}, v{vAcc+h}, v{vAcc+8+h}')
            a(f'v_add_f32 v{vD+2*h+1}, v{vAcc+4+h}, v{vAcc+12+h}')
            a(f'ds_write_b64 v{vA0}, v[{vD+2*h}:{vD+2*h+1}] offset:{L_OB+640*h}')
        self.lab('L_D')
        if 'notail' in self.exp:
            a('s_branch L_exit')
        self.barrier()
        for k in range(2):
            a(f'ds_read2st64_b32 v[{vD+2*k}:{vD+2*k+1}], v{vA1} offset0:{20*k} offset1:{20*k+10}')
        a(f's_cmp_eq_u32 {sLOC}, 1')
        a('s_waitcnt lgkmcnt(0)')
        a(f'v_add_f32 v{vD}, v{vD}, v{vD+2}')
        a(f'v_add_f32 v{vD+1}, v{vD+1}, v{vD+3}')
        a(f'v_add_f32 v{vT}, v{vD}, v{vD+1}')
        a(f'v_perm_b32 v{vT}, v{vT}, v{vTB}, {sSEL}')
        if 't_none' in self.exp:
            a('s_branch L_exit')
        if self.local:
            a('s_cbranch_scc0 L_far')
            a(f'buffer_store_dword v{vT}, v{vA2}, {SRD_WS}, 0 offen {self.ospol}')
            self.lab('L_near')
        else:
            a(f'buffer_store_dword v{vT}, v{vA2}, {SRD_WS}, 0 offen sc1')
        self.stamp('opub')
        if 't_opubsleep' in self.exp:
            a('s_sleep 127')
            a('s_branch L_exit')
        if 't_otherpoll' in self.exp:
            a(f'v_add_u32 v{vA3}, 0x400000, v{vA3}')
            for i in range(5):
                a(f'buffer_load_dword v{vT+1}, v{vA3}, {SRD_WS}, 0 offen {self.lpol}')
                a('s_waitcnt vmcnt(0)')
            a('s_branch L_exit')
        if 't_opub' in self.exp:
            a('s_branch L_exit')

        self.poll([f'buffer_load_dword v{vT+1}, v{vA3}, {SRD_WS}, 0 offen {self.olpol}'],
                  lambda: a(f'v_cmp_ne_u32_sdwa vcc, v{vT+1}, v{vTB} src0_sel:BYTE_0 src1_sel:BYTE_0'), sleep=self.sl1)
        self.stamp('goto')
        a(f'v_mul_f32 v{vT+1}, v{vT+1}, v{vWt}')
        self.rows_allreduce('v_add_f32', vT + 1, vT + 2)
        a(f'ds_write_b32 v{vT+7}, v{vT+1} offset:{L_O2}')
        self.barrier()
        a(f'ds_read_b128 v[{vD}:{vD+3}], v{vT+6} offset:{L_O2}')
        a(f'ds_read_b128 v[{vD+4}:{vD+7}], v{vT+6} offset:{L_O2+16}')
        a('s_waitcnt lgkmcnt(0)')
        self.sum8(vT, vD)
        a('s_nop 1')
        for e in range(16):
            op = 'v_mul_f32' if e < 4 else 'v_fmac_f32'
            self.dpp(op, vD + (e & 3), vT, vW + e, f'row_newbcast:{e}')
        a(f'v_add_f32 v{vD}, v{vD}, v{vD+2}')
        a(f'v_add_f32 v{vD+1}, v{vD+1}, v{vD+3}')
        a(f'v_add_f32 v{vT}, v{vD}, v{vD+1}')
        a(f'v_perm_b32 v{vT}, v{vT}, v{vTB}, {sSEL}')
        if self.diag:
            i = self.stamp_names.index(self.diag[0]) if self.diag[0] in self.stamp_names else 0
            a(f's_cmp_lg_u32 {sW}, 0')
            a('s_cbranch_scc1 L_nodg')
            a('s_waitcnt lgkmcnt(0)')
            a(f'v_mov_b32 v{vD}, s{STAMP_BASE}')
            a(f'v_mov_b32 v{vD+1}, s{STAMP_BASE+2*i}')
            a(f's_lshl_b32 {sT0}, s2, 3')
            a(f's_add_u32 {sT0}, {sT0}, {hex(STAMP)}')
            a(f'v_mov_b32 v{vD+2}, {sT0}')
            a('s_mov_b64 exec, 1')
            a(f'buffer_store_dwordx2 v[{vD}:{vD+1}], v{vD+2}, {SRD_WS}, 0 offen sc1')
            a('s_mov_b64 exec, -1')
            self.lab('L_nodg')
        if 't_hop1' in self.exp:
            a('s_branch L_exit')
        a(f'buffer_store_dword v{vT}, v{vA4}, {SRD_WS}, 0 offen {self.spol}')
        self.stamp('spub')
        if 't_spub' in self.exp:
            a('s_branch L_exit')

        a(f's_cmp_ge_u32 s2, {NCONS}')
        a('s_cbranch_scc1 L_exit')
        nl, lpp = CPC // 8, CPC // 4
        a(f's_lshl_b32 {sT0}, s2, {lg+10}')
        if emu:
            nl = 1
            a(f's_mul_i32 {sT0}, s2, {nprod * 128}')
        a(f's_add_u32 {sT0}, {sT0}, {hex(SBOX)}')
        a(f'v_lshl_add_u32 v{vA0}, v0, 4, {sT0}')
        if emu and npw == 1:
            a(f'v_and_b32 v{vA0}, 255, v0')
            a(f'v_lshl_add_u32 v{vA0}, v{vA0}, 4, {sT0}')
        sl = []
        for u in range(nl):
            if u:
                sl.append(f's_movk_i32 {sT2}, {hex(u*8192)}')
            sl.append(f'buffer_load_dwordx4 v[{SG+4*u}:{SG+4*u+3}], v{vA0}, {SRD_WS}, {sT2 if u else 0} offen {self.lpol}')
        for x in sl:
            a(x)
        a(f'v_mov_b32 v{vA1}, {sTAG}')
        a(f'v_and_b32 v{vT+1}, {lpp-1}, v1')
        a(f'v_lshlrev_b32 v{vT+1}, 7, v{vT+1}')
        a(f'v_lshrrev_b32 v{vT+2}, 4, v1')
        a(f'v_lshlrev_b32 v{vT+2}, 5, v{vT+2}')
        a(f's_lshl_b32 {sT0}, {sW}, 2')
        a(f'v_add3_u32 v{vA2}, v{vT+1}, v{vT+2}, {sT0}')
        a(f'v_and_b32 v{vT+1}, {CPC-1}, v1')
        a(f'v_lshlrev_b32 v{vA3}, 5, v{vT+1}')
        a(f'v_lshlrev_b32 v{vT+2}, 2, v{vT+1}')
        a(f'ds_read_b32 v{vA4}, v{vT+2} offset:{L_GB}')
        a(f'ds_read_b32 v{vA5}, v{vT+2} offset:{L_XB}')
        a(f's_lshl_b32 {sT0}, s2, {lg+1}')
        a(f'v_lshl_add_u32 v{vWt}, v{vT+1}, 1, {sT0}')
        a('s_waitcnt vmcnt(0)')
        self.poll(sl, lambda: self.check_quads([SG + 4 * u for u in range(nl)], vA1, vT + 1, vT + 2, vT + 3), True, sleep=self.sl2)
        self.stamp('gots')
        for u in range(1, nl):
            for k in range(4):
                a(f'v_add_f32 v{SG+k}, v{SG+k}, v{SG+4*u+k}')
        self.quad_reduce(SG, lpp)
        a(f'ds_write_b32 v{vA2}, v{SG} offset:{L_S2}')
        self.barrier()
        a(f's_cmp_lg_u32 {sW}, 0')
        a('s_cbranch_scc1 L_exit')
        a(f'ds_read_b128 v[{vD}:{vD+3}], v{vA3} offset:{L_S2}')
        a(f'ds_read_b128 v[{vD+4}:{vD+7}], v{vA3} offset:{L_S2+16}')
        a(f's_mov_b32 exec_lo, {hex((1 << CPC) - 1)}')
        a('s_mov_b32 exec_hi, 0')
        a('s_waitcnt lgkmcnt(0)')
        self.sum8(vT, vD)
        self.bf16r(vT, vT)
        a(f'v_mul_f32 v{vT}, v{vT}, v{vA4}')
        self.bf16r(vT, vT)
        a(f'v_add_f32 v{vT}, v{vT}, v{vA5}')
        a(f'v_cvt_pk_bf16_f32 v{vT}, v{vT}, v{vT}')
        a(f'buffer_store_short v{vT}, v{vWt}, {SRD_OUT}, 0 offen')
        a('s_mov_b64 exec, -1')
        a('s_cmp_lg_u32 s2, 0')
        a('s_cbranch_scc1 L_exit')
        if self.diag:
            a('s_memrealtime s[98:99]')
            a('s_sleep 40')
            a(f'v_lshlrev_b32 v{vT}, 5, v1')
            a(f'v_add_u32 v{vT}, {hex(STAMP)}, v{vT}')
            a(f'buffer_load_dwordx4 v[{vD}:{vD+3}], v{vT}, {SRD_WS}, 0 offen sc1')
            a(f'buffer_load_dwordx4 v[{vD+4}:{vD+7}], v{vT}, {SRD_WS}, 0 offen offset:16 sc1')
            a('s_waitcnt vmcnt(0) lgkmcnt(0)')
            for k in range(8):
                a(f'v_sub_u32 v{vD+k}, s98, v{vD+k}')
            a(f'v_max3_u32 v{vT}, v{vD}, v{vD+2}, v{vD+4}')
            a(f'v_max_u32 v{vT}, v{vT}, v{vD+6}')
            self.inrow_allreduce('v_max_u32', vT, (8, 4, 2, 1))
            self.rows_allreduce('v_max_u32', vT, vT + 2)
            op = {'max': 'v_min_u32', 'min': 'v_max_u32', 'mean': 'v_add_u32'}[self.diag[1]]
            a(f'{op} v{vD+1}, v{vD+1}, v{vD+3}')
            a(f'{op} v{vD+5}, v{vD+5}, v{vD+7}')
            a(f'{op} v{vT+1}, v{vD+1}, v{vD+5}')
            self.inrow_allreduce(op, vT + 1, (8, 4, 2, 1))
            self.rows_allreduce(op, vT + 1, vT + 2)
            if self.diag[1] == 'mean':
                a(f'v_lshrrev_b32 v{vT+1}, 8, v{vT+1}')
            if self.diag[0] == 'end':
                a(f'v_mov_b32 v{vT+1}, 0')
            if self.diag[0] == 'none':
                a(f'v_mov_b32 v{vT+1}, v{vT}')
            a(f'v_sub_u32 v{vT}, v{vT}, v{vT+1}')
            a('s_nop 1')
            a(f'v_readfirstlane_b32 s96, v{vT}')
            a('s_min_u32 s96, s96, 20000')
            a('s_lshl_b32 s96, s96, 2')
            a('s_add_u32 s96, s96, 200')
            self.lab('L_spin')
            a('s_memrealtime s[94:95]')
            a('s_waitcnt lgkmcnt(0)')
            a('s_sub_u32 s94, s94, s98')
            a('s_cmp_lt_u32 s94, s96')
            a('s_cbranch_scc1 L_spin')
        a(f'v_mov_b32 v{vT}, 0')
        a('s_mov_b64 exec, 1')
        a(f'buffer_store_dword v{vA1}, v{vT}, {SRD_WS}, 0 offen sc1')
        a('s_mov_b64 exec, -1')
        a('s_branch L_exit')

    def far_store(self):
        self.lab('L_far')
        self.a(f'buffer_store_dword v60, v70, {SRD_WS}, 0 offen sc1')
        self.a('s_branch L_near')

    def helpers(self):
        a = self.a
        CPC = self.CPC
        NCONS = 512 // CPC
        lg = int(math.log2(CPC))
        vLane = 1
        vT = 4
        vX = 16
        vA = 24
        vB = 32
        vCol, vTC = 40, 41
        vW = 112
        vTag, vTB = 2, 3
        self.lab('L_helper')
        if self.prio:
            a(f's_setprio {self.prio}')
        a('s_waitcnt lgkmcnt(0)')
        self.stamp('_hstart')
        a(f's_load_dword {sTAG}, s[26:27], 0')
        self.srd(SRD_WS, 26, 256 << 20)
        self.srd(SRD_X, 4, 1024)
        a(f's_cmp_ge_u32 {sW}, 6')
        a('s_cbranch_scc1 L_h23')
        self.vm = []
        sRB, sCB, sPUB = 's60', 's61', 's3'
        a(f's_and_b32 {sRB}, {sJ}, 3')
        a(f's_lshr_b32 {sCB}, {sJ}, 2')
        a(f's_cmp_eq_u32 {sW}, 4')
        a('s_cbranch_scc0 L_h1_setup')
        a(f's_lshl_b32 {sPUB}, {sG}, 13')
        a(f's_lshl_b32 {sT0}, {sRB}, 11')
        a(f's_add_u32 {sPUB}, {sPUB}, {sT0}')
        a(f's_add_u32 {sPUB}, {sPUB}, {hex(QBOX)}')
        a('s_branch L_tile')
        self.lab('L_h1_setup')
        a(f's_cmp_ge_u32 {sJ}, 28')
        a('s_cbranch_scc1 L_h23')
        a(f's_lshl_b32 {sCB}, {sCB}, 3')
        a(f's_add_u32 {sCB}, {sCB}, {sG}')
        a(f's_sub_u32 {sT0}, {sCB}, 28')
        a(f's_cmp_ge_u32 {sCB}, 28')
        a(f's_cselect_b32 {sCB}, {sT0}, {sCB}')
        a(f's_cselect_b32 {sPUB}, {hex(4*7168)}, 0')
        a(f's_add_u32 {sPUB}, {sPUB}, {hex(HBOX)}')
        a(f's_mul_i32 {sT0}, {sRB}, 7168')
        a(f's_add_u32 {sPUB}, {sPUB}, {sT0}')
        self.lab('L_tile')
        a(f'v_lshlrev_b32 v{vT}, 4, v{vLane}')
        self.load('x16', f'buffer_load_dwordx4 v[{vX}:{vX+3}], v{vT}, {SRD_X}, 0 offen')
        a(f's_lshl_b32 {sT0}, {sCB}, 8')
        a(f's_add_u32 {sPUB}, {sPUB}, {sT0}')
        a(f'v_lshrrev_b32 v{vT+4}, 3, v{vLane}')
        a(f'v_lshlrev_b32 v{vT+1}, 4, v{vT+4}')
        a(f's_lshl_b32 {sT0}, {sRB}, 7')
        a(f'v_add_u32 v{vT+1}, {sT0}, v{vT+1}')
        a(f's_sub_u32 {sT0}, {sW}, 4')
        a(f's_lshl_b32 {sT1}, {sT0}, 14')
        a(f'v_add_u32 v{vT+2}, {sT1}, v{vT}')
        a(f's_lshl_b32 {sT0}, {sT0}, 10')
        a(f'v_add_u32 v{vT}, {sT0}, v{vT}')
        a(f'v_lshl_add_u32 v{vT+1}, v{vT+1}, 1, {sT0}')
        a(f'v_and_b32 v{vT+3}, 7, v{vLane}')
        a(f'v_lshlrev_b32 v{vT+3}, 5, v{vT+3}')
        a(f'v_lshl_add_u32 v{vCol}, v{vT+4}, 2, v{vT+3}')
        a(f'v_add_u32 v{vT+3}, {sPUB}, v{vCol}')
        a(f'v_and_b32 v{vT+4}, 3, v{vT+4}')
        a(f'v_lshlrev_b32 v{vT+4}, 3, v{vT+4}')
        a(f's_mov_b32 {sPLO}, 0x05040100')
        a(f's_mov_b32 {sPHI}, 0x07060302')
        self.wait('x16')
        self.stamp('_x16')
        for k in range(4):
            a(f'v_lshlrev_b32 v{vA+2*k}, 16, v{vX+k}')
            a(f'v_and_b32 v{vA+2*k+1}, 0xffff0000, v{vX+k}')
        m, s2, t = vT + 5, vT + 6, vT + 7
        a(f'v_add_f32 v{m}, v{vA}, v{vA+1}')
        for k in range(2, 8):
            a(f'v_add_f32 v{m}, v{m}, v{vA+k}')
        self.inrow_allreduce('v_add_f32', m, (8, 4, 2, 1))
        self.rows_allreduce('v_add_f32', m, t)
        a(f'v_mul_f32 v{m}, {hex(f2u(1/512.))}, v{m}')
        for k in range(8):
            a(f'v_sub_f32 v{vB+k}, v{vA+k}, v{m}')
        a(f'v_mul_f32 v{s2}, v{vB}, v{vB}')
        for k in range(1, 8):
            a(f'v_fmac_f32 v{s2}, v{vB+k}, v{vB+k}')
        self.inrow_allreduce('v_add_f32', s2, (8, 4, 2, 1))
        self.rows_allreduce('v_add_f32', s2, t)
        a(f'v_mul_f32 v{s2}, {hex(f2u(1/512.))}, v{s2}')
        self.bf16r(m, m)
        self.bf16r(s2, s2)
        a(f'v_add_f32 v{s2}, {hex(f2u(1e-5))}, v{s2}')
        self.bf16r(s2, s2)
        a(f'v_sqrt_f32 v{s2}, v{s2}')
        for k in range(8):
            a(f'v_sub_f32 v{vA+k}, v{vA+k}, v{m}')
        self.bf16r(s2, s2)
        a(f'v_rcp_f32 v{s2}, v{s2}')
        for k in range(4):
            a(f'v_cvt_pk_bf16_f32 v{vX+k}, v{vA+2*k}, v{vA+2*k+1}')
        for k in range(4):
            a(f'v_lshlrev_b32 v{vA+2*k}, 16, v{vX+k}')
            a(f'v_and_b32 v{vA+2*k+1}, 0xffff0000, v{vX+k}')
        for k in range(8):
            a(f'v_mul_f32 v{vA+k}, v{vA+k}, v{s2}')
        for k in range(4):
            a(f'v_cvt_pk_bf16_f32 v{vX+k}, v{vA+2*k}, v{vA+2*k+1}')
        a(f'ds_write_b128 v{vT}, v[{vX}:{vX+3}] offset:{L_XN}')
        a('s_waitcnt lgkmcnt(0)')
        a(f'ds_read_b128 v[{vX}:{vX+3}], v{vT+1} offset:{L_XN}')
        a(f'ds_read_b128 v[{vX+4}:{vX+7}], v{vT+1} offset:{L_XN+16}')
        self.make_tag()
        a(f'v_lshrrev_b32 v{vTC}, v{vT+4}, {sTAG}')
        a(f's_mov_b32 {sSEL}, 0x07060500')
        self.stamp('_ln')
        self.barrier()
        a(f's_cmp_eq_u32 {sW}, 4')
        a('s_cbranch_scc1 L_tile2')
        a('s_barrier')
        self.lab('L_tile2')
        for u in range(16):
            a(f'ds_read_b128 v[{vW+4*u}:{vW+4*u+3}], v{vT+2} offset:{L_TL+1024*u}')
        self.tile_dot(8, vW, vX, vA, vB, lambda p: a(f's_waitcnt lgkmcnt({min(15, 14-2*p)})'))
        a(f'v_perm_b32 v{vA+4}, v{vA+4}, v{vTC}, {sSEL}')
        self.stamp('tilepub')
        a(f's_cmp_eq_u32 {sW}, 4')
        a('s_cbranch_scc0 L_h1')
        a(f'buffer_store_dword v{vA+4}, v{vT+3}, {SRD_WS}, 0 offen {self.qspol}')

        a(f's_mov_b32 {sSA}, 0x0c0c0400')
        a(f's_mov_b32 {sSB}, 0x04000c0c')
        a(f'v_mov_b32 v{vTag}, {sTAG}')
        a(f's_lshl_b32 {sT0}, {sG}, 13')
        a(f's_add_u32 {sT0}, {sT0}, {hex(QBOX)}')
        a(f'v_lshrrev_b32 v{vT}, 5, v{vLane}')
        a(f'v_and_b32 v{vT+1}, 31, v{vLane}')
        a(f'v_lshlrev_b32 v{vT+2}, 11, v{vT}')
        a(f'v_lshlrev_b32 v{vT+3}, 4, v{vT+1}')
        a(f'v_add3_u32 v{vT+2}, v{vT+2}, v{vT+3}, {sT0}')
        a(f's_movk_i32 {sT2}, 0x1000')
        a(f'v_lshrrev_b32 v{vT+1}, 1, v{vT+1}')
        a(f'v_lshlrev_b32 v{vT+1}, 6, v{vT+1}')
        a(f'v_and_b32 v{vT+3}, 1, v{vLane}')
        a(f'v_lshlrev_b32 v{vT+3}, 3, v{vT+3}')
        a(f'v_lshl_add_u32 v{vT+1}, v{vT}, 2, v{vT+1}')
        a(f'v_add_u32 v{vT+1}, v{vT+1}, v{vT+3}')
        ql = [f'buffer_load_dwordx4 v[{vW+8*h+4*b}:{vW+8*h+4*b+3}], v{vT+2}, {SRD_WS}, {sT2 if b else 0} offen offset:{512*h} sc1'
              for h in range(4) for b in range(2)]
        a('s_barrier')
        self.poll(ql, lambda: self.check_quads([vW + 4 * i for i in range(8)], vTag, vT + 4, vT + 5, vT + 6))
        self.stamp('gotq')
        for h in range(4):
            for k in range(4):
                a(f'v_add_f32 v{vW+8*h+k}, v{vW+8*h+k}, v{vW+8*h+4+k}')
        for h in range(4):
            a(f'v_permlane32_swap_b32 v{vW+8*h}, v{vW+8*h+2}')
            a(f'v_permlane32_swap_b32 v{vW+8*h+1}, v{vW+8*h+3}')
        for h in range(4):
            a(f'v_add_f32 v{vW+8*h}, v{vW+8*h}, v{vW+8*h+2}')
            a(f'v_add_f32 v{vW+8*h+1}, v{vW+8*h+1}, v{vW+8*h+3}')
            a(f'v_cvt_pk_bf16_f32 v{vW+8*h}, v{vW+8*h}, v{vW+8*h+1}')
            a(f'ds_write_b32 v{vT+1}, v{vW+8*h} offset:{L_BQ+16*h}')
        self.barrier()
        a(f'v_and_b32 v{vT}, 3, v{vLane}')
        a(f'v_lshlrev_b32 v{vT}, 4, v{vT}')
        a(f's_lshl_b32 {sT2}, {sG}, 11')
        a(f's_add_u32 {sT2}, {sT2}, {hex(MLBOX)}')
        a(f's_lshl_b32 {sT1}, {sJ}, 4')
        a(f's_add_u32 {sT0}, {sT2}, {sT1}')
        a(f'v_lshl_add_u32 v{vT+1}, v{vT}, 5, {sT0}')
        a(f's_lshr_b32 {sT1}, {sJ}, 3')
        a(f's_lshl_b32 {sT1}, {sT1}, 9')
        a(f's_add_u32 {sT0}, {sT2}, {sT1}')
        a(f'v_and_b32 v{vT+2}, 31, v{vLane}')
        a(f'v_lshlrev_b32 v{vT+3}, 2, v{vT+2}')
        a(f'v_lshl_add_u32 v{vT+2}, v{vT+2}, 4, {sT0}')
        sXC = 's11'
        a(f's_getreg_b32 {sXC}, hwreg(HW_REG_XCC_ID, 0, 4)')
        a(f's_and_b32 {sT0}, {sTAG}, 0xfffffff0')
        a(f's_or_b32 {sXC}, {sXC}, {sT0}')
        a(f'v_mov_b32 v{vX+2}, {sXC}')
        a(f'v_mov_b32 v{vX+3}, {sTAG}')
        a(f's_mov_b32 {sC}, {hex(f2u(math.log2(math.e) / math.sqrt(128.0)))}')
        a('s_barrier')
        a(f'ds_read_b128 v[{vA}:{vA+3}], v{vT} offset:{L_MB}')
        a('s_waitcnt lgkmcnt(0)')
        a(f'v_max3_f32 v{vX}, v{vA}, v{vA+1}, v{vA+2}')
        a(f'v_max_f32 v{vX}, v{vX}, v{vA+3}')
        a('s_barrier')
        a(f'ds_read_b128 v[{vA}:{vA+3}], v{vT} offset:{L_LB}')
        a('s_waitcnt lgkmcnt(0)')
        a(f'v_add_f32 v{vA}, v{vA}, v{vA+2}')
        a(f'v_add_f32 v{vA+1}, v{vA+1}, v{vA+3}')
        a(f'v_add_f32 v{vX+1}, v{vA}, v{vA+1}')
        a('s_mov_b64 exec, 0xf')
        a(f'buffer_store_dwordx4 v[{vX}:{vX+3}], v{vT+1}, {SRD_WS}, 0 offen {self.mspol}')
        a('s_mov_b64 exec, -1')
        a('s_barrier')

        def chk_ml():
            a(f'v_xor_b32 v{vT+4}, {sTAG}, v{vB+2}')
            a(f'v_lshrrev_b32 v{vT+4}, 4, v{vT+4}')
            a(f'v_xor_b32 v{vT+5}, {sTAG}, v{vB+3}')
            a(f'v_or_b32 v{vT+4}, v{vT+4}, v{vT+5}')
            a(f'v_cmp_ne_u32 vcc, 0, v{vT+4}')
        self.poll([f'buffer_load_dwordx4 v[{vB}:{vB+3}], v{vT+2}, {SRD_WS}, 0 offen sc1'], chk_ml, sleep=4)
        mx, y, t = vT + 4, vT + 5, vT + 6
        a(f'v_cmp_ne_u32 vcc, {sXC}, v{vB+2}')
        a(f'v_mov_b32 v{t}, {L_FL}')
        a('s_cmp_eq_u64 vcc, 0')
        a(f's_cselect_b32 {sT0}, 1, 0')
        a(f'v_mov_b32 v{y}, {sT0}')
        a(f'ds_write_b32 v{t}, v{y}')
        a(f'v_mov_b32 v{mx}, v{vB}')
        self.inrow_allreduce('v_max_f32', mx, (8, 4, 2, 1))
        self.rows_allreduce('v_max_f32', mx, t, do32=False)
        a(f'v_sub_f32 v{mx}, v{vB}, v{mx}')
        a(f'v_mul_f32 v{mx}, {sC}, v{mx}')
        a(f'v_exp_f32 v{mx}, v{mx}')
        a('s_nop 0')
        a(f'v_mul_f32 v{y}, v{mx}, v{vB+1}')
        self.inrow_allreduce('v_add_f32', y, (8, 4, 2, 1))
        self.rows_allreduce('v_add_f32', y, t, do32=False)
        a(f'v_rcp_f32 v{y}, v{y}')
        a('s_nop 0')
        a(f'v_mul_f32 v{mx}, v{mx}, v{y}')
        a(f'ds_write_b32 v{vT+3}, v{mx} offset:{L_WB}')
        self.stamp('mlw')
        a('s_waitcnt lgkmcnt(0)')
        a('s_branch L_Z')

        self.lab('L_h1')
        a(f'buffer_store_dword v{vA+4}, v{vT+3}, {SRD_WS}, 0 offen sc1')
        self.srd(SRD_B, 20, 1792 * 1024)
        sFI, sRD, sCD = 's8', 's9', 's10'
        a(f's_mul_i32 {sFI}, {sG}, 28')
        a(f's_add_u32 {sFI}, {sFI}, {sJ}')
        a(f's_lshr_b32 {sRD}, {sFI}, 3')
        a(f's_and_b32 {sCD}, {sFI}, 7')
        a(f's_lshl_b32 {sT0}, {sRD}, 16')
        a(f's_lshl_b32 {sT1}, {sCD}, 7')
        a(f's_add_u32 {sT0}, {sT0}, {sT1}')
        a(f'v_lshrrev_b32 v{vT+2}, 3, v{vLane}')
        a(f'v_lshlrev_b32 v{vT}, 13, v{vT+2}')
        a(f'v_lshlrev_b32 v{vT+2}, 4, v{vT+2}')
        a(f'v_and_b32 v{vT+1}, 7, v{vLane}')
        a(f'v_lshlrev_b32 v{vT+1}, 4, v{vT+1}')
        a(f'v_add3_u32 v{vT}, v{vT}, v{vT+1}, {sT0}')
        a(f's_movk_i32 {sT2}, 0x1000')
        for e in range(8):
            a(f'buffer_load_dwordx4 v[{vW+4*e}:{vW+4*e+3}], v{vT}, {SRD_B}, {sT2 if e >= 4 else 0} offen offset:{(e & 3)*1024} {self.wpol}')
        a(f's_lshl_b32 {sT0}, {sRD}, 8')
        a(f's_add_u32 {sT0}, {sT0}, {hex(HBOX)}')
        a(f'v_lshl_add_u32 v{vT+1}, v{vLane}, 2, {sT0}')
        a(f'v_and_b32 v{vT+3}, 3, v{vLane}')
        a(f'v_lshlrev_b32 v{vT+3}, 3, v{vT+3}')
        a(f'v_lshrrev_b32 v{vTB}, v{vT+3}, {sTAG}')
        a(f'v_lshlrev_b32 v{vT+3}, 1, v{vLane}')
        a(f's_lshl_b32 {sT0}, {sCD}, 13')
        a(f's_lshl_b32 {sT1}, {sRD}, 8')
        a(f's_add_u32 {sT0}, {sT0}, {sT1}')
        a(f's_add_u32 {sT0}, {sT0}, {hex(FBOX)}')
        a(f'v_add_u32 v{vCol}, {sT0}, v{vCol}')
        for b in 'ABC':
            a('s_barrier')
        hl = []
        for k in range(8):
            if k:
                hl.append(f's_movk_i32 {sT2}, {k*7168 - (0 if k < 4 else 0x7000)}')
            if k == 4:
                hl.append(f'v_add_u32 v{vT+4}, 0x7000, v{vT+1}')
            hl.append(f'buffer_load_dword v{vB+k}, v{vT+1 if k < 4 else vT+4}, {SRD_WS}, {sT2 if k else 0} offen sc1')

        def chk_h():
            a(f'v_xor_b32 v{vT+4}, v{vB}, v{vTB}')
            for k in range(1, 8):
                a(f'v_bitop3_b32 v{vT+4}, v{vB+k}, v{vTB}, v{vT+4} bitop3:0xbe')
            a(f'v_and_b32 v{vT+4}, 0xff, v{vT+4}')
            a(f'v_cmp_ne_u32 vcc, 0, v{vT+4}')
        self.poll(hl, chk_h, sleep=0)
        for b in (vB, vB + 4):
            a(f'v_add_f32 v{b}, v{b}, v{b+1}')
            a(f'v_add_f32 v{b+2}, v{b+2}, v{b+3}')
            a(f'v_add_f32 v{b}, v{b}, v{b+2}')
            self.bf16r(b, b)
        self.silu_bf16(vB + 1, vB, vB + 2)
        a(f'v_mul_f32 v{vB+1}, v{vB+1}, v{vB+4}')
        a(f'v_cvt_pk_bf16_f32 v{vB+1}, v{vB+1}, v{vB+1}')
        a(f'ds_write_b16 v{vT+3}, v{vB+1} offset:{L_HB}')
        a('s_waitcnt lgkmcnt(0)')
        a(f'ds_read_b128 v[{vX}:{vX+3}], v{vT+2} offset:{L_HB}')
        a('s_waitcnt lgkmcnt(0)')
        self.tile_dot(4, vW, vX, vA, vB, lambda p: None)
        a(f'v_perm_b32 v{vA+4}, v{vA+4}, v{vTC}, {sSEL}')
        a(f'buffer_store_dword v{vA+4}, v{vCol}, {SRD_WS}, 0 offen sc1')
        self.stamp('fpub')
        a('s_barrier')
        a('s_branch L_Z')

        self.lab('L_h23')
        if self.tlb:
            a(f's_cmp_lg_u32 {sW}, 7')
            a('s_cbranch_scc1 L_h23b')
            a(f's_and_b32 {sT0}, {sJ}, 3')
            a(f's_lshl_b32 {sT1}, {sT0}, 20')
            a(f's_load_dword s28, s[10:11], {sT1}')
            a(f's_mul_i32 {sT1}, {sT0}, {128*3584}')
            a(f's_load_dword s29, s[16:17], {sT1}')
            a(f's_load_dword s30, s[18:19], {sT1}')
            a(f's_lshl_b32 {sT0}, {sG}, 23')
            a(f's_lshl_b32 {sT1}, {sJ}, 18')
            a(f's_add_u32 {sT0}, {sT0}, {sT1}')
            a(f's_load_dword s31, s[8:9], {sT0}')
            a(f's_lshr_b32 {sT0}, {sT0}, 4')
            a(f's_load_dword s32, s[12:13], {sT0}')
            a('s_load_dword s33, s[20:21], 0')
            a('s_load_dword s34, s[20:21], 0xffffc')
            a('s_load_dword s35, s[22:23], 0')
            self.lab('L_h23b')
        a('s_waitcnt lgkmcnt(0)')
        self.make_tag()
        for b in 'TGABCM':
            a('s_barrier')
        a(f's_cmp_lg_u32 {sW}, 6')
        a('s_cbranch_scc1 L_Z')
        a(f's_cmp_ge_u32 s2, {NCONS}')
        a('s_cbranch_scc1 L_Z')
        lpp = CPC // 4
        ppl = 64 // lpp
        nl = -(-28 // ppl)
        last = (28 - (nl - 1) * ppl) * lpp
        a(f'v_mov_b32 v{vTag}, {sTAG}')
        a(f's_mov_b32 {sSA}, 0x0c0c0400')
        a(f's_mov_b32 {sSB}, 0x04000c0c')
        a(f's_lshr_b32 {sT0}, s2, {6-lg}')
        a(f's_lshl_b32 {sT0}, {sT0}, 13')
        a(f's_and_b32 {sT1}, s2, {64//CPC - 1}')
        a(f's_lshl_b32 {sT1}, {sT1}, {lg+2}')
        a(f's_add_u32 {sT0}, {sT0}, {sT1}')
        a(f's_add_u32 {sT0}, {sT0}, {hex(FBOX)}')
        a(f'v_and_b32 v{vT+1}, {lpp-1}, v{vLane}')
        a(f'v_lshlrev_b32 v{vT+2}, 4, v{vT+1}')
        a(f'v_lshrrev_b32 v{vT}, {lg-2}, v{vLane}')
        a(f'v_lshlrev_b32 v{vT}, 8, v{vT}')
        a(f'v_add3_u32 v{vT}, v{vT}, v{vT+2}, {sT0}')
        a(f'v_lshrrev_b32 v{vT+2}, 4, v{vLane}')
        a(f'v_lshl_add_u32 v{vT+1}, v{vT+1}, 2, v{vT+2}')
        a(f's_lshl_b32 {sT0}, s2, {lg+1}')
        a(f'v_lshl_add_u32 v{vT+2}, v{vT+1}, 1, {sT0}')
        a(f'v_lshlrev_b32 v{vT+1}, 2, v{vT+1}')
        a(f'buffer_load_short_d16_hi v{vT+3}, v{vT+2}, {SRD_X}, 0 offen')
        if self.touch:
            self.srd(SRD_OUT, 22, 1024)
            a(f'buffer_load_short_d16_hi v{vT+7}, v{vT+2}, {SRD_OUT}, 0 offen')
        for k in range(4):
            a(f'v_bfe_u32 v{vW+4*(nl-1)+k}, v{vTag}, {8*k}, 8')
        fl = []
        for u in range(nl):
            off = u * ppl * 256
            if u == nl - 1 and last < 64:
                fl.append(f's_mov_b32 exec_lo, {hex(((1 << last) - 1) & 0xffffffff)}')
                fl.append(f's_mov_b32 exec_hi, {hex(((1 << last) - 1) >> 32)}')
            if off >= 4096:
                fl.append(f's_movk_i32 {sT2}, {hex(off & ~4095)}')
            fl.append(f'buffer_load_dwordx4 v[{vW+4*u}:{vW+4*u+3}], v{vT}, {SRD_WS}, {sT2 if off >= 4096 else 0} offen offset:{off & 4095} sc1')
        fl.append('s_mov_b64 exec, -1')
        self.poll(fl, lambda: self.check_quads([vW + 4 * u for u in range(nl)], vTag, vT + 4, vT + 5, vT + 6), sleep=0)
        for u in range(1, nl):
            for k in range(4):
                a(f'v_add_f32 v{vW+k}, v{vW+k}, v{vW+4*u+k}')
        self.quad_reduce(vW, lpp)
        self.bf16r(vW, vW)
        self.silu_bf16(vT + 4, vW, vT + 5)
        a(f'ds_write_b32 v{vT+1}, v{vT+4} offset:{L_GB}')
        a(f'ds_write_b32 v{vT+1}, v{vT+3} offset:{L_XB}')
        a('s_branch L_Z')


def gen(**kw):
    g = G(**kw)
    s = g.gen()
    return s, g.stamp_names


if __name__ == '__main__':
    kw = eval('dict(' + (sys.argv[2] if len(sys.argv) > 2 else '') + ')')
    s, _ = gen(**kw)
    open(sys.argv[1], 'w').write(s)
```

```python
import math, struct, sys

NAME = 'recurrent_scan__gqa_block_cached__swiglu_ffn__decode_kernel'

HEADER = """; Kernarg layout for this problem (96 bytes, ptrs only, base s[0:1]):
"""


def f2u(x):
    return struct.unpack('<I', struct.pack('<f', x))[0]


QBOX  = 0x010000
HBOX  = 0x020000
MLBOX = 0x030000
OBOX  = 0x080000
FBOX  = 0x040000
SBOX  = 0x100000
RBOX  = 0x038000
STAMP = 0x800000

L_BQ = 0
L_XN = 1024
L_MB = 3072
L_LB = 3200
L_WB = 3312
L_GB = 3440
L_XB = 3568
L_O2 = 3696
L_S2 = 4208
L_AD = 5240
L_FL = 5244
L_HB = 5248
L_A  = 1024
L_OB = 5376
L_WO = 5376 + 16384
L_TL = 5376
LDS_BYTES = L_TL + 2 * 16384

SRD_A, SRD_B, SRD_X, SRD_C, SRD_OUT, SRD_WS = [f's[{b}:{b+3}]' for b in range(28, 52, 4)]
sG, sJ, sW, sTAG, sOFF, sT0, sT1, sT2, sPLO, sPHI, sC, sCNT = [f's{i}' for i in range(52, 64)]
sL2E, sSEL, sSA, sSB, sLOC = 's3', 's64', 's65', 's66', 's67'
STAMP_BASE = 68
NVGPR = 256
RING = 44
RING0 = NVGPR - 4 * RING


class G:
    def __init__(self, Ds=((0, 10), (12, 5), (104, 8)), pol='nt', wpol='nt', opol='nt', CPC=32, stamps=False, kfirst=2, nG=18, nA=44, nM=44,
                 spin=200000, padk=7, prio=0, sl1=0, sl2=0, sorder=False, spol='sc1', lpol='sc1', ospol='', olpol='sc1', local=True, touch=False, tlb=True, diag=None, pp1=None, pp2=(4, 5), adapt=None, qspol='sc1', mspol='sc1', exp=()):
        self.__dict__.update(locals())
        if diag:
            self.stamps = (diag[0],)
        self.L = []
        self.vm = []
        self.nlab = 0
        self.stamp_names = []
        self.padding = False
        self.npad = 0
        self.since_pad = 0

    def a(self, s):
        self.L.append('    ' + s)
        if self.padding:
            self.since_pad += 1
            if self.since_pad >= self.padk:
                self.pad()

    def pad(self):
        self.L.append(f'L_pad_{self.npad}:')
        self.L.append(f'    s_cbranch_execz L_pad_{self.npad+1}')
        self.npad += 1
        self.since_pad = 0

    def lab(self, s):
        self.L.append(s + ':')

    def newlab(self, p):
        self.nlab += 1
        return f'L_{p}_{self.nlab}'

    def load(self, name, text):
        self.a(text)
        self.vm.append(name)

    def wait(self, name):
        n = len(self.vm) - 1 - self.vm.index(name)
        assert n <= 63
        self.a(f's_waitcnt vmcnt({n})')

    def stamp(self, name):
        if not self.stamps:
            return
        if self.stamps is True:
            if name.startswith('_'):
                return
        elif name not in self.stamps and name not in ('start', 'end'):
            return
        i = len(self.stamp_names)
        assert STAMP_BASE + 2 * i + 1 <= 101
        self.a(f's_memrealtime s[{STAMP_BASE+2*i}:{STAMP_BASE+2*i+1}]')
        self.stamp_names.append(name)

    def dpp(self, op, d, s0, s1, ctl, bank=0xf):
        self.a(f'{op}_dpp v{d}, v{s0}, v{s1} {ctl} row_mask:0xf bank_mask:{hex(bank)}')

    def rows_allreduce(self, op, v, t, do16=True, do32=True):
        if do16:
            self.a(f'v_mov_b32 v{t}, v{v}')
            self.a('s_nop 1')
            self.a(f'v_permlane16_swap_b32 v{v}, v{t}')
            self.a(f'{op} v{v}, v{v}, v{t}')
        if do32:
            self.a(f'v_mov_b32 v{t}, v{v}')
            self.a('s_nop 1')
            self.a(f'v_permlane32_swap_b32 v{v}, v{t}')
            self.a(f'{op} v{v}, v{v}, v{t}')

    def inrow_allreduce(self, op, v, rots):
        for r in rots:
            self.a('s_nop 1')
            self.dpp(op, v, v, v, f'row_ror:{r}')

    def bf16r(self, d, s):
        self.a(f'v_cvt_pk_bf16_f32 v{d}, v{s}, v{s}')
        self.a(f'v_and_b32 v{d}, 0xffff0000, v{d}')

    def sum8(self, d, b):
        for k in range(4):
            self.a(f'v_add_f32 v{b+k}, v{b+k}, v{b+4+k}')
        self.a(f'v_add_f32 v{b}, v{b}, v{b+2}')
        self.a(f'v_add_f32 v{b+1}, v{b+1}, v{b+3}')
        self.a(f'v_add_f32 v{d}, v{b}, v{b+1}')

    def max8(self, d, b, t):
        self.a(f'v_max3_f32 v{d}, v{b}, v{b+1}, v{b+2}')
        self.a(f'v_max3_f32 v{t}, v{b+3}, v{b+4}, v{b+5}')
        self.a(f'v_max3_f32 v{d}, v{d}, v{b+6}, v{b+7}')
        self.a(f'v_max_f32 v{d}, v{d}, v{t}')

    def silu_bf16(self, d, x, t):
        self.a(f'v_mul_f32 v{t}, {hex(f2u(math.log2(math.e)))}, v{x}')
        self.a(f'v_exp_f32 v{t}, -v{t}')
        self.a('s_nop 0')
        self.a(f'v_add_f32 v{t}, 1.0, v{t}')
        self.a(f'v_rcp_f32 v{t}, v{t}')
        self.a('s_nop 0')
        self.a(f'v_mul_f32 v{t}, v{x}, v{t}')
        self.bf16r(d, t)

    def make_tag(self):
        self.a(f's_and_b32 {sT0}, {sTAG}, 0x7f7f7f7f')
        self.a(f's_add_u32 {sT0}, {sT0}, 0x47611b35')
        self.a(f's_and_b32 {sTAG}, {sTAG}, 0x80808080')
        self.a(f's_xor_b32 {sTAG}, {sTAG}, {sT0}')

    def check_quads(self, quads, vtag, t0, t1, t2):
        for i, q in enumerate(quads):
            self.a(f'v_perm_b32 v{t0}, v{q+1}, v{q}, {sSA}')
            self.a(f'v_perm_b32 v{t1}, v{q+3}, v{q+2}, {sSB}')
            if i == 0:
                self.a(f'v_bitop3_b32 v{t2}, v{t0}, v{t1}, v{vtag} bitop3:0x56')
            else:
                self.a(f'v_bitop3_b32 v{t0}, v{t0}, v{t1}, v{vtag} bitop3:0x56')
                self.a(f'v_or_b32 v{t2}, v{t2}, v{t0}')
        self.a(f'v_cmp_ne_u32 vcc, 0, v{t2}')

    def poll(self, loads, check, first_issued=False, sleep=0):
        again, done = self.newlab('again'), self.newlab('done')
        self.a(f's_mov_b32 {sCNT}, {self.spin}')
        if first_issued:
            check()
            self.a(f's_cbranch_vccz {done}')
        first = None
        if sleep and not first_issued:
            first = self.newlab('first')
            self.a(f's_branch {first}')
        self.lab(again)
        if sleep:
            self.a(f's_sleep {sleep}')
        if first:
            self.lab(first)
        for x in loads:
            self.a(x)
        self.a(f's_sub_u32 {sCNT}, {sCNT}, 1')
        self.a('s_waitcnt vmcnt(0)')
        self.a(f's_cbranch_scc1 {done}')
        check()
        self.a(f's_cbranch_vccnz {again}')
        self.lab(done)

    def ppoll(self, mk, check, base, P, gap, first_done=False):
        a = self.a
        done = self.newlab('pdone')
        hit = [self.newlab('phit') for _ in range(P)]
        again = self.newlab('pagain')
        a(f's_mov_b32 {sCNT}, {self.spin}')
        if first_done:
            check(base)
            a(f's_cbranch_vccz {done}')
        for b in range(P - 1):
            a(mk(base + 4 * b))
            a(f's_sleep {gap}')
        self.lab(again)
        for b in range(P):
            a(mk(base + 4 * ((b + P - 1) % P)))
            a(f's_waitcnt vmcnt({P-1})')
            check(base + 4 * b)
            a(f's_cbranch_vccz {hit[b]}')
        a(f's_sub_u32 {sCNT}, {sCNT}, 1')
        a(f's_cbranch_scc0 {again}')
        for b in range(P - 1, 0, -1):
            self.lab(hit[b])
            for k in range(4):
                a(f'v_mov_b32 v{base+4*P+k}, v{base+4*b+k}')
            a(f's_branch {done}x')
        self.lab(hit[0])
        self.lab(done)
        for k in range(4):
            a(f'v_mov_b32 v{base+4*P+k}, v{base+k}')
        self.lab(done + 'x')
        return base + 4 * P

    def quad_reduce(self, v, lpp):
        self.a('s_nop 1')
        self.a(f'v_permlane32_swap_b32 v{v}, v{v+2}')
        self.a(f'v_permlane32_swap_b32 v{v+1}, v{v+3}')
        self.a(f'v_add_f32 v{v}, v{v}, v{v+2}')
        self.a(f'v_add_f32 v{v+1}, v{v+1}, v{v+3}')
        self.a('s_nop 1')
        self.a(f'v_permlane16_swap_b32 v{v}, v{v+1}')
        self.a(f'v_add_f32 v{v}, v{v}, v{v+1}')
        self.inrow_allreduce('v_add_f32', v, [r for r in (8, 4, 2) if r >= lpp])

    def tile_dot(self, npairs, vW, vX, vA, vB, waitp):
        a = self.a
        for p in range(npairs):
            waitp(p)
            w0, w1 = vW + 8 * p, vW + 8 * p + 4
            for e in range(8):
                a(f'v_perm_b32 v{vB+e}, v{w1+(e>>1)}, v{w0+(e>>1)}, {sPHI if e & 1 else sPLO}')
            for e in range(8):
                a(f'v_dot2_f32_bf16 v{vA+e}, v{vB+e}, v{vX+p}, {"0" if p == 0 else f"v{vA+e}"}')
        a('s_nop 2')
        for e in range(4):
            a(f'v_permlane32_swap_b32 v{vA+e}, v{vA+e+4}')
        for e in range(4):
            a(f'v_add_f32 v{vA+e}, v{vA+e}, v{vA+e+4}')
        a('s_nop 0')
        for e in range(2):
            a(f'v_permlane16_swap_b32 v{vA+e}, v{vA+e+2}')
        for e in range(2):
            a(f'v_add_f32 v{vA+e}, v{vA+e}, v{vA+e+2}')
        a('s_nop 0')
        self.dpp('v_add_f32', vA + 4, vA, vA, 'row_ror:8', 0x3)
        a('s_nop 1')
        self.dpp('v_add_f32', vA + 4, vA + 1, vA + 1, 'row_ror:8', 0xc)

    def srd(self, srd, p, nbytes):
        b = int(srd[2:srd.index(':')])
        self.a(f's_mov_b64 s[{b}:{b+1}], s[{p}:{p+1}]')
        self.a(f's_mov_b32 s{b+2}, {hex(nbytes)}')
        self.a(f's_mov_b32 s{b+3}, 0x20000')

    def barrier(self):
        self.a('s_waitcnt lgkmcnt(0)')
        if 'nobar' not in self.exp:
            self.a('s_barrier')

    def slot(self, n):
        return RING0 + 4 * (n % RING)

    def depth(self, m):
        return [d for f, d in self.Ds if m >= f][-1]

    def need(self, name):
        k = self.seq.index(name)
        assert k < self.m, name
        if k > self.landed:
            self.wait(name)
            self.landed = k

    def has(self, name):
        return self.seq.index(name) <= self.landed

    def step(self):
        if self.m >= len(self.seq):
            return
        k = self.m - self.depth(self.m)
        if self.adapting:
            k2 = k - self.adapt[0]
            if k2 > self.landed:
                self.wait(self.seq[k2])
                self.landed = k2
            if k > self.landed:
                skip = self.newlab('deep')
                self.a(f's_cbranch_vccnz {skip}')
                self.wait(self.seq[k])
                self.lab(skip)
        elif k > self.landed:
            self.wait(self.seq[k])
            self.landed = k
        if self.adapt and self.m in self.pick:
            self.a(f'ds_read_b32 v78, v79')
        if self.adapt and self.m - 1 in self.pick:
            self.a('s_waitcnt lgkmcnt(0)')
            self.a('v_cmp_ne_u32 vcc, 0, v78')
            self.adapting = True
        name = self.seq[self.m]
        kind, i = name[0], int(name[1:])
        if kind in 'KV':
            n = i + (64 if kind == 'V' else 0)
            old = n - RING
            assert old < 0 or (old < 64 and old < 4 * self.beta) or (old >= 64 and old - 64 < 4 * self.tau), name
            r = self.slot(n)
            srd, vo, off, dst, tailtxt = (SRD_A if kind == 'K' else SRD_B), (2 if kind == 'K' else 3), i * 4096, f'v[{r}:{r+3}], ', self.pol
        else:
            if i == 0:
                self.tile_setup(kind)
            srd, vo = (SRD_X, 76) if kind == 'Q' else (SRD_C, 77)
            off, dst, tailtxt = i * ((8192 if kind == 'Q' else 3584) - 1024), '', f'offset:{i*1024} {self.wpol} lds'
        so = '0'
        if off:
            self.a(f's_mov_b32 {sOFF}, {hex(off)}')
            so = sOFF
        self.load(name, f'buffer_load_dwordx4 {dst}v{vo}, {srd}, {so} offen {tailtxt}')
        self.stamp('_' + name)
        self.m += 1

    def steps_until(self, name):
        while self.seq[self.m] != name:
            self.step()

    def tile_setup(self, kind):
        a, vT = self.a, 60
        if kind == 'Q':
            self.srd(SRD_X, 10, 4 << 20)
            a(f's_and_b32 {sT0}, {sJ}, 3')
            a(f's_lshl_b32 {sT0}, {sT0}, 7')
            a(f's_lshl_b32 {sT1}, {sW}, 2')
            a(f's_add_u32 {sT0}, {sT0}, {sT1}')
            a(f'v_lshrrev_b32 v{vT}, 3, v1')
            a(f'v_lshl_add_u32 v{vT}, v{vT}, 4, {sT0}')
            a(f'v_and_b32 v{vT+1}, 7, v1')
            a(f'v_lshlrev_b32 v{vT+1}, 4, v{vT+1}')
            a(f's_lshr_b32 {sT2}, {sJ}, 2')
            a(f's_lshl_b32 {sT0}, {sG}, 10')
            a(f's_lshl_b32 {sT1}, {sT2}, 7')
            a(f's_add_u32 {sT0}, {sT0}, {sT1}')
            a(f'v_lshlrev_b32 v76, 13, v{vT}')
            a(f'v_add3_u32 v76, v76, v{vT+1}, {sT0}')
            a(f's_lshl_b32 {sT1}, {sW}, 12')
            a(f's_add_u32 m0, {sT1}, {L_TL}')
            a('s_nop 0')
        else:
            a(f's_lshl_b32 {sT2}, {sT2}, 3')
            a(f's_add_u32 {sT2}, {sT2}, {sG}')
            a(f's_sub_u32 {sT0}, {sT2}, 28')
            a(f's_cmp_ge_u32 {sT2}, 28')
            a(f's_cselect_b32 {sT2}, {sT0}, {sT2}')
            a('s_cselect_b64 s[40:41], s[18:19], s[16:17]')
            a(f's_mov_b32 s42, {hex(512*3584)}')
            a('s_mov_b32 s43, 0x20000')
            a(f's_lshl_b32 {sT2}, {sT2}, 7')
            a(f's_cmp_ge_u32 {sJ}, 28')
            a(f's_cselect_b32 {sT2}, 0x10000000, {sT2}')
            a(f's_add_u32 m0, {sT1}, {L_TL + 16384}')
            a(f'v_mul_u32_u24 v77, 3584, v{vT}')
            a(f'v_add3_u32 v77, v77, v{vT+1}, {sT2}')

    def qk_batch(self):
        beta = self.beta
        half, t = beta >> 2, beta & 3
        Dr, P0, Bq = 36, 4, 52
        self.need(f'K{4*beta+3}')
        self.beta += 1
        if 'noqk' in self.exp:
            return
        for gam in range(4):
            r = self.slot(4 * beta + gam)
            self.a(f'v_mfma_f32_16x16x32_bf16 v[{Dr+4*gam}:{Dr+4*gam+3}], v[{r}:{r+3}], v[{Bq}:{Bq+3}], 0')
        self.a('s_nop 5')
        for k in (1, 2, 3):
            for gam in range(4):
                P = P0 + 4 * half + gam
                d = Dr + 4 * gam
                self.dpp('v_add_f32', P, d + ((t + k) & 3), d + t if k == 1 else P, f'row_ror:{16-4*k}', 1 << t)

    def pv_group(self):
        tau = self.tau
        B = 36
        self.tau += 1
        for pair in range(2):
            v0 = self.slot(64 + 4 * tau + 2 * pair)
            v1 = self.slot(64 + 4 * tau + 2 * pair + 1)
            self.need(f'V{4*tau+2*pair+1}')
            if 'nopv' in self.exp:
                continue
            for e in range(8):
                self.a(f'v_perm_b32 v{B+2*e+pair}, v{v1+(e>>1)}, v{v0+(e>>1)}, {sPHI if e & 1 else sPLO}')
        if 'nopv' in self.exp:
            return
        PA = 52 + 2 * (tau >> 2)
        for e in range(8):
            ac = 4 + 4 * e
            c = '0' if tau == 0 else f'v[{ac}:{ac+3}]'
            self.a(f'v_mfma_f32_4x4x4_16b_bf16 v[{ac}:{ac+3}], v[{PA}:{PA+1}], v[{B+2*e}:{B+2*e+1}], {c} cbsz:2 abid:{tau & 3}')

    def gen(self):
        a = self.a
        self.L.append(f'; @launch grid=(256,1,1) block=(512,1,1) lds={LDS_BYTES}')
        self.L.append('.amdgcn_target "amdgcn-amd-amdhsa--gfx950"')
        self.L.append('.text')
        self.L.append(f'.globl {NAME}')
        self.L.append('.p2align 8')
        self.L.append(f'.type {NAME},@function')
        self.lab(NAME)
        a('s_load_dwordx16 s[4:19], s[0:1], 0')
        a('s_load_dwordx8 s[20:27], s[0:1], 64')
        if self.stamps:
            for i in range(STAMP_BASE, 102, 2):
                if not self.diag:
                    a(f's_mov_b64 s[{i}:{i+1}], 0')
            self.stamp('start')
        a('s_cmp_ge_u32 s2, 0x100')
        a('s_cbranch_scc1 L_end')
        a('v_lshrrev_b32 v4, 6, v0')
        a('v_and_b32 v1, 63, v0')
        a(f'v_readfirstlane_b32 {sW}, v4')
        a(f's_and_b32 {sG}, s2, 7')
        a(f's_lshr_b32 {sJ}, s2, 3')
        a(f's_cmp_ge_u32 {sW}, 4')
        a('s_cbranch_scc1 L_helper')
        self.stream_wave()
        self.tail()
        if self.local:
            self.far_store()
        self.helpers()
        self.lab('L_exit')
        if self.stamps and not self.diag:
            self.stamp('end')
            a('s_waitcnt lgkmcnt(0)')
            a('v_mov_b32 v4, 0')
            for i in range(len(self.stamp_names)):
                a(f'v_writelane_b32 v4, s{STAMP_BASE+2*i}, {i}')
            a(f's_getreg_b32 {sT1}, hwreg(HW_REG_XCC_ID)')
            a(f'v_writelane_b32 v4, {sT1}, 63')
            a(f's_getreg_b32 {sT1}, hwreg(HW_REG_HW_ID)')
            a(f'v_writelane_b32 v4, {sT1}, 62')
            a(f's_lshl_b32 {sT0}, s2, 3')
            a(f's_add_u32 {sT0}, {sT0}, {sW}')
            a(f's_lshl_b32 {sT0}, {sT0}, 8')
            a(f's_add_u32 {sT0}, {sT0}, {hex(STAMP)}')
            a(f'v_lshl_add_u32 v5, v1, 2, {sT0}')
            a(f'buffer_store_dword v4, v5, {SRD_WS}, 0 offen')
        self.lab('L_end')
        a('s_endpgm')
        self.L += ['.section .rodata,"a"', '.p2align 6', f'.amdhsa_kernel {NAME}',
                   f'  .amdhsa_next_free_vgpr {NVGPR}', '  .amdhsa_next_free_sgpr 102', f'  .amdhsa_accum_offset {NVGPR}',
                   '  .amdhsa_group_segment_fixed_size 0', '  .amdhsa_kernarg_size 96',
                   '  .amdhsa_user_sgpr_count 2', '  .amdhsa_user_sgpr_kernarg_segment_ptr 1',
                   '  .amdhsa_system_sgpr_workgroup_id_x 1',
                   '  .amdhsa_float_denorm_mode_32 3', '.end_amdhsa_kernel']
        return HEADER + '\n'.join(self.L) + '\n'

    def stream_wave(self):
        a = self.a
        vP, vD, vPA, vBq, vT = 4, 36, 52, 52, 60
        assert RING0 == 80
        kf = self.kfirst
        self.seq = [f'K{i}' for i in range(kf)] + [f'Q{i}' for i in range(4)] + [f'F{i}' for i in range(4)] + \
                   [f'K{i}' for i in range(kf, 64)] + [f'V{i}' for i in range(64)]
        self.m = self.beta = self.tau = 0
        self.landed = -1
        self.adapting = False
        self.pick = set()
        self.vm = []
        a(f's_lshl_b32 {sT0}, {sG}, 23')
        a(f's_lshl_b32 {sT1}, {sJ}, 18')
        a(f's_add_u32 {sT0}, {sT0}, {sT1}')
        a(f's_lshl_b32 {sT1}, {sW}, 10')
        a(f's_add_u32 {sT0}, {sT0}, {sT1}')
        a(f'v_bfe_u32 v{vT}, v1, 2, 2')
        a(f'v_lshlrev_b32 v{vT}, 8, v{vT}')
        a(f'v_and_b32 v{vT+1}, 3, v1')
        a(f'v_lshl_add_u32 v{vT}, v{vT+1}, 4, v{vT}')
        a(f'v_lshrrev_b32 v{vT+2}, 4, v1')
        a(f'v_lshlrev_b32 v{vT+2}, 6, v{vT+2}')
        a(f'v_add3_u32 v2, v{vT}, v{vT+2}, {sT0}')
        a(f'v_lshl_add_u32 v3, v1, 4, {sT0}')
        a('s_waitcnt lgkmcnt(0)')
        self.srd(SRD_A, 6, 64 << 20)
        self.steps_until('F0')
        self.stamp('issued0')
        a(f's_load_dword {sTAG}, s[26:27], 0')
        self.srd(SRD_B, 8, 64 << 20)
        self.srd(SRD_WS, 26, 256 << 20)
        a(f's_mov_b32 {sPLO}, 0x05040100')
        a(f's_mov_b32 {sPHI}, 0x07060302')
        a(f's_mov_b32 {sC}, {hex(f2u(math.log2(math.e) / math.sqrt(128.0)))}')
        while not self.has('Q3'):
            self.step()
        self.stamp('preT')
        a('s_barrier')
        self.steps_until(f'K{self.nG}')
        assert self.has('F3')
        a('s_barrier')
        self.steps_until(f'K{self.nA}')
        a(f'v_lshlrev_b32 v{vT}, 4, v1')
        self.stamp('preA')
        self.barrier()
        a(f'ds_read_b128 v[{vBq}:{vBq+3}], v{vT} offset:{L_BQ}')
        self.stamp('A')
        if self.adapt:
            a(f'v_mov_b32 v79, {L_AD}')
            if 'A' in self.adapt[2]:
                self.pick.add(self.m + self.adapt[3])
        self.make_tag()
        a(f'v_and_b32 v{vT+6}, 3, v1')
        a(f'v_lshlrev_b32 v{vT+6}, 4, v{vT+6}')
        a(f's_lshl_b32 {sT0}, {sW}, 2')
        a(f'v_add_u32 v{vT+7}, {sT0}, v{vT+6}')
        a('s_waitcnt lgkmcnt(0)')
        while self.beta < 16:
            nxt = self.seq[self.m]
            if int(nxt[1:]) + (64 if nxt[0] == 'V' else 0) - RING >= 4 * self.beta:
                self.qk_batch()
            self.step()
            if self.beta < 16 and self.has(f'K{4*self.beta+3}'):
                self.qk_batch()
        self.max8(vT, vP, vT + 1)
        self.max8(vT + 2, vP + 8, vT + 1)
        a(f'v_max_f32 v{vT}, v{vT}, v{vT+2}')
        self.inrow_allreduce('v_max_f32', vT, (8, 4))
        self.rows_allreduce('v_max_f32', vT, vT + 1)
        a(f'ds_write_b32 v{vT+7}, v{vT} offset:{L_MB}')
        self.step()
        self.stamp('_preB')
        self.barrier()
        a(f'ds_read_b128 v[{vD}:{vD+3}], v{vT+6} offset:{L_MB}')
        a('s_waitcnt lgkmcnt(0)')
        a(f'v_max3_f32 v{vT}, v{vD}, v{vD+1}, v{vD+2}')
        a(f'v_max_f32 v{vT}, v{vT}, v{vD+3}')
        a(f'v_mul_f32 v{vT}, {sC}, v{vT}')
        for i in range(16):
            a(f'v_fma_f32 v{vP+i}, v{vP+i}, {sC}, -v{vT}')
        self.step()
        for i in range(16):
            a(f'v_exp_f32 v{vP+i}, v{vP+i}')
        self.step()
        for i in range(8):
            a(f'v_cvt_pk_bf16_f32 v{vPA+i}, v{vP+2*i}, v{vP+2*i+1}')
        for i in range(8):
            a(f'v_add_f32 v{vP+i}, v{vP+i}, v{vP+8+i}')
        self.sum8(vT, vP)
        self.inrow_allreduce('v_add_f32', vT, (8, 4))
        self.rows_allreduce('v_add_f32', vT, vT + 1)
        a(f'ds_write_b32 v{vT+7}, v{vT} offset:{L_LB}')
        self.step()
        self.barrier()
        self.stamp('C')
        if self.adapt and 'C' in self.adapt[2]:
            self.pick.add(self.m + self.adapt[3])
        while self.m < len(self.seq):
            if self.seq[self.m] == f'V{self.nM}':
                a('s_barrier')
                if self.adapt and 'M' in self.adapt[2]:
                    self.pick.add(self.m + self.adapt[3])
            if int(self.seq[self.m][1:]) - RING >= 4 * self.tau:
                self.pv_group()
            self.step()
            if self.has(f'V{4*self.tau+3}'):
                self.pv_group()
        self.stamp('allissued')

    def tail(self):
        a = self.a
        CPC = self.CPC
        assert CPC == 32
        NCONS = 16
        lg = 5
        emu = None
        vAcc, vD, vT = 4, 36, 60
        vA0, vA1, vA2, vA3, vA4, vA5, vTB, vWt = range(68, 76)
        vW, SG = 80, 96
        vZ = 20
        AM = (52, 54, 56, 76)
        assert self.tau >= 12
        self.lab('L_Z')
        a(f's_cmp_lt_u32 {sW}, 4')
        a('s_cbranch_scc1 L_Z1')
        self.srd(SRD_C, 12, 4 << 20)
        a(f's_lshl_b32 {sT0}, {sG}, 19')
        a(f's_lshr_b32 {sT1}, {sJ}, 2')
        a(f's_lshl_b32 {sT1}, {sT1}, 16')
        a(f's_add_u32 {sT0}, {sT0}, {sT1}')
        a(f's_and_b32 {sT1}, {sJ}, 3')
        a(f's_lshl_b32 {sT1}, {sT1}, 8')
        a(f's_add_u32 {sT0}, {sT0}, {sT1}')
        a(f's_and_b32 {sT2}, {sW}, 3')
        a(f's_lshl_b32 {sT1}, {sT2}, 6')
        a(f's_add_u32 {sT0}, {sT0}, {sT1}')
        a(f'v_lshrrev_b32 v{vT}, 2, v1')
        a(f'v_lshlrev_b32 v{vT}, 10, v{vT}')
        a(f'v_and_b32 v{vT+1}, 3, v1')
        a(f'v_lshlrev_b32 v{vT+1}, 4, v{vT+1}')
        a(f'v_add3_u32 v{vT}, v{vT}, v{vT+1}, {sT0}')
        a(f's_lshl_b32 {sT2}, {sT2}, 12')
        a(f's_add_u32 m0, {sT2}, {L_WO}')
        a('s_barrier')
        for i in range(4):
            if i:
                a(f's_mov_b32 {sOFF}, {i*(16384-1024)}')
            a(f'buffer_load_dwordx4 v{vT}, {SRD_C}, {sOFF if i else 0} offen offset:{i*1024} {self.opol} lds')
        a('s_branch L_Z2')
        self.lab('L_Z1')
        a('s_barrier')
        self.lab('L_Z2')
        self.srd(SRD_OUT, 22, 1024)
        a(f's_mov_b32 {sSEL}, 0x07060500')
        a(f's_mov_b32 {sSA}, 0x0c0c0400')
        a(f's_mov_b32 {sSB}, 0x04000c0c')
        a(f'v_and_b32 v{vT+3}, 3, v1')
        a(f'v_lshlrev_b32 v{vT}, 3, v{vT+3}')
        a(f'v_lshrrev_b32 v{vTB}, v{vT}, {sTAG}')
        a(f'v_lshrrev_b32 v{vT}, 4, v0')
        a(f'v_lshlrev_b32 v{vWt}, 2, v{vT}')
        a(f'ds_read_b32 v{vWt}, v{vWt} offset:{L_WB}')
        a(f'v_mov_b32 v{vT+5}, {L_FL}')
        a(f'ds_read_b32 v{vT+5}, v{vT+5}')
        a(f'v_lshrrev_b32 v{vT}, 4, v1')
        a(f'v_and_b32 v{vT+1}, 15, v1')
        a(f'v_lshl_add_u32 v{vT+2}, v{vT+1}, 2, v{vT}')
        a(f's_lshl_b32 {sT0}, {sW}, 11')
        a(f's_add_u32 {sT0}, {sT0}, {L_OB}')
        a(f'v_lshl_add_u32 v{vA0}, v{vT+2}, 2, {sT0}')
        a(f's_mul_i32 {sT0}, {sW}, 144')
        a(f'v_lshl_add_u32 v{vT+7}, v{vT+2}, 1, {sT0}')
        a(f'v_and_b32 v{vT+2}, 7, v1')
        a(f'v_mul_u32_u24 v{vT+2}, 144, v{vT+2}')
        a(f'v_lshl_add_u32 v{vT+6}, v{vT}, 4, v{vT+2}')
        a(f'v_lshlrev_b32 v{vT}, 9, v{vT}')
        a(f'v_bfe_u32 v{vT+2}, v1, 2, 2')
        a(f'v_lshl_add_u32 v{vT}, v{vT+2}, 6, v{vT}')
        a(f'v_lshl_add_u32 v{vT}, v{vT+3}, 3, v{vT}')
        a(f's_and_b32 {sT2}, {sW}, 3')
        a(f's_lshl_b32 {sT0}, {sT2}, 12')
        a(f'v_add_u32 v{vA5}, {sT0}, v{vT}')
        a(f'v_lshrrev_b32 v{vT}, 7, v0')
        a(f'v_lshlrev_b32 v{vT}, 9, v{vT}')
        a(f'v_and_b32 v{vT+2}, 1, v0')
        a(f'v_lshl_add_u32 v{vT}, v{vT+2}, 8, v{vT}')
        a(f'v_bfe_u32 v{vT+2}, v0, 1, 6')
        a(f'v_lshl_add_u32 v{vA1}, v{vT+2}, 2, v{vT}')
        a(f'v_add_u32 v{vA1}, {L_OB}, v{vA1}')
        a(f's_lshl_b32 {sT1}, {sG}, 16')
        a(f's_add_u32 {sT1}, {sT1}, {hex(OBOX)}')
        a(f's_lshl_b32 {sT0}, {sW}, 13')
        a(f's_add_u32 {sT0}, {sT0}, {sT1}')
        a(f's_lshl_b32 {sOFF}, {sJ}, 8')
        a(f's_add_u32 {sT0}, {sT0}, {sOFF}')
        a(f'v_lshl_add_u32 v{vA2}, v1, 2, {sT0}')
        a(f's_lshr_b32 {sOFF}, {sJ}, 2')
        a(f's_lshl_b32 {sT0}, {sOFF}, 13')
        a(f's_add_u32 {sT0}, {sT0}, {sT1}')
        a(f'v_lshl_add_u32 v{vA3}, v0, 4, {sT0}')
        a(f's_and_b32 {sT0}, {sJ}, 3')
        a(f's_lshl_b32 {sT0}, {sT0}, 2')
        a(f's_add_u32 {sT0}, {sT0}, {sT2}')
        a(f's_lshl_b32 {sT0}, {sT0}, 6')
        a(f's_lshl_b32 {sT1}, {sG}, 3')
        a(f's_add_u32 {sT0}, {sT0}, {sT1}')
        a(f's_add_u32 {sT0}, {sT0}, {sOFF}')
        a(f's_lshl_b32 {sT0}, {sT0}, 7')
        a(f's_add_u32 {sT0}, {sT0}, {hex(SBOX)}')
        a(f'v_lshrrev_b32 v{vT}, 5, v1')
        a(f'v_lshlrev_b32 v{vT}, 29, v{vT}')
        a(f'v_lshl_add_u32 v{vT}, v1, 2, v{vT}')
        a(f'v_add_u32 v{vA4}, {sT0}, v{vT}')
        a(f'v_mov_b32 v{vT+4}, {sTAG}')
        a('s_waitcnt lgkmcnt(0)')
        a(f'v_readfirstlane_b32 {sLOC}, v{vT+5}')
        a(f's_cmp_ge_u32 {sW}, 4')
        a('s_cbranch_scc1 L_D')
        for b in range(4):
            a(f'v_mov_b32 v{AM[b]}, 0')
            a(f'v_mov_b32 v{AM[b]+1}, 0')
        while self.tau < 15:
            self.pv_group()
        for b in range(4):
            for k in range(2):
                ctl = f'row_ror:{4*(b+1)}' if b < 3 else 'quad_perm:[0,1,2,3]'
                a(f'v_mov_b32_dpp v{AM[b]+k}, v{58+k} {ctl} row_mask:0xf bank_mask:{hex(1 << b)}')
        for e in range(4):
            for h in range(4):
                a(f'v_permlane32_swap_b32 v{vAcc+4*e+h}, v{vAcc+4*(e+4)+h}')
        for e in range(4):
            for h in range(4):
                a(f'v_add_f32 v{vAcc+4*e+h}, v{vAcc+4*e+h}, v{vAcc+4*(e+4)+h}')
        for e in range(2):
            for h in range(4):
                a(f'v_permlane16_swap_b32 v{vAcc+4*e+h}, v{vAcc+4*(e+2)+h}')
        for e in range(2):
            for h in range(4):
                a(f'v_add_f32 v{vZ+4*e+h}, v{vAcc+4*e+h}, v{vAcc+4*(e+2)+h}')
        for pair in range(2):
            v0, v1 = self.slot(64 + 60 + 2 * pair), self.slot(64 + 61 + 2 * pair)
            self.need(f'V{61+2*pair}')
            for e in range(8):
                a(f'v_perm_b32 v{vD+2*e+pair}, v{v1+(e>>1)}, v{v0+(e>>1)}, {sPHI if e & 1 else sPLO}')
        for e in range(8):
            z = vZ + 4 * (e & 1)
            a(f'v_mfma_f32_16x16x16_bf16 v[{z}:{z+3}], v[{AM[e>>1]}:{AM[e>>1]+1}], v[{vD+2*e}:{vD+2*e+1}], v[{z}:{z+3}]')
        self.stamp('pvdone')
        a('s_nop 7')
        for h in range(4):
            a(f'ds_write2st64_b32 v{vA0}, v{vZ+h}, v{vZ+4+h} offset0:{2*h} offset1:{2*h+1}')
        self.lab('L_D')
        self.barrier()
        for k in range(2):
            a(f'ds_read2st64_b32 v[{vD+2*k}:{vD+2*k+1}], v{vA1} offset0:{16*k} offset1:{16*k+8}')
        a(f's_cmp_eq_u32 {sLOC}, 1')
        a('s_waitcnt lgkmcnt(0)')
        a(f'v_add_f32 v{vD}, v{vD}, v{vD+2}')
        a(f'v_add_f32 v{vD+1}, v{vD+1}, v{vD+3}')
        a(f'v_add_f32 v{vT}, v{vD}, v{vD+1}')
        a(f'v_perm_b32 v{vT}, v{vT}, v{vTB}, {sSEL}')
        if self.local:
            a('s_cbranch_scc0 L_far')
            a(f'buffer_store_dword v{vT}, v{vA2}, {SRD_WS}, 0 offen {self.ospol}')
            self.lab('L_near')
        else:
            a(f'buffer_store_dword v{vT}, v{vA2}, {SRD_WS}, 0 offen sc1')
        self.stamp('opub')

        ol = [f'buffer_load_dwordx4 v[{SG}:{SG+3}], v{vA3}, {SRD_WS}, 0 offen {self.olpol}']
        a(ol[0])
        a('s_waitcnt vmcnt(0)')
        for t2 in range(2):
            for kh in range(2):
                for m in range(2):
                    r = vW + 8 * t2 + 4 * kh + 2 * m
                    a(f'ds_read_b64_tr_b16 v[{r}:{r+1}], v{vA5} offset:{L_WO + kh*2048 + m*256 + t2*32}')
        if self.pp1:
            R = self.ppoll(lambda r: f'buffer_load_dwordx4 v[{r}:{r+3}], v{vA3}, {SRD_WS}, 0 offen {self.olpol}',
                           lambda r: self.check_quads([r], vT + 4, vT + 1, vT + 2, vT + 3), SG, self.pp1[0], self.pp1[1], True)
        else:
            self.poll(ol, lambda: self.check_quads([SG], vT + 4, vT + 1, vT + 2, vT + 3), True, sleep=self.sl1)
            R = SG
        self.stamp('goto')
        for k in range(4):
            a(f'v_mul_f32 v{R+k}, v{R+k}, v{vWt}')
        self.quad_reduce(R, 16)
        a(f'v_cvt_pk_bf16_f32 v{R}, v{R}, v{R}')
        a(f'ds_write_b16 v{vT+7}, v{R} offset:{L_A}')
        SG = 120
        self.barrier()
        a(f's_cmp_lt_u32 {sW}, 4')
        a('s_cbranch_scc1 L_hop2')
        a(f'ds_read_b128 v[{vD}:{vD+3}], v{vT+6} offset:{L_A}')
        a(f'ds_read_b128 v[{vD+4}:{vD+7}], v{vT+6} offset:{L_A+64}')
        a('s_waitcnt lgkmcnt(1)')
        a(f'v_mfma_f32_16x16x32_bf16 v[{vD+8}:{vD+11}], v[{vD}:{vD+3}], v[{vW}:{vW+3}], 0')
        a(f'v_mfma_f32_16x16x32_bf16 v[{vD+12}:{vD+15}], v[{vD}:{vD+3}], v[{vW+8}:{vW+11}], 0')
        a('s_waitcnt lgkmcnt(0)')
        a(f'v_mfma_f32_16x16x32_bf16 v[{vD+8}:{vD+11}], v[{vD+4}:{vD+7}], v[{vW+4}:{vW+7}], v[{vD+8}:{vD+11}]')
        a(f'v_mfma_f32_16x16x32_bf16 v[{vD+12}:{vD+15}], v[{vD+4}:{vD+7}], v[{vW+12}:{vW+15}], v[{vD+12}:{vD+15}]')
        a('s_nop 6')
        a(f'v_add_f32 v{vD+8}, v{vD+8}, v{vD+9}')
        a(f'v_add_f32 v{vD+10}, v{vD+10}, v{vD+11}')
        a(f'v_add_f32 v{vD+12}, v{vD+12}, v{vD+13}')
        a(f'v_add_f32 v{vD+14}, v{vD+14}, v{vD+15}')
        a(f'v_add_f32 v{vD+8}, v{vD+8}, v{vD+10}')
        a(f'v_add_f32 v{vD+12}, v{vD+12}, v{vD+14}')
        a('s_nop 1')
        a(f'v_permlane16_swap_b32 v{vD+8}, v{vD+12}')
        a(f'v_add_f32 v{vT}, v{vD+8}, v{vD+12}')
        a(f'v_perm_b32 v{vT}, v{vT}, v{vTB}, {sSEL}')
        if 'execst' in self.exp:
            a('s_mov_b32 exec_hi, 0')
        a(f'buffer_store_dword v{vT}, v{vA4}, {SRD_WS}, 0 offen {self.spol}')
        if 'execst' in self.exp:
            a('s_mov_b32 exec_hi, -1')
        self.stamp('spub')
        self.lab('L_hop2')
        if 'h2bar' in self.exp:
            a('s_barrier')
        if 'h2sleep' in self.exp:
            a('s_sleep 8')
        if self.diag:
            i = self.stamp_names.index(self.diag[0]) if self.diag[0] in self.stamp_names else 0
            a(f's_cmp_lg_u32 {sW}, 0')
            a('s_cbranch_scc1 L_nodg')
            a('s_waitcnt lgkmcnt(0)')
            a(f'v_mov_b32 v{vD}, s{STAMP_BASE}')
            a(f'v_mov_b32 v{vD+1}, s{STAMP_BASE+2*i}')
            a(f's_lshl_b32 {sT0}, s2, 3')
            a(f's_add_u32 {sT0}, {sT0}, {hex(STAMP)}')
            a(f'v_mov_b32 v{vD+2}, {sT0}')
            a('s_mov_b64 exec, 1')
            a(f'buffer_store_dwordx2 v[{vD}:{vD+1}], v{vD+2}, {SRD_WS}, 0 offen sc1')
            a('s_mov_b64 exec, -1')
            self.lab('L_nodg')

        a(f's_cmp_ge_u32 s2, {NCONS}')
        a('s_cbranch_scc1 L_exit')
        nl, lpp = 1, 8
        a(f's_lshl_b32 {sT0}, s2, 13')
        if emu:
            nl = 1
            a(f's_mul_i32 {sT0}, s2, {nprod * 128}')
        a(f's_add_u32 {sT0}, {sT0}, {hex(SBOX)}')
        a(f'v_lshl_add_u32 v{vA0}, v0, 4, {sT0}')
        if emu and npw == 1:
            a(f'v_and_b32 v{vA0}, 255, v0')
            a(f'v_lshl_add_u32 v{vA0}, v{vA0}, 4, {sT0}')
        sl = []
        for u in range(nl):
            if u:
                sl.append(f's_movk_i32 {sT2}, {hex(u*8192)}')
            sl.append(f'buffer_load_dwordx4 v[{SG+4*u}:{SG+4*u+3}], v{vA0}, {SRD_WS}, {sT2 if u else 0} offen {self.lpol}')
        if not self.pp2:
            for x in sl:
                a(x)
        a(f'v_mov_b32 v{vA1}, {sTAG}')
        a(f'v_and_b32 v{vT+1}, {lpp-1}, v1')
        a(f'v_lshlrev_b32 v{vT+1}, 7, v{vT+1}')
        a(f'v_lshrrev_b32 v{vT+2}, 4, v1')
        a(f'v_lshlrev_b32 v{vT+2}, 5, v{vT+2}')
        a(f's_lshl_b32 {sT0}, {sW}, 2')
        a(f'v_add3_u32 v{vA2}, v{vT+1}, v{vT+2}, {sT0}')
        a(f'v_and_b32 v{vT+1}, {CPC-1}, v1')
        a(f'v_lshlrev_b32 v{vA3}, 5, v{vT+1}')
        a(f'v_lshlrev_b32 v{vT+2}, 2, v{vT+1}')
        a(f'ds_read_b32 v{vA4}, v{vT+2} offset:{L_GB}')
        a(f'ds_read_b32 v{vA5}, v{vT+2} offset:{L_XB}')
        a(f's_lshl_b32 {sT0}, s2, {lg+1}')
        a(f'v_lshl_add_u32 v{vWt}, v{vT+1}, 1, {sT0}')
        if self.pp2:
            SG = self.ppoll(lambda r: f'buffer_load_dwordx4 v[{r}:{r+3}], v{vA0}, {SRD_WS}, 0 offen {self.lpol}',
                            lambda r: self.check_quads([r], vA1, vT + 1, vT + 2, vT + 3), SG, self.pp2[0], self.pp2[1])
        else:
            a('s_waitcnt vmcnt(0)')
            self.poll(sl, lambda: self.check_quads([SG + 4 * u for u in range(nl)], vA1, vT + 1, vT + 2, vT + 3), True, sleep=self.sl2)
        self.stamp('gots')
        for u in range(1, nl):
            for k in range(4):
                a(f'v_add_f32 v{SG+k}, v{SG+k}, v{SG+4*u+k}')
        self.quad_reduce(SG, lpp)
        a(f'ds_write_b32 v{vA2}, v{SG} offset:{L_S2}')
        self.barrier()
        a(f's_cmp_lg_u32 {sW}, 0')
        a('s_cbranch_scc1 L_exit')
        a(f'ds_read_b128 v[{vD}:{vD+3}], v{vA3} offset:{L_S2}')
        a(f'ds_read_b128 v[{vD+4}:{vD+7}], v{vA3} offset:{L_S2+16}')
        a(f's_mov_b32 exec_lo, {hex((1 << CPC) - 1)}')
        a('s_mov_b32 exec_hi, 0')
        a('s_waitcnt lgkmcnt(0)')
        self.sum8(vT, vD)
        self.bf16r(vT, vT)
        a(f'v_mul_f32 v{vT}, v{vT}, v{vA4}')
        self.bf16r(vT, vT)
        a(f'v_add_f32 v{vT}, v{vT}, v{vA5}')
        a(f'v_cvt_pk_bf16_f32 v{vT}, v{vT}, v{vT}')
        a(f'buffer_store_short v{vT}, v{vWt}, {SRD_OUT}, 0 offen')
        a('s_mov_b64 exec, -1')
        a('s_cmp_lg_u32 s2, 0')
        a('s_cbranch_scc1 L_exit')
        if self.diag:
            a('s_memrealtime s[98:99]')
            a('s_sleep 40')
            a(f'v_lshlrev_b32 v{vT}, 5, v1')
            a(f'v_add_u32 v{vT}, {hex(STAMP)}, v{vT}')
            a(f'buffer_load_dwordx4 v[{vD}:{vD+3}], v{vT}, {SRD_WS}, 0 offen sc1')
            a(f'buffer_load_dwordx4 v[{vD+4}:{vD+7}], v{vT}, {SRD_WS}, 0 offen offset:16 sc1')
            a('s_waitcnt vmcnt(0) lgkmcnt(0)')
            for k in range(8):
                a(f'v_sub_u32 v{vD+k}, s98, v{vD+k}')
            a(f'v_max3_u32 v{vT}, v{vD}, v{vD+2}, v{vD+4}')
            a(f'v_max_u32 v{vT}, v{vT}, v{vD+6}')
            self.inrow_allreduce('v_max_u32', vT, (8, 4, 2, 1))
            self.rows_allreduce('v_max_u32', vT, vT + 2)
            op = {'max': 'v_min_u32', 'min': 'v_max_u32', 'mean': 'v_add_u32'}[self.diag[1]]
            a(f'{op} v{vD+1}, v{vD+1}, v{vD+3}')
            a(f'{op} v{vD+5}, v{vD+5}, v{vD+7}')
            a(f'{op} v{vT+1}, v{vD+1}, v{vD+5}')
            self.inrow_allreduce(op, vT + 1, (8, 4, 2, 1))
            self.rows_allreduce(op, vT + 1, vT + 2)
            if self.diag[1] == 'mean':
                a(f'v_lshrrev_b32 v{vT+1}, 8, v{vT+1}')
            if self.diag[0] == 'end':
                a(f'v_mov_b32 v{vT+1}, 0')
            if self.diag[0] == 'none':
                a(f'v_mov_b32 v{vT+1}, v{vT}')
            a(f'v_sub_u32 v{vT}, v{vT}, v{vT+1}')
            a('s_nop 1')
            a(f'v_readfirstlane_b32 s96, v{vT}')
            a('s_min_u32 s96, s96, 20000')
            a('s_lshl_b32 s96, s96, 2')
            a('s_add_u32 s96, s96, 200')
            self.lab('L_spin')
            a('s_memrealtime s[94:95]')
            a('s_waitcnt lgkmcnt(0)')
            a('s_sub_u32 s94, s94, s98')
            a('s_cmp_lt_u32 s94, s96')
            a('s_cbranch_scc1 L_spin')
        a(f'v_mov_b32 v{vT}, 0')
        a('s_mov_b64 exec, 1')
        a(f'buffer_store_dword v{vA1}, v{vT}, {SRD_WS}, 0 offen sc1')
        a('s_mov_b64 exec, -1')
        a('s_branch L_exit')

    def far_store(self):
        self.lab('L_far')
        self.a(f'buffer_store_dword v60, v70, {SRD_WS}, 0 offen sc1')
        self.a('s_branch L_near')

    def helpers(self):
        a = self.a
        CPC = self.CPC
        NCONS = 512 // CPC
        lg = int(math.log2(CPC))
        vLane = 1
        vT = 4
        vX = 16
        vA = 24
        vB = 32
        vCol, vTC = 40, 41
        vW = 112
        vTag, vTB = 2, 3
        self.lab('L_helper')
        if self.prio:
            a(f's_setprio {self.prio}')
        a('s_waitcnt lgkmcnt(0)')
        self.stamp('_hstart')
        a(f's_load_dword {sTAG}, s[26:27], 0')
        self.srd(SRD_WS, 26, 256 << 20)
        self.srd(SRD_X, 4, 1024)
        a(f's_cmp_ge_u32 {sW}, 6')
        a('s_cbranch_scc1 L_h23')
        self.vm = []
        sRB, sCB, sPUB = 's60', 's61', 's3'
        a(f's_and_b32 {sRB}, {sJ}, 3')
        a(f's_lshr_b32 {sCB}, {sJ}, 2')
        a(f's_cmp_eq_u32 {sW}, 4')
        a('s_cbranch_scc0 L_h1_setup')
        a(f's_lshl_b32 {sPUB}, {sG}, 13')
        a(f's_lshl_b32 {sT0}, {sRB}, 11')
        a(f's_add_u32 {sPUB}, {sPUB}, {sT0}')
        a(f's_add_u32 {sPUB}, {sPUB}, {hex(QBOX)}')
        a('s_branch L_tile')
        self.lab('L_h1_setup')
        a(f's_cmp_ge_u32 {sJ}, 28')
        a('s_cbranch_scc1 L_h23')
        a(f's_lshl_b32 {sCB}, {sCB}, 3')
        a(f's_add_u32 {sCB}, {sCB}, {sG}')
        a(f's_sub_u32 {sT0}, {sCB}, 28')
        a(f's_cmp_ge_u32 {sCB}, 28')
        a(f's_cselect_b32 {sCB}, {sT0}, {sCB}')
        a(f's_cselect_b32 {sPUB}, {hex(4*7168)}, 0')
        a(f's_add_u32 {sPUB}, {sPUB}, {hex(HBOX)}')
        a(f's_mul_i32 {sT0}, {sRB}, 7168')
        a(f's_add_u32 {sPUB}, {sPUB}, {sT0}')
        self.lab('L_tile')
        a(f'v_lshlrev_b32 v{vT}, 4, v{vLane}')
        self.load('x16', f'buffer_load_dwordx4 v[{vX}:{vX+3}], v{vT}, {SRD_X}, 0 offen')
        a(f's_lshl_b32 {sT0}, {sCB}, 8')
        a(f's_add_u32 {sPUB}, {sPUB}, {sT0}')
        a(f'v_lshrrev_b32 v{vT+4}, 3, v{vLane}')
        a(f'v_lshlrev_b32 v{vT+1}, 4, v{vT+4}')
        a(f's_lshl_b32 {sT0}, {sRB}, 7')
        a(f'v_add_u32 v{vT+1}, {sT0}, v{vT+1}')
        a(f's_sub_u32 {sT0}, {sW}, 4')
        a(f's_lshl_b32 {sT1}, {sT0}, 14')
        a(f'v_add_u32 v{vT+2}, {sT1}, v{vT}')
        a(f's_lshl_b32 {sT0}, {sT0}, 10')
        a(f'v_add_u32 v{vT}, {sT0}, v{vT}')
        a(f'v_lshl_add_u32 v{vT+1}, v{vT+1}, 1, {sT0}')
        a(f'v_and_b32 v{vT+3}, 7, v{vLane}')
        a(f'v_lshlrev_b32 v{vT+3}, 5, v{vT+3}')
        a(f'v_lshl_add_u32 v{vCol}, v{vT+4}, 2, v{vT+3}')
        a(f'v_add_u32 v{vT+3}, {sPUB}, v{vCol}')
        a(f'v_and_b32 v{vT+4}, 3, v{vT+4}')
        a(f'v_lshlrev_b32 v{vT+4}, 3, v{vT+4}')
        a(f's_mov_b32 {sPLO}, 0x05040100')
        a(f's_mov_b32 {sPHI}, 0x07060302')
        self.wait('x16')
        self.stamp('_x16')
        for k in range(4):
            a(f'v_lshlrev_b32 v{vA+2*k}, 16, v{vX+k}')
            a(f'v_and_b32 v{vA+2*k+1}, 0xffff0000, v{vX+k}')
        m, s2, t = vT + 5, vT + 6, vT + 7
        a(f'v_add_f32 v{m}, v{vA}, v{vA+1}')
        for k in range(2, 8):
            a(f'v_add_f32 v{m}, v{m}, v{vA+k}')
        self.inrow_allreduce('v_add_f32', m, (8, 4, 2, 1))
        self.rows_allreduce('v_add_f32', m, t)
        a(f'v_mul_f32 v{m}, {hex(f2u(1/512.))}, v{m}')
        for k in range(8):
            a(f'v_sub_f32 v{vB+k}, v{vA+k}, v{m}')
        a(f'v_mul_f32 v{s2}, v{vB}, v{vB}')
        for k in range(1, 8):
            a(f'v_fmac_f32 v{s2}, v{vB+k}, v{vB+k}')
        self.inrow_allreduce('v_add_f32', s2, (8, 4, 2, 1))
        self.rows_allreduce('v_add_f32', s2, t)
        a(f'v_mul_f32 v{s2}, {hex(f2u(1/512.))}, v{s2}')
        self.bf16r(m, m)
        self.bf16r(s2, s2)
        a(f'v_add_f32 v{s2}, {hex(f2u(1e-5))}, v{s2}')
        self.bf16r(s2, s2)
        a(f'v_sqrt_f32 v{s2}, v{s2}')
        for k in range(8):
            a(f'v_sub_f32 v{vA+k}, v{vA+k}, v{m}')
        self.bf16r(s2, s2)
        a(f'v_rcp_f32 v{s2}, v{s2}')
        for k in range(4):
            a(f'v_cvt_pk_bf16_f32 v{vX+k}, v{vA+2*k}, v{vA+2*k+1}')
        for k in range(4):
            a(f'v_lshlrev_b32 v{vA+2*k}, 16, v{vX+k}')
            a(f'v_and_b32 v{vA+2*k+1}, 0xffff0000, v{vX+k}')
        for k in range(8):
            a(f'v_mul_f32 v{vA+k}, v{vA+k}, v{s2}')
        for k in range(4):
            a(f'v_cvt_pk_bf16_f32 v{vX+k}, v{vA+2*k}, v{vA+2*k+1}')
        a(f'ds_write_b128 v{vT}, v[{vX}:{vX+3}] offset:{L_XN}')
        a('s_waitcnt lgkmcnt(0)')
        a(f'ds_read_b128 v[{vX}:{vX+3}], v{vT+1} offset:{L_XN}')
        a(f'ds_read_b128 v[{vX+4}:{vX+7}], v{vT+1} offset:{L_XN+16}')
        self.make_tag()
        a(f'v_lshrrev_b32 v{vTC}, v{vT+4}, {sTAG}')
        a(f's_mov_b32 {sSEL}, 0x07060500')
        self.stamp('_ln')
        self.barrier()
        a(f's_cmp_eq_u32 {sW}, 4')
        a('s_cbranch_scc1 L_tile2')
        a('s_barrier')
        self.lab('L_tile2')
        for u in range(16):
            a(f'ds_read_b128 v[{vW+4*u}:{vW+4*u+3}], v{vT+2} offset:{L_TL+1024*u}')
        self.tile_dot(8, vW, vX, vA, vB, lambda p: a(f's_waitcnt lgkmcnt({min(15, 14-2*p)})'))
        a(f'v_perm_b32 v{vA+4}, v{vA+4}, v{vTC}, {sSEL}')
        self.stamp('tilepub')
        a(f's_cmp_eq_u32 {sW}, 4')
        a('s_cbranch_scc0 L_h1')
        a(f'buffer_store_dword v{vA+4}, v{vT+3}, {SRD_WS}, 0 offen {self.qspol}')

        a(f's_mov_b32 {sSA}, 0x0c0c0400')
        a(f's_mov_b32 {sSB}, 0x04000c0c')
        a(f'v_mov_b32 v{vTag}, {sTAG}')
        a(f's_lshl_b32 {sT0}, {sG}, 13')
        a(f's_add_u32 {sT0}, {sT0}, {hex(QBOX)}')
        a(f'v_lshrrev_b32 v{vT}, 5, v{vLane}')
        a(f'v_and_b32 v{vT+1}, 31, v{vLane}')
        a(f'v_lshlrev_b32 v{vT+2}, 11, v{vT}')
        a(f'v_lshlrev_b32 v{vT+3}, 4, v{vT+1}')
        a(f'v_add3_u32 v{vT+2}, v{vT+2}, v{vT+3}, {sT0}')
        a(f's_movk_i32 {sT2}, 0x1000')
        a(f'v_lshrrev_b32 v{vT+1}, 1, v{vT+1}')
        a(f'v_lshlrev_b32 v{vT+1}, 6, v{vT+1}')
        a(f'v_and_b32 v{vT+3}, 1, v{vLane}')
        a(f'v_lshlrev_b32 v{vT+3}, 3, v{vT+3}')
        a(f'v_lshl_add_u32 v{vT+1}, v{vT}, 2, v{vT+1}')
        a(f'v_add_u32 v{vT+1}, v{vT+1}, v{vT+3}')
        ql = [f'buffer_load_dwordx4 v[{vW+8*h+4*b}:{vW+8*h+4*b+3}], v{vT+2}, {SRD_WS}, {sT2 if b else 0} offen offset:{512*h} sc1'
              for h in range(4) for b in range(2)]
        a('s_barrier')
        self.poll(ql, lambda: self.check_quads([vW + 4 * i for i in range(8)], vTag, vT + 4, vT + 5, vT + 6))
        self.stamp('gotq')
        for h in range(4):
            for k in range(4):
                a(f'v_add_f32 v{vW+8*h+k}, v{vW+8*h+k}, v{vW+8*h+4+k}')
        for h in range(4):
            a(f'v_permlane32_swap_b32 v{vW+8*h}, v{vW+8*h+2}')
            a(f'v_permlane32_swap_b32 v{vW+8*h+1}, v{vW+8*h+3}')
        for h in range(4):
            a(f'v_add_f32 v{vW+8*h}, v{vW+8*h}, v{vW+8*h+2}')
            a(f'v_add_f32 v{vW+8*h+1}, v{vW+8*h+1}, v{vW+8*h+3}')
            a(f'v_cvt_pk_bf16_f32 v{vW+8*h}, v{vW+8*h}, v{vW+8*h+1}')
            a(f'ds_write_b32 v{vT+1}, v{vW+8*h} offset:{L_BQ+16*h}')
        self.barrier()
        a(f'v_and_b32 v{vT}, 3, v{vLane}')
        a(f'v_lshlrev_b32 v{vT}, 4, v{vT}')
        a(f's_lshl_b32 {sT2}, {sG}, 11')
        a(f's_add_u32 {sT2}, {sT2}, {hex(MLBOX)}')
        a(f's_lshl_b32 {sT1}, {sJ}, 4')
        a(f's_add_u32 {sT0}, {sT2}, {sT1}')
        a(f'v_lshl_add_u32 v{vT+1}, v{vT}, 5, {sT0}')
        a(f's_lshr_b32 {sT1}, {sJ}, 3')
        a(f's_lshl_b32 {sT1}, {sT1}, 9')
        a(f's_add_u32 {sT0}, {sT2}, {sT1}')
        a(f'v_and_b32 v{vT+2}, 31, v{vLane}')
        a(f'v_lshlrev_b32 v{vT+3}, 2, v{vT+2}')
        a(f'v_lshl_add_u32 v{vT+2}, v{vT+2}, 4, {sT0}')
        sXC = 's11'
        a(f's_getreg_b32 {sXC}, hwreg(HW_REG_XCC_ID, 0, 4)')
        a(f's_and_b32 {sT0}, {sTAG}, 0xfffffff0')
        a(f's_or_b32 {sXC}, {sXC}, {sT0}')
        a(f'v_mov_b32 v{vX+2}, {sXC}')
        a(f'v_mov_b32 v{vX+3}, {sTAG}')
        a(f's_mov_b32 {sC}, {hex(f2u(math.log2(math.e) / math.sqrt(128.0)))}')
        a('s_barrier')
        a(f'ds_read_b128 v[{vA}:{vA+3}], v{vT} offset:{L_MB}')
        a('s_waitcnt lgkmcnt(0)')
        a(f'v_max3_f32 v{vX}, v{vA}, v{vA+1}, v{vA+2}')
        a(f'v_max_f32 v{vX}, v{vX}, v{vA+3}')
        a('s_barrier')
        a(f'ds_read_b128 v[{vA}:{vA+3}], v{vT} offset:{L_LB}')
        a('s_waitcnt lgkmcnt(0)')
        a(f'v_add_f32 v{vA}, v{vA}, v{vA+2}')
        a(f'v_add_f32 v{vA+1}, v{vA+1}, v{vA+3}')
        a(f'v_add_f32 v{vX+1}, v{vA}, v{vA+1}')
        a('s_mov_b64 exec, 0xf')
        a(f'buffer_store_dwordx4 v[{vX}:{vX+3}], v{vT+1}, {SRD_WS}, 0 offen {self.mspol}')
        a('s_mov_b64 exec, -1')
        a('s_barrier')

        def chk_ml():
            a(f'v_xor_b32 v{vT+4}, {sTAG}, v{vB+2}')
            a(f'v_lshrrev_b32 v{vT+4}, 4, v{vT+4}')
            a(f'v_xor_b32 v{vT+5}, {sTAG}, v{vB+3}')
            a(f'v_or_b32 v{vT+4}, v{vT+4}, v{vT+5}')
            a(f'v_cmp_ne_u32 vcc, 0, v{vT+4}')
        self.poll([f'buffer_load_dwordx4 v[{vB}:{vB+3}], v{vT+2}, {SRD_WS}, 0 offen sc1'], chk_ml, sleep=4)
        mx, y, t = vT + 4, vT + 5, vT + 6
        a(f'v_cmp_ne_u32 vcc, {sXC}, v{vB+2}')
        a(f'v_mov_b32 v{t}, {L_FL}')
        a('s_cmp_eq_u64 vcc, 0')
        a(f's_cselect_b32 {sT0}, 1, 0')
        a(f'v_mov_b32 v{y}, {sT0}')
        a(f'ds_write_b32 v{t}, v{y}')
        a(f'v_mov_b32 v{mx}, v{vB}')
        self.inrow_allreduce('v_max_f32', mx, (8, 4, 2, 1))
        self.rows_allreduce('v_max_f32', mx, t, do32=False)
        a(f'v_sub_f32 v{mx}, v{vB}, v{mx}')
        a(f'v_mul_f32 v{mx}, {sC}, v{mx}')
        a(f'v_exp_f32 v{mx}, v{mx}')
        a('s_nop 0')
        a(f'v_mul_f32 v{y}, v{mx}, v{vB+1}')
        self.inrow_allreduce('v_add_f32', y, (8, 4, 2, 1))
        self.rows_allreduce('v_add_f32', y, t, do32=False)
        a(f'v_rcp_f32 v{y}, v{y}')
        a('s_nop 0')
        a(f'v_mul_f32 v{mx}, v{mx}, v{y}')
        a(f'ds_write_b32 v{vT+3}, v{mx} offset:{L_WB}')
        self.stamp('mlw')
        a('s_waitcnt lgkmcnt(0)')
        a('s_branch L_Z')

        self.lab('L_h1')
        a(f'buffer_store_dword v{vA+4}, v{vT+3}, {SRD_WS}, 0 offen sc1')
        self.srd(SRD_B, 20, 1792 * 1024)
        sFI, sRD, sCD = 's8', 's9', 's10'
        a(f's_mul_i32 {sFI}, {sG}, 28')
        a(f's_add_u32 {sFI}, {sFI}, {sJ}')
        a(f's_lshr_b32 {sRD}, {sFI}, 3')
        a(f's_and_b32 {sCD}, {sFI}, 7')
        a(f's_lshl_b32 {sT0}, {sRD}, 16')
        a(f's_lshl_b32 {sT1}, {sCD}, 7')
        a(f's_add_u32 {sT0}, {sT0}, {sT1}')
        a(f'v_lshrrev_b32 v{vT+2}, 3, v{vLane}')
        a(f'v_lshlrev_b32 v{vT}, 13, v{vT+2}')
        a(f'v_lshlrev_b32 v{vT+2}, 4, v{vT+2}')
        a(f'v_and_b32 v{vT+1}, 7, v{vLane}')
        a(f'v_lshlrev_b32 v{vT+1}, 4, v{vT+1}')
        a(f'v_add3_u32 v{vT}, v{vT}, v{vT+1}, {sT0}')
        a(f's_movk_i32 {sT2}, 0x1000')
        for e in range(8):
            a(f'buffer_load_dwordx4 v[{vW+4*e}:{vW+4*e+3}], v{vT}, {SRD_B}, {sT2 if e >= 4 else 0} offen offset:{(e & 3)*1024} {self.wpol}')
        a(f's_lshl_b32 {sT0}, {sRD}, 8')
        a(f's_add_u32 {sT0}, {sT0}, {hex(HBOX)}')
        a(f'v_lshl_add_u32 v{vT+1}, v{vLane}, 2, {sT0}')
        a(f'v_and_b32 v{vT+3}, 3, v{vLane}')
        a(f'v_lshlrev_b32 v{vT+3}, 3, v{vT+3}')
        a(f'v_lshrrev_b32 v{vTB}, v{vT+3}, {sTAG}')
        a(f'v_lshlrev_b32 v{vT+3}, 1, v{vLane}')
        a(f's_lshl_b32 {sT0}, {sCD}, 13')
        a(f's_lshl_b32 {sT1}, {sRD}, 8')
        a(f's_add_u32 {sT0}, {sT0}, {sT1}')
        a(f's_add_u32 {sT0}, {sT0}, {hex(FBOX)}')
        a(f'v_add_u32 v{vCol}, {sT0}, v{vCol}')
        for b in 'ABC':
            a('s_barrier')
        hl = []
        for k in range(8):
            if k:
                hl.append(f's_movk_i32 {sT2}, {k*7168 - (0 if k < 4 else 0x7000)}')
            if k == 4:
                hl.append(f'v_add_u32 v{vT+4}, 0x7000, v{vT+1}')
            hl.append(f'buffer_load_dword v{vB+k}, v{vT+1 if k < 4 else vT+4}, {SRD_WS}, {sT2 if k else 0} offen sc1')

        def chk_h():
            a(f'v_xor_b32 v{vT+4}, v{vB}, v{vTB}')
            for k in range(1, 8):
                a(f'v_bitop3_b32 v{vT+4}, v{vB+k}, v{vTB}, v{vT+4} bitop3:0xbe')
            a(f'v_and_b32 v{vT+4}, 0xff, v{vT+4}')
            a(f'v_cmp_ne_u32 vcc, 0, v{vT+4}')
        self.poll(hl, chk_h, sleep=0)
        for b in (vB, vB + 4):
            a(f'v_add_f32 v{b}, v{b}, v{b+1}')
            a(f'v_add_f32 v{b+2}, v{b+2}, v{b+3}')
            a(f'v_add_f32 v{b}, v{b}, v{b+2}')
            self.bf16r(b, b)
        self.silu_bf16(vB + 1, vB, vB + 2)
        a(f'v_mul_f32 v{vB+1}, v{vB+1}, v{vB+4}')
        a(f'v_cvt_pk_bf16_f32 v{vB+1}, v{vB+1}, v{vB+1}')
        a(f'ds_write_b16 v{vT+3}, v{vB+1} offset:{L_HB}')
        a('s_waitcnt lgkmcnt(0)')
        a(f'ds_read_b128 v[{vX}:{vX+3}], v{vT+2} offset:{L_HB}')
        a('s_waitcnt lgkmcnt(0)')
        self.tile_dot(4, vW, vX, vA, vB, lambda p: None)
        a(f'v_perm_b32 v{vA+4}, v{vA+4}, v{vTC}, {sSEL}')
        a(f'buffer_store_dword v{vA+4}, v{vCol}, {SRD_WS}, 0 offen sc1')
        self.stamp('fpub')
        a('s_barrier')
        a('s_branch L_Z')

        self.lab('L_h23')
        if self.tlb:
            a(f's_cmp_lg_u32 {sW}, 7')
            a('s_cbranch_scc1 L_h23b')
            a(f's_and_b32 {sT0}, {sJ}, 3')
            a(f's_lshl_b32 {sT1}, {sT0}, 20')
            a(f's_load_dword s28, s[10:11], {sT1}')
            a(f's_mul_i32 {sT1}, {sT0}, {128*3584}')
            a(f's_load_dword s29, s[16:17], {sT1}')
            a(f's_load_dword s30, s[18:19], {sT1}')
            a(f's_lshl_b32 {sT0}, {sG}, 23')
            a(f's_lshl_b32 {sT1}, {sJ}, 18')
            a(f's_add_u32 {sT0}, {sT0}, {sT1}')
            a(f's_load_dword s31, s[8:9], {sT0}')
            a(f's_lshr_b32 {sT0}, {sT0}, 4')
            a(f's_load_dword s32, s[12:13], {sT0}')
            a('s_load_dword s33, s[20:21], 0')
            a('s_load_dword s34, s[20:21], 0xffffc')
            a('s_load_dword s35, s[22:23], 0')
            self.lab('L_h23b')
        a('s_waitcnt lgkmcnt(0)')
        self.make_tag()
        if self.adapt:
            a(f's_cmp_eq_u32 {sW}, 7')
            a('s_cbranch_scc1 L_h3')
        for b in 'TGABCM':
            a('s_barrier')
        a(f's_cmp_lg_u32 {sW}, 6')
        a('s_cbranch_scc1 L_Z')
        a(f's_cmp_ge_u32 s2, {NCONS}')
        a('s_cbranch_scc1 L_Z')
        lpp = CPC // 4
        ppl = 64 // lpp
        nl = -(-28 // ppl)
        last = (28 - (nl - 1) * ppl) * lpp
        a(f'v_mov_b32 v{vTag}, {sTAG}')
        a(f's_mov_b32 {sSA}, 0x0c0c0400')
        a(f's_mov_b32 {sSB}, 0x04000c0c')
        a(f's_lshr_b32 {sT0}, s2, {6-lg}')
        a(f's_lshl_b32 {sT0}, {sT0}, 13')
        a(f's_and_b32 {sT1}, s2, {64//CPC - 1}')
        a(f's_lshl_b32 {sT1}, {sT1}, {lg+2}')
        a(f's_add_u32 {sT0}, {sT0}, {sT1}')
        a(f's_add_u32 {sT0}, {sT0}, {hex(FBOX)}')
        a(f'v_and_b32 v{vT+1}, {lpp-1}, v{vLane}')
        a(f'v_lshlrev_b32 v{vT+2}, 4, v{vT+1}')
        a(f'v_lshrrev_b32 v{vT}, {lg-2}, v{vLane}')
        a(f'v_lshlrev_b32 v{vT}, 8, v{vT}')
        a(f'v_add3_u32 v{vT}, v{vT}, v{vT+2}, {sT0}')
        a(f'v_lshrrev_b32 v{vT+2}, 4, v{vLane}')
        a(f'v_lshl_add_u32 v{vT+1}, v{vT+1}, 2, v{vT+2}')
        a(f's_lshl_b32 {sT0}, s2, {lg+1}')
        a(f'v_lshl_add_u32 v{vT+2}, v{vT+1}, 1, {sT0}')
        a(f'v_lshlrev_b32 v{vT+1}, 2, v{vT+1}')
        a(f'buffer_load_short_d16_hi v{vT+3}, v{vT+2}, {SRD_X}, 0 offen')
        if self.touch:
            self.srd(SRD_OUT, 22, 1024)
            a(f'buffer_load_short_d16_hi v{vT+7}, v{vT+2}, {SRD_OUT}, 0 offen')
        for k in range(4):
            a(f'v_bfe_u32 v{vW+4*(nl-1)+k}, v{vTag}, {8*k}, 8')
        fl = []
        for u in range(nl):
            off = u * ppl * 256
            if u == nl - 1 and last < 64:
                fl.append(f's_mov_b32 exec_lo, {hex(((1 << last) - 1) & 0xffffffff)}')
                fl.append(f's_mov_b32 exec_hi, {hex(((1 << last) - 1) >> 32)}')
            if off >= 4096:
                fl.append(f's_movk_i32 {sT2}, {hex(off & ~4095)}')
            fl.append(f'buffer_load_dwordx4 v[{vW+4*u}:{vW+4*u+3}], v{vT}, {SRD_WS}, {sT2 if off >= 4096 else 0} offen offset:{off & 4095} sc1')
        fl.append('s_mov_b64 exec, -1')
        self.poll(fl, lambda: self.check_quads([vW + 4 * u for u in range(nl)], vTag, vT + 4, vT + 5, vT + 6), sleep=0)
        for u in range(1, nl):
            for k in range(4):
                a(f'v_add_f32 v{vW+k}, v{vW+k}, v{vW+4*u+k}')
        self.quad_reduce(vW, lpp)
        self.bf16r(vW, vW)
        self.silu_bf16(vT + 4, vW, vT + 5)
        a(f'ds_write_b32 v{vT+1}, v{vT+4} offset:{L_GB}')
        a(f'ds_write_b32 v{vT+1}, v{vT+3} offset:{L_XB}')
        a('s_branch L_Z')
        if self.adapt:
            self.lab('L_h3')
            a(f'v_mov_b32 v{vT}, {L_AD}')
            a(f'v_mov_b32 v{vT+1}, 0')
            a(f'ds_write_b32 v{vT}, v{vT+1}')
            a(f's_lshl_b32 {sT1}, {sG}, 7')
            a(f's_add_u32 {sT1}, {sT1}, {hex(RBOX)}')
            a(f'v_and_b32 v{vT+2}, 31, v1')
            a(f'v_lshl_add_u32 v{vT+2}, v{vT+2}, 2, {sT1}')
            a(f's_lshl_b32 {sT0}, {sJ}, 2')
            a(f's_add_u32 {sT1}, {sT1}, {sT0}')
            a(f'v_mov_b32 v{vT+3}, {sT1}')
            a(f'v_mov_b32 v{vT+4}, {sTAG}')
            a('s_waitcnt lgkmcnt(0)')
            k = 0
            for b in 'TGABCM':
                a('s_barrier')
                if b in self.adapt[2]:
                    a('s_mov_b64 exec, 1')
                    a(f'buffer_store_dword v{vT+4}, v{vT+3}, {SRD_WS}, 0 offen offset:{1024*k}')
                    a('s_mov_b64 exec, -1')
                    a(f'buffer_load_dword v{vT+5}, v{vT+2}, {SRD_WS}, 0 offen offset:{1024*k} sc1')
                    a('s_waitcnt vmcnt(0)')
                    a(f'v_cmp_eq_u32 vcc, v{vT+4}, v{vT+5}')
                    a(f's_bcnt1_i32_b32 {sT0}, vcc_lo')
                    a(f's_cmp_gt_u32 {sT0}, {self.adapt[1]}')
                    a(f's_cselect_b32 {sT0}, 1, 0')
                    a(f'v_mov_b32 v{vT+1}, {sT0}')
                    a(f'ds_write_b32 v{vT}, v{vT+1}')
                    k += 1
            a('s_branch L_Z')


def gen(**kw):
    g = G(**kw)
    s = g.gen()
    return s, g.stamp_names


if __name__ == '__main__':
    kw = eval('dict(' + (sys.argv[2] if len(sys.argv) > 2 else '') + ')')
    s, _ = gen(**kw)
    open(sys.argv[1], 'w').write(s)
```

```python
import math, struct, sys

NAME = 'recurrent_scan__gqa_block_cached__swiglu_ffn__decode_kernel'

HEADER = """; Kernarg layout for this problem (96 bytes, ptrs only, base s[0:1]):
"""


def f2u(x):
    return struct.unpack('<I', struct.pack('<f', x))[0]


QBOX  = 0x010000
HBOX  = 0x020000
MLBOX = 0x030000
OBOX  = 0x080000
FBOX  = 0x040000
SBOX  = 0x100000
RBOX  = 0x038000
STAMP = 0x800000

L_BQ = 0
L_XN = 1024
L_MB = 3072
L_LB = 3200
L_WB = 3312
L_GB = 3440
L_XB = 3568
L_O2 = 3696
L_S2 = 4208
L_CT = 5236
L_AD = 5240
L_FL = 5244
L_HB = 5248
L_A  = 1024
L_OB = 5376
L_WO = 5376 + 16384
L_TL = 5376
LDS_BYTES = L_TL + 2 * 16384

SRD_A, SRD_B, SRD_X, SRD_C, SRD_OUT, SRD_WS = [f's[{b}:{b+3}]' for b in range(28, 52, 4)]
sG, sJ, sW, sTAG, sOFF, sT0, sT1, sT2, sPLO, sPHI, sC, sCNT = [f's{i}' for i in range(52, 64)]
sL2E, sSEL, sSA, sSB, sLOC = 's3', 's64', 's65', 's66', 's67'
STAMP_BASE = 68
NVGPR = 256
RING = 44
RING0 = NVGPR - 4 * RING


class G:
    def __init__(self, Ds=((0, 7), (16, 5), (104, 8)), pol='nt', wpol='nt', opol='nt', CPC=32, stamps=False, kfirst=1, nG=18, nA=44, nM=44,
                 spin=200000, padk=7, prio=0, sl1=0, sl2=0, sorder=False, spol='sc1', lpol='sc1', ospol='', olpol='sc1', local=True, touch=False, tlb=False, diag=None, pp1=None, pp2=1, lastwave=True, split=False, adapt=None, wavefin=False, qtry=4, hspol='sc1', wdpace=0, qspol='sc1', mspol='sc1', exp=()):
        self.__dict__.update(locals())
        if diag:
            self.stamps = (diag[0],)
        self.L = []
        self.vm = []
        self.nlab = 0
        self.stamp_names = []
        self.padding = False
        self.npad = 0
        self.since_pad = 0

    def a(self, s):
        self.L.append('    ' + s)
        if self.padding:
            self.since_pad += 1
            if self.since_pad >= self.padk:
                self.pad()

    def pad(self):
        self.L.append(f'L_pad_{self.npad}:')
        self.L.append(f'    s_cbranch_execz L_pad_{self.npad+1}')
        self.npad += 1
        self.since_pad = 0

    def lab(self, s):
        self.L.append(s + ':')

    def newlab(self, p):
        self.nlab += 1
        return f'L_{p}_{self.nlab}'

    def load(self, name, text):
        self.a(text)
        self.vm.append(name)

    def wait(self, name):
        n = len(self.vm) - 1 - self.vm.index(name)
        assert n <= 63
        self.a(f's_waitcnt vmcnt({n})')

    def stamp(self, name):
        if not self.stamps:
            return
        if self.stamps is True:
            if name.startswith('_'):
                return
        elif name not in self.stamps and name not in ('start', 'end'):
            return
        i = len(self.stamp_names)
        assert STAMP_BASE + 2 * i + 1 <= 101
        self.a(f's_memrealtime s[{STAMP_BASE+2*i}:{STAMP_BASE+2*i+1}]')
        self.stamp_names.append(name)

    def dpp(self, op, d, s0, s1, ctl, bank=0xf):
        self.a(f'{op}_dpp v{d}, v{s0}, v{s1} {ctl} row_mask:0xf bank_mask:{hex(bank)}')

    def rows_allreduce(self, op, v, t, do16=True, do32=True):
        if do16:
            self.a(f'v_mov_b32 v{t}, v{v}')
            self.a('s_nop 1')
            self.a(f'v_permlane16_swap_b32 v{v}, v{t}')
            self.a(f'{op} v{v}, v{v}, v{t}')
        if do32:
            self.a(f'v_mov_b32 v{t}, v{v}')
            self.a('s_nop 1')
            self.a(f'v_permlane32_swap_b32 v{v}, v{t}')
            self.a(f'{op} v{v}, v{v}, v{t}')

    def inrow_allreduce(self, op, v, rots):
        for r in rots:
            self.a('s_nop 1')
            self.dpp(op, v, v, v, f'row_ror:{r}')

    def bf16r(self, d, s):
        self.a(f'v_cvt_pk_bf16_f32 v{d}, v{s}, v{s}')
        self.a(f'v_and_b32 v{d}, 0xffff0000, v{d}')

    def sum8(self, d, b):
        for k in range(4):
            self.a(f'v_add_f32 v{b+k}, v{b+k}, v{b+4+k}')
        self.a(f'v_add_f32 v{b}, v{b}, v{b+2}')
        self.a(f'v_add_f32 v{b+1}, v{b+1}, v{b+3}')
        self.a(f'v_add_f32 v{d}, v{b}, v{b+1}')

    def max8(self, d, b, t):
        self.a(f'v_max3_f32 v{d}, v{b}, v{b+1}, v{b+2}')
        self.a(f'v_max3_f32 v{t}, v{b+3}, v{b+4}, v{b+5}')
        self.a(f'v_max3_f32 v{d}, v{d}, v{b+6}, v{b+7}')
        self.a(f'v_max_f32 v{d}, v{d}, v{t}')

    def silu_bf16(self, d, x, t):
        self.a(f'v_mul_f32 v{t}, {hex(f2u(math.log2(math.e)))}, v{x}')
        self.a(f'v_exp_f32 v{t}, -v{t}')
        self.a('s_nop 0')
        self.a(f'v_add_f32 v{t}, 1.0, v{t}')
        self.a(f'v_rcp_f32 v{t}, v{t}')
        self.a('s_nop 0')
        self.a(f'v_mul_f32 v{t}, v{x}, v{t}')
        self.bf16r(d, t)

    def make_tag(self):
        self.a(f's_and_b32 {sT0}, {sTAG}, 0x7f7f7f7f')
        self.a(f's_add_u32 {sT0}, {sT0}, 0x47611b35')
        self.a(f's_and_b32 {sTAG}, {sTAG}, 0x80808080')
        self.a(f's_xor_b32 {sTAG}, {sTAG}, {sT0}')

    def check_quads(self, quads, vtag, t0, t1, t2):
        for i, q in enumerate(quads):
            self.a(f'v_perm_b32 v{t0}, v{q+1}, v{q}, {sSA}')
            self.a(f'v_perm_b32 v{t1}, v{q+3}, v{q+2}, {sSB}')
            if i == 0:
                self.a(f'v_bitop3_b32 v{t2}, v{t0}, v{t1}, v{vtag} bitop3:0x56')
            else:
                self.a(f'v_bitop3_b32 v{t0}, v{t0}, v{t1}, v{vtag} bitop3:0x56')
                self.a(f'v_or_b32 v{t2}, v{t2}, v{t0}')
        self.a(f'v_cmp_ne_u32 vcc, 0, v{t2}')

    def poll(self, loads, check, first_issued=False, sleep=0):
        again, done = self.newlab('again'), self.newlab('done')
        self.a(f's_mov_b32 {sCNT}, {self.spin}')
        if first_issued:
            check()
            self.a(f's_cbranch_vccz {done}')
        first = None
        if sleep and not first_issued:
            first = self.newlab('first')
            self.a(f's_branch {first}')
        self.lab(again)
        if sleep:
            self.a(f's_sleep {sleep}')
        if first:
            self.lab(first)
        for x in loads:
            self.a(x)
        self.a(f's_sub_u32 {sCNT}, {sCNT}, 1')
        self.a('s_waitcnt vmcnt(0)')
        self.a(f's_cbranch_scc1 {done}')
        check()
        self.a(f's_cbranch_vccnz {again}')
        self.lab(done)

    def ppoll(self, mk, check, base, P, preissued, first_done=False):
        a = self.a
        done = self.newlab('pdone')
        hit = [self.newlab('phit') for _ in range(P)]
        again = self.newlab('pagain')
        a(f's_mov_b32 {sCNT}, {self.spin}')
        if first_done:
            check(base)
            a(f's_cbranch_vccz {done}')
        for b in range(P - 1):
            if b >= preissued:
                a(mk(base + 4 * b))
        self.lab(again)
        for b in range(P):
            a(mk(base + 4 * ((b + P - 1) % P)))
            a(f's_waitcnt vmcnt({P-1})')
            check(base + 4 * b)
            a(f's_cbranch_vccz {hit[b]}')
        a(f's_sub_u32 {sCNT}, {sCNT}, 1')
        a(f's_cbranch_scc0 {again}')
        for b in range(P - 1, 0, -1):
            self.lab(hit[b])
            for k in range(4):
                a(f'v_mov_b32 v{base+4*P+k}, v{base+4*b+k}')
            a(f's_branch {done}x')
        self.lab(hit[0])
        self.lab(done)
        for k in range(4):
            a(f'v_mov_b32 v{base+4*P+k}, v{base+k}')
        self.lab(done + 'x')
        return base + 4 * P

    def quad_reduce(self, v, lpp):
        self.a('s_nop 1')
        self.a(f'v_permlane32_swap_b32 v{v}, v{v+2}')
        self.a(f'v_permlane32_swap_b32 v{v+1}, v{v+3}')
        self.a(f'v_add_f32 v{v}, v{v}, v{v+2}')
        self.a(f'v_add_f32 v{v+1}, v{v+1}, v{v+3}')
        self.a('s_nop 1')
        self.a(f'v_permlane16_swap_b32 v{v}, v{v+1}')
        self.a(f'v_add_f32 v{v}, v{v}, v{v+1}')
        self.inrow_allreduce('v_add_f32', v, [r for r in (8, 4, 2) if r >= lpp])

    def tile_dot(self, npairs, vW, vX, vA, vB, waitp):
        a = self.a
        for p in range(npairs):
            waitp(p)
            w0, w1 = vW + 8 * p, vW + 8 * p + 4
            for e in range(8):
                a(f'v_perm_b32 v{vB+e}, v{w1+(e>>1)}, v{w0+(e>>1)}, {sPHI if e & 1 else sPLO}')
            for e in range(8):
                a(f'v_dot2_f32_bf16 v{vA+e}, v{vB+e}, v{vX+p}, {"0" if p == 0 else f"v{vA+e}"}')
        a('s_nop 2')
        for e in range(4):
            a(f'v_permlane32_swap_b32 v{vA+e}, v{vA+e+4}')
        for e in range(4):
            a(f'v_add_f32 v{vA+e}, v{vA+e}, v{vA+e+4}')
        a('s_nop 0')
        for e in range(2):
            a(f'v_permlane16_swap_b32 v{vA+e}, v{vA+e+2}')
        for e in range(2):
            a(f'v_add_f32 v{vA+e}, v{vA+e}, v{vA+e+2}')
        a('s_nop 0')
        self.dpp('v_add_f32', vA + 4, vA, vA, 'row_ror:8', 0x3)
        a('s_nop 1')
        self.dpp('v_add_f32', vA + 4, vA + 1, vA + 1, 'row_ror:8', 0xc)

    def srd(self, srd, p, nbytes):
        b = int(srd[2:srd.index(':')])
        self.a(f's_mov_b64 s[{b}:{b+1}], s[{p}:{p+1}]')
        self.a(f's_mov_b32 s{b+2}, {hex(nbytes)}')
        self.a(f's_mov_b32 s{b+3}, 0x20000')

    def barrier(self):
        self.a('s_waitcnt lgkmcnt(0)')
        if 'nobar' not in self.exp:
            self.a('s_barrier')

    def slot(self, n):
        return RING0 + 4 * (n % RING)

    def depth(self, m):
        return [d for f, d in self.Ds if m >= f][-1]

    def need(self, name):
        k = self.seq.index(name)
        assert k < self.m, name
        if k > self.landed:
            self.wait(name)
            self.landed = k

    def has(self, name):
        return self.seq.index(name) <= self.landed

    def step(self):
        if self.m >= len(self.seq):
            return
        k = self.m - self.depth(self.m)
        if self.adapting:
            k2 = k - self.adapt[0]
            if k2 > self.landed:
                self.wait(self.seq[k2])
                self.landed = k2
            if k > self.landed:
                skip = self.newlab('deep')
                self.a(f's_cbranch_vccnz {skip}')
                self.wait(self.seq[k])
                self.lab(skip)
        elif k > self.landed:
            self.wait(self.seq[k])
            self.landed = k
        if self.adapt and self.m in self.pick:
            self.a(f'ds_read_b32 v78, v79')
        if self.adapt and self.m - 1 in self.pick:
            self.a('s_waitcnt lgkmcnt(0)')
            self.a('v_cmp_ne_u32 vcc, 0, v78')
            self.adapting = True
        name = self.seq[self.m]
        kind, i = name[0], int(name[1:])
        if kind in 'KV':
            n = i + (64 if kind == 'V' else 0)
            old = n - RING
            assert old < 0 or (old < 64 and old < 4 * self.beta) or (old >= 64 and old - 64 < 4 * self.tau), name
            r = self.slot(n)
            srd, vo, off, dst, tailtxt = (SRD_A if kind == 'K' else SRD_B), (2 if kind == 'K' else 3), i * 4096, f'v[{r}:{r+3}], ', self.pol
        else:
            if i == 0:
                self.tile_setup(kind)
            srd, vo = (SRD_X, 76) if kind == 'Q' else (SRD_C, 77)
            off, dst, tailtxt = i * ((8192 if kind == 'Q' else 3584) - 1024), '', f'offset:{i*1024} {self.wpol} lds'
        so = '0'
        if off:
            self.a(f's_mov_b32 {sOFF}, {hex(off)}')
            so = sOFF
        self.load(name, f'buffer_load_dwordx4 {dst}v{vo}, {srd}, {so} offen {tailtxt}')
        self.stamp('_' + name)
        self.m += 1

    def steps_until(self, name):
        while self.seq[self.m] != name:
            self.step()

    def tile_setup(self, kind):
        a, vT = self.a, 60
        if kind == 'Q':
            self.srd(SRD_X, 10, 4 << 20)
            a(f's_and_b32 {sT0}, {sJ}, 3')
            a(f's_lshl_b32 {sT0}, {sT0}, 7')
            a(f's_lshl_b32 {sT1}, {sW}, 2')
            a(f's_add_u32 {sT0}, {sT0}, {sT1}')
            a(f'v_lshrrev_b32 v{vT}, 3, v1')
            a(f'v_lshl_add_u32 v{vT}, v{vT}, 4, {sT0}')
            a(f'v_and_b32 v{vT+1}, 7, v1')
            a(f'v_lshlrev_b32 v{vT+1}, 4, v{vT+1}')
            a(f's_lshr_b32 {sT2}, {sJ}, 2')
            a(f's_lshl_b32 {sT0}, {sG}, 10')
            a(f's_lshl_b32 {sT1}, {sT2}, 7')
            a(f's_add_u32 {sT0}, {sT0}, {sT1}')
            a(f'v_lshlrev_b32 v76, 13, v{vT}')
            a(f'v_add3_u32 v76, v76, v{vT+1}, {sT0}')
            a(f's_lshl_b32 {sT1}, {sW}, 12')
            a(f's_add_u32 m0, {sT1}, {L_TL}')
            a('s_nop 0')
        else:
            a(f's_lshl_b32 {sT2}, {sT2}, 3')
            a(f's_add_u32 {sT2}, {sT2}, {sG}')
            a(f's_sub_u32 {sT0}, {sT2}, 28')
            a(f's_cmp_ge_u32 {sT2}, 28')
            a(f's_cselect_b32 {sT2}, {sT0}, {sT2}')
            a('s_cselect_b64 s[40:41], s[18:19], s[16:17]')
            a(f's_mov_b32 s42, {hex(512*3584)}')
            a('s_mov_b32 s43, 0x20000')
            a(f's_lshl_b32 {sT2}, {sT2}, 7')
            a(f's_cmp_ge_u32 {sJ}, 28')
            a(f's_cselect_b32 {sT2}, 0x10000000, {sT2}')
            a(f's_add_u32 m0, {sT1}, {L_TL + 16384}')
            a(f'v_mul_u32_u24 v77, 3584, v{vT}')
            a(f'v_add3_u32 v77, v77, v{vT+1}, {sT2}')

    def qk_batch(self):
        beta = self.beta
        half, t = beta >> 2, beta & 3
        Dr, P0, Bq = 36, 4, 52
        self.need(f'K{4*beta+3}')
        self.beta += 1
        if 'noqk' in self.exp:
            return
        for gam in range(4):
            r = self.slot(4 * beta + gam)
            self.a(f'v_mfma_f32_16x16x32_bf16 v[{Dr+4*gam}:{Dr+4*gam+3}], v[{r}:{r+3}], v[{Bq}:{Bq+3}], 0')
        self.a('s_nop 5')
        for k in (1, 2, 3):
            for gam in range(4):
                P = P0 + 4 * half + gam
                d = Dr + 4 * gam
                self.dpp('v_add_f32', P, d + ((t + k) & 3), d + t if k == 1 else P, f'row_ror:{16-4*k}', 1 << t)

    def pv_group(self):
        tau = self.tau
        B = 36
        self.tau += 1
        for pair in range(2):
            v0 = self.slot(64 + 4 * tau + 2 * pair)
            v1 = self.slot(64 + 4 * tau + 2 * pair + 1)
            self.need(f'V{4*tau+2*pair+1}')
            if 'nopv' in self.exp:
                continue
            for e in range(8):
                self.a(f'v_perm_b32 v{B+2*e+pair}, v{v1+(e>>1)}, v{v0+(e>>1)}, {sPHI if e & 1 else sPLO}')
        if 'nopv' in self.exp:
            return
        PA = 52 + 2 * (tau >> 2)
        for e in range(8):
            ac = 4 + 4 * e
            c = '0' if tau == 0 else f'v[{ac}:{ac+3}]'
            self.a(f'v_mfma_f32_4x4x4_16b_bf16 v[{ac}:{ac+3}], v[{PA}:{PA+1}], v[{B+2*e}:{B+2*e+1}], {c} cbsz:2 abid:{tau & 3}')

    def gen(self):
        a = self.a
        self.L.append(f'; @launch grid=(256,1,1) block=(512,1,1) lds={LDS_BYTES}')
        self.L.append('.amdgcn_target "amdgcn-amd-amdhsa--gfx950"')
        self.L.append('.text')
        self.L.append(f'.globl {NAME}')
        self.L.append('.p2align 8')
        self.L.append(f'.type {NAME},@function')
        self.lab(NAME)
        a('s_load_dwordx16 s[4:19], s[0:1], 0')
        if not self.split:
            a('s_load_dwordx8 s[20:27], s[0:1], 64')
        if self.stamps:
            for i in range(STAMP_BASE, 102, 2):
                if not self.diag:
                    a(f's_mov_b64 s[{i}:{i+1}], 0')
            self.stamp('start')
        a('s_cmp_ge_u32 s2, 0x100')
        a('s_cbranch_scc1 L_end')
        a('v_lshrrev_b32 v4, 6, v0')
        a('v_and_b32 v1, 63, v0')
        a(f'v_readfirstlane_b32 {sW}, v4')
        a(f's_and_b32 {sG}, s2, 7')
        a(f's_lshr_b32 {sJ}, s2, 3')
        a(f's_cmp_ge_u32 {sW}, 4')
        a('s_cbranch_scc1 L_helper')
        self.stream_wave()
        self.tail()
        if self.local:
            self.far_store()
        self.helpers()
        self.lab('L_exit0')
        if self.stamps and not self.diag:
            a('s_mov_b64 exec, -1')
        self.lab('L_exit')
        if self.stamps and not self.diag:
            self.stamp('end')
            a('s_waitcnt lgkmcnt(0)')
            a('v_mov_b32 v4, 0')
            for i in range(len(self.stamp_names)):
                a(f'v_writelane_b32 v4, s{STAMP_BASE+2*i}, {i}')
            a(f's_getreg_b32 {sT1}, hwreg(HW_REG_XCC_ID)')
            a(f'v_writelane_b32 v4, {sT1}, 63')
            a(f's_getreg_b32 {sT1}, hwreg(HW_REG_HW_ID)')
            a(f'v_writelane_b32 v4, {sT1}, 62')
            a(f's_lshl_b32 {sT0}, s2, 3')
            a(f's_add_u32 {sT0}, {sT0}, {sW}')
            a(f's_lshl_b32 {sT0}, {sT0}, 8')
            a(f's_add_u32 {sT0}, {sT0}, {hex(STAMP)}')
            a(f'v_lshl_add_u32 v5, v1, 2, {sT0}')
            a(f'buffer_store_dword v4, v5, {SRD_WS}, 0 offen')
        self.lab('L_end')
        a('s_endpgm')
        self.L += ['.section .rodata,"a"', '.p2align 6', f'.amdhsa_kernel {NAME}',
                   f'  .amdhsa_next_free_vgpr {NVGPR}', '  .amdhsa_next_free_sgpr 102', f'  .amdhsa_accum_offset {NVGPR}',
                   '  .amdhsa_group_segment_fixed_size 0', '  .amdhsa_kernarg_size 96',
                   '  .amdhsa_user_sgpr_count 2', '  .amdhsa_user_sgpr_kernarg_segment_ptr 1',
                   '  .amdhsa_system_sgpr_workgroup_id_x 1',
                   '  .amdhsa_float_denorm_mode_32 3', '.end_amdhsa_kernel']
        return HEADER + '\n'.join(self.L) + '\n'

    def stream_wave(self):
        a = self.a
        vP, vD, vPA, vBq, vT = 4, 36, 52, 52, 60
        assert RING0 == 80
        kf = self.kfirst
        self.seq = [f'K{i}' for i in range(kf)] + [f'Q{i}' for i in range(4)] + [f'F{i}' for i in range(4)] + \
                   [f'K{i}' for i in range(kf, 64)] + [f'V{i}' for i in range(64)]
        self.m = self.beta = self.tau = 0
        self.landed = -1
        self.adapting = False
        self.pick = set()
        self.vm = []
        a(f's_lshl_b32 {sT0}, {sG}, 23')
        a(f's_lshl_b32 {sT1}, {sJ}, 18')
        a(f's_add_u32 {sT0}, {sT0}, {sT1}')
        a(f's_lshl_b32 {sT1}, {sW}, 10')
        a(f's_add_u32 {sT0}, {sT0}, {sT1}')
        a(f'v_bfe_u32 v{vT}, v1, 2, 2')
        a(f'v_lshlrev_b32 v{vT}, 8, v{vT}')
        a(f'v_and_b32 v{vT+1}, 3, v1')
        a(f'v_lshl_add_u32 v{vT}, v{vT+1}, 4, v{vT}')
        a(f'v_lshrrev_b32 v{vT+2}, 4, v1')
        a(f'v_lshlrev_b32 v{vT+2}, 6, v{vT+2}')
        a(f'v_add3_u32 v2, v{vT}, v{vT+2}, {sT0}')
        a(f'v_lshl_add_u32 v3, v1, 4, {sT0}')
        a('s_waitcnt lgkmcnt(0)')
        self.srd(SRD_A, 6, 64 << 20)
        self.steps_until('F0')
        self.stamp('issued0')
        if self.split:
            a('s_load_dwordx8 s[20:27], s[0:1], 64')
        else:
            a(f's_load_dword {sTAG}, s[26:27], 0')
            self.srd(SRD_WS, 26, 256 << 20)
        self.srd(SRD_B, 8, 64 << 20)
        a(f's_mov_b32 {sPLO}, 0x05040100')
        a(f's_mov_b32 {sPHI}, 0x07060302')
        a(f's_mov_b32 {sC}, {hex(f2u(math.log2(math.e) / math.sqrt(128.0)))}')
        while not self.has('Q3'):
            self.step()
        self.stamp('preT')
        a('s_barrier')
        if self.split:
            a('s_waitcnt lgkmcnt(0)')
            a(f's_load_dword {sTAG}, s[26:27], 0')
            self.srd(SRD_WS, 26, 256 << 20)
        self.steps_until(f'K{self.nG}')
        assert self.has('F3')
        a('s_barrier')
        self.steps_until(f'K{self.nA}')
        a(f'v_lshlrev_b32 v{vT}, 4, v1')
        self.stamp('preA')
        self.barrier()
        a(f'ds_read_b128 v[{vBq}:{vBq+3}], v{vT} offset:{L_BQ}')
        self.stamp('A')
        if self.adapt:
            a(f'v_mov_b32 v79, {L_AD}')
            if 'A' in self.adapt[2]:
                self.pick.add(self.m + self.adapt[3])
        self.make_tag()
        a(f'v_and_b32 v{vT+6}, 3, v1')
        a(f'v_lshlrev_b32 v{vT+6}, 4, v{vT+6}')
        a(f's_lshl_b32 {sT0}, {sW}, 2')
        a(f'v_add_u32 v{vT+7}, {sT0}, v{vT+6}')
        a('s_waitcnt lgkmcnt(0)')
        while self.beta < 16:
            nxt = self.seq[self.m]
            if int(nxt[1:]) + (64 if nxt[0] == 'V' else 0) - RING >= 4 * self.beta:
                self.qk_batch()
            self.step()
            if self.beta < 16 and self.has(f'K{4*self.beta+3}'):
                self.qk_batch()
        self.max8(vT, vP, vT + 1)
        self.max8(vT + 2, vP + 8, vT + 1)
        a(f'v_max_f32 v{vT}, v{vT}, v{vT+2}')
        self.inrow_allreduce('v_max_f32', vT, (8, 4))
        self.rows_allreduce('v_max_f32', vT, vT + 1)
        a(f'ds_write_b32 v{vT+7}, v{vT} offset:{L_MB}')
        self.step()
        self.stamp('_preB')
        self.barrier()
        a(f'ds_read_b128 v[{vD}:{vD+3}], v{vT+6} offset:{L_MB}')
        a('s_waitcnt lgkmcnt(0)')
        a(f'v_max3_f32 v{vT}, v{vD}, v{vD+1}, v{vD+2}')
        a(f'v_max_f32 v{vT}, v{vT}, v{vD+3}')
        a(f'v_mul_f32 v{vT}, {sC}, v{vT}')
        for i in range(16):
            a(f'v_fma_f32 v{vP+i}, v{vP+i}, {sC}, -v{vT}')
        self.step()
        for i in range(16):
            a(f'v_exp_f32 v{vP+i}, v{vP+i}')
        self.step()
        for i in range(8):
            a(f'v_cvt_pk_bf16_f32 v{vPA+i}, v{vP+2*i}, v{vP+2*i+1}')
        for i in range(8):
            a(f'v_add_f32 v{vP+i}, v{vP+i}, v{vP+8+i}')
        self.sum8(vT, vP)
        self.inrow_allreduce('v_add_f32', vT, (8, 4))
        self.rows_allreduce('v_add_f32', vT, vT + 1)
        a(f'ds_write_b32 v{vT+7}, v{vT} offset:{L_LB}')
        self.step()
        self.barrier()
        self.stamp('C')
        if self.adapt and 'C' in self.adapt[2]:
            self.pick.add(self.m + self.adapt[3])
        while self.m < len(self.seq):
            if self.seq[self.m] == f'V{self.nM}':
                a('s_barrier')
                if self.adapt and 'M' in self.adapt[2]:
                    self.pick.add(self.m + self.adapt[3])
            if int(self.seq[self.m][1:]) - RING >= 4 * self.tau:
                self.pv_group()
            self.step()
            if self.has(f'V{4*self.tau+3}'):
                self.pv_group()
        self.stamp('allissued')

    def tail(self):
        a = self.a
        CPC = self.CPC
        assert CPC == 32
        NCONS = 16
        lg = 5
        emu = None
        vAcc, vD, vT = 4, 36, 60
        vA0, vA1, vA2, vA3, vA4, vA5, vTB, vWt = range(68, 76)
        vW, SG = 80, 96
        vZ = 20
        AM = (52, 54, 56, 76)
        assert self.tau >= 12
        self.lab('L_Z')
        a(f's_cmp_lt_u32 {sW}, 4')
        a('s_cbranch_scc1 L_Z1')
        self.srd(SRD_C, 12, 4 << 20)
        a(f's_lshl_b32 {sT0}, {sG}, 19')
        a(f's_lshr_b32 {sT1}, {sJ}, 2')
        a(f's_lshl_b32 {sT1}, {sT1}, 16')
        a(f's_add_u32 {sT0}, {sT0}, {sT1}')
        a(f's_and_b32 {sT1}, {sJ}, 3')
        a(f's_lshl_b32 {sT1}, {sT1}, 8')
        a(f's_add_u32 {sT0}, {sT0}, {sT1}')
        a(f's_and_b32 {sT2}, {sW}, 3')
        a(f's_lshl_b32 {sT1}, {sT2}, 6')
        a(f's_add_u32 {sT0}, {sT0}, {sT1}')
        a(f'v_lshrrev_b32 v{vT}, 2, v1')
        a(f'v_lshlrev_b32 v{vT}, 10, v{vT}')
        a(f'v_and_b32 v{vT+1}, 3, v1')
        a(f'v_lshlrev_b32 v{vT+1}, 4, v{vT+1}')
        a(f'v_add3_u32 v{vT}, v{vT}, v{vT+1}, {sT0}')
        a(f's_lshl_b32 {sT2}, {sT2}, 12')
        a(f's_add_u32 m0, {sT2}, {L_WO}')
        a('s_barrier')
        for i in range(4):
            if i:
                a(f's_mov_b32 {sOFF}, {i*(16384-1024)}')
            a(f'buffer_load_dwordx4 v{vT}, {SRD_C}, {sOFF if i else 0} offen offset:{i*1024} {self.opol} lds')
        a('s_branch L_Z2')
        self.lab('L_Z1')
        a('s_barrier')
        self.lab('L_Z2')
        self.srd(SRD_OUT, 22, 1024)
        a(f's_mov_b32 {sSEL}, 0x07060500')
        a(f's_mov_b32 {sSA}, 0x0c0c0400')
        a(f's_mov_b32 {sSB}, 0x04000c0c')
        a(f'v_and_b32 v{vT+3}, 3, v1')
        a(f'v_lshlrev_b32 v{vT}, 3, v{vT+3}')
        a(f'v_lshrrev_b32 v{vTB}, v{vT}, {sTAG}')
        a(f'v_lshrrev_b32 v{vT}, 4, v0')
        a(f'v_lshlrev_b32 v{vWt}, 2, v{vT}')
        a(f'ds_read_b32 v{vWt}, v{vWt} offset:{L_WB}')
        a(f'v_mov_b32 v{vT+5}, {L_FL}')
        a(f'ds_read_b32 v{vT+5}, v{vT+5}')
        a(f'v_lshrrev_b32 v{vT}, 4, v1')
        a(f'v_and_b32 v{vT+1}, 15, v1')
        a(f'v_lshl_add_u32 v{vT+2}, v{vT+1}, 2, v{vT}')
        a(f's_lshl_b32 {sT0}, {sW}, 11')
        a(f's_add_u32 {sT0}, {sT0}, {L_OB}')
        a(f'v_lshl_add_u32 v{vA0}, v{vT+2}, 2, {sT0}')
        a(f's_mul_i32 {sT0}, {sW}, 144')
        a(f'v_lshl_add_u32 v{vT+7}, v{vT+2}, 1, {sT0}')
        a(f'v_and_b32 v{vT+2}, 7, v1')
        a(f'v_mul_u32_u24 v{vT+2}, 144, v{vT+2}')
        a(f'v_lshl_add_u32 v{vT+6}, v{vT}, 4, v{vT+2}')
        a(f'v_lshlrev_b32 v{vT}, 9, v{vT}')
        a(f'v_bfe_u32 v{vT+2}, v1, 2, 2')
        a(f'v_lshl_add_u32 v{vT}, v{vT+2}, 6, v{vT}')
        a(f'v_lshl_add_u32 v{vT}, v{vT+3}, 3, v{vT}')
        a(f's_and_b32 {sT2}, {sW}, 3')
        a(f's_lshl_b32 {sT0}, {sT2}, 12')
        a(f'v_add_u32 v{vA5}, {sT0}, v{vT}')
        a(f'v_lshrrev_b32 v{vT}, 7, v0')
        a(f'v_lshlrev_b32 v{vT}, 9, v{vT}')
        a(f'v_and_b32 v{vT+2}, 1, v0')
        a(f'v_lshl_add_u32 v{vT}, v{vT+2}, 8, v{vT}')
        a(f'v_bfe_u32 v{vT+2}, v0, 1, 6')
        a(f'v_lshl_add_u32 v{vA1}, v{vT+2}, 2, v{vT}')
        a(f'v_add_u32 v{vA1}, {L_OB}, v{vA1}')
        a(f's_lshl_b32 {sT1}, {sG}, 16')
        a(f's_add_u32 {sT1}, {sT1}, {hex(OBOX)}')
        a(f's_lshl_b32 {sT0}, {sW}, 13')
        a(f's_add_u32 {sT0}, {sT0}, {sT1}')
        a(f's_lshl_b32 {sOFF}, {sJ}, 8')
        a(f's_add_u32 {sT0}, {sT0}, {sOFF}')
        a(f'v_lshl_add_u32 v{vA2}, v1, 2, {sT0}')
        a(f's_lshr_b32 {sOFF}, {sJ}, 2')
        a(f's_lshl_b32 {sT0}, {sOFF}, 13')
        a(f's_add_u32 {sT0}, {sT0}, {sT1}')
        a(f'v_lshl_add_u32 v{vA3}, v0, 4, {sT0}')
        a(f's_and_b32 {sT0}, {sJ}, 3')
        a(f's_lshl_b32 {sT0}, {sT0}, 2')
        a(f's_add_u32 {sT0}, {sT0}, {sT2}')
        a(f's_lshl_b32 {sT0}, {sT0}, 6')
        a(f's_lshl_b32 {sT1}, {sG}, 3')
        a(f's_add_u32 {sT0}, {sT0}, {sT1}')
        a(f's_add_u32 {sT0}, {sT0}, {sOFF}')
        a(f's_lshl_b32 {sT0}, {sT0}, 7')
        a(f's_add_u32 {sT0}, {sT0}, {hex(SBOX)}')
        a(f'v_lshrrev_b32 v{vT}, 5, v1')
        a(f'v_lshlrev_b32 v{vT}, 29, v{vT}')
        a(f'v_lshl_add_u32 v{vT}, v1, 2, v{vT}')
        a(f'v_add_u32 v{vA4}, {sT0}, v{vT}')
        a(f'v_mov_b32 v{vT+4}, {sTAG}')
        a('s_waitcnt lgkmcnt(0)')
        a(f'v_readfirstlane_b32 {sLOC}, v{vT+5}')
        a(f's_cmp_ge_u32 {sW}, 4')
        a('s_cbranch_scc1 L_D')
        for b in range(4):
            a(f'v_mov_b32 v{AM[b]}, 0')
            a(f'v_mov_b32 v{AM[b]+1}, 0')
        while self.tau < 15:
            self.pv_group()
        for b in range(4):
            for k in range(2):
                ctl = f'row_ror:{4*(b+1)}' if b < 3 else 'quad_perm:[0,1,2,3]'
                a(f'v_mov_b32_dpp v{AM[b]+k}, v{58+k} {ctl} row_mask:0xf bank_mask:{hex(1 << b)}')
        for e in range(4):
            for h in range(4):
                a(f'v_permlane32_swap_b32 v{vAcc+4*e+h}, v{vAcc+4*(e+4)+h}')
        for e in range(4):
            for h in range(4):
                a(f'v_add_f32 v{vAcc+4*e+h}, v{vAcc+4*e+h}, v{vAcc+4*(e+4)+h}')
        for e in range(2):
            for h in range(4):
                a(f'v_permlane16_swap_b32 v{vAcc+4*e+h}, v{vAcc+4*(e+2)+h}')
        for e in range(2):
            for h in range(4):
                a(f'v_add_f32 v{vZ+4*e+h}, v{vAcc+4*e+h}, v{vAcc+4*(e+2)+h}')
        for pair in range(2):
            v0, v1 = self.slot(64 + 60 + 2 * pair), self.slot(64 + 61 + 2 * pair)
            self.need(f'V{61+2*pair}')
            for e in range(8):
                a(f'v_perm_b32 v{vD+2*e+pair}, v{v1+(e>>1)}, v{v0+(e>>1)}, {sPHI if e & 1 else sPLO}')
        for e in range(8):
            z = vZ + 4 * (e & 1)
            a(f'v_mfma_f32_16x16x16_bf16 v[{z}:{z+3}], v[{AM[e>>1]}:{AM[e>>1]+1}], v[{vD+2*e}:{vD+2*e+1}], v[{z}:{z+3}]')
        self.stamp('pvdone')
        a('s_nop 7')
        for h in range(4):
            a(f'ds_write2st64_b32 v{vA0}, v{vZ+h}, v{vZ+4+h} offset0:{2*h} offset1:{2*h+1}')
        self.lab('L_D')
        if 'notail' in self.exp:
            a('s_branch L_exit')
        self.barrier()
        for k in range(2):
            a(f'ds_read2st64_b32 v[{vD+2*k}:{vD+2*k+1}], v{vA1} offset0:{16*k} offset1:{16*k+8}')
        a(f's_cmp_eq_u32 {sLOC}, 1')
        a('s_waitcnt lgkmcnt(0)')
        a(f'v_add_f32 v{vD}, v{vD}, v{vD+2}')
        a(f'v_add_f32 v{vD+1}, v{vD+1}, v{vD+3}')
        a(f'v_add_f32 v{vT}, v{vD}, v{vD+1}')
        a(f'v_perm_b32 v{vT}, v{vT}, v{vTB}, {sSEL}')
        if self.local:
            a('s_cbranch_scc0 L_far')
            a(f'buffer_store_dword v{vT}, v{vA2}, {SRD_WS}, 0 offen {self.ospol}')
            self.lab('L_near')
        else:
            a(f'buffer_store_dword v{vT}, v{vA2}, {SRD_WS}, 0 offen sc1')
        self.stamp('opub')

        ol = [f'buffer_load_dwordx4 v[{SG}:{SG+3}], v{vA3}, {SRD_WS}, 0 offen {self.olpol}']
        a(ol[0])
        a('s_waitcnt vmcnt(0)')
        for t2 in range(2):
            for kh in range(2):
                for m in range(2):
                    r = vW + 8 * t2 + 4 * kh + 2 * m
                    a(f'ds_read_b64_tr_b16 v[{r}:{r+1}], v{vA5} offset:{L_WO + kh*2048 + m*256 + t2*32}')
        if self.pp1:
            R = self.ppoll(lambda r: f'buffer_load_dwordx4 v[{r}:{r+3}], v{vA3}, {SRD_WS}, 0 offen {self.olpol}',
                           lambda r: self.check_quads([r], vT + 4, vT + 1, vT + 2, vT + 3), SG, self.pp1[0], self.pp1[1], True)
        else:
            self.poll(ol, lambda: self.check_quads([SG], vT + 4, vT + 1, vT + 2, vT + 3), True, sleep=self.sl1)
            R = SG
        self.stamp('goto')
        for k in range(4):
            a(f'v_mul_f32 v{R+k}, v{R+k}, v{vWt}')
        self.quad_reduce(R, 16)
        a(f'v_cvt_pk_bf16_f32 v{R}, v{R}, v{R}')
        a(f'ds_write_b16 v{vT+7}, v{R} offset:{L_A}')
        SG = 120
        self.barrier()
        a(f's_cmp_lt_u32 {sW}, 4')
        a('s_cbranch_scc1 L_hop2')
        a(f'ds_read_b128 v[{vD}:{vD+3}], v{vT+6} offset:{L_A}')
        a(f'ds_read_b128 v[{vD+4}:{vD+7}], v{vT+6} offset:{L_A+64}')
        a('s_waitcnt lgkmcnt(1)')
        a(f'v_mfma_f32_16x16x32_bf16 v[{vD+8}:{vD+11}], v[{vD}:{vD+3}], v[{vW}:{vW+3}], 0')
        a(f'v_mfma_f32_16x16x32_bf16 v[{vD+12}:{vD+15}], v[{vD}:{vD+3}], v[{vW+8}:{vW+11}], 0')
        a('s_waitcnt lgkmcnt(0)')
        a(f'v_mfma_f32_16x16x32_bf16 v[{vD+8}:{vD+11}], v[{vD+4}:{vD+7}], v[{vW+4}:{vW+7}], v[{vD+8}:{vD+11}]')
        a(f'v_mfma_f32_16x16x32_bf16 v[{vD+12}:{vD+15}], v[{vD+4}:{vD+7}], v[{vW+12}:{vW+15}], v[{vD+12}:{vD+15}]')
        a('s_nop 6')
        a(f'v_add_f32 v{vD+8}, v{vD+8}, v{vD+9}')
        a(f'v_add_f32 v{vD+10}, v{vD+10}, v{vD+11}')
        a(f'v_add_f32 v{vD+12}, v{vD+12}, v{vD+13}')
        a(f'v_add_f32 v{vD+14}, v{vD+14}, v{vD+15}')
        a(f'v_add_f32 v{vD+8}, v{vD+8}, v{vD+10}')
        a(f'v_add_f32 v{vD+12}, v{vD+12}, v{vD+14}')
        a('s_nop 1')
        a(f'v_permlane16_swap_b32 v{vD+8}, v{vD+12}')
        a(f'v_add_f32 v{vT}, v{vD+8}, v{vD+12}')
        a(f'v_perm_b32 v{vT}, v{vT}, v{vTB}, {sSEL}')
        if 'execst' in self.exp:
            a('s_mov_b32 exec_hi, 0')
        a(f'buffer_store_dword v{vT}, v{vA4}, {SRD_WS}, 0 offen {self.spol}')
        if 'execst' in self.exp:
            a('s_mov_b32 exec_hi, -1')
        self.stamp('spub')
        self.lab('L_hop2')
        if 'h2bar' in self.exp:
            a('s_barrier')
        if 'h2sleep' in self.exp:
            a('s_sleep 8')
        if self.diag:
            i = self.stamp_names.index(self.diag[0]) if self.diag[0] in self.stamp_names else 0
            a(f's_cmp_lg_u32 {sW}, 0')
            a('s_cbranch_scc1 L_nodg')
            a('s_waitcnt lgkmcnt(0)')
            a(f'v_mov_b32 v{vD}, s{STAMP_BASE}')
            a(f'v_mov_b32 v{vD+1}, s{STAMP_BASE+2*i}')
            a(f's_lshl_b32 {sT0}, s2, 3')
            a(f's_add_u32 {sT0}, {sT0}, {hex(STAMP)}')
            a(f'v_mov_b32 v{vD+2}, {sT0}')
            a('s_mov_b64 exec, 1')
            a(f'buffer_store_dwordx2 v[{vD}:{vD+1}], v{vD+2}, {SRD_WS}, 0 offen sc1')
            a('s_mov_b64 exec, -1')
            self.lab('L_nodg')

        a(f's_cmp_ge_u32 s2, {NCONS}')
        a('s_cbranch_scc1 L_exit')
        nl, lpp = 1, 8
        a(f's_lshl_b32 {sT0}, s2, 13')
        if emu:
            nl = 1
            a(f's_mul_i32 {sT0}, s2, {nprod * 128}')
        a(f's_add_u32 {sT0}, {sT0}, {hex(SBOX)}')
        a(f'v_lshl_add_u32 v{vA0}, v0, 4, {sT0}')
        if emu and npw == 1:
            a(f'v_and_b32 v{vA0}, 255, v0')
            a(f'v_lshl_add_u32 v{vA0}, v{vA0}, 4, {sT0}')
        mk = lambda r: f'buffer_load_dwordx4 v[{r}:{r+3}], v{vA0}, {SRD_WS}, 0 offen {self.lpol}'
        P = self.pp2
        a(mk(SG))
        a(f'v_mov_b32 v{vA1}, {sTAG}')
        a(f'v_and_b32 v{vT+1}, 7, v1')
        a(f'v_lshlrev_b32 v{vT+1}, 7, v{vT+1}')
        a(f'v_lshrrev_b32 v{vT+2}, 4, v1')
        a(f'v_lshlrev_b32 v{vT+2}, 5, v{vT+2}')
        a(f's_lshl_b32 {sT0}, {sW}, 2')
        a(f'v_add3_u32 v{vA2}, v{vT+1}, v{vT+2}, {sT0}')
        a(f'v_and_b32 v{vT+1}, 31, v1')
        a(f'v_lshlrev_b32 v{vA3}, 5, v{vT+1}')
        a(f'v_lshlrev_b32 v{vT+2}, 2, v{vT+1}')
        a(f'ds_read_b32 v{vA4}, v{vT+2} offset:{L_GB}')
        a(f'ds_read_b32 v{vA5}, v{vT+2} offset:{L_XB}')
        if P > 2:
            a(mk(SG + 4))
        a(f's_lshl_b32 {sT0}, s2, 6')
        a(f'v_lshl_add_u32 v{vWt}, v{vT+1}, 1, {sT0}')
        a(f'v_mov_b32 v{vT+5}, {L_CT}')
        a(f'v_mov_b32 v{vT+6}, 1')
        if P > 1:
            SG = self.ppoll(mk, lambda r: self.check_quads([r], vA1, vT + 1, vT + 2, vT + 3), SG, P, 2 if P > 2 else 1)
        else:
            a('s_waitcnt vmcnt(0)')
            self.poll([mk(SG)], lambda: self.check_quads([SG], vA1, vT + 1, vT + 2, vT + 3), True)
        self.stamp('gots')
        self.quad_reduce(SG, 8)
        if self.lastwave:
            a(f'ds_write_b32 v{vA2}, v{SG} offset:{L_S2}')
            a('s_mov_b64 exec, 1')
            a(f'ds_add_rtn_u32 v{vT+6}, v{vT+5}, v{vT+6}')
            a('s_mov_b32 exec_lo, -1')
            a(f'ds_read_b128 v[{vD}:{vD+3}], v{vA3} offset:{L_S2}')
            a(f'ds_read_b128 v[{vD+4}:{vD+7}], v{vA3} offset:{L_S2+16}')
            a('s_waitcnt lgkmcnt(0)')
            a(f'v_readfirstlane_b32 {sT0}, v{vT+6}')
            self.sum8(vT, vD)
            a(f's_cmp_lg_u32 {sT0}, 7')
            a('s_cbranch_scc1 L_exit0')
        else:
            a(f'ds_write_b32 v{vA2}, v{SG} offset:{L_S2}')
            self.barrier()
            a(f's_cmp_lg_u32 {sW}, 0')
            a('s_cbranch_scc1 L_exit')
            a(f'ds_read_b128 v[{vD}:{vD+3}], v{vA3} offset:{L_S2}')
            a(f'ds_read_b128 v[{vD+4}:{vD+7}], v{vA3} offset:{L_S2+16}')
            a('s_mov_b32 exec_hi, 0')
            a('s_waitcnt lgkmcnt(0)')
            self.sum8(vT, vD)
        self.bf16r(vT, vT)
        a(f'v_mul_f32 v{vT}, v{vT}, v{vA4}')
        self.bf16r(vT, vT)
        a(f'v_add_f32 v{vT}, v{vT}, v{vA5}')
        a(f'v_cvt_pk_bf16_f32 v{vT}, v{vT}, v{vT}')
        a(f'buffer_store_short v{vT}, v{vWt}, {SRD_OUT}, 0 offen')
        a('s_mov_b64 exec, -1')
        a('s_cmp_lg_u32 s2, 0')
        a('s_cbranch_scc1 L_exit')
        if self.diag:
            a('s_memrealtime s[98:99]')
            a('s_sleep 40')
            a(f'v_lshlrev_b32 v{vT}, 5, v1')
            a(f'v_add_u32 v{vT}, {hex(STAMP)}, v{vT}')
            a(f'buffer_load_dwordx4 v[{vD}:{vD+3}], v{vT}, {SRD_WS}, 0 offen sc1')
            a(f'buffer_load_dwordx4 v[{vD+4}:{vD+7}], v{vT}, {SRD_WS}, 0 offen offset:16 sc1')
            a('s_waitcnt vmcnt(0) lgkmcnt(0)')
            for k in range(8):
                a(f'v_sub_u32 v{vD+k}, s98, v{vD+k}')
            a(f'v_max3_u32 v{vT}, v{vD}, v{vD+2}, v{vD+4}')
            a(f'v_max_u32 v{vT}, v{vT}, v{vD+6}')
            self.inrow_allreduce('v_max_u32', vT, (8, 4, 2, 1))
            self.rows_allreduce('v_max_u32', vT, vT + 2)
            op = {'max': 'v_min_u32', 'min': 'v_max_u32', 'mean': 'v_add_u32'}[self.diag[1]]
            a(f'{op} v{vD+1}, v{vD+1}, v{vD+3}')
            a(f'{op} v{vD+5}, v{vD+5}, v{vD+7}')
            a(f'{op} v{vT+1}, v{vD+1}, v{vD+5}')
            self.inrow_allreduce(op, vT + 1, (8, 4, 2, 1))
            self.rows_allreduce(op, vT + 1, vT + 2)
            if self.diag[1] == 'mean':
                a(f'v_lshrrev_b32 v{vT+1}, 8, v{vT+1}')
            if self.diag[0] == 'end':
                a(f'v_mov_b32 v{vT+1}, 0')
            if self.diag[0] == 'none':
                a(f'v_mov_b32 v{vT+1}, v{vT}')
            a(f'v_sub_u32 v{vT}, v{vT}, v{vT+1}')
            a('s_nop 1')
            a(f'v_readfirstlane_b32 s96, v{vT}')
            a('s_min_u32 s96, s96, 20000')
            a('s_lshl_b32 s96, s96, 2')
            a('s_add_u32 s96, s96, 200')
            self.lab('L_spin')
            a('s_memrealtime s[94:95]')
            a('s_waitcnt lgkmcnt(0)')
            a('s_sub_u32 s94, s94, s98')
            a('s_cmp_lt_u32 s94, s96')
            a('s_cbranch_scc1 L_spin')
        a(f'v_mov_b32 v{vT}, 0')
        a('s_mov_b64 exec, 1')
        a(f'buffer_store_dword v{vA1}, v{vT}, {SRD_WS}, 0 offen sc1')
        a('s_mov_b64 exec, -1')
        a('s_branch L_exit')

    def far_store(self):
        self.lab('L_far')
        self.a(f'buffer_store_dword v60, v70, {SRD_WS}, 0 offen sc1')
        self.a('s_branch L_near')

    def helpers(self):
        a = self.a
        CPC = self.CPC
        NCONS = 512 // CPC
        lg = int(math.log2(CPC))
        vLane = 1
        vT = 4
        vX = 16
        vA = 24
        vB = 32
        vCol, vTC = 40, 41
        vW = 112
        vTag, vTB = 2, 3
        self.lab('L_helper')
        if self.split:
            a('s_load_dwordx8 s[20:27], s[0:1], 64')
        if self.prio:
            a(f's_setprio {self.prio}')
        a('s_waitcnt lgkmcnt(0)')
        self.stamp('_hstart')
        a(f's_load_dword {sTAG}, s[26:27], 0')
        self.srd(SRD_WS, 26, 256 << 20)
        self.srd(SRD_X, 4, 1024)
        a(f's_cmp_ge_u32 {sW}, 6')
        a('s_cbranch_scc1 L_h23')
        self.vm = []
        sRB, sCB, sPUB = 's60', 's61', 's3'
        a(f's_and_b32 {sRB}, {sJ}, 3')
        a(f's_lshr_b32 {sCB}, {sJ}, 2')
        a(f's_cmp_eq_u32 {sW}, 4')
        a('s_cbranch_scc0 L_h1_setup')
        a(f's_lshl_b32 {sPUB}, {sG}, 13')
        a(f's_lshl_b32 {sT0}, {sRB}, 11')
        a(f's_add_u32 {sPUB}, {sPUB}, {sT0}')
        a(f's_add_u32 {sPUB}, {sPUB}, {hex(QBOX)}')
        a('s_branch L_tile')
        self.lab('L_h1_setup')
        a(f's_cmp_ge_u32 {sJ}, 28')
        a('s_cbranch_scc1 L_h23')
        a(f's_lshl_b32 {sCB}, {sCB}, 3')
        a(f's_add_u32 {sCB}, {sCB}, {sG}')
        a(f's_sub_u32 {sT0}, {sCB}, 28')
        a(f's_cmp_ge_u32 {sCB}, 28')
        a(f's_cselect_b32 {sCB}, {sT0}, {sCB}')
        a(f's_cselect_b32 {sPUB}, {hex(4*7168)}, 0')
        a(f's_add_u32 {sPUB}, {sPUB}, {hex(HBOX)}')
        a(f's_mul_i32 {sT0}, {sRB}, 7168')
        a(f's_add_u32 {sPUB}, {sPUB}, {sT0}')
        self.lab('L_tile')
        a(f'v_lshlrev_b32 v{vT}, 4, v{vLane}')
        self.load('x16', f'buffer_load_dwordx4 v[{vX}:{vX+3}], v{vT}, {SRD_X}, 0 offen')
        a(f's_lshl_b32 {sT0}, {sCB}, 8')
        a(f's_add_u32 {sPUB}, {sPUB}, {sT0}')
        a(f'v_lshrrev_b32 v{vT+4}, 3, v{vLane}')
        a(f'v_lshlrev_b32 v{vT+1}, 4, v{vT+4}')
        a(f's_lshl_b32 {sT0}, {sRB}, 7')
        a(f'v_add_u32 v{vT+1}, {sT0}, v{vT+1}')
        a(f's_sub_u32 {sT0}, {sW}, 4')
        a(f's_lshl_b32 {sT1}, {sT0}, 14')
        a(f'v_add_u32 v{vT+2}, {sT1}, v{vT}')
        a(f's_lshl_b32 {sT0}, {sT0}, 10')
        a(f'v_add_u32 v{vT}, {sT0}, v{vT}')
        a(f'v_lshl_add_u32 v{vT+1}, v{vT+1}, 1, {sT0}')
        a(f'v_and_b32 v{vT+3}, 7, v{vLane}')
        a(f'v_lshlrev_b32 v{vT+3}, 5, v{vT+3}')
        a(f'v_lshl_add_u32 v{vCol}, v{vT+4}, 2, v{vT+3}')
        a(f'v_add_u32 v{vT+3}, {sPUB}, v{vCol}')
        a(f'v_and_b32 v{vT+4}, 3, v{vT+4}')
        a(f'v_lshlrev_b32 v{vT+4}, 3, v{vT+4}')
        a(f's_mov_b32 {sPLO}, 0x05040100')
        a(f's_mov_b32 {sPHI}, 0x07060302')
        self.wait('x16')
        self.stamp('_x16')
        for k in range(4):
            a(f'v_lshlrev_b32 v{vA+2*k}, 16, v{vX+k}')
            a(f'v_and_b32 v{vA+2*k+1}, 0xffff0000, v{vX+k}')
        m, s2, t = vT + 5, vT + 6, vT + 7
        a(f'v_add_f32 v{m}, v{vA}, v{vA+1}')
        for k in range(2, 8):
            a(f'v_add_f32 v{m}, v{m}, v{vA+k}')
        self.inrow_allreduce('v_add_f32', m, (8, 4, 2, 1))
        self.rows_allreduce('v_add_f32', m, t)
        a(f'v_mul_f32 v{m}, {hex(f2u(1/512.))}, v{m}')
        for k in range(8):
            a(f'v_sub_f32 v{vB+k}, v{vA+k}, v{m}')
        a(f'v_mul_f32 v{s2}, v{vB}, v{vB}')
        for k in range(1, 8):
            a(f'v_fmac_f32 v{s2}, v{vB+k}, v{vB+k}')
        self.inrow_allreduce('v_add_f32', s2, (8, 4, 2, 1))
        self.rows_allreduce('v_add_f32', s2, t)
        a(f'v_mul_f32 v{s2}, {hex(f2u(1/512.))}, v{s2}')
        self.bf16r(m, m)
        self.bf16r(s2, s2)
        a(f'v_add_f32 v{s2}, {hex(f2u(1e-5))}, v{s2}')
        self.bf16r(s2, s2)
        a(f'v_sqrt_f32 v{s2}, v{s2}')
        for k in range(8):
            a(f'v_sub_f32 v{vA+k}, v{vA+k}, v{m}')
        self.bf16r(s2, s2)
        a(f'v_rcp_f32 v{s2}, v{s2}')
        for k in range(4):
            a(f'v_cvt_pk_bf16_f32 v{vX+k}, v{vA+2*k}, v{vA+2*k+1}')
        for k in range(4):
            a(f'v_lshlrev_b32 v{vA+2*k}, 16, v{vX+k}')
            a(f'v_and_b32 v{vA+2*k+1}, 0xffff0000, v{vX+k}')
        for k in range(8):
            a(f'v_mul_f32 v{vA+k}, v{vA+k}, v{s2}')
        for k in range(4):
            a(f'v_cvt_pk_bf16_f32 v{vX+k}, v{vA+2*k}, v{vA+2*k+1}')
        a(f'ds_write_b128 v{vT}, v[{vX}:{vX+3}] offset:{L_XN}')
        a('s_waitcnt lgkmcnt(0)')
        a(f'ds_read_b128 v[{vX}:{vX+3}], v{vT+1} offset:{L_XN}')
        a(f'ds_read_b128 v[{vX+4}:{vX+7}], v{vT+1} offset:{L_XN+16}')
        self.make_tag()
        a(f'v_lshrrev_b32 v{vTC}, v{vT+4}, {sTAG}')
        a(f's_mov_b32 {sSEL}, 0x07060500')
        self.stamp('_ln')
        self.barrier()
        a(f's_cmp_eq_u32 {sW}, 4')
        a('s_cbranch_scc1 L_tile2')
        a('s_barrier')
        self.lab('L_tile2')
        for u in range(16):
            a(f'ds_read_b128 v[{vW+4*u}:{vW+4*u+3}], v{vT+2} offset:{L_TL+1024*u}')
        self.tile_dot(8, vW, vX, vA, vB, lambda p: a(f's_waitcnt lgkmcnt({min(15, 14-2*p)})'))
        a(f'v_perm_b32 v{vA+4}, v{vA+4}, v{vTC}, {sSEL}')
        self.stamp('tilepub')
        a(f's_cmp_eq_u32 {sW}, 4')
        a('s_cbranch_scc0 L_h1')
        if 'x_noq' in self.exp:
            for b in 'GABCM':
                a('s_barrier')
            a('s_branch L_Z')
        sXC, sNEAR, sN = 's11', 's10', 's9'
        vQ, vQA = vA + 4, vA + 5
        a(f's_getreg_b32 {sXC}, hwreg(HW_REG_XCC_ID, 0, 4)')
        a(f's_lshl_b32 {sXC}, {sXC}, 8')
        a(f'v_cmp_eq_u32 vcc, 0, v{vT+4}')
        a(f'v_mov_b32 v{vT+5}, 0xf00')
        a(f'v_mov_b32 v{vQA}, v{vT+3}')
        a(f'v_cndmask_b32 v{vT+5}, 0, v{vT+5}, vcc')
        a(f'v_bfi_b32 v{vQ}, v{vT+5}, {sXC}, v{vQ}')
        far = f'buffer_store_dword v{vQ}, v{vQA}, {SRD_WS}, 0 offen sc1'
        a(f'buffer_store_dword v{vQ}, v{vQA}, {SRD_WS}, 0 offen' if self.local else far)

        a(f's_mov_b32 {sSA}, 0x0c0c0400')
        a(f's_mov_b32 {sSB}, 0x04000c0c')
        a(f'v_mov_b32 v{vTag}, {sTAG}')
        a(f's_lshl_b32 {sT0}, {sG}, 13')
        a(f's_add_u32 {sT0}, {sT0}, {hex(QBOX)}')
        a(f'v_lshrrev_b32 v{vT}, 5, v{vLane}')
        a(f'v_and_b32 v{vT+1}, 31, v{vLane}')
        a(f'v_lshlrev_b32 v{vT+2}, 11, v{vT}')
        a(f'v_lshlrev_b32 v{vT+3}, 4, v{vT+1}')
        a(f'v_add3_u32 v{vT+2}, v{vT+2}, v{vT+3}, {sT0}')
        a(f's_movk_i32 {sT2}, 0x1000')
        a(f'v_lshrrev_b32 v{vT+1}, 1, v{vT+1}')
        a(f'v_lshlrev_b32 v{vT+1}, 6, v{vT+1}')
        a(f'v_and_b32 v{vT+3}, 1, v{vLane}')
        a(f'v_lshlrev_b32 v{vT+3}, 3, v{vT+3}')
        a(f'v_lshl_add_u32 v{vT+1}, v{vT}, 2, v{vT+1}')
        a(f'v_add_u32 v{vT+1}, v{vT+1}, v{vT+3}')
        ql = [f'buffer_load_dwordx4 v[{vW+8*h+4*b}:{vW+8*h+4*b+3}], v{vT+2}, {SRD_WS}, {sT2 if b else 0} offen offset:{512*h} sc1'
              for h in range(4) for b in range(2)]
        a(f's_mov_b32 {sN}, {self.qtry}')
        ql = [f's_sub_u32 {sN}, {sN}, 1', f's_cmp_lg_u32 {sN}, 0', 's_cbranch_scc1 L_qtry', far, 'L_qtry:'] + ql
        a('s_barrier')
        self.poll(ql, lambda: self.check_quads([vW + 4 * i for i in range(8)], vTag, vT + 4, vT + 5, vT + 6))
        a(f'v_xor_b32 v{vT+4}, {sXC}, v{vW}')
        for i in range(1, 8):
            a(f'v_bitop3_b32 v{vT+4}, v{vW+4*i}, {sXC}, v{vT+4} bitop3:0xbe')
        a(f'v_and_b32 v{vT+4}, 0xf00, v{vT+4}')
        a(f'v_cmp_ne_u32 vcc, 0, v{vT+4}')
        a(f'v_mov_b32 v{vT+5}, {L_FL}')
        a('s_cmp_eq_u64 vcc, 0')
        a(f's_cselect_b32 {sNEAR}, {1 if self.local else 0}, 0')
        a('s_cbranch_scc1 L_qnear')
        a(far)
        self.lab('L_qnear')
        a(f'v_mov_b32 v{vT+4}, {sNEAR}')
        a(f'ds_write_b32 v{vT+5}, v{vT+4}')
        self.stamp('gotq')
        for h in range(4):
            for k in range(4):
                a(f'v_add_f32 v{vW+8*h+k}, v{vW+8*h+k}, v{vW+8*h+4+k}')
        for h in range(4):
            a(f'v_permlane32_swap_b32 v{vW+8*h}, v{vW+8*h+2}')
            a(f'v_permlane32_swap_b32 v{vW+8*h+1}, v{vW+8*h+3}')
        for h in range(4):
            a(f'v_add_f32 v{vW+8*h}, v{vW+8*h}, v{vW+8*h+2}')
            a(f'v_add_f32 v{vW+8*h+1}, v{vW+8*h+1}, v{vW+8*h+3}')
            a(f'v_cvt_pk_bf16_f32 v{vW+8*h}, v{vW+8*h}, v{vW+8*h+1}')
            a(f'ds_write_b32 v{vT+1}, v{vW+8*h} offset:{L_BQ+16*h}')
        self.barrier()
        if 'x_noml' in self.exp:
            for b in 'BCM':
                a('s_barrier')
            a('s_branch L_Z')
        a(f'v_and_b32 v{vT}, 3, v{vLane}')
        a(f'v_lshlrev_b32 v{vT}, 4, v{vT}')
        a(f's_lshl_b32 {sT2}, {sG}, 11')
        a(f's_add_u32 {sT2}, {sT2}, {hex(MLBOX)}')
        a(f's_lshl_b32 {sT1}, {sJ}, 4')
        a(f's_add_u32 {sT0}, {sT2}, {sT1}')
        a(f'v_lshl_add_u32 v{vT+1}, v{vT}, 5, {sT0}')
        a(f's_lshr_b32 {sT1}, {sJ}, 3')
        a(f's_lshl_b32 {sT1}, {sT1}, 9')
        a(f's_add_u32 {sT0}, {sT2}, {sT1}')
        a(f'v_and_b32 v{vT+2}, 31, v{vLane}')
        a(f'v_lshlrev_b32 v{vT+3}, 2, v{vT+2}')
        a(f'v_lshl_add_u32 v{vT+2}, v{vT+2}, 4, {sT0}')
        a(f'v_mov_b32 v{vX+2}, {sTAG}')
        a(f'v_mov_b32 v{vX+3}, {sTAG}')
        a(f's_mov_b32 {sC}, {hex(f2u(math.log2(math.e) / math.sqrt(128.0)))}')
        a('s_barrier')
        a(f'ds_read_b128 v[{vA}:{vA+3}], v{vT} offset:{L_MB}')
        a('s_waitcnt lgkmcnt(0)')
        a(f'v_max3_f32 v{vX}, v{vA}, v{vA+1}, v{vA+2}')
        a(f'v_max_f32 v{vX}, v{vX}, v{vA+3}')
        a('s_barrier')
        a(f'ds_read_b128 v[{vA}:{vA+3}], v{vT} offset:{L_LB}')
        a('s_waitcnt lgkmcnt(0)')
        a(f'v_add_f32 v{vA}, v{vA}, v{vA+2}')
        a(f'v_add_f32 v{vA+1}, v{vA+1}, v{vA+3}')
        a(f'v_add_f32 v{vX+1}, v{vA}, v{vA+1}')
        a('s_mov_b64 exec, 0xf')
        a(f's_cmp_eq_u32 {sNEAR}, 1')
        a('s_cbranch_scc1 L_mlnear')
        a(f'buffer_store_dwordx4 v[{vX}:{vX+3}], v{vT+1}, {SRD_WS}, 0 offen sc1')
        a('s_branch L_mlfar')
        self.lab('L_mlnear')
        a(f'buffer_store_dwordx4 v[{vX}:{vX+3}], v{vT+1}, {SRD_WS}, 0 offen')
        self.lab('L_mlfar')
        a('s_mov_b64 exec, -1')
        a('s_barrier')

        def chk_ml():
            a(f'v_xor_b32 v{vT+4}, {sTAG}, v{vB+2}')
            a(f'v_xor_b32 v{vT+5}, {sTAG}, v{vB+3}')
            a(f'v_or_b32 v{vT+4}, v{vT+4}, v{vT+5}')
            a(f'v_cmp_ne_u32 vcc, 0, v{vT+4}')
        self.poll([f'buffer_load_dwordx4 v[{vB}:{vB+3}], v{vT+2}, {SRD_WS}, 0 offen sc1'], chk_ml)
        mx, y, t = vT + 4, vT + 5, vT + 6
        a(f'v_mov_b32 v{mx}, v{vB}')
        self.inrow_allreduce('v_max_f32', mx, (8, 4, 2, 1))
        self.rows_allreduce('v_max_f32', mx, t, do32=False)
        a(f'v_sub_f32 v{mx}, v{vB}, v{mx}')
        a(f'v_mul_f32 v{mx}, {sC}, v{mx}')
        a(f'v_exp_f32 v{mx}, v{mx}')
        a('s_nop 0')
        a(f'v_mul_f32 v{y}, v{mx}, v{vB+1}')
        self.inrow_allreduce('v_add_f32', y, (8, 4, 2, 1))
        self.rows_allreduce('v_add_f32', y, t, do32=False)
        a(f'v_rcp_f32 v{y}, v{y}')
        a('s_nop 0')
        a(f'v_mul_f32 v{mx}, v{mx}, v{y}')
        a(f'ds_write_b32 v{vT+3}, v{mx} offset:{L_WB}')
        self.stamp('mlw')
        a('s_waitcnt lgkmcnt(0)')
        a('s_branch L_Z')

        self.lab('L_h1')
        if 'x_noh' in self.exp:
            for b in 'ABCM':
                a('s_barrier')
            a('s_branch L_Z')
        if 'x_nohp' not in self.exp:
            a(f'buffer_store_dword v{vA+4}, v{vT+3}, {SRD_WS}, 0 offen {self.hspol}')
        self.srd(SRD_B, 20, 1792 * 1024)
        sFI, sRD, sCD = 's8', 's9', 's10'
        a(f's_mul_i32 {sFI}, {sG}, 28')
        a(f's_add_u32 {sFI}, {sFI}, {sJ}')
        a(f's_lshr_b32 {sRD}, {sFI}, 3')
        a(f's_and_b32 {sCD}, {sFI}, 7')
        a(f's_lshl_b32 {sT0}, {sRD}, 16')
        a(f's_lshl_b32 {sT1}, {sCD}, 7')
        a(f's_add_u32 {sT0}, {sT0}, {sT1}')
        a(f'v_lshrrev_b32 v{vT+2}, 3, v{vLane}')
        a(f'v_lshlrev_b32 v{vT}, 13, v{vT+2}')
        a(f'v_lshlrev_b32 v{vT+2}, 4, v{vT+2}')
        a(f'v_and_b32 v{vT+1}, 7, v{vLane}')
        a(f'v_lshlrev_b32 v{vT+1}, 4, v{vT+1}')
        a(f'v_add3_u32 v{vT}, v{vT}, v{vT+1}, {sT0}')
        a(f's_movk_i32 {sT2}, 0x1000')
        for e in range(8):
            if 'x_nowd' not in self.exp:
                a(f'buffer_load_dwordx4 v[{vW+4*e}:{vW+4*e+3}], v{vT}, {SRD_B}, {sT2 if e >= 4 else 0} offen offset:{(e & 3)*1024} {self.wpol}')
                if self.wdpace:
                    a(f's_waitcnt vmcnt({self.wdpace - 1})')
        a(f's_lshl_b32 {sT0}, {sRD}, 8')
        a(f's_add_u32 {sT0}, {sT0}, {hex(HBOX)}')
        a(f'v_lshl_add_u32 v{vT+1}, v{vLane}, 2, {sT0}')
        a(f'v_and_b32 v{vT+3}, 3, v{vLane}')
        a(f'v_lshlrev_b32 v{vT+3}, 3, v{vT+3}')
        a(f'v_lshrrev_b32 v{vTB}, v{vT+3}, {sTAG}')
        a(f'v_lshlrev_b32 v{vT+3}, 1, v{vLane}')
        a(f's_lshl_b32 {sT0}, {sCD}, 13')
        a(f's_lshl_b32 {sT1}, {sRD}, 8')
        a(f's_add_u32 {sT0}, {sT0}, {sT1}')
        a(f's_add_u32 {sT0}, {sT0}, {hex(FBOX)}')
        a(f'v_add_u32 v{vCol}, {sT0}, v{vCol}')
        for b in 'ABC':
            a('s_barrier')
        if 'x_nohg' in self.exp:
            a('s_barrier')
            a('s_branch L_Z')
        hl = []
        for k in range(8):
            if k:
                hl.append(f's_movk_i32 {sT2}, {k*7168 - (0 if k < 4 else 0x7000)}')
            if k == 4:
                hl.append(f'v_add_u32 v{vT+4}, 0x7000, v{vT+1}')
            hl.append(f'buffer_load_dword v{vB+k}, v{vT+1 if k < 4 else vT+4}, {SRD_WS}, {sT2 if k else 0} offen sc1')

        def chk_h():
            a(f'v_xor_b32 v{vT+4}, v{vB}, v{vTB}')
            for k in range(1, 8):
                a(f'v_bitop3_b32 v{vT+4}, v{vB+k}, v{vTB}, v{vT+4} bitop3:0xbe')
            a(f'v_and_b32 v{vT+4}, 0xff, v{vT+4}')
            a(f'v_cmp_ne_u32 vcc, 0, v{vT+4}')
        self.poll(hl, chk_h, sleep=0)
        for b in (vB, vB + 4):
            a(f'v_add_f32 v{b}, v{b}, v{b+1}')
            a(f'v_add_f32 v{b+2}, v{b+2}, v{b+3}')
            a(f'v_add_f32 v{b}, v{b}, v{b+2}')
            self.bf16r(b, b)
        self.silu_bf16(vB + 1, vB, vB + 2)
        a(f'v_mul_f32 v{vB+1}, v{vB+1}, v{vB+4}')
        a(f'v_cvt_pk_bf16_f32 v{vB+1}, v{vB+1}, v{vB+1}')
        a(f'ds_write_b16 v{vT+3}, v{vB+1} offset:{L_HB}')
        a('s_waitcnt lgkmcnt(0)')
        a(f'ds_read_b128 v[{vX}:{vX+3}], v{vT+2} offset:{L_HB}')
        a('s_waitcnt lgkmcnt(0)')
        self.tile_dot(4, vW, vX, vA, vB, lambda p: None)
        a(f'v_perm_b32 v{vA+4}, v{vA+4}, v{vTC}, {sSEL}')
        a(f'buffer_store_dword v{vA+4}, v{vCol}, {SRD_WS}, 0 offen sc1')
        self.stamp('fpub')
        a('s_barrier')
        a('s_branch L_Z')

        self.lab('L_h23')
        if self.tlb:
            a(f's_cmp_lg_u32 {sW}, 7')
            a('s_cbranch_scc1 L_h23b')
            a(f's_and_b32 {sT0}, {sJ}, 3')
            a(f's_lshl_b32 {sT1}, {sT0}, 20')
            a(f's_load_dword s28, s[10:11], {sT1}')
            a(f's_mul_i32 {sT1}, {sT0}, {128*3584}')
            a(f's_load_dword s29, s[16:17], {sT1}')
            a(f's_load_dword s30, s[18:19], {sT1}')
            a(f's_lshl_b32 {sT0}, {sG}, 23')
            a(f's_lshl_b32 {sT1}, {sJ}, 18')
            a(f's_add_u32 {sT0}, {sT0}, {sT1}')
            a(f's_load_dword s31, s[8:9], {sT0}')
            a(f's_lshr_b32 {sT0}, {sT0}, 4')
            a(f's_load_dword s32, s[12:13], {sT0}')
            a('s_load_dword s33, s[20:21], 0')
            a('s_load_dword s34, s[20:21], 0xffffc')
            a('s_load_dword s35, s[22:23], 0')
            self.lab('L_h23b')
        a('s_waitcnt lgkmcnt(0)')
        self.make_tag()
        if self.adapt:
            a(f's_cmp_eq_u32 {sW}, 7')
            a('s_cbranch_scc1 L_h3')
        for b in 'TGABCM':
            a('s_barrier')
        if 'x_noh' in self.exp or 'x_nohg' in self.exp or 'x_nofg' in self.exp:
            a('s_branch L_Z')
        a(f's_cmp_lg_u32 {sW}, 6')
        a('s_cbranch_scc1 L_Z')
        a(f's_cmp_ge_u32 s2, {NCONS}')
        a('s_cbranch_scc1 L_Z')
        lpp = CPC // 4
        ppl = 64 // lpp
        nl = -(-28 // ppl)
        last = (28 - (nl - 1) * ppl) * lpp
        a(f'v_mov_b32 v{vTag}, {sTAG}')
        a(f's_mov_b32 {sSA}, 0x0c0c0400')
        a(f's_mov_b32 {sSB}, 0x04000c0c')
        a(f's_lshr_b32 {sT0}, s2, {6-lg}')
        a(f's_lshl_b32 {sT0}, {sT0}, 13')
        a(f's_and_b32 {sT1}, s2, {64//CPC - 1}')
        a(f's_lshl_b32 {sT1}, {sT1}, {lg+2}')
        a(f's_add_u32 {sT0}, {sT0}, {sT1}')
        a(f's_add_u32 {sT0}, {sT0}, {hex(FBOX)}')
        a(f'v_and_b32 v{vT+1}, {lpp-1}, v{vLane}')
        a(f'v_lshlrev_b32 v{vT+2}, 4, v{vT+1}')
        a(f'v_lshrrev_b32 v{vT}, {lg-2}, v{vLane}')
        a(f'v_lshlrev_b32 v{vT}, 8, v{vT}')
        a(f'v_add3_u32 v{vT}, v{vT}, v{vT+2}, {sT0}')
        a(f'v_lshrrev_b32 v{vT+2}, 4, v{vLane}')
        a(f'v_lshl_add_u32 v{vT+1}, v{vT+1}, 2, v{vT+2}')
        a(f's_lshl_b32 {sT0}, s2, {lg+1}')
        a(f'v_lshl_add_u32 v{vT+2}, v{vT+1}, 1, {sT0}')
        a(f'v_lshlrev_b32 v{vT+1}, 2, v{vT+1}')
        a(f'buffer_load_short_d16_hi v{vT+3}, v{vT+2}, {SRD_X}, 0 offen')
        if self.touch:
            self.srd(SRD_OUT, 22, 1024)
            a(f'buffer_load_short_d16_hi v{vT+7}, v{vT+2}, {SRD_OUT}, 0 offen')
        for k in range(4):
            a(f'v_bfe_u32 v{vW+4*(nl-1)+k}, v{vTag}, {8*k}, 8')
        fl = []
        for u in range(nl):
            off = u * ppl * 256
            if u == nl - 1 and last < 64:
                fl.append(f's_mov_b32 exec_lo, {hex(((1 << last) - 1) & 0xffffffff)}')
                fl.append(f's_mov_b32 exec_hi, {hex(((1 << last) - 1) >> 32)}')
            if off >= 4096:
                fl.append(f's_movk_i32 {sT2}, {hex(off & ~4095)}')
            fl.append(f'buffer_load_dwordx4 v[{vW+4*u}:{vW+4*u+3}], v{vT}, {SRD_WS}, {sT2 if off >= 4096 else 0} offen offset:{off & 4095} sc1')
        fl.append('s_mov_b64 exec, -1')
        self.poll(fl, lambda: self.check_quads([vW + 4 * u for u in range(nl)], vTag, vT + 4, vT + 5, vT + 6), sleep=0)
        for u in range(1, nl):
            for k in range(4):
                a(f'v_add_f32 v{vW+k}, v{vW+k}, v{vW+4*u+k}')
        self.quad_reduce(vW, lpp)
        self.bf16r(vW, vW)
        self.silu_bf16(vT + 4, vW, vT + 5)
        a(f'ds_write_b32 v{vT+1}, v{vT+4} offset:{L_GB}')
        a(f'ds_write_b32 v{vT+1}, v{vT+3} offset:{L_XB}')
        a(f'v_mov_b32 v{vT+4}, {L_CT}')
        a(f'v_mov_b32 v{vT+5}, 0')
        a(f'ds_write_b32 v{vT+4}, v{vT+5}')
        a('s_branch L_Z')
        if self.adapt:
            self.lab('L_h3')
            a(f'v_mov_b32 v{vT}, {L_AD}')
            a(f'v_mov_b32 v{vT+1}, 0')
            a(f'ds_write_b32 v{vT}, v{vT+1}')
            a(f's_lshl_b32 {sT1}, {sG}, 7')
            a(f's_add_u32 {sT1}, {sT1}, {hex(RBOX)}')
            a(f'v_and_b32 v{vT+2}, 31, v1')
            a(f'v_lshl_add_u32 v{vT+2}, v{vT+2}, 2, {sT1}')
            a(f's_lshl_b32 {sT0}, {sJ}, 2')
            a(f's_add_u32 {sT1}, {sT1}, {sT0}')
            a(f'v_mov_b32 v{vT+3}, {sT1}')
            a(f'v_mov_b32 v{vT+4}, {sTAG}')
            a('s_waitcnt lgkmcnt(0)')
            k = 0
            for b in 'TGABCM':
                a('s_barrier')
                if b in self.adapt[2]:
                    a('s_mov_b64 exec, 1')
                    a(f'buffer_store_dword v{vT+4}, v{vT+3}, {SRD_WS}, 0 offen offset:{1024*k}')
                    a('s_mov_b64 exec, -1')
                    a(f'buffer_load_dword v{vT+5}, v{vT+2}, {SRD_WS}, 0 offen offset:{1024*k} sc1')
                    a('s_waitcnt vmcnt(0)')
                    a(f'v_cmp_eq_u32 vcc, v{vT+4}, v{vT+5}')
                    a(f's_bcnt1_i32_b32 {sT0}, vcc_lo')
                    a(f's_cmp_gt_u32 {sT0}, {self.adapt[1]}')
                    a(f's_cselect_b32 {sT0}, 1, 0')
                    a(f'v_mov_b32 v{vT+1}, {sT0}')
                    a(f'ds_write_b32 v{vT}, v{vT+1}')
                    k += 1
            a('s_branch L_Z')


def gen(**kw):
    g = G(**kw)
    s = g.gen()
    return s, g.stamp_names


if __name__ == '__main__':
    kw = eval('dict(' + (sys.argv[2] if len(sys.argv) > 2 else '') + ')')
    s, _ = gen(**kw)
    open(sys.argv[1], 'w').write(s)
```

```python
import math, struct, sys

NAME = 'recurrent_scan__gqa_block_cached__swiglu_ffn__decode_kernel'

HEADER = """; Kernarg layout for this problem (96 bytes, ptrs only, base s[0:1]):
"""


def f2u(x):
    return struct.unpack('<I', struct.pack('<f', x))[0]


QBOX  = 0x010000
HBOX  = 0x020000
MLBOX = 0x030000
OBOX  = 0x080000
FBOX  = 0x040000
SBOX  = 0x100000
RBOX  = 0x038000
STAMP = 0x800000

L_BQ = 0
L_XN = 1024
L_MB = 3072
L_LB = 3200
L_WB = 3312
L_GB = 3440
L_XB = 3568
L_O2 = 3696
L_S2 = 4208
L_CT = 5236
L_AD = 5240
L_FL = 5244
L_HB = 5248
L_A  = 1024
L_OB = 5376
L_WO = 5376 + 16384
L_TL = 5376
LDS_BYTES = L_TL + 2 * 16384

SRD_A, SRD_B, SRD_X, SRD_C, SRD_OUT, SRD_WS = [f's[{b}:{b+3}]' for b in range(28, 52, 4)]
sG, sJ, sW, sTAG, sOFF, sT0, sT1, sT2, sPLO, sPHI, sC, sCNT = [f's{i}' for i in range(52, 64)]
sL2E, sSEL, sSA, sSB, sLOC = 's3', 's64', 's65', 's66', 's67'
STAMP_BASE = 68
NVGPR = 256
RING = 44
RING0 = NVGPR - 4 * RING


class G:
    def __init__(self, Ds=((0, 7), (16, 5), (104, 8)), pol='nt', wpol='nt', opol='nt', CPC=32, stamps=False, kfirst=1, nG=18, nA=44, nM=44,
                 spin=200000, padk=7, prio=0, sl1=0, sl2=0, sorder=False, spol='sc1', lpol='sc1', ospol='', olpol='sc1', local=True, touch=False, tlb=False, diag=None, pp1=None, pp2=1, lastwave=True, split=False, adapt=None, wavefin=False, qtry=4, hspol='sc1', wdpace=0, qspol='sc1', mspol='sc1', exp=()):
        self.__dict__.update(locals())
        if diag:
            self.stamps = (diag[0],)
        self.L = []
        self.vm = []
        self.nlab = 0
        self.stamp_names = []
        self.padding = False
        self.npad = 0
        self.since_pad = 0

    def a(self, s):
        self.L.append('    ' + s)
        if self.padding:
            self.since_pad += 1
            if self.since_pad >= self.padk:
                self.pad()

    def pad(self):
        self.L.append(f'L_pad_{self.npad}:')
        self.L.append(f'    s_cbranch_execz L_pad_{self.npad+1}')
        self.npad += 1
        self.since_pad = 0

    def lab(self, s):
        self.L.append(s + ':')

    def newlab(self, p):
        self.nlab += 1
        return f'L_{p}_{self.nlab}'

    def load(self, name, text):
        self.a(text)
        self.vm.append(name)

    def wait(self, name):
        n = len(self.vm) - 1 - self.vm.index(name)
        assert n <= 63
        self.a(f's_waitcnt vmcnt({n})')

    def stamp(self, name):
        if not self.stamps:
            return
        if self.stamps is True:
            if name.startswith('_'):
                return
        elif name not in self.stamps and name not in ('start', 'end'):
            return
        i = len(self.stamp_names)
        assert STAMP_BASE + 2 * i + 1 <= 101
        self.a(f's_memrealtime s[{STAMP_BASE+2*i}:{STAMP_BASE+2*i+1}]')
        self.stamp_names.append(name)

    def dpp(self, op, d, s0, s1, ctl, bank=0xf):
        self.a(f'{op}_dpp v{d}, v{s0}, v{s1} {ctl} row_mask:0xf bank_mask:{hex(bank)}')

    def rows_allreduce(self, op, v, t, do16=True, do32=True):
        if do16:
            self.a(f'v_mov_b32 v{t}, v{v}')
            self.a('s_nop 1')
            self.a(f'v_permlane16_swap_b32 v{v}, v{t}')
            self.a(f'{op} v{v}, v{v}, v{t}')
        if do32:
            self.a(f'v_mov_b32 v{t}, v{v}')
            self.a('s_nop 1')
            self.a(f'v_permlane32_swap_b32 v{v}, v{t}')
            self.a(f'{op} v{v}, v{v}, v{t}')

    def inrow_allreduce(self, op, v, rots):
        for r in rots:
            self.a('s_nop 1')
            self.dpp(op, v, v, v, f'row_ror:{r}')

    def bf16r(self, d, s):
        self.a(f'v_cvt_pk_bf16_f32 v{d}, v{s}, v{s}')
        self.a(f'v_and_b32 v{d}, 0xffff0000, v{d}')

    def sum8(self, d, b):
        for k in range(4):
            self.a(f'v_add_f32 v{b+k}, v{b+k}, v{b+4+k}')
        self.a(f'v_add_f32 v{b}, v{b}, v{b+2}')
        self.a(f'v_add_f32 v{b+1}, v{b+1}, v{b+3}')
        self.a(f'v_add_f32 v{d}, v{b}, v{b+1}')

    def max8(self, d, b, t):
        self.a(f'v_max3_f32 v{d}, v{b}, v{b+1}, v{b+2}')
        self.a(f'v_max3_f32 v{t}, v{b+3}, v{b+4}, v{b+5}')
        self.a(f'v_max3_f32 v{d}, v{d}, v{b+6}, v{b+7}')
        self.a(f'v_max_f32 v{d}, v{d}, v{t}')

    def silu_bf16(self, d, x, t):
        self.a(f'v_mul_f32 v{t}, {hex(f2u(math.log2(math.e)))}, v{x}')
        self.a(f'v_exp_f32 v{t}, -v{t}')
        self.a('s_nop 0')
        self.a(f'v_add_f32 v{t}, 1.0, v{t}')
        self.a(f'v_rcp_f32 v{t}, v{t}')
        self.a('s_nop 0')
        self.a(f'v_mul_f32 v{t}, v{x}, v{t}')
        self.bf16r(d, t)

    def make_tag(self):
        self.a(f's_and_b32 {sT0}, {sTAG}, 0x7f7f7f7f')
        self.a(f's_add_u32 {sT0}, {sT0}, 0x47611b35')
        self.a(f's_and_b32 {sTAG}, {sTAG}, 0x80808080')
        self.a(f's_xor_b32 {sTAG}, {sTAG}, {sT0}')

    def check_quads(self, quads, vtag, t0, t1, t2):
        for i, q in enumerate(quads):
            self.a(f'v_perm_b32 v{t0}, v{q+1}, v{q}, {sSA}')
            self.a(f'v_perm_b32 v{t1}, v{q+3}, v{q+2}, {sSB}')
            if i == 0:
                self.a(f'v_bitop3_b32 v{t2}, v{t0}, v{t1}, v{vtag} bitop3:0x56')
            else:
                self.a(f'v_bitop3_b32 v{t0}, v{t0}, v{t1}, v{vtag} bitop3:0x56')
                self.a(f'v_or_b32 v{t2}, v{t2}, v{t0}')
        self.a(f'v_cmp_ne_u32 vcc, 0, v{t2}')

    def poll(self, loads, check, first_issued=False, sleep=0):
        again, done = self.newlab('again'), self.newlab('done')
        self.a(f's_mov_b32 {sCNT}, {self.spin}')
        if first_issued:
            check()
            self.a(f's_cbranch_vccz {done}')
        first = None
        if sleep and not first_issued:
            first = self.newlab('first')
            self.a(f's_branch {first}')
        self.lab(again)
        if sleep:
            self.a(f's_sleep {sleep}')
        if first:
            self.lab(first)
        for x in loads:
            self.a(x)
        self.a(f's_sub_u32 {sCNT}, {sCNT}, 1')
        self.a('s_waitcnt vmcnt(0)')
        self.a(f's_cbranch_scc1 {done}')
        check()
        self.a(f's_cbranch_vccnz {again}')
        self.lab(done)

    def ppoll(self, mk, check, base, P, preissued, first_done=False):
        a = self.a
        done = self.newlab('pdone')
        hit = [self.newlab('phit') for _ in range(P)]
        again = self.newlab('pagain')
        a(f's_mov_b32 {sCNT}, {self.spin}')
        if first_done:
            check(base)
            a(f's_cbranch_vccz {done}')
        for b in range(P - 1):
            if b >= preissued:
                a(mk(base + 4 * b))
        self.lab(again)
        for b in range(P):
            a(mk(base + 4 * ((b + P - 1) % P)))
            a(f's_waitcnt vmcnt({P-1})')
            check(base + 4 * b)
            a(f's_cbranch_vccz {hit[b]}')
        a(f's_sub_u32 {sCNT}, {sCNT}, 1')
        a(f's_cbranch_scc0 {again}')
        for b in range(P - 1, 0, -1):
            self.lab(hit[b])
            for k in range(4):
                a(f'v_mov_b32 v{base+4*P+k}, v{base+4*b+k}')
            a(f's_branch {done}x')
        self.lab(hit[0])
        self.lab(done)
        for k in range(4):
            a(f'v_mov_b32 v{base+4*P+k}, v{base+k}')
        self.lab(done + 'x')
        return base + 4 * P

    def quad_reduce(self, v, lpp):
        self.a('s_nop 1')
        self.a(f'v_permlane32_swap_b32 v{v}, v{v+2}')
        self.a(f'v_permlane32_swap_b32 v{v+1}, v{v+3}')
        self.a(f'v_add_f32 v{v}, v{v}, v{v+2}')
        self.a(f'v_add_f32 v{v+1}, v{v+1}, v{v+3}')
        self.a('s_nop 1')
        self.a(f'v_permlane16_swap_b32 v{v}, v{v+1}')
        self.a(f'v_add_f32 v{v}, v{v}, v{v+1}')
        self.inrow_allreduce('v_add_f32', v, [r for r in (8, 4, 2) if r >= lpp])

    def tile_dot(self, npairs, vW, vX, vA, vB, waitp):
        a = self.a
        for p in range(npairs):
            waitp(p)
            w0, w1 = vW + 8 * p, vW + 8 * p + 4
            for e in range(8):
                a(f'v_perm_b32 v{vB+e}, v{w1+(e>>1)}, v{w0+(e>>1)}, {sPHI if e & 1 else sPLO}')
            for e in range(8):
                a(f'v_dot2_f32_bf16 v{vA+e}, v{vB+e}, v{vX+p}, {"0" if p == 0 else f"v{vA+e}"}')
        a('s_nop 2')
        for e in range(4):
            a(f'v_permlane32_swap_b32 v{vA+e}, v{vA+e+4}')
        for e in range(4):
            a(f'v_add_f32 v{vA+e}, v{vA+e}, v{vA+e+4}')
        a('s_nop 0')
        for e in range(2):
            a(f'v_permlane16_swap_b32 v{vA+e}, v{vA+e+2}')
        for e in range(2):
            a(f'v_add_f32 v{vA+e}, v{vA+e}, v{vA+e+2}')
        a('s_nop 0')
        self.dpp('v_add_f32', vA + 4, vA, vA, 'row_ror:8', 0x3)
        a('s_nop 1')
        self.dpp('v_add_f32', vA + 4, vA + 1, vA + 1, 'row_ror:8', 0xc)

    def srd(self, srd, p, nbytes):
        b = int(srd[2:srd.index(':')])
        self.a(f's_mov_b64 s[{b}:{b+1}], s[{p}:{p+1}]')
        self.a(f's_mov_b32 s{b+2}, {hex(nbytes)}')
        self.a(f's_mov_b32 s{b+3}, 0x20000')

    def barrier(self):
        self.a('s_waitcnt lgkmcnt(0)')
        if 'nobar' not in self.exp:
            self.a('s_barrier')

    def slot(self, n):
        return RING0 + 4 * (n % RING)

    def depth(self, m):
        return [d for f, d in self.Ds if m >= f][-1]

    def need(self, name):
        k = self.seq.index(name)
        assert k < self.m, name
        if k > self.landed:
            self.wait(name)
            self.landed = k

    def has(self, name):
        return self.seq.index(name) <= self.landed

    def step(self):
        if self.m >= len(self.seq):
            return
        k = self.m - self.depth(self.m)
        if self.adapting:
            k2 = k - self.adapt[0]
            if k2 > self.landed:
                self.wait(self.seq[k2])
                self.landed = k2
            if k > self.landed:
                skip = self.newlab('deep')
                self.a(f's_cbranch_vccnz {skip}')
                self.wait(self.seq[k])
                self.lab(skip)
        elif k > self.landed:
            self.wait(self.seq[k])
            self.landed = k
        if self.adapt and self.m in self.pick:
            self.a(f'ds_read_b32 v78, v79')
        if self.adapt and self.m - 1 in self.pick:
            self.a('s_waitcnt lgkmcnt(0)')
            self.a('v_cmp_ne_u32 vcc, 0, v78')
            self.adapting = True
        name = self.seq[self.m]
        kind, i = name[0], int(name[1:])
        if kind in 'KV':
            n = i + (64 if kind == 'V' else 0)
            old = n - RING
            assert old < 0 or (old < 64 and old < 4 * self.beta) or (old >= 64 and old - 64 < 4 * self.tau), name
            r = self.slot(n)
            srd, vo, off, dst, tailtxt = (SRD_A if kind == 'K' else SRD_B), (2 if kind == 'K' else 3), i * 4096, f'v[{r}:{r+3}], ', self.pol
        else:
            if i == 0:
                self.tile_setup(kind)
            srd, vo = (SRD_X, 76) if kind == 'Q' else (SRD_C, 77)
            off, dst, tailtxt = i * ((8192 if kind == 'Q' else 3584) - 1024), '', f'offset:{i*1024} {self.wpol} lds'
        so = '0'
        if off:
            self.a(f's_mov_b32 {sOFF}, {hex(off)}')
            so = sOFF
        self.load(name, f'buffer_load_dwordx4 {dst}v{vo}, {srd}, {so} offen {tailtxt}')
        self.stamp('_' + name)
        self.m += 1

    def steps_until(self, name):
        while self.seq[self.m] != name:
            self.step()

    def tile_setup(self, kind):
        a, vT = self.a, 60
        if kind == 'Q':
            self.srd(SRD_X, 10, 4 << 20)
            a(f's_and_b32 {sT0}, {sJ}, 3')
            a(f's_lshl_b32 {sT0}, {sT0}, 7')
            a(f's_lshl_b32 {sT1}, {sW}, 2')
            a(f's_add_u32 {sT0}, {sT0}, {sT1}')
            a(f'v_lshrrev_b32 v{vT}, 3, v1')
            a(f'v_lshl_add_u32 v{vT}, v{vT}, 4, {sT0}')
            a(f'v_and_b32 v{vT+1}, 7, v1')
            a(f'v_lshlrev_b32 v{vT+1}, 4, v{vT+1}')
            a(f's_lshr_b32 {sT2}, {sJ}, 2')
            a(f's_lshl_b32 {sT0}, {sG}, 10')
            a(f's_lshl_b32 {sT1}, {sT2}, 7')
            a(f's_add_u32 {sT0}, {sT0}, {sT1}')
            a(f'v_lshlrev_b32 v76, 13, v{vT}')
            a(f'v_add3_u32 v76, v76, v{vT+1}, {sT0}')
            a(f's_lshl_b32 {sT1}, {sW}, 12')
            a(f's_add_u32 m0, {sT1}, {L_TL}')
            a('s_nop 0')
        else:
            a(f's_lshl_b32 {sT2}, {sT2}, 3')
            a(f's_add_u32 {sT2}, {sT2}, {sG}')
            a(f's_sub_u32 {sT0}, {sT2}, 28')
            a(f's_cmp_ge_u32 {sT2}, 28')
            a(f's_cselect_b32 {sT2}, {sT0}, {sT2}')
            a('s_cselect_b64 s[40:41], s[18:19], s[16:17]')
            a(f's_mov_b32 s42, {hex(512*3584)}')
            a('s_mov_b32 s43, 0x20000')
            a(f's_lshl_b32 {sT2}, {sT2}, 7')
            a(f's_cmp_ge_u32 {sJ}, 28')
            a(f's_cselect_b32 {sT2}, 0x10000000, {sT2}')
            a(f's_add_u32 m0, {sT1}, {L_TL + 16384}')
            a(f'v_mul_u32_u24 v77, 3584, v{vT}')
            a(f'v_add3_u32 v77, v77, v{vT+1}, {sT2}')

    def qk_batch(self):
        beta = self.beta
        half, t = beta >> 2, beta & 3
        Dr, P0, Bq = 36, 4, 52
        self.need(f'K{4*beta+3}')
        self.beta += 1
        if 'noqk' in self.exp:
            return
        for gam in range(4):
            r = self.slot(4 * beta + gam)
            self.a(f'v_mfma_f32_16x16x32_bf16 v[{Dr+4*gam}:{Dr+4*gam+3}], v[{r}:{r+3}], v[{Bq}:{Bq+3}], 0')
        self.a('s_nop 5')
        for k in (1, 2, 3):
            for gam in range(4):
                P = P0 + 4 * half + gam
                d = Dr + 4 * gam
                self.dpp('v_add_f32', P, d + ((t + k) & 3), d + t if k == 1 else P, f'row_ror:{16-4*k}', 1 << t)

    def pv_group(self):
        tau = self.tau
        B = 36
        self.tau += 1
        for pair in range(2):
            v0 = self.slot(64 + 4 * tau + 2 * pair)
            v1 = self.slot(64 + 4 * tau + 2 * pair + 1)
            self.need(f'V{4*tau+2*pair+1}')
            if 'nopv' in self.exp:
                continue
            for e in range(8):
                self.a(f'v_perm_b32 v{B+2*e+pair}, v{v1+(e>>1)}, v{v0+(e>>1)}, {sPHI if e & 1 else sPLO}')
        if 'nopv' in self.exp:
            return
        PA = 52 + 2 * (tau >> 2)
        for e in range(8):
            ac = 4 + 4 * e
            c = '0' if tau == 0 else f'v[{ac}:{ac+3}]'
            self.a(f'v_mfma_f32_4x4x4_16b_bf16 v[{ac}:{ac+3}], v[{PA}:{PA+1}], v[{B+2*e}:{B+2*e+1}], {c} cbsz:2 abid:{tau & 3}')

    def gen(self):
        a = self.a
        self.L.append(f'; @launch grid=(256,1,1) block=(512,1,1) lds={LDS_BYTES}')
        self.L.append('.amdgcn_target "amdgcn-amd-amdhsa--gfx950"')
        self.L.append('.text')
        self.L.append(f'.globl {NAME}')
        self.L.append('.p2align 8')
        self.L.append(f'.type {NAME},@function')
        self.lab(NAME)
        a('s_load_dwordx16 s[4:19], s[0:1], 0')
        if not self.split:
            a('s_load_dwordx8 s[20:27], s[0:1], 64')
        if self.stamps:
            for i in range(STAMP_BASE, 102, 2):
                if not self.diag:
                    a(f's_mov_b64 s[{i}:{i+1}], 0')
            self.stamp('start')
        a('s_cmp_ge_u32 s2, 0x100')
        a('s_cbranch_scc1 L_end')
        a('v_lshrrev_b32 v4, 6, v0')
        a('v_and_b32 v1, 63, v0')
        a(f'v_readfirstlane_b32 {sW}, v4')
        a(f's_and_b32 {sG}, s2, 7')
        a(f's_lshr_b32 {sJ}, s2, 3')
        a(f's_cmp_ge_u32 {sW}, 4')
        a('s_cbranch_scc1 L_helper')
        self.stream_wave()
        self.tail()
        if self.local:
            self.far_store()
        self.helpers()
        self.lab('L_exit0')
        if self.stamps and not self.diag:
            a('s_mov_b64 exec, -1')
        self.lab('L_exit')
        if self.stamps and not self.diag:
            self.stamp('end')
            a('s_waitcnt lgkmcnt(0)')
            a('v_mov_b32 v4, 0')
            for i in range(len(self.stamp_names)):
                a(f'v_writelane_b32 v4, s{STAMP_BASE+2*i}, {i}')
            a(f's_getreg_b32 {sT1}, hwreg(HW_REG_XCC_ID)')
            a(f'v_writelane_b32 v4, {sT1}, 63')
            a(f's_getreg_b32 {sT1}, hwreg(HW_REG_HW_ID)')
            a(f'v_writelane_b32 v4, {sT1}, 62')
            a(f's_lshl_b32 {sT0}, s2, 3')
            a(f's_add_u32 {sT0}, {sT0}, {sW}')
            a(f's_lshl_b32 {sT0}, {sT0}, 8')
            a(f's_add_u32 {sT0}, {sT0}, {hex(STAMP)}')
            a(f'v_lshl_add_u32 v5, v1, 2, {sT0}')
            a(f'buffer_store_dword v4, v5, {SRD_WS}, 0 offen')
        self.lab('L_end')
        a('s_endpgm')
        self.L += ['.section .rodata,"a"', '.p2align 6', f'.amdhsa_kernel {NAME}',
                   f'  .amdhsa_next_free_vgpr {NVGPR}', '  .amdhsa_next_free_sgpr 102', f'  .amdhsa_accum_offset {NVGPR}',
                   '  .amdhsa_group_segment_fixed_size 0', '  .amdhsa_kernarg_size 96',
                   '  .amdhsa_user_sgpr_count 2', '  .amdhsa_user_sgpr_kernarg_segment_ptr 1',
                   '  .amdhsa_system_sgpr_workgroup_id_x 1',
                   '  .amdhsa_float_denorm_mode_32 3', '.end_amdhsa_kernel']
        return HEADER + '\n'.join(self.L) + '\n'

    def stream_wave(self):
        a = self.a
        vP, vD, vPA, vBq, vT = 4, 36, 52, 52, 60
        assert RING0 == 80
        kf = self.kfirst
        self.seq = [f'K{i}' for i in range(kf)] + [f'Q{i}' for i in range(4)] + [f'F{i}' for i in range(4)] + \
                   [f'K{i}' for i in range(kf, 64)] + [f'V{i}' for i in range(64)]
        self.m = self.beta = self.tau = 0
        self.landed = -1
        self.adapting = False
        self.pick = set()
        self.vm = []
        a(f's_lshl_b32 {sT0}, {sG}, 23')
        a(f's_lshl_b32 {sT1}, {sJ}, 18')
        a(f's_add_u32 {sT0}, {sT0}, {sT1}')
        a(f's_lshl_b32 {sT1}, {sW}, 10')
        a(f's_add_u32 {sT0}, {sT0}, {sT1}')
        a(f'v_bfe_u32 v{vT}, v1, 2, 2')
        a(f'v_lshlrev_b32 v{vT}, 8, v{vT}')
        a(f'v_and_b32 v{vT+1}, 3, v1')
        a(f'v_lshl_add_u32 v{vT}, v{vT+1}, 4, v{vT}')
        a(f'v_lshrrev_b32 v{vT+2}, 4, v1')
        a(f'v_lshlrev_b32 v{vT+2}, 6, v{vT+2}')
        a(f'v_add3_u32 v2, v{vT}, v{vT+2}, {sT0}')
        a(f'v_lshl_add_u32 v3, v1, 4, {sT0}')
        a('s_waitcnt lgkmcnt(0)')
        self.srd(SRD_A, 6, 64 << 20)
        self.steps_until('F0')
        self.stamp('issued0')
        if self.split:
            a('s_load_dwordx8 s[20:27], s[0:1], 64')
        else:
            a(f's_load_dword {sTAG}, s[26:27], 0')
            self.srd(SRD_WS, 26, 256 << 20)
        self.srd(SRD_B, 8, 64 << 20)
        a(f's_mov_b32 {sPLO}, 0x05040100')
        a(f's_mov_b32 {sPHI}, 0x07060302')
        a(f's_mov_b32 {sC}, {hex(f2u(math.log2(math.e) / math.sqrt(128.0)))}')
        while not self.has('Q3'):
            self.step()
        self.stamp('preT')
        a('s_barrier')
        if self.split:
            a('s_waitcnt lgkmcnt(0)')
            a(f's_load_dword {sTAG}, s[26:27], 0')
            self.srd(SRD_WS, 26, 256 << 20)
        self.steps_until(f'K{self.nG}')
        assert self.has('F3')
        a('s_barrier')
        if self.adapt:
            a(f'v_mov_b32 v79, {L_AD}')
            if 'G' in self.adapt[2]:
                self.pick.add(self.m + self.adapt[3])
        self.steps_until(f'K{self.nA}')
        a(f'v_lshlrev_b32 v{vT}, 4, v1')
        self.stamp('preA')
        self.barrier()
        a(f'ds_read_b128 v[{vBq}:{vBq+3}], v{vT} offset:{L_BQ}')
        self.stamp('A')
        if self.adapt:
            a(f'v_mov_b32 v79, {L_AD}')
            if 'A' in self.adapt[2]:
                self.pick.add(self.m + self.adapt[3])
        self.make_tag()
        a(f'v_and_b32 v{vT+6}, 3, v1')
        a(f'v_lshlrev_b32 v{vT+6}, 4, v{vT+6}')
        a(f's_lshl_b32 {sT0}, {sW}, 2')
        a(f'v_add_u32 v{vT+7}, {sT0}, v{vT+6}')
        a('s_waitcnt lgkmcnt(0)')
        while self.beta < 16:
            nxt = self.seq[self.m]
            if int(nxt[1:]) + (64 if nxt[0] == 'V' else 0) - RING >= 4 * self.beta:
                self.qk_batch()
            self.step()
            if self.beta < 16 and self.has(f'K{4*self.beta+3}'):
                self.qk_batch()
        self.max8(vT, vP, vT + 1)
        self.max8(vT + 2, vP + 8, vT + 1)
        a(f'v_max_f32 v{vT}, v{vT}, v{vT+2}')
        self.inrow_allreduce('v_max_f32', vT, (8, 4))
        self.rows_allreduce('v_max_f32', vT, vT + 1)
        a(f'ds_write_b32 v{vT+7}, v{vT} offset:{L_MB}')
        self.step()
        self.stamp('_preB')
        self.barrier()
        a(f'ds_read_b128 v[{vD}:{vD+3}], v{vT+6} offset:{L_MB}')
        a('s_waitcnt lgkmcnt(0)')
        a(f'v_max3_f32 v{vT}, v{vD}, v{vD+1}, v{vD+2}')
        a(f'v_max_f32 v{vT}, v{vT}, v{vD+3}')
        a(f'v_mul_f32 v{vT}, {sC}, v{vT}')
        for i in range(16):
            a(f'v_fma_f32 v{vP+i}, v{vP+i}, {sC}, -v{vT}')
        self.step()
        for i in range(16):
            a(f'v_exp_f32 v{vP+i}, v{vP+i}')
        self.step()
        for i in range(8):
            a(f'v_cvt_pk_bf16_f32 v{vPA+i}, v{vP+2*i}, v{vP+2*i+1}')
        for i in range(8):
            a(f'v_add_f32 v{vP+i}, v{vP+i}, v{vP+8+i}')
        self.sum8(vT, vP)
        self.inrow_allreduce('v_add_f32', vT, (8, 4))
        self.rows_allreduce('v_add_f32', vT, vT + 1)
        a(f'ds_write_b32 v{vT+7}, v{vT} offset:{L_LB}')
        self.step()
        self.barrier()
        self.stamp('C')
        if self.adapt and 'C' in self.adapt[2]:
            self.pick.add(self.m + self.adapt[3])
        while self.m < len(self.seq):
            if self.seq[self.m] == f'V{self.nM}':
                a('s_barrier')
                if self.adapt and 'M' in self.adapt[2]:
                    self.pick.add(self.m + self.adapt[3])
            if int(self.seq[self.m][1:]) - RING >= 4 * self.tau:
                self.pv_group()
            self.step()
            if self.has(f'V{4*self.tau+3}'):
                self.pv_group()
        self.stamp('allissued')

    def tail(self):
        a = self.a
        CPC = self.CPC
        assert CPC == 32
        NCONS = 16
        lg = 5
        emu = None
        vAcc, vD, vT = 4, 36, 60
        vA0, vA1, vA2, vA3, vA4, vA5, vTB, vWt = range(68, 76)
        vW, SG = 80, 96
        vZ = 20
        AM = (52, 54, 56, 76)
        assert self.tau >= 12
        self.lab('L_Z')
        a(f's_cmp_lt_u32 {sW}, 4')
        a('s_cbranch_scc1 L_Z1')
        self.srd(SRD_C, 12, 4 << 20)
        a(f's_lshl_b32 {sT0}, {sG}, 19')
        a(f's_lshr_b32 {sT1}, {sJ}, 2')
        a(f's_lshl_b32 {sT1}, {sT1}, 16')
        a(f's_add_u32 {sT0}, {sT0}, {sT1}')
        a(f's_and_b32 {sT1}, {sJ}, 3')
        a(f's_lshl_b32 {sT1}, {sT1}, 8')
        a(f's_add_u32 {sT0}, {sT0}, {sT1}')
        a(f's_and_b32 {sT2}, {sW}, 3')
        a(f's_lshl_b32 {sT1}, {sT2}, 6')
        a(f's_add_u32 {sT0}, {sT0}, {sT1}')
        a(f'v_lshrrev_b32 v{vT}, 2, v1')
        a(f'v_lshlrev_b32 v{vT}, 10, v{vT}')
        a(f'v_and_b32 v{vT+1}, 3, v1')
        a(f'v_lshlrev_b32 v{vT+1}, 4, v{vT+1}')
        a(f'v_add3_u32 v{vT}, v{vT}, v{vT+1}, {sT0}')
        a(f's_lshl_b32 {sT2}, {sT2}, 12')
        a(f's_add_u32 m0, {sT2}, {L_WO}')
        a('s_barrier')
        for i in range(4):
            if i:
                a(f's_mov_b32 {sOFF}, {i*(16384-1024)}')
            a(f'buffer_load_dwordx4 v{vT}, {SRD_C}, {sOFF if i else 0} offen offset:{i*1024} {self.opol} lds')
        a('s_branch L_Z2')
        self.lab('L_Z1')
        a('s_barrier')
        self.lab('L_Z2')
        self.srd(SRD_OUT, 22, 1024)
        a(f's_mov_b32 {sSEL}, 0x07060500')
        a(f's_mov_b32 {sSA}, 0x0c0c0400')
        a(f's_mov_b32 {sSB}, 0x04000c0c')
        a(f'v_and_b32 v{vT+3}, 3, v1')
        a(f'v_lshlrev_b32 v{vT}, 3, v{vT+3}')
        a(f'v_lshrrev_b32 v{vTB}, v{vT}, {sTAG}')
        a(f'v_lshrrev_b32 v{vT}, 4, v0')
        a(f'v_lshlrev_b32 v{vWt}, 2, v{vT}')
        a(f'ds_read_b32 v{vWt}, v{vWt} offset:{L_WB}')
        a(f'v_mov_b32 v{vT+5}, {L_FL}')
        a(f'ds_read_b32 v{vT+5}, v{vT+5}')
        a(f'v_lshrrev_b32 v{vT}, 4, v1')
        a(f'v_and_b32 v{vT+1}, 15, v1')
        a(f'v_lshl_add_u32 v{vT+2}, v{vT+1}, 2, v{vT}')
        a(f's_lshl_b32 {sT0}, {sW}, 11')
        a(f's_add_u32 {sT0}, {sT0}, {L_OB}')
        a(f'v_lshl_add_u32 v{vA0}, v{vT+2}, 2, {sT0}')
        a(f's_mul_i32 {sT0}, {sW}, 144')
        a(f'v_lshl_add_u32 v{vT+7}, v{vT+2}, 1, {sT0}')
        a(f'v_and_b32 v{vT+2}, 7, v1')
        a(f'v_mul_u32_u24 v{vT+2}, 144, v{vT+2}')
        a(f'v_lshl_add_u32 v{vT+6}, v{vT}, 4, v{vT+2}')
        a(f'v_lshlrev_b32 v{vT}, 9, v{vT}')
        a(f'v_bfe_u32 v{vT+2}, v1, 2, 2')
        a(f'v_lshl_add_u32 v{vT}, v{vT+2}, 6, v{vT}')
        a(f'v_lshl_add_u32 v{vT}, v{vT+3}, 3, v{vT}')
        a(f's_and_b32 {sT2}, {sW}, 3')
        a(f's_lshl_b32 {sT0}, {sT2}, 12')
        a(f'v_add_u32 v{vA5}, {sT0}, v{vT}')
        a(f'v_lshrrev_b32 v{vT}, 7, v0')
        a(f'v_lshlrev_b32 v{vT}, 9, v{vT}')
        a(f'v_and_b32 v{vT+2}, 1, v0')
        a(f'v_lshl_add_u32 v{vT}, v{vT+2}, 8, v{vT}')
        a(f'v_bfe_u32 v{vT+2}, v0, 1, 6')
        a(f'v_lshl_add_u32 v{vA1}, v{vT+2}, 2, v{vT}')
        a(f'v_add_u32 v{vA1}, {L_OB}, v{vA1}')
        a(f's_lshl_b32 {sT1}, {sG}, 16')
        a(f's_add_u32 {sT1}, {sT1}, {hex(OBOX)}')
        a(f's_lshl_b32 {sT0}, {sW}, 13')
        a(f's_add_u32 {sT0}, {sT0}, {sT1}')
        a(f's_lshl_b32 {sOFF}, {sJ}, 8')
        a(f's_add_u32 {sT0}, {sT0}, {sOFF}')
        a(f'v_lshl_add_u32 v{vA2}, v1, 2, {sT0}')
        a(f's_lshr_b32 {sOFF}, {sJ}, 2')
        a(f's_lshl_b32 {sT0}, {sOFF}, 13')
        a(f's_add_u32 {sT0}, {sT0}, {sT1}')
        a(f'v_lshl_add_u32 v{vA3}, v0, 4, {sT0}')
        a(f's_and_b32 {sT0}, {sJ}, 3')
        a(f's_lshl_b32 {sT0}, {sT0}, 2')
        a(f's_add_u32 {sT0}, {sT0}, {sT2}')
        a(f's_lshl_b32 {sT0}, {sT0}, 6')
        a(f's_lshl_b32 {sT1}, {sG}, 3')
        a(f's_add_u32 {sT0}, {sT0}, {sT1}')
        a(f's_add_u32 {sT0}, {sT0}, {sOFF}')
        a(f's_lshl_b32 {sT0}, {sT0}, 7')
        a(f's_add_u32 {sT0}, {sT0}, {hex(SBOX)}')
        a(f'v_lshrrev_b32 v{vT}, 5, v1')
        a(f'v_lshlrev_b32 v{vT}, 29, v{vT}')
        a(f'v_lshl_add_u32 v{vT}, v1, 2, v{vT}')
        a(f'v_add_u32 v{vA4}, {sT0}, v{vT}')
        a(f'v_mov_b32 v{vT+4}, {sTAG}')
        a('s_waitcnt lgkmcnt(0)')
        a(f'v_readfirstlane_b32 {sLOC}, v{vT+5}')
        a(f's_cmp_ge_u32 {sW}, 4')
        a('s_cbranch_scc1 L_D')
        for b in range(4):
            a(f'v_mov_b32 v{AM[b]}, 0')
            a(f'v_mov_b32 v{AM[b]+1}, 0')
        while self.tau < 15:
            self.pv_group()
        for b in range(4):
            for k in range(2):
                ctl = f'row_ror:{4*(b+1)}' if b < 3 else 'quad_perm:[0,1,2,3]'
                a(f'v_mov_b32_dpp v{AM[b]+k}, v{58+k} {ctl} row_mask:0xf bank_mask:{hex(1 << b)}')
        for e in range(4):
            for h in range(4):
                a(f'v_permlane32_swap_b32 v{vAcc+4*e+h}, v{vAcc+4*(e+4)+h}')
        for e in range(4):
            for h in range(4):
                a(f'v_add_f32 v{vAcc+4*e+h}, v{vAcc+4*e+h}, v{vAcc+4*(e+4)+h}')
        for e in range(2):
            for h in range(4):
                a(f'v_permlane16_swap_b32 v{vAcc+4*e+h}, v{vAcc+4*(e+2)+h}')
        for e in range(2):
            for h in range(4):
                a(f'v_add_f32 v{vZ+4*e+h}, v{vAcc+4*e+h}, v{vAcc+4*(e+2)+h}')
        for pair in range(2):
            v0, v1 = self.slot(64 + 60 + 2 * pair), self.slot(64 + 61 + 2 * pair)
            self.need(f'V{61+2*pair}')
            for e in range(8):
                a(f'v_perm_b32 v{vD+2*e+pair}, v{v1+(e>>1)}, v{v0+(e>>1)}, {sPHI if e & 1 else sPLO}')
        for e in range(8):
            z = vZ + 4 * (e & 1)
            a(f'v_mfma_f32_16x16x16_bf16 v[{z}:{z+3}], v[{AM[e>>1]}:{AM[e>>1]+1}], v[{vD+2*e}:{vD+2*e+1}], v[{z}:{z+3}]')
        self.stamp('pvdone')
        a('s_nop 7')
        for h in range(4):
            a(f'ds_write2st64_b32 v{vA0}, v{vZ+h}, v{vZ+4+h} offset0:{2*h} offset1:{2*h+1}')
        self.lab('L_D')
        if 'notail' in self.exp:
            a('s_branch L_exit')
        self.barrier()
        for k in range(2):
            a(f'ds_read2st64_b32 v[{vD+2*k}:{vD+2*k+1}], v{vA1} offset0:{16*k} offset1:{16*k+8}')
        a(f's_cmp_eq_u32 {sLOC}, 1')
        a('s_waitcnt lgkmcnt(0)')
        a(f'v_add_f32 v{vD}, v{vD}, v{vD+2}')
        a(f'v_add_f32 v{vD+1}, v{vD+1}, v{vD+3}')
        a(f'v_add_f32 v{vT}, v{vD}, v{vD+1}')
        a(f'v_perm_b32 v{vT}, v{vT}, v{vTB}, {sSEL}')
        if self.local:
            a('s_cbranch_scc0 L_far')
            a(f'buffer_store_dword v{vT}, v{vA2}, {SRD_WS}, 0 offen {self.ospol}')
            self.lab('L_near')
        else:
            a(f'buffer_store_dword v{vT}, v{vA2}, {SRD_WS}, 0 offen sc1')
        self.stamp('opub')

        ol = [f'buffer_load_dwordx4 v[{SG}:{SG+3}], v{vA3}, {SRD_WS}, 0 offen {self.olpol}']
        a(ol[0])
        a('s_waitcnt vmcnt(0)')
        self.stamp('poll1')
        for t2 in range(2):
            for kh in range(2):
                for m in range(2):
                    r = vW + 8 * t2 + 4 * kh + 2 * m
                    a(f'ds_read_b64_tr_b16 v[{r}:{r+1}], v{vA5} offset:{L_WO + kh*2048 + m*256 + t2*32}')
        if self.pp1:
            R = self.ppoll(lambda r: f'buffer_load_dwordx4 v[{r}:{r+3}], v{vA3}, {SRD_WS}, 0 offen {self.olpol}',
                           lambda r: self.check_quads([r], vT + 4, vT + 1, vT + 2, vT + 3), SG, self.pp1[0], self.pp1[1], True)
        else:
            self.poll(ol, lambda: self.check_quads([SG], vT + 4, vT + 1, vT + 2, vT + 3), True, sleep=self.sl1)
            R = SG
        self.stamp('goto')
        for k in range(4):
            a(f'v_mul_f32 v{R+k}, v{R+k}, v{vWt}')
        self.quad_reduce(R, 16)
        a(f'v_cvt_pk_bf16_f32 v{R}, v{R}, v{R}')
        a(f'ds_write_b16 v{vT+7}, v{R} offset:{L_A}')
        SG = 120
        self.barrier()
        a(f's_cmp_lt_u32 {sW}, 4')
        a('s_cbranch_scc1 L_hop2')
        a(f'ds_read_b128 v[{vD}:{vD+3}], v{vT+6} offset:{L_A}')
        a(f'ds_read_b128 v[{vD+4}:{vD+7}], v{vT+6} offset:{L_A+64}')
        a('s_waitcnt lgkmcnt(1)')
        a(f'v_mfma_f32_16x16x32_bf16 v[{vD+8}:{vD+11}], v[{vD}:{vD+3}], v[{vW}:{vW+3}], 0')
        a(f'v_mfma_f32_16x16x32_bf16 v[{vD+12}:{vD+15}], v[{vD}:{vD+3}], v[{vW+8}:{vW+11}], 0')
        a('s_waitcnt lgkmcnt(0)')
        a(f'v_mfma_f32_16x16x32_bf16 v[{vD+8}:{vD+11}], v[{vD+4}:{vD+7}], v[{vW+4}:{vW+7}], v[{vD+8}:{vD+11}]')
        a(f'v_mfma_f32_16x16x32_bf16 v[{vD+12}:{vD+15}], v[{vD+4}:{vD+7}], v[{vW+12}:{vW+15}], v[{vD+12}:{vD+15}]')
        a('s_nop 6')
        a(f'v_add_f32 v{vD+8}, v{vD+8}, v{vD+9}')
        a(f'v_add_f32 v{vD+10}, v{vD+10}, v{vD+11}')
        a(f'v_add_f32 v{vD+12}, v{vD+12}, v{vD+13}')
        a(f'v_add_f32 v{vD+14}, v{vD+14}, v{vD+15}')
        a(f'v_add_f32 v{vD+8}, v{vD+8}, v{vD+10}')
        a(f'v_add_f32 v{vD+12}, v{vD+12}, v{vD+14}')
        a('s_nop 1')
        a(f'v_permlane16_swap_b32 v{vD+8}, v{vD+12}')
        a(f'v_add_f32 v{vT}, v{vD+8}, v{vD+12}')
        a(f'v_perm_b32 v{vT}, v{vT}, v{vTB}, {sSEL}')
        if 'execst' in self.exp:
            a('s_mov_b32 exec_hi, 0')
        a(f'buffer_store_dword v{vT}, v{vA4}, {SRD_WS}, 0 offen {self.spol}')
        if 'execst' in self.exp:
            a('s_mov_b32 exec_hi, -1')
        self.stamp('spub')
        self.lab('L_hop2')
        if 'h2bar' in self.exp:
            a('s_barrier')
        if 'h2sleep' in self.exp:
            a('s_sleep 8')
        if self.diag:
            i = self.stamp_names.index(self.diag[0]) if self.diag[0] in self.stamp_names else 0
            a(f's_cmp_lg_u32 {sW}, {self.diag[2] if len(self.diag) > 2 else 0}')
            a('s_cbranch_scc1 L_nodg')
            a('s_waitcnt lgkmcnt(0)')
            a(f'v_mov_b32 v{vD}, s{STAMP_BASE}')
            a(f'v_mov_b32 v{vD+1}, s{STAMP_BASE+2*i}')
            a(f's_lshl_b32 {sT0}, s2, 3')
            a(f's_add_u32 {sT0}, {sT0}, {hex(STAMP)}')
            a(f'v_mov_b32 v{vD+2}, {sT0}')
            a('s_mov_b64 exec, 1')
            a(f'buffer_store_dwordx2 v[{vD}:{vD+1}], v{vD+2}, {SRD_WS}, 0 offen sc1')
            a('s_mov_b64 exec, -1')
            self.lab('L_nodg')

        a(f's_cmp_ge_u32 s2, {NCONS}')
        a('s_cbranch_scc1 L_exit')
        nl, lpp = 1, 8
        a(f's_lshl_b32 {sT0}, s2, 13')
        if emu:
            nl = 1
            a(f's_mul_i32 {sT0}, s2, {nprod * 128}')
        a(f's_add_u32 {sT0}, {sT0}, {hex(SBOX)}')
        a(f'v_lshl_add_u32 v{vA0}, v0, 4, {sT0}')
        if emu and npw == 1:
            a(f'v_and_b32 v{vA0}, 255, v0')
            a(f'v_lshl_add_u32 v{vA0}, v{vA0}, 4, {sT0}')
        mk = lambda r: f'buffer_load_dwordx4 v[{r}:{r+3}], v{vA0}, {SRD_WS}, 0 offen {self.lpol}'
        P = self.pp2
        a(mk(SG))
        a(f'v_mov_b32 v{vA1}, {sTAG}')
        a(f'v_and_b32 v{vT+1}, 7, v1')
        a(f'v_lshlrev_b32 v{vT+1}, 7, v{vT+1}')
        a(f'v_lshrrev_b32 v{vT+2}, 4, v1')
        a(f'v_lshlrev_b32 v{vT+2}, 5, v{vT+2}')
        a(f's_lshl_b32 {sT0}, {sW}, 2')
        a(f'v_add3_u32 v{vA2}, v{vT+1}, v{vT+2}, {sT0}')
        a(f'v_and_b32 v{vT+1}, 31, v1')
        a(f'v_lshlrev_b32 v{vA3}, 5, v{vT+1}')
        a(f'v_lshlrev_b32 v{vT+2}, 2, v{vT+1}')
        a(f'ds_read_b32 v{vA4}, v{vT+2} offset:{L_GB}')
        a(f'ds_read_b32 v{vA5}, v{vT+2} offset:{L_XB}')
        if P > 2:
            a(mk(SG + 4))
        a(f's_lshl_b32 {sT0}, s2, 6')
        a(f'v_lshl_add_u32 v{vWt}, v{vT+1}, 1, {sT0}')
        a(f'v_mov_b32 v{vT+5}, {L_CT}')
        a(f'v_mov_b32 v{vT+6}, 1')
        if P > 1:
            SG = self.ppoll(mk, lambda r: self.check_quads([r], vA1, vT + 1, vT + 2, vT + 3), SG, P, 2 if P > 2 else 1)
        else:
            a('s_waitcnt vmcnt(0)')
            self.poll([mk(SG)], lambda: self.check_quads([SG], vA1, vT + 1, vT + 2, vT + 3), True)
        self.stamp('gots')
        self.quad_reduce(SG, 8)
        if self.lastwave:
            a(f'ds_write_b32 v{vA2}, v{SG} offset:{L_S2}')
            a('s_mov_b64 exec, 1')
            a(f'ds_add_rtn_u32 v{vT+6}, v{vT+5}, v{vT+6}')
            a('s_mov_b32 exec_lo, -1')
            a(f'ds_read_b128 v[{vD}:{vD+3}], v{vA3} offset:{L_S2}')
            a(f'ds_read_b128 v[{vD+4}:{vD+7}], v{vA3} offset:{L_S2+16}')
            a('s_waitcnt lgkmcnt(0)')
            a(f'v_readfirstlane_b32 {sT0}, v{vT+6}')
            self.sum8(vT, vD)
            a(f's_cmp_lg_u32 {sT0}, 7')
            a('s_cbranch_scc1 L_exit0')
        else:
            a(f'ds_write_b32 v{vA2}, v{SG} offset:{L_S2}')
            self.barrier()
            a(f's_cmp_lg_u32 {sW}, 0')
            a('s_cbranch_scc1 L_exit')
            a(f'ds_read_b128 v[{vD}:{vD+3}], v{vA3} offset:{L_S2}')
            a(f'ds_read_b128 v[{vD+4}:{vD+7}], v{vA3} offset:{L_S2+16}')
            a('s_mov_b32 exec_hi, 0')
            a('s_waitcnt lgkmcnt(0)')
            self.sum8(vT, vD)
        self.bf16r(vT, vT)
        a(f'v_mul_f32 v{vT}, v{vT}, v{vA4}')
        self.bf16r(vT, vT)
        a(f'v_add_f32 v{vT}, v{vT}, v{vA5}')
        a(f'v_cvt_pk_bf16_f32 v{vT}, v{vT}, v{vT}')
        a(f'buffer_store_short v{vT}, v{vWt}, {SRD_OUT}, 0 offen')
        a('s_mov_b64 exec, -1')
        a('s_cmp_lg_u32 s2, 0')
        a('s_cbranch_scc1 L_exit')
        if self.diag:
            a('s_memrealtime s[98:99]')
            a('s_sleep 40')
            a(f'v_lshlrev_b32 v{vT}, 5, v1')
            a(f'v_add_u32 v{vT}, {hex(STAMP)}, v{vT}')
            a(f'buffer_load_dwordx4 v[{vD}:{vD+3}], v{vT}, {SRD_WS}, 0 offen sc1')
            a(f'buffer_load_dwordx4 v[{vD+4}:{vD+7}], v{vT}, {SRD_WS}, 0 offen offset:16 sc1')
            a('s_waitcnt vmcnt(0) lgkmcnt(0)')
            for k in range(8):
                a(f'v_sub_u32 v{vD+k}, s98, v{vD+k}')
            a(f'v_max3_u32 v{vT}, v{vD}, v{vD+2}, v{vD+4}')
            a(f'v_max_u32 v{vT}, v{vT}, v{vD+6}')
            self.inrow_allreduce('v_max_u32', vT, (8, 4, 2, 1))
            self.rows_allreduce('v_max_u32', vT, vT + 2)
            op = {'max': 'v_min_u32', 'min': 'v_max_u32', 'mean': 'v_add_u32'}[self.diag[1]]
            a(f'{op} v{vD+1}, v{vD+1}, v{vD+3}')
            a(f'{op} v{vD+5}, v{vD+5}, v{vD+7}')
            a(f'{op} v{vT+1}, v{vD+1}, v{vD+5}')
            self.inrow_allreduce(op, vT + 1, (8, 4, 2, 1))
            self.rows_allreduce(op, vT + 1, vT + 2)
            if self.diag[1] == 'mean':
                a(f'v_lshrrev_b32 v{vT+1}, 8, v{vT+1}')
            if self.diag[0] == 'end':
                a(f'v_mov_b32 v{vT+1}, 0')
            if self.diag[0] == 'none':
                a(f'v_mov_b32 v{vT+1}, v{vT}')
            a(f'v_sub_u32 v{vT}, v{vT}, v{vT+1}')
            a('s_nop 1')
            a(f'v_readfirstlane_b32 s96, v{vT}')
            a('s_min_u32 s96, s96, 20000')
            a('s_lshl_b32 s96, s96, 2')
            a('s_add_u32 s96, s96, 200')
            self.lab('L_spin')
            a('s_memrealtime s[94:95]')
            a('s_waitcnt lgkmcnt(0)')
            a('s_sub_u32 s94, s94, s98')
            a('s_cmp_lt_u32 s94, s96')
            a('s_cbranch_scc1 L_spin')
        a(f'v_mov_b32 v{vT}, 0')
        a('s_mov_b64 exec, 1')
        a(f'buffer_store_dword v{vA1}, v{vT}, {SRD_WS}, 0 offen sc1')
        a('s_mov_b64 exec, -1')
        a('s_branch L_exit')

    def far_store(self):
        self.lab('L_far')
        self.a(f'buffer_store_dword v60, v70, {SRD_WS}, 0 offen sc1')
        self.a('s_branch L_near')

    def helpers(self):
        a = self.a
        CPC = self.CPC
        NCONS = 512 // CPC
        lg = int(math.log2(CPC))
        vLane = 1
        vT = 4
        vX = 16
        vA = 24
        vB = 32
        vCol, vTC = 40, 41
        vW = 112
        vTag, vTB = 2, 3
        self.lab('L_helper')
        if self.split:
            a('s_load_dwordx8 s[20:27], s[0:1], 64')
        if self.prio:
            a(f's_setprio {self.prio}')
        a('s_waitcnt lgkmcnt(0)')
        self.stamp('_hstart')
        a(f's_load_dword {sTAG}, s[26:27], 0')
        self.srd(SRD_WS, 26, 256 << 20)
        self.srd(SRD_X, 4, 1024)
        a(f's_cmp_ge_u32 {sW}, 6')
        a('s_cbranch_scc1 L_h23')
        self.vm = []
        sRB, sCB, sPUB = 's60', 's61', 's3'
        a(f's_and_b32 {sRB}, {sJ}, 3')
        a(f's_lshr_b32 {sCB}, {sJ}, 2')
        a(f's_cmp_eq_u32 {sW}, 4')
        a('s_cbranch_scc0 L_h1_setup')
        a(f's_lshl_b32 {sPUB}, {sG}, 13')
        a(f's_lshl_b32 {sT0}, {sRB}, 11')
        a(f's_add_u32 {sPUB}, {sPUB}, {sT0}')
        a(f's_add_u32 {sPUB}, {sPUB}, {hex(QBOX)}')
        a('s_branch L_tile')
        self.lab('L_h1_setup')
        a(f's_cmp_ge_u32 {sJ}, 28')
        a('s_cbranch_scc1 L_h23')
        a(f's_lshl_b32 {sCB}, {sCB}, 3')
        a(f's_add_u32 {sCB}, {sCB}, {sG}')
        a(f's_sub_u32 {sT0}, {sCB}, 28')
        a(f's_cmp_ge_u32 {sCB}, 28')
        a(f's_cselect_b32 {sCB}, {sT0}, {sCB}')
        a(f's_cselect_b32 {sPUB}, {hex(4*7168)}, 0')
        a(f's_add_u32 {sPUB}, {sPUB}, {hex(HBOX)}')
        a(f's_mul_i32 {sT0}, {sRB}, 7168')
        a(f's_add_u32 {sPUB}, {sPUB}, {sT0}')
        self.lab('L_tile')
        a(f'v_lshlrev_b32 v{vT}, 4, v{vLane}')
        self.load('x16', f'buffer_load_dwordx4 v[{vX}:{vX+3}], v{vT}, {SRD_X}, 0 offen')
        a(f's_lshl_b32 {sT0}, {sCB}, 8')
        a(f's_add_u32 {sPUB}, {sPUB}, {sT0}')
        a(f'v_lshrrev_b32 v{vT+4}, 3, v{vLane}')
        a(f'v_lshlrev_b32 v{vT+1}, 4, v{vT+4}')
        a(f's_lshl_b32 {sT0}, {sRB}, 7')
        a(f'v_add_u32 v{vT+1}, {sT0}, v{vT+1}')
        a(f's_sub_u32 {sT0}, {sW}, 4')
        a(f's_lshl_b32 {sT1}, {sT0}, 14')
        a(f'v_add_u32 v{vT+2}, {sT1}, v{vT}')
        a(f's_lshl_b32 {sT0}, {sT0}, 10')
        a(f'v_add_u32 v{vT}, {sT0}, v{vT}')
        a(f'v_lshl_add_u32 v{vT+1}, v{vT+1}, 1, {sT0}')
        a(f'v_and_b32 v{vT+3}, 7, v{vLane}')
        a(f'v_lshlrev_b32 v{vT+3}, 5, v{vT+3}')
        a(f'v_lshl_add_u32 v{vCol}, v{vT+4}, 2, v{vT+3}')
        a(f'v_add_u32 v{vT+3}, {sPUB}, v{vCol}')
        a(f'v_and_b32 v{vT+4}, 3, v{vT+4}')
        a(f'v_lshlrev_b32 v{vT+4}, 3, v{vT+4}')
        a(f's_mov_b32 {sPLO}, 0x05040100')
        a(f's_mov_b32 {sPHI}, 0x07060302')
        self.wait('x16')
        self.stamp('_x16')
        for k in range(4):
            a(f'v_lshlrev_b32 v{vA+2*k}, 16, v{vX+k}')
            a(f'v_and_b32 v{vA+2*k+1}, 0xffff0000, v{vX+k}')
        m, s2, t = vT + 5, vT + 6, vT + 7
        a(f'v_add_f32 v{m}, v{vA}, v{vA+1}')
        for k in range(2, 8):
            a(f'v_add_f32 v{m}, v{m}, v{vA+k}')
        self.inrow_allreduce('v_add_f32', m, (8, 4, 2, 1))
        self.rows_allreduce('v_add_f32', m, t)
        a(f'v_mul_f32 v{m}, {hex(f2u(1/512.))}, v{m}')
        for k in range(8):
            a(f'v_sub_f32 v{vB+k}, v{vA+k}, v{m}')
        a(f'v_mul_f32 v{s2}, v{vB}, v{vB}')
        for k in range(1, 8):
            a(f'v_fmac_f32 v{s2}, v{vB+k}, v{vB+k}')
        self.inrow_allreduce('v_add_f32', s2, (8, 4, 2, 1))
        self.rows_allreduce('v_add_f32', s2, t)
        a(f'v_mul_f32 v{s2}, {hex(f2u(1/512.))}, v{s2}')
        self.bf16r(m, m)
        self.bf16r(s2, s2)
        a(f'v_add_f32 v{s2}, {hex(f2u(1e-5))}, v{s2}')
        self.bf16r(s2, s2)
        a(f'v_sqrt_f32 v{s2}, v{s2}')
        for k in range(8):
            a(f'v_sub_f32 v{vA+k}, v{vA+k}, v{m}')
        self.bf16r(s2, s2)
        a(f'v_rcp_f32 v{s2}, v{s2}')
        for k in range(4):
            a(f'v_cvt_pk_bf16_f32 v{vX+k}, v{vA+2*k}, v{vA+2*k+1}')
        for k in range(4):
            a(f'v_lshlrev_b32 v{vA+2*k}, 16, v{vX+k}')
            a(f'v_and_b32 v{vA+2*k+1}, 0xffff0000, v{vX+k}')
        for k in range(8):
            a(f'v_mul_f32 v{vA+k}, v{vA+k}, v{s2}')
        for k in range(4):
            a(f'v_cvt_pk_bf16_f32 v{vX+k}, v{vA+2*k}, v{vA+2*k+1}')
        a(f'ds_write_b128 v{vT}, v[{vX}:{vX+3}] offset:{L_XN}')
        a('s_waitcnt lgkmcnt(0)')
        a(f'ds_read_b128 v[{vX}:{vX+3}], v{vT+1} offset:{L_XN}')
        a(f'ds_read_b128 v[{vX+4}:{vX+7}], v{vT+1} offset:{L_XN+16}')
        self.make_tag()
        a(f'v_lshrrev_b32 v{vTC}, v{vT+4}, {sTAG}')
        a(f's_mov_b32 {sSEL}, 0x07060500')
        self.stamp('_ln')
        self.barrier()
        a(f's_cmp_eq_u32 {sW}, 4')
        a('s_cbranch_scc1 L_tile2')
        a('s_barrier')
        self.lab('L_tile2')
        for u in range(16):
            a(f'ds_read_b128 v[{vW+4*u}:{vW+4*u+3}], v{vT+2} offset:{L_TL+1024*u}')
        self.tile_dot(8, vW, vX, vA, vB, lambda p: a(f's_waitcnt lgkmcnt({min(15, 14-2*p)})'))
        a(f'v_perm_b32 v{vA+4}, v{vA+4}, v{vTC}, {sSEL}')
        self.stamp('tilepub')
        a(f's_cmp_eq_u32 {sW}, 4')
        a('s_cbranch_scc0 L_h1')
        if 'x_noq' in self.exp:
            for b in 'GABCM':
                a('s_barrier')
            a('s_branch L_Z')
        sXC, sNEAR, sN = 's11', 's10', 's9'
        vQ, vQA = vA + 4, vA + 5
        a(f's_getreg_b32 {sXC}, hwreg(HW_REG_XCC_ID, 0, 4)')
        a(f's_lshl_b32 {sXC}, {sXC}, 8')
        a(f'v_cmp_eq_u32 vcc, 0, v{vT+4}')
        a(f'v_mov_b32 v{vT+5}, 0xf00')
        a(f'v_mov_b32 v{vQA}, v{vT+3}')
        a(f'v_cndmask_b32 v{vT+5}, 0, v{vT+5}, vcc')
        a(f'v_bfi_b32 v{vQ}, v{vT+5}, {sXC}, v{vQ}')
        far = f'buffer_store_dword v{vQ}, v{vQA}, {SRD_WS}, 0 offen sc1'
        a(f'buffer_store_dword v{vQ}, v{vQA}, {SRD_WS}, 0 offen' if self.local else far)

        a(f's_mov_b32 {sSA}, 0x0c0c0400')
        a(f's_mov_b32 {sSB}, 0x04000c0c')
        a(f'v_mov_b32 v{vTag}, {sTAG}')
        a(f's_lshl_b32 {sT0}, {sG}, 13')
        a(f's_add_u32 {sT0}, {sT0}, {hex(QBOX)}')
        a(f'v_lshrrev_b32 v{vT}, 5, v{vLane}')
        a(f'v_and_b32 v{vT+1}, 31, v{vLane}')
        a(f'v_lshlrev_b32 v{vT+2}, 11, v{vT}')
        a(f'v_lshlrev_b32 v{vT+3}, 4, v{vT+1}')
        a(f'v_add3_u32 v{vT+2}, v{vT+2}, v{vT+3}, {sT0}')
        a(f's_movk_i32 {sT2}, 0x1000')
        a(f'v_lshrrev_b32 v{vT+1}, 1, v{vT+1}')
        a(f'v_lshlrev_b32 v{vT+1}, 6, v{vT+1}')
        a(f'v_and_b32 v{vT+3}, 1, v{vLane}')
        a(f'v_lshlrev_b32 v{vT+3}, 3, v{vT+3}')
        a(f'v_lshl_add_u32 v{vT+1}, v{vT}, 2, v{vT+1}')
        a(f'v_add_u32 v{vT+1}, v{vT+1}, v{vT+3}')
        ql = [f'buffer_load_dwordx4 v[{vW+8*h+4*b}:{vW+8*h+4*b+3}], v{vT+2}, {SRD_WS}, {sT2 if b else 0} offen offset:{512*h} sc1'
              for h in range(4) for b in range(2)]
        a(f's_mov_b32 {sN}, {self.qtry}')
        ql = [f's_sub_u32 {sN}, {sN}, 1', f's_cmp_lg_u32 {sN}, 0', 's_cbranch_scc1 L_qtry', far, 'L_qtry:'] + ql
        a('s_barrier')
        self.poll(ql, lambda: self.check_quads([vW + 4 * i for i in range(8)], vTag, vT + 4, vT + 5, vT + 6))
        a(f'v_xor_b32 v{vT+4}, {sXC}, v{vW}')
        for i in range(1, 8):
            a(f'v_bitop3_b32 v{vT+4}, v{vW+4*i}, {sXC}, v{vT+4} bitop3:0xbe')
        a(f'v_and_b32 v{vT+4}, 0xf00, v{vT+4}')
        a(f'v_cmp_ne_u32 vcc, 0, v{vT+4}')
        a(f'v_mov_b32 v{vT+5}, {L_FL}')
        a('s_cmp_eq_u64 vcc, 0')
        a(f's_cselect_b32 {sNEAR}, {1 if self.local else 0}, 0')
        a('s_cbranch_scc1 L_qnear')
        a(far)
        self.lab('L_qnear')
        a(f'v_mov_b32 v{vT+4}, {sNEAR}')
        a(f'ds_write_b32 v{vT+5}, v{vT+4}')
        self.stamp('gotq')
        for h in range(4):
            for k in range(4):
                a(f'v_add_f32 v{vW+8*h+k}, v{vW+8*h+k}, v{vW+8*h+4+k}')
        for h in range(4):
            a(f'v_permlane32_swap_b32 v{vW+8*h}, v{vW+8*h+2}')
            a(f'v_permlane32_swap_b32 v{vW+8*h+1}, v{vW+8*h+3}')
        for h in range(4):
            a(f'v_add_f32 v{vW+8*h}, v{vW+8*h}, v{vW+8*h+2}')
            a(f'v_add_f32 v{vW+8*h+1}, v{vW+8*h+1}, v{vW+8*h+3}')
            a(f'v_cvt_pk_bf16_f32 v{vW+8*h}, v{vW+8*h}, v{vW+8*h+1}')
            a(f'ds_write_b32 v{vT+1}, v{vW+8*h} offset:{L_BQ+16*h}')
        self.barrier()
        if 'x_noml' in self.exp:
            for b in 'BCM':
                a('s_barrier')
            a('s_branch L_Z')
        a(f'v_and_b32 v{vT}, 3, v{vLane}')
        a(f'v_lshlrev_b32 v{vT}, 4, v{vT}')
        a(f's_lshl_b32 {sT2}, {sG}, 11')
        a(f's_add_u32 {sT2}, {sT2}, {hex(MLBOX)}')
        a(f's_lshl_b32 {sT1}, {sJ}, 4')
        a(f's_add_u32 {sT0}, {sT2}, {sT1}')
        a(f'v_lshl_add_u32 v{vT+1}, v{vT}, 5, {sT0}')
        a(f's_lshr_b32 {sT1}, {sJ}, 3')
        a(f's_lshl_b32 {sT1}, {sT1}, 9')
        a(f's_add_u32 {sT0}, {sT2}, {sT1}')
        a(f'v_and_b32 v{vT+2}, 31, v{vLane}')
        a(f'v_lshlrev_b32 v{vT+3}, 2, v{vT+2}')
        a(f'v_lshl_add_u32 v{vT+2}, v{vT+2}, 4, {sT0}')
        a(f'v_mov_b32 v{vX+2}, {sTAG}')
        a(f'v_mov_b32 v{vX+3}, {sTAG}')
        a(f's_mov_b32 {sC}, {hex(f2u(math.log2(math.e) / math.sqrt(128.0)))}')
        a('s_barrier')
        a(f'ds_read_b128 v[{vA}:{vA+3}], v{vT} offset:{L_MB}')
        a('s_waitcnt lgkmcnt(0)')
        a(f'v_max3_f32 v{vX}, v{vA}, v{vA+1}, v{vA+2}')
        a(f'v_max_f32 v{vX}, v{vX}, v{vA+3}')
        a('s_barrier')
        a(f'ds_read_b128 v[{vA}:{vA+3}], v{vT} offset:{L_LB}')
        a('s_waitcnt lgkmcnt(0)')
        a(f'v_add_f32 v{vA}, v{vA}, v{vA+2}')
        a(f'v_add_f32 v{vA+1}, v{vA+1}, v{vA+3}')
        a(f'v_add_f32 v{vX+1}, v{vA}, v{vA+1}')
        a('s_mov_b64 exec, 0xf')
        a(f's_cmp_eq_u32 {sNEAR}, 1')
        a('s_cbranch_scc1 L_mlnear')
        a(f'buffer_store_dwordx4 v[{vX}:{vX+3}], v{vT+1}, {SRD_WS}, 0 offen sc1')
        a('s_branch L_mlfar')
        self.lab('L_mlnear')
        a(f'buffer_store_dwordx4 v[{vX}:{vX+3}], v{vT+1}, {SRD_WS}, 0 offen')
        self.lab('L_mlfar')
        a('s_mov_b64 exec, -1')
        a('s_barrier')

        def chk_ml():
            a(f'v_xor_b32 v{vT+4}, {sTAG}, v{vB+2}')
            a(f'v_xor_b32 v{vT+5}, {sTAG}, v{vB+3}')
            a(f'v_or_b32 v{vT+4}, v{vT+4}, v{vT+5}')
            a(f'v_cmp_ne_u32 vcc, 0, v{vT+4}')
        self.poll([f'buffer_load_dwordx4 v[{vB}:{vB+3}], v{vT+2}, {SRD_WS}, 0 offen sc1'], chk_ml)
        mx, y, t = vT + 4, vT + 5, vT + 6
        a(f'v_mov_b32 v{mx}, v{vB}')
        self.inrow_allreduce('v_max_f32', mx, (8, 4, 2, 1))
        self.rows_allreduce('v_max_f32', mx, t, do32=False)
        a(f'v_sub_f32 v{mx}, v{vB}, v{mx}')
        a(f'v_mul_f32 v{mx}, {sC}, v{mx}')
        a(f'v_exp_f32 v{mx}, v{mx}')
        a('s_nop 0')
        a(f'v_mul_f32 v{y}, v{mx}, v{vB+1}')
        self.inrow_allreduce('v_add_f32', y, (8, 4, 2, 1))
        self.rows_allreduce('v_add_f32', y, t, do32=False)
        a(f'v_rcp_f32 v{y}, v{y}')
        a('s_nop 0')
        a(f'v_mul_f32 v{mx}, v{mx}, v{y}')
        a(f'ds_write_b32 v{vT+3}, v{mx} offset:{L_WB}')
        self.stamp('mlw')
        a('s_waitcnt lgkmcnt(0)')
        a('s_branch L_Z')

        self.lab('L_h1')
        if 'x_noh' in self.exp:
            for b in 'ABCM':
                a('s_barrier')
            a('s_branch L_Z')
        if 'x_nohp' not in self.exp:
            a(f'buffer_store_dword v{vA+4}, v{vT+3}, {SRD_WS}, 0 offen {self.hspol}')
        self.srd(SRD_B, 20, 1792 * 1024)
        sFI, sRD, sCD = 's8', 's9', 's10'
        a(f's_mul_i32 {sFI}, {sG}, 28')
        a(f's_add_u32 {sFI}, {sFI}, {sJ}')
        a(f's_lshr_b32 {sRD}, {sFI}, 3')
        a(f's_and_b32 {sCD}, {sFI}, 7')
        a(f's_lshl_b32 {sT0}, {sRD}, 16')
        a(f's_lshl_b32 {sT1}, {sCD}, 7')
        a(f's_add_u32 {sT0}, {sT0}, {sT1}')
        a(f'v_lshrrev_b32 v{vT+2}, 3, v{vLane}')
        a(f'v_lshlrev_b32 v{vT}, 13, v{vT+2}')
        a(f'v_lshlrev_b32 v{vT+2}, 4, v{vT+2}')
        a(f'v_and_b32 v{vT+1}, 7, v{vLane}')
        a(f'v_lshlrev_b32 v{vT+1}, 4, v{vT+1}')
        a(f'v_add3_u32 v{vT}, v{vT}, v{vT+1}, {sT0}')
        a(f's_movk_i32 {sT2}, 0x1000')
        for e in range(8):
            if 'x_nowd' not in self.exp:
                a(f'buffer_load_dwordx4 v[{vW+4*e}:{vW+4*e+3}], v{vT}, {SRD_B}, {sT2 if e >= 4 else 0} offen offset:{(e & 3)*1024} {self.wpol}')
                if self.wdpace:
                    a(f's_waitcnt vmcnt({self.wdpace - 1})')
        a(f's_lshl_b32 {sT0}, {sRD}, 8')
        a(f's_add_u32 {sT0}, {sT0}, {hex(HBOX)}')
        a(f'v_lshl_add_u32 v{vT+1}, v{vLane}, 2, {sT0}')
        a(f'v_and_b32 v{vT+3}, 3, v{vLane}')
        a(f'v_lshlrev_b32 v{vT+3}, 3, v{vT+3}')
        a(f'v_lshrrev_b32 v{vTB}, v{vT+3}, {sTAG}')
        a(f'v_lshlrev_b32 v{vT+3}, 1, v{vLane}')
        a(f's_lshl_b32 {sT0}, {sCD}, 13')
        a(f's_lshl_b32 {sT1}, {sRD}, 8')
        a(f's_add_u32 {sT0}, {sT0}, {sT1}')
        a(f's_add_u32 {sT0}, {sT0}, {hex(FBOX)}')
        a(f'v_add_u32 v{vCol}, {sT0}, v{vCol}')
        for b in 'ABC':
            a('s_barrier')
        if 'x_nohg' in self.exp:
            a('s_barrier')
            a('s_branch L_Z')
        hl = []
        for k in range(8):
            if k:
                hl.append(f's_movk_i32 {sT2}, {k*7168 - (0 if k < 4 else 0x7000)}')
            if k == 4:
                hl.append(f'v_add_u32 v{vT+4}, 0x7000, v{vT+1}')
            hl.append(f'buffer_load_dword v{vB+k}, v{vT+1 if k < 4 else vT+4}, {SRD_WS}, {sT2 if k else 0} offen sc1')

        def chk_h():
            a(f'v_xor_b32 v{vT+4}, v{vB}, v{vTB}')
            for k in range(1, 8):
                a(f'v_bitop3_b32 v{vT+4}, v{vB+k}, v{vTB}, v{vT+4} bitop3:0xbe')
            a(f'v_and_b32 v{vT+4}, 0xff, v{vT+4}')
            a(f'v_cmp_ne_u32 vcc, 0, v{vT+4}')
        self.poll(hl, chk_h, sleep=0)
        for b in (vB, vB + 4):
            a(f'v_add_f32 v{b}, v{b}, v{b+1}')
            a(f'v_add_f32 v{b+2}, v{b+2}, v{b+3}')
            a(f'v_add_f32 v{b}, v{b}, v{b+2}')
            self.bf16r(b, b)
        self.silu_bf16(vB + 1, vB, vB + 2)
        a(f'v_mul_f32 v{vB+1}, v{vB+1}, v{vB+4}')
        a(f'v_cvt_pk_bf16_f32 v{vB+1}, v{vB+1}, v{vB+1}')
        a(f'ds_write_b16 v{vT+3}, v{vB+1} offset:{L_HB}')
        a('s_waitcnt lgkmcnt(0)')
        a(f'ds_read_b128 v[{vX}:{vX+3}], v{vT+2} offset:{L_HB}')
        a('s_waitcnt lgkmcnt(0)')
        self.tile_dot(4, vW, vX, vA, vB, lambda p: None)
        a(f'v_perm_b32 v{vA+4}, v{vA+4}, v{vTC}, {sSEL}')
        a(f'buffer_store_dword v{vA+4}, v{vCol}, {SRD_WS}, 0 offen sc1')
        self.stamp('fpub')
        a('s_barrier')
        a('s_branch L_Z')

        self.lab('L_h23')
        if self.tlb:
            a(f's_cmp_lg_u32 {sW}, 7')
            a('s_cbranch_scc1 L_h23b')
            a(f's_and_b32 {sT0}, {sJ}, 3')
            a(f's_lshl_b32 {sT1}, {sT0}, 20')
            a(f's_load_dword s28, s[10:11], {sT1}')
            a(f's_mul_i32 {sT1}, {sT0}, {128*3584}')
            a(f's_load_dword s29, s[16:17], {sT1}')
            a(f's_load_dword s30, s[18:19], {sT1}')
            a(f's_lshl_b32 {sT0}, {sG}, 23')
            a(f's_lshl_b32 {sT1}, {sJ}, 18')
            a(f's_add_u32 {sT0}, {sT0}, {sT1}')
            a(f's_load_dword s31, s[8:9], {sT0}')
            a(f's_lshr_b32 {sT0}, {sT0}, 4')
            a(f's_load_dword s32, s[12:13], {sT0}')
            a('s_load_dword s33, s[20:21], 0')
            a('s_load_dword s34, s[20:21], 0xffffc')
            a('s_load_dword s35, s[22:23], 0')
            self.lab('L_h23b')
        a('s_waitcnt lgkmcnt(0)')
        self.make_tag()
        if self.adapt:
            a(f's_cmp_eq_u32 {sW}, 7')
            a('s_cbranch_scc1 L_h3')
        for b in 'TGABCM':
            a('s_barrier')
        if 'x_noh' in self.exp or 'x_nohg' in self.exp or 'x_nofg' in self.exp:
            a('s_branch L_Z')
        a(f's_cmp_lg_u32 {sW}, 6')
        a('s_cbranch_scc1 L_Z')
        a(f's_cmp_ge_u32 s2, {NCONS}')
        a('s_cbranch_scc1 L_Z')
        lpp = CPC // 4
        ppl = 64 // lpp
        nl = -(-28 // ppl)
        last = (28 - (nl - 1) * ppl) * lpp
        a(f'v_mov_b32 v{vTag}, {sTAG}')
        a(f's_mov_b32 {sSA}, 0x0c0c0400')
        a(f's_mov_b32 {sSB}, 0x04000c0c')
        a(f's_lshr_b32 {sT0}, s2, {6-lg}')
        a(f's_lshl_b32 {sT0}, {sT0}, 13')
        a(f's_and_b32 {sT1}, s2, {64//CPC - 1}')
        a(f's_lshl_b32 {sT1}, {sT1}, {lg+2}')
        a(f's_add_u32 {sT0}, {sT0}, {sT1}')
        a(f's_add_u32 {sT0}, {sT0}, {hex(FBOX)}')
        a(f'v_and_b32 v{vT+1}, {lpp-1}, v{vLane}')
        a(f'v_lshlrev_b32 v{vT+2}, 4, v{vT+1}')
        a(f'v_lshrrev_b32 v{vT}, {lg-2}, v{vLane}')
        a(f'v_lshlrev_b32 v{vT}, 8, v{vT}')
        a(f'v_add3_u32 v{vT}, v{vT}, v{vT+2}, {sT0}')
        a(f'v_lshrrev_b32 v{vT+2}, 4, v{vLane}')
        a(f'v_lshl_add_u32 v{vT+1}, v{vT+1}, 2, v{vT+2}')
        a(f's_lshl_b32 {sT0}, s2, {lg+1}')
        a(f'v_lshl_add_u32 v{vT+2}, v{vT+1}, 1, {sT0}')
        a(f'v_lshlrev_b32 v{vT+1}, 2, v{vT+1}')
        a(f'buffer_load_short_d16_hi v{vT+3}, v{vT+2}, {SRD_X}, 0 offen')
        if self.touch:
            self.srd(SRD_OUT, 22, 1024)
            a(f'buffer_load_short_d16_hi v{vT+7}, v{vT+2}, {SRD_OUT}, 0 offen')
        for k in range(4):
            a(f'v_bfe_u32 v{vW+4*(nl-1)+k}, v{vTag}, {8*k}, 8')
        fl = []
        for u in range(nl):
            off = u * ppl * 256
            if u == nl - 1 and last < 64:
                fl.append(f's_mov_b32 exec_lo, {hex(((1 << last) - 1) & 0xffffffff)}')
                fl.append(f's_mov_b32 exec_hi, {hex(((1 << last) - 1) >> 32)}')
            if off >= 4096:
                fl.append(f's_movk_i32 {sT2}, {hex(off & ~4095)}')
            fl.append(f'buffer_load_dwordx4 v[{vW+4*u}:{vW+4*u+3}], v{vT}, {SRD_WS}, {sT2 if off >= 4096 else 0} offen offset:{off & 4095} sc1')
        fl.append('s_mov_b64 exec, -1')
        self.poll(fl, lambda: self.check_quads([vW + 4 * u for u in range(nl)], vTag, vT + 4, vT + 5, vT + 6), sleep=0)
        for u in range(1, nl):
            for k in range(4):
                a(f'v_add_f32 v{vW+k}, v{vW+k}, v{vW+4*u+k}')
        self.quad_reduce(vW, lpp)
        self.bf16r(vW, vW)
        self.silu_bf16(vT + 4, vW, vT + 5)
        a(f'ds_write_b32 v{vT+1}, v{vT+4} offset:{L_GB}')
        a(f'ds_write_b32 v{vT+1}, v{vT+3} offset:{L_XB}')
        a(f'v_mov_b32 v{vT+4}, {L_CT}')
        a(f'v_mov_b32 v{vT+5}, 0')
        a(f'ds_write_b32 v{vT+4}, v{vT+5}')
        a('s_branch L_Z')
        if self.adapt:
            self.lab('L_h3')
            a(f'v_mov_b32 v{vT}, {L_AD}')
            a(f'v_mov_b32 v{vT+1}, 0')
            a(f'ds_write_b32 v{vT}, v{vT+1}')
            a(f's_lshl_b32 {sT1}, {sG}, 7')
            a(f's_add_u32 {sT1}, {sT1}, {hex(RBOX)}')
            a(f'v_and_b32 v{vT+2}, 31, v1')
            a(f'v_lshl_add_u32 v{vT+2}, v{vT+2}, 2, {sT1}')
            a(f's_lshl_b32 {sT0}, {sJ}, 2')
            a(f's_add_u32 {sT1}, {sT1}, {sT0}')
            a(f'v_mov_b32 v{vT+3}, {sT1}')
            a(f'v_mov_b32 v{vT+4}, {sTAG}')
            a('s_waitcnt lgkmcnt(0)')
            k = 0
            for b in 'TGABCM':
                a('s_barrier')
                if b in self.adapt[2]:
                    a('s_mov_b64 exec, 1')
                    a(f'buffer_store_dword v{vT+4}, v{vT+3}, {SRD_WS}, 0 offen offset:{1024*k}')
                    a('s_mov_b64 exec, -1')
                    a(f'buffer_load_dword v{vT+5}, v{vT+2}, {SRD_WS}, 0 offen offset:{1024*k} sc1')
                    a('s_waitcnt vmcnt(0)')
                    a(f'v_cmp_eq_u32 vcc, v{vT+4}, v{vT+5}')
                    a(f's_bcnt1_i32_b32 {sT0}, vcc_lo')
                    a(f's_cmp_gt_u32 {sT0}, {self.adapt[1]}')
                    a(f's_cselect_b32 {sT0}, 1, 0')
                    a(f'v_mov_b32 v{vT+1}, {sT0}')
                    a(f'ds_write_b32 v{vT}, v{vT+1}')
                    k += 1
            a('s_branch L_Z')


def gen(**kw):
    g = G(**kw)
    s = g.gen()
    return s, g.stamp_names


if __name__ == '__main__':
    kw = eval('dict(' + (sys.argv[2] if len(sys.argv) > 2 else '') + ')')
    s, _ = gen(**kw)
    open(sys.argv[1], 'w').write(s)
```

```python
import math, struct, sys

NAME = 'recurrent_scan__gqa_block_cached__swiglu_ffn__decode_kernel'

HEADER = """; Kernarg layout for this problem (96 bytes, ptrs only, base s[0:1]):
"""


def f2u(x):
    return struct.unpack('<I', struct.pack('<f', x))[0]


QBOX  = 0x010000
HBOX  = 0x020000
MLBOX = 0x030000
OBOX  = 0x080000
FBOX  = 0x040000
SBOX  = 0x100000
RBOX  = 0x038000
STAMP = 0x800000

L_BQ = 0
L_XN = 1024
L_MB = 3072
L_LB = 3200
L_WB = 3312
L_GB = 3440
L_XB = 3568
L_O2 = 3696
L_S2 = 4208
L_CT = 5236
L_AD = 5240
L_FL = 5244
L_HB = 5248
L_A  = 1024
L_OB = 5376
L_WO = 5376 + 16384
L_TL = 5376
LDS_BYTES = L_TL + 2 * 16384

SRD_A, SRD_B, SRD_X, SRD_C, SRD_OUT, SRD_WS = [f's[{b}:{b+3}]' for b in range(28, 52, 4)]
sG, sJ, sW, sTAG, sOFF, sT0, sT1, sT2, sPLO, sPHI, sC, sCNT = [f's{i}' for i in range(52, 64)]
sL2E, sSEL, sSA, sSB, sLOC = 's3', 's64', 's65', 's66', 's67'
STAMP_BASE = 68
NVGPR = 256
RING = 44
RING0 = NVGPR - 4 * RING


class G:
    def __init__(self, Ds=((0, 7), (16, 5), (104, 8)), pol='nt', wpol='nt', opol='nt', CPC=32, stamps=False, kfirst=1, nG=18, nA=44, nM=44,
                 spin=200000, padk=7, prio=0, sl1=0, sl2=0, sorder=False, spol='sc1', lpol='sc1', ospol='', olpol='sc1', local=True, touch=False, tlb=False, diag=None, pp1=None, pp2=1, lastwave=True, split=False, adapt=None, wavefin=False, qtry=4, hspol='sc1', wdpace=0, qspol='sc1', mspol='sc1', exp=()):
        self.__dict__.update(locals())
        if diag:
            self.stamps = (diag[0],) + tuple(diag[3:4])
        self.L = []
        self.vm = []
        self.nlab = 0
        self.stamp_names = []
        self.padding = False
        self.npad = 0
        self.since_pad = 0

    def a(self, s):
        self.L.append('    ' + s)
        if self.padding:
            self.since_pad += 1
            if self.since_pad >= self.padk:
                self.pad()

    def pad(self):
        self.L.append(f'L_pad_{self.npad}:')
        self.L.append(f'    s_cbranch_execz L_pad_{self.npad+1}')
        self.npad += 1
        self.since_pad = 0

    def lab(self, s):
        self.L.append(s + ':')

    def newlab(self, p):
        self.nlab += 1
        return f'L_{p}_{self.nlab}'

    def load(self, name, text):
        self.a(text)
        self.vm.append(name)

    def wait(self, name):
        n = len(self.vm) - 1 - self.vm.index(name)
        assert n <= 63
        self.a(f's_waitcnt vmcnt({n})')

    def stamp(self, name):
        if not self.stamps:
            return
        if self.stamps is True:
            if name.startswith('_'):
                return
        elif name not in self.stamps and name not in ('start', 'end'):
            return
        i = len(self.stamp_names)
        assert STAMP_BASE + 2 * i + 1 <= 101
        self.a(f's_memrealtime s[{STAMP_BASE+2*i}:{STAMP_BASE+2*i+1}]')
        self.stamp_names.append(name)

    def dpp(self, op, d, s0, s1, ctl, bank=0xf):
        self.a(f'{op}_dpp v{d}, v{s0}, v{s1} {ctl} row_mask:0xf bank_mask:{hex(bank)}')

    def rows_allreduce(self, op, v, t, do16=True, do32=True):
        if do16:
            self.a(f'v_mov_b32 v{t}, v{v}')
            self.a('s_nop 1')
            self.a(f'v_permlane16_swap_b32 v{v}, v{t}')
            self.a(f'{op} v{v}, v{v}, v{t}')
        if do32:
            self.a(f'v_mov_b32 v{t}, v{v}')
            self.a('s_nop 1')
            self.a(f'v_permlane32_swap_b32 v{v}, v{t}')
            self.a(f'{op} v{v}, v{v}, v{t}')

    def inrow_allreduce(self, op, v, rots):
        for r in rots:
            self.a('s_nop 1')
            self.dpp(op, v, v, v, f'row_ror:{r}')

    def bf16r(self, d, s):
        self.a(f'v_cvt_pk_bf16_f32 v{d}, v{s}, v{s}')
        self.a(f'v_and_b32 v{d}, 0xffff0000, v{d}')

    def sum8(self, d, b):
        for k in range(4):
            self.a(f'v_add_f32 v{b+k}, v{b+k}, v{b+4+k}')
        self.a(f'v_add_f32 v{b}, v{b}, v{b+2}')
        self.a(f'v_add_f32 v{b+1}, v{b+1}, v{b+3}')
        self.a(f'v_add_f32 v{d}, v{b}, v{b+1}')

    def max8(self, d, b, t):
        self.a(f'v_max3_f32 v{d}, v{b}, v{b+1}, v{b+2}')
        self.a(f'v_max3_f32 v{t}, v{b+3}, v{b+4}, v{b+5}')
        self.a(f'v_max3_f32 v{d}, v{d}, v{b+6}, v{b+7}')
        self.a(f'v_max_f32 v{d}, v{d}, v{t}')

    def silu_bf16(self, d, x, t):
        self.a(f'v_mul_f32 v{t}, {hex(f2u(math.log2(math.e)))}, v{x}')
        self.a(f'v_exp_f32 v{t}, -v{t}')
        self.a('s_nop 0')
        self.a(f'v_add_f32 v{t}, 1.0, v{t}')
        self.a(f'v_rcp_f32 v{t}, v{t}')
        self.a('s_nop 0')
        self.a(f'v_mul_f32 v{t}, v{x}, v{t}')
        self.bf16r(d, t)

    def make_tag(self):
        self.a(f's_and_b32 {sT0}, {sTAG}, 0x7f7f7f7f')
        self.a(f's_add_u32 {sT0}, {sT0}, 0x47611b35')
        self.a(f's_and_b32 {sTAG}, {sTAG}, 0x80808080')
        self.a(f's_xor_b32 {sTAG}, {sTAG}, {sT0}')

    def check_quads(self, quads, vtag, t0, t1, t2):
        for i, q in enumerate(quads):
            self.a(f'v_perm_b32 v{t0}, v{q+1}, v{q}, {sSA}')
            self.a(f'v_perm_b32 v{t1}, v{q+3}, v{q+2}, {sSB}')
            if i == 0:
                self.a(f'v_bitop3_b32 v{t2}, v{t0}, v{t1}, v{vtag} bitop3:0x56')
            else:
                self.a(f'v_bitop3_b32 v{t0}, v{t0}, v{t1}, v{vtag} bitop3:0x56')
                self.a(f'v_or_b32 v{t2}, v{t2}, v{t0}')
        self.a(f'v_cmp_ne_u32 vcc, 0, v{t2}')

    def poll(self, loads, check, first_issued=False, sleep=0):
        again, done = self.newlab('again'), self.newlab('done')
        self.a(f's_mov_b32 {sCNT}, {self.spin}')
        if first_issued:
            check()
            self.a(f's_cbranch_vccz {done}')
        first = None
        if sleep and not first_issued:
            first = self.newlab('first')
            self.a(f's_branch {first}')
        self.lab(again)
        if sleep:
            self.a(f's_sleep {sleep}')
        if first:
            self.lab(first)
        for x in loads:
            self.a(x)
        self.a(f's_sub_u32 {sCNT}, {sCNT}, 1')
        self.a('s_waitcnt vmcnt(0)')
        self.a(f's_cbranch_scc1 {done}')
        check()
        self.a(f's_cbranch_vccnz {again}')
        self.lab(done)

    def ppoll(self, mk, check, base, P, preissued, first_done=False):
        a = self.a
        done = self.newlab('pdone')
        hit = [self.newlab('phit') for _ in range(P)]
        again = self.newlab('pagain')
        a(f's_mov_b32 {sCNT}, {self.spin}')
        if first_done:
            check(base)
            a(f's_cbranch_vccz {done}')
        for b in range(P - 1):
            if b >= preissued:
                a(mk(base + 4 * b))
        self.lab(again)
        for b in range(P):
            a(mk(base + 4 * ((b + P - 1) % P)))
            a(f's_waitcnt vmcnt({P-1})')
            check(base + 4 * b)
            a(f's_cbranch_vccz {hit[b]}')
        a(f's_sub_u32 {sCNT}, {sCNT}, 1')
        a(f's_cbranch_scc0 {again}')
        for b in range(P - 1, 0, -1):
            self.lab(hit[b])
            for k in range(4):
                a(f'v_mov_b32 v{base+4*P+k}, v{base+4*b+k}')
            a(f's_branch {done}x')
        self.lab(hit[0])
        self.lab(done)
        for k in range(4):
            a(f'v_mov_b32 v{base+4*P+k}, v{base+k}')
        self.lab(done + 'x')
        return base + 4 * P

    def quad_reduce(self, v, lpp):
        self.a('s_nop 1')
        self.a(f'v_permlane32_swap_b32 v{v}, v{v+2}')
        self.a(f'v_permlane32_swap_b32 v{v+1}, v{v+3}')
        self.a(f'v_add_f32 v{v}, v{v}, v{v+2}')
        self.a(f'v_add_f32 v{v+1}, v{v+1}, v{v+3}')
        self.a('s_nop 1')
        self.a(f'v_permlane16_swap_b32 v{v}, v{v+1}')
        self.a(f'v_add_f32 v{v}, v{v}, v{v+1}')
        self.inrow_allreduce('v_add_f32', v, [r for r in (8, 4, 2) if r >= lpp])

    def tile_dot(self, npairs, vW, vX, vA, vB, waitp):
        a = self.a
        for p in range(npairs):
            waitp(p)
            w0, w1 = vW + 8 * p, vW + 8 * p + 4
            for e in range(8):
                a(f'v_perm_b32 v{vB+e}, v{w1+(e>>1)}, v{w0+(e>>1)}, {sPHI if e & 1 else sPLO}')
            for e in range(8):
                a(f'v_dot2_f32_bf16 v{vA+e}, v{vB+e}, v{vX+p}, {"0" if p == 0 else f"v{vA+e}"}')
        a('s_nop 2')
        for e in range(4):
            a(f'v_permlane32_swap_b32 v{vA+e}, v{vA+e+4}')
        for e in range(4):
            a(f'v_add_f32 v{vA+e}, v{vA+e}, v{vA+e+4}')
        a('s_nop 0')
        for e in range(2):
            a(f'v_permlane16_swap_b32 v{vA+e}, v{vA+e+2}')
        for e in range(2):
            a(f'v_add_f32 v{vA+e}, v{vA+e}, v{vA+e+2}')
        a('s_nop 0')
        self.dpp('v_add_f32', vA + 4, vA, vA, 'row_ror:8', 0x3)
        a('s_nop 1')
        self.dpp('v_add_f32', vA + 4, vA + 1, vA + 1, 'row_ror:8', 0xc)

    def srd(self, srd, p, nbytes):
        b = int(srd[2:srd.index(':')])
        self.a(f's_mov_b64 s[{b}:{b+1}], s[{p}:{p+1}]')
        self.a(f's_mov_b32 s{b+2}, {hex(nbytes)}')
        self.a(f's_mov_b32 s{b+3}, 0x20000')

    def barrier(self):
        self.a('s_waitcnt lgkmcnt(0)')
        if 'nobar' not in self.exp:
            self.a('s_barrier')

    def slot(self, n):
        return RING0 + 4 * (n % RING)

    def depth(self, m):
        return [d for f, d in self.Ds if m >= f][-1]

    def need(self, name):
        k = self.seq.index(name)
        assert k < self.m, name
        if k > self.landed:
            self.wait(name)
            self.landed = k

    def has(self, name):
        return self.seq.index(name) <= self.landed

    def step(self):
        if self.m >= len(self.seq):
            return
        k = self.m - self.depth(self.m)
        if self.adapting:
            k2 = k - self.adapt[0]
            if k2 > self.landed:
                self.wait(self.seq[k2])
                self.landed = k2
            if k > self.landed:
                skip = self.newlab('deep')
                self.a(f's_cbranch_vccnz {skip}')
                self.wait(self.seq[k])
                self.lab(skip)
        elif k > self.landed:
            self.wait(self.seq[k])
            self.landed = k
        if self.adapt and self.m in self.pick:
            self.a(f'ds_read_b32 v78, v79')
        if self.adapt and self.m - 1 in self.pick:
            self.a('s_waitcnt lgkmcnt(0)')
            self.a('v_cmp_ne_u32 vcc, 0, v78')
            self.adapting = True
        name = self.seq[self.m]
        kind, i = name[0], int(name[1:])
        if kind in 'KV':
            n = i + (64 if kind == 'V' else 0)
            old = n - RING
            assert old < 0 or (old < 64 and old < 4 * self.beta) or (old >= 64 and old - 64 < 4 * self.tau), name
            r = self.slot(n)
            srd, vo, off, dst, tailtxt = (SRD_A if kind == 'K' else SRD_B), (2 if kind == 'K' else 3), i * 4096, f'v[{r}:{r+3}], ', self.pol
        else:
            if i == 0:
                self.tile_setup(kind)
            srd, vo = (SRD_X, 76) if kind == 'Q' else (SRD_C, 77)
            off, dst, tailtxt = i * ((8192 if kind == 'Q' else 3584) - 1024), '', f'offset:{i*1024} {self.wpol} lds'
        so = '0'
        if off:
            self.a(f's_mov_b32 {sOFF}, {hex(off)}')
            so = sOFF
        self.load(name, f'buffer_load_dwordx4 {dst}v{vo}, {srd}, {so} offen {tailtxt}')
        self.stamp('_' + name)
        self.m += 1

    def steps_until(self, name):
        while self.seq[self.m] != name:
            self.step()

    def tile_setup(self, kind):
        a, vT = self.a, 60
        if kind == 'Q':
            self.srd(SRD_X, 10, 4 << 20)
            a(f's_and_b32 {sT0}, {sJ}, 3')
            a(f's_lshl_b32 {sT0}, {sT0}, 7')
            a(f's_lshl_b32 {sT1}, {sW}, 2')
            a(f's_add_u32 {sT0}, {sT0}, {sT1}')
            a(f'v_lshrrev_b32 v{vT}, 3, v1')
            a(f'v_lshl_add_u32 v{vT}, v{vT}, 4, {sT0}')
            a(f'v_and_b32 v{vT+1}, 7, v1')
            a(f'v_lshlrev_b32 v{vT+1}, 4, v{vT+1}')
            a(f's_lshr_b32 {sT2}, {sJ}, 2')
            a(f's_lshl_b32 {sT0}, {sG}, 10')
            a(f's_lshl_b32 {sT1}, {sT2}, 7')
            a(f's_add_u32 {sT0}, {sT0}, {sT1}')
            a(f'v_lshlrev_b32 v76, 13, v{vT}')
            a(f'v_add3_u32 v76, v76, v{vT+1}, {sT0}')
            a(f's_lshl_b32 {sT1}, {sW}, 12')
            a(f's_add_u32 m0, {sT1}, {L_TL}')
            a('s_nop 0')
        else:
            a(f's_lshl_b32 {sT2}, {sT2}, 3')
            a(f's_add_u32 {sT2}, {sT2}, {sG}')
            a(f's_sub_u32 {sT0}, {sT2}, 28')
            a(f's_cmp_ge_u32 {sT2}, 28')
            a(f's_cselect_b32 {sT2}, {sT0}, {sT2}')
            a('s_cselect_b64 s[40:41], s[18:19], s[16:17]')
            a(f's_mov_b32 s42, {hex(512*3584)}')
            a('s_mov_b32 s43, 0x20000')
            a(f's_lshl_b32 {sT2}, {sT2}, 7')
            a(f's_cmp_ge_u32 {sJ}, 28')
            a(f's_cselect_b32 {sT2}, 0x10000000, {sT2}')
            a(f's_add_u32 m0, {sT1}, {L_TL + 16384}')
            a(f'v_mul_u32_u24 v77, 3584, v{vT}')
            a(f'v_add3_u32 v77, v77, v{vT+1}, {sT2}')

    def qk_batch(self):
        beta = self.beta
        half, t = beta >> 2, beta & 3
        Dr, P0, Bq = 36, 4, 52
        self.need(f'K{4*beta+3}')
        self.beta += 1
        if 'noqk' in self.exp:
            return
        for gam in range(4):
            r = self.slot(4 * beta + gam)
            self.a(f'v_mfma_f32_16x16x32_bf16 v[{Dr+4*gam}:{Dr+4*gam+3}], v[{r}:{r+3}], v[{Bq}:{Bq+3}], 0')
        self.a('s_nop 5')
        for k in (1, 2, 3):
            for gam in range(4):
                P = P0 + 4 * half + gam
                d = Dr + 4 * gam
                self.dpp('v_add_f32', P, d + ((t + k) & 3), d + t if k == 1 else P, f'row_ror:{16-4*k}', 1 << t)

    def pv_group(self):
        tau = self.tau
        B = 36
        self.tau += 1
        for pair in range(2):
            v0 = self.slot(64 + 4 * tau + 2 * pair)
            v1 = self.slot(64 + 4 * tau + 2 * pair + 1)
            self.need(f'V{4*tau+2*pair+1}')
            if 'nopv' in self.exp:
                continue
            for e in range(8):
                self.a(f'v_perm_b32 v{B+2*e+pair}, v{v1+(e>>1)}, v{v0+(e>>1)}, {sPHI if e & 1 else sPLO}')
        if 'nopv' in self.exp:
            return
        PA = 52 + 2 * (tau >> 2)
        for e in range(8):
            ac = 4 + 4 * e
            c = '0' if tau == 0 else f'v[{ac}:{ac+3}]'
            self.a(f'v_mfma_f32_4x4x4_16b_bf16 v[{ac}:{ac+3}], v[{PA}:{PA+1}], v[{B+2*e}:{B+2*e+1}], {c} cbsz:2 abid:{tau & 3}')

    def gen(self):
        a = self.a
        self.L.append(f'; @launch grid=(256,1,1) block=(512,1,1) lds={LDS_BYTES}')
        self.L.append('.amdgcn_target "amdgcn-amd-amdhsa--gfx950"')
        self.L.append('.text')
        self.L.append(f'.globl {NAME}')
        self.L.append('.p2align 8')
        self.L.append(f'.type {NAME},@function')
        self.lab(NAME)
        a('s_load_dwordx16 s[4:19], s[0:1], 0')
        if not self.split:
            a('s_load_dwordx8 s[20:27], s[0:1], 64')
        if self.stamps:
            for i in range(STAMP_BASE, 102, 2):
                if not self.diag:
                    a(f's_mov_b64 s[{i}:{i+1}], 0')
            self.stamp('start')
        a('s_cmp_ge_u32 s2, 0x100')
        a('s_cbranch_scc1 L_end')
        a('v_lshrrev_b32 v4, 6, v0')
        a('v_and_b32 v1, 63, v0')
        a(f'v_readfirstlane_b32 {sW}, v4')
        a(f's_and_b32 {sG}, s2, 7')
        a(f's_lshr_b32 {sJ}, s2, 3')
        a(f's_cmp_ge_u32 {sW}, 4')
        a('s_cbranch_scc1 L_helper')
        self.stream_wave()
        self.tail()
        if self.local:
            self.far_store()
        self.helpers()
        self.lab('L_exit0')
        if self.stamps and not self.diag:
            a('s_mov_b64 exec, -1')
        self.lab('L_exit')
        if self.stamps and not self.diag:
            self.stamp('end')
            a('s_waitcnt lgkmcnt(0)')
            a('v_mov_b32 v4, 0')
            for i in range(len(self.stamp_names)):
                a(f'v_writelane_b32 v4, s{STAMP_BASE+2*i}, {i}')
            a(f's_getreg_b32 {sT1}, hwreg(HW_REG_XCC_ID)')
            a(f'v_writelane_b32 v4, {sT1}, 63')
            a(f's_getreg_b32 {sT1}, hwreg(HW_REG_HW_ID)')
            a(f'v_writelane_b32 v4, {sT1}, 62')
            a(f's_lshl_b32 {sT0}, s2, 3')
            a(f's_add_u32 {sT0}, {sT0}, {sW}')
            a(f's_lshl_b32 {sT0}, {sT0}, 8')
            a(f's_add_u32 {sT0}, {sT0}, {hex(STAMP)}')
            a(f'v_lshl_add_u32 v5, v1, 2, {sT0}')
            a(f'buffer_store_dword v4, v5, {SRD_WS}, 0 offen')
        self.lab('L_end')
        a('s_endpgm')
        self.L += ['.section .rodata,"a"', '.p2align 6', f'.amdhsa_kernel {NAME}',
                   f'  .amdhsa_next_free_vgpr {NVGPR}', '  .amdhsa_next_free_sgpr 102', f'  .amdhsa_accum_offset {NVGPR}',
                   '  .amdhsa_group_segment_fixed_size 0', '  .amdhsa_kernarg_size 96',
                   '  .amdhsa_user_sgpr_count 2', '  .amdhsa_user_sgpr_kernarg_segment_ptr 1',
                   '  .amdhsa_system_sgpr_workgroup_id_x 1',
                   '  .amdhsa_float_denorm_mode_32 3', '.end_amdhsa_kernel']
        return HEADER + '\n'.join(self.L) + '\n'

    def stream_wave(self):
        a = self.a
        vP, vD, vPA, vBq, vT = 4, 36, 52, 52, 60
        assert RING0 == 80
        kf = self.kfirst
        self.seq = [f'K{i}' for i in range(kf)] + [f'Q{i}' for i in range(4)] + [f'F{i}' for i in range(4)] + \
                   [f'K{i}' for i in range(kf, 64)] + [f'V{i}' for i in range(64)]
        self.m = self.beta = self.tau = 0
        self.landed = -1
        self.adapting = False
        self.pick = set()
        self.vm = []
        a(f's_lshl_b32 {sT0}, {sG}, 23')
        a(f's_lshl_b32 {sT1}, {sJ}, 18')
        a(f's_add_u32 {sT0}, {sT0}, {sT1}')
        a(f's_lshl_b32 {sT1}, {sW}, 10')
        a(f's_add_u32 {sT0}, {sT0}, {sT1}')
        a(f'v_bfe_u32 v{vT}, v1, 2, 2')
        a(f'v_lshlrev_b32 v{vT}, 8, v{vT}')
        a(f'v_and_b32 v{vT+1}, 3, v1')
        a(f'v_lshl_add_u32 v{vT}, v{vT+1}, 4, v{vT}')
        a(f'v_lshrrev_b32 v{vT+2}, 4, v1')
        a(f'v_lshlrev_b32 v{vT+2}, 6, v{vT+2}')
        a(f'v_add3_u32 v2, v{vT}, v{vT+2}, {sT0}')
        a(f'v_lshl_add_u32 v3, v1, 4, {sT0}')
        a('s_waitcnt lgkmcnt(0)')
        self.srd(SRD_A, 6, 64 << 20)
        self.steps_until('F0')
        self.stamp('issued0')
        if self.split:
            a('s_load_dwordx8 s[20:27], s[0:1], 64')
        else:
            a(f's_load_dword {sTAG}, s[26:27], 0')
            self.srd(SRD_WS, 26, 256 << 20)
        self.srd(SRD_B, 8, 64 << 20)
        a(f's_mov_b32 {sPLO}, 0x05040100')
        a(f's_mov_b32 {sPHI}, 0x07060302')
        a(f's_mov_b32 {sC}, {hex(f2u(math.log2(math.e) / math.sqrt(128.0)))}')
        while not self.has('Q3'):
            self.step()
        self.stamp('preT')
        a('s_barrier')
        if self.split:
            a('s_waitcnt lgkmcnt(0)')
            a(f's_load_dword {sTAG}, s[26:27], 0')
            self.srd(SRD_WS, 26, 256 << 20)
        self.steps_until(f'K{self.nG}')
        assert self.has('F3')
        a('s_barrier')
        if self.adapt:
            a(f'v_mov_b32 v79, {L_AD}')
            if 'G' in self.adapt[2]:
                self.pick.add(self.m + self.adapt[3])
        self.steps_until(f'K{self.nA}')
        a(f'v_lshlrev_b32 v{vT}, 4, v1')
        self.stamp('preA')
        self.barrier()
        a(f'ds_read_b128 v[{vBq}:{vBq+3}], v{vT} offset:{L_BQ}')
        self.stamp('A')
        if self.adapt:
            a(f'v_mov_b32 v79, {L_AD}')
            if 'A' in self.adapt[2]:
                self.pick.add(self.m + self.adapt[3])
        self.make_tag()
        a(f'v_and_b32 v{vT+6}, 3, v1')
        a(f'v_lshlrev_b32 v{vT+6}, 4, v{vT+6}')
        a(f's_lshl_b32 {sT0}, {sW}, 2')
        a(f'v_add_u32 v{vT+7}, {sT0}, v{vT+6}')
        a('s_waitcnt lgkmcnt(0)')
        while self.beta < 16:
            nxt = self.seq[self.m]
            if int(nxt[1:]) + (64 if nxt[0] == 'V' else 0) - RING >= 4 * self.beta:
                self.qk_batch()
            self.step()
            if self.beta < 16 and self.has(f'K{4*self.beta+3}'):
                self.qk_batch()
        self.max8(vT, vP, vT + 1)
        self.max8(vT + 2, vP + 8, vT + 1)
        a(f'v_max_f32 v{vT}, v{vT}, v{vT+2}')
        self.inrow_allreduce('v_max_f32', vT, (8, 4))
        self.rows_allreduce('v_max_f32', vT, vT + 1)
        a(f'ds_write_b32 v{vT+7}, v{vT} offset:{L_MB}')
        self.step()
        self.stamp('_preB')
        self.barrier()
        a(f'ds_read_b128 v[{vD}:{vD+3}], v{vT+6} offset:{L_MB}')
        a('s_waitcnt lgkmcnt(0)')
        a(f'v_max3_f32 v{vT}, v{vD}, v{vD+1}, v{vD+2}')
        a(f'v_max_f32 v{vT}, v{vT}, v{vD+3}')
        a(f'v_mul_f32 v{vT}, {sC}, v{vT}')
        for i in range(16):
            a(f'v_fma_f32 v{vP+i}, v{vP+i}, {sC}, -v{vT}')
        self.step()
        for i in range(16):
            a(f'v_exp_f32 v{vP+i}, v{vP+i}')
        self.step()
        for i in range(8):
            a(f'v_cvt_pk_bf16_f32 v{vPA+i}, v{vP+2*i}, v{vP+2*i+1}')
        for i in range(8):
            a(f'v_add_f32 v{vP+i}, v{vP+i}, v{vP+8+i}')
        self.sum8(vT, vP)
        self.inrow_allreduce('v_add_f32', vT, (8, 4))
        self.rows_allreduce('v_add_f32', vT, vT + 1)
        a(f'ds_write_b32 v{vT+7}, v{vT} offset:{L_LB}')
        self.step()
        self.barrier()
        self.stamp('C')
        if self.adapt and 'C' in self.adapt[2]:
            self.pick.add(self.m + self.adapt[3])
        while self.m < len(self.seq):
            if self.seq[self.m] == f'V{self.nM}':
                a('s_barrier')
                if self.adapt and 'M' in self.adapt[2]:
                    self.pick.add(self.m + self.adapt[3])
            if int(self.seq[self.m][1:]) - RING >= 4 * self.tau:
                self.pv_group()
            self.step()
            if self.has(f'V{4*self.tau+3}'):
                self.pv_group()
        self.stamp('allissued')

    def tail(self):
        a = self.a
        CPC = self.CPC
        assert CPC == 32
        NCONS = 16
        lg = 5
        emu = None
        vAcc, vD, vT = 4, 36, 60
        vA0, vA1, vA2, vA3, vA4, vA5, vTB, vWt = range(68, 76)
        vW, SG = 80, 96
        vZ = 20
        AM = (52, 54, 56, 76)
        assert self.tau >= 12
        self.lab('L_Z')
        a(f's_cmp_lt_u32 {sW}, 4')
        a('s_cbranch_scc1 L_Z1')
        self.srd(SRD_C, 12, 4 << 20)
        a(f's_lshl_b32 {sT0}, {sG}, 19')
        a(f's_lshr_b32 {sT1}, {sJ}, 2')
        a(f's_lshl_b32 {sT1}, {sT1}, 16')
        a(f's_add_u32 {sT0}, {sT0}, {sT1}')
        a(f's_and_b32 {sT1}, {sJ}, 3')
        a(f's_lshl_b32 {sT1}, {sT1}, 8')
        a(f's_add_u32 {sT0}, {sT0}, {sT1}')
        a(f's_and_b32 {sT2}, {sW}, 3')
        a(f's_lshl_b32 {sT1}, {sT2}, 6')
        a(f's_add_u32 {sT0}, {sT0}, {sT1}')
        a(f'v_lshrrev_b32 v{vT}, 2, v1')
        a(f'v_lshlrev_b32 v{vT}, 10, v{vT}')
        a(f'v_and_b32 v{vT+1}, 3, v1')
        a(f'v_lshlrev_b32 v{vT+1}, 4, v{vT+1}')
        a(f'v_add3_u32 v{vT}, v{vT}, v{vT+1}, {sT0}')
        a(f's_lshl_b32 {sT2}, {sT2}, 12')
        a(f's_add_u32 m0, {sT2}, {L_WO}')
        a('s_barrier')
        for i in range(4):
            if i:
                a(f's_mov_b32 {sOFF}, {i*(16384-1024)}')
            a(f'buffer_load_dwordx4 v{vT}, {SRD_C}, {sOFF if i else 0} offen offset:{i*1024} {self.opol} lds')
        a('s_branch L_Z2')
        self.lab('L_Z1')
        a('s_barrier')
        self.lab('L_Z2')
        self.srd(SRD_OUT, 22, 1024)
        a(f's_mov_b32 {sSEL}, 0x07060500')
        a(f's_mov_b32 {sSA}, 0x0c0c0400')
        a(f's_mov_b32 {sSB}, 0x04000c0c')
        a(f'v_and_b32 v{vT+3}, 3, v1')
        a(f'v_lshlrev_b32 v{vT}, 3, v{vT+3}')
        a(f'v_lshrrev_b32 v{vTB}, v{vT}, {sTAG}')
        a(f'v_lshrrev_b32 v{vT}, 4, v0')
        a(f'v_lshlrev_b32 v{vWt}, 2, v{vT}')
        a(f'ds_read_b32 v{vWt}, v{vWt} offset:{L_WB}')
        a(f'v_mov_b32 v{vT+5}, {L_FL}')
        a(f'ds_read_b32 v{vT+5}, v{vT+5}')
        a(f'v_lshrrev_b32 v{vT}, 4, v1')
        a(f'v_and_b32 v{vT+1}, 15, v1')
        a(f'v_lshl_add_u32 v{vT+2}, v{vT+1}, 2, v{vT}')
        a(f's_lshl_b32 {sT0}, {sW}, 11')
        a(f's_add_u32 {sT0}, {sT0}, {L_OB}')
        a(f'v_lshl_add_u32 v{vA0}, v{vT+2}, 2, {sT0}')
        a(f's_mul_i32 {sT0}, {sW}, 144')
        a(f'v_lshl_add_u32 v{vT+7}, v{vT+2}, 1, {sT0}')
        a(f'v_and_b32 v{vT+2}, 7, v1')
        a(f'v_mul_u32_u24 v{vT+2}, 144, v{vT+2}')
        a(f'v_lshl_add_u32 v{vT+6}, v{vT}, 4, v{vT+2}')
        a(f'v_lshlrev_b32 v{vT}, 9, v{vT}')
        a(f'v_bfe_u32 v{vT+2}, v1, 2, 2')
        a(f'v_lshl_add_u32 v{vT}, v{vT+2}, 6, v{vT}')
        a(f'v_lshl_add_u32 v{vT}, v{vT+3}, 3, v{vT}')
        a(f's_and_b32 {sT2}, {sW}, 3')
        a(f's_lshl_b32 {sT0}, {sT2}, 12')
        a(f'v_add_u32 v{vA5}, {sT0}, v{vT}')
        a(f'v_lshrrev_b32 v{vT}, 7, v0')
        a(f'v_lshlrev_b32 v{vT}, 9, v{vT}')
        a(f'v_and_b32 v{vT+2}, 1, v0')
        a(f'v_lshl_add_u32 v{vT}, v{vT+2}, 8, v{vT}')
        a(f'v_bfe_u32 v{vT+2}, v0, 1, 6')
        a(f'v_lshl_add_u32 v{vA1}, v{vT+2}, 2, v{vT}')
        a(f'v_add_u32 v{vA1}, {L_OB}, v{vA1}')
        a(f's_lshl_b32 {sT1}, {sG}, 16')
        a(f's_add_u32 {sT1}, {sT1}, {hex(OBOX)}')
        a(f's_lshl_b32 {sT0}, {sW}, 13')
        a(f's_add_u32 {sT0}, {sT0}, {sT1}')
        a(f's_lshl_b32 {sOFF}, {sJ}, 8')
        a(f's_add_u32 {sT0}, {sT0}, {sOFF}')
        a(f'v_lshl_add_u32 v{vA2}, v1, 2, {sT0}')
        a(f's_lshr_b32 {sOFF}, {sJ}, 2')
        a(f's_lshl_b32 {sT0}, {sOFF}, 13')
        a(f's_add_u32 {sT0}, {sT0}, {sT1}')
        a(f'v_lshl_add_u32 v{vA3}, v0, 4, {sT0}')
        a(f's_and_b32 {sT0}, {sJ}, 3')
        a(f's_lshl_b32 {sT0}, {sT0}, 2')
        a(f's_add_u32 {sT0}, {sT0}, {sT2}')
        a(f's_lshl_b32 {sT0}, {sT0}, 6')
        a(f's_lshl_b32 {sT1}, {sG}, 3')
        a(f's_add_u32 {sT0}, {sT0}, {sT1}')
        a(f's_add_u32 {sT0}, {sT0}, {sOFF}')
        a(f's_lshl_b32 {sT0}, {sT0}, 7')
        a(f's_add_u32 {sT0}, {sT0}, {hex(SBOX)}')
        a(f'v_lshrrev_b32 v{vT}, 5, v1')
        a(f'v_lshlrev_b32 v{vT}, 29, v{vT}')
        a(f'v_lshl_add_u32 v{vT}, v1, 2, v{vT}')
        a(f'v_add_u32 v{vA4}, {sT0}, v{vT}')
        a(f'v_mov_b32 v{vT+4}, {sTAG}')
        a('s_waitcnt lgkmcnt(0)')
        a(f'v_readfirstlane_b32 {sLOC}, v{vT+5}')
        a(f's_cmp_ge_u32 {sW}, 4')
        a('s_cbranch_scc1 L_D')
        for b in range(4):
            a(f'v_mov_b32 v{AM[b]}, 0')
            a(f'v_mov_b32 v{AM[b]+1}, 0')
        while self.tau < 15:
            self.pv_group()
        for b in range(4):
            for k in range(2):
                ctl = f'row_ror:{4*(b+1)}' if b < 3 else 'quad_perm:[0,1,2,3]'
                a(f'v_mov_b32_dpp v{AM[b]+k}, v{58+k} {ctl} row_mask:0xf bank_mask:{hex(1 << b)}')
        for e in range(4):
            for h in range(4):
                a(f'v_permlane32_swap_b32 v{vAcc+4*e+h}, v{vAcc+4*(e+4)+h}')
        for e in range(4):
            for h in range(4):
                a(f'v_add_f32 v{vAcc+4*e+h}, v{vAcc+4*e+h}, v{vAcc+4*(e+4)+h}')
        for e in range(2):
            for h in range(4):
                a(f'v_permlane16_swap_b32 v{vAcc+4*e+h}, v{vAcc+4*(e+2)+h}')
        for e in range(2):
            for h in range(4):
                a(f'v_add_f32 v{vZ+4*e+h}, v{vAcc+4*e+h}, v{vAcc+4*(e+2)+h}')
        for pair in range(2):
            v0, v1 = self.slot(64 + 60 + 2 * pair), self.slot(64 + 61 + 2 * pair)
            self.need(f'V{61+2*pair}')
            for e in range(8):
                a(f'v_perm_b32 v{vD+2*e+pair}, v{v1+(e>>1)}, v{v0+(e>>1)}, {sPHI if e & 1 else sPLO}')
        for e in range(8):
            z = vZ + 4 * (e & 1)
            a(f'v_mfma_f32_16x16x16_bf16 v[{z}:{z+3}], v[{AM[e>>1]}:{AM[e>>1]+1}], v[{vD+2*e}:{vD+2*e+1}], v[{z}:{z+3}]')
        self.stamp('pvdone')
        a('s_nop 7')
        for h in range(4):
            a(f'ds_write2st64_b32 v{vA0}, v{vZ+h}, v{vZ+4+h} offset0:{2*h} offset1:{2*h+1}')
        self.lab('L_D')
        if 'notail' in self.exp:
            a('s_branch L_exit')
        self.barrier()
        for k in range(2):
            a(f'ds_read2st64_b32 v[{vD+2*k}:{vD+2*k+1}], v{vA1} offset0:{16*k} offset1:{16*k+8}')
        a(f's_cmp_eq_u32 {sLOC}, 1')
        a('s_waitcnt lgkmcnt(0)')
        a(f'v_add_f32 v{vD}, v{vD}, v{vD+2}')
        a(f'v_add_f32 v{vD+1}, v{vD+1}, v{vD+3}')
        a(f'v_add_f32 v{vT}, v{vD}, v{vD+1}')
        a(f'v_perm_b32 v{vT}, v{vT}, v{vTB}, {sSEL}')
        if self.local:
            a('s_cbranch_scc0 L_far')
            a(f'buffer_store_dword v{vT}, v{vA2}, {SRD_WS}, 0 offen {self.ospol}')
            self.lab('L_near')
        else:
            a(f'buffer_store_dword v{vT}, v{vA2}, {SRD_WS}, 0 offen sc1')
        self.stamp('opub')

        ol = [f'buffer_load_dwordx4 v[{SG}:{SG+3}], v{vA3}, {SRD_WS}, 0 offen {self.olpol}']
        a(ol[0])
        a('s_waitcnt vmcnt(0)')
        self.stamp('poll1')
        for t2 in range(2):
            for kh in range(2):
                for m in range(2):
                    r = vW + 8 * t2 + 4 * kh + 2 * m
                    a(f'ds_read_b64_tr_b16 v[{r}:{r+1}], v{vA5} offset:{L_WO + kh*2048 + m*256 + t2*32}')
        if self.pp1:
            R = self.ppoll(lambda r: f'buffer_load_dwordx4 v[{r}:{r+3}], v{vA3}, {SRD_WS}, 0 offen {self.olpol}',
                           lambda r: self.check_quads([r], vT + 4, vT + 1, vT + 2, vT + 3), SG, self.pp1[0], self.pp1[1], True)
        else:
            self.poll(ol, lambda: self.check_quads([SG], vT + 4, vT + 1, vT + 2, vT + 3), True, sleep=self.sl1)
            R = SG
        self.stamp('goto')
        for k in range(4):
            a(f'v_mul_f32 v{R+k}, v{R+k}, v{vWt}')
        self.quad_reduce(R, 16)
        a(f'v_cvt_pk_bf16_f32 v{R}, v{R}, v{R}')
        a(f'ds_write_b16 v{vT+7}, v{R} offset:{L_A}')
        SG = 120
        self.barrier()
        a(f's_cmp_lt_u32 {sW}, 4')
        a('s_cbranch_scc1 L_hop2')
        a(f'ds_read_b128 v[{vD}:{vD+3}], v{vT+6} offset:{L_A}')
        a(f'ds_read_b128 v[{vD+4}:{vD+7}], v{vT+6} offset:{L_A+64}')
        a('s_waitcnt lgkmcnt(1)')
        a(f'v_mfma_f32_16x16x32_bf16 v[{vD+8}:{vD+11}], v[{vD}:{vD+3}], v[{vW}:{vW+3}], 0')
        a(f'v_mfma_f32_16x16x32_bf16 v[{vD+12}:{vD+15}], v[{vD}:{vD+3}], v[{vW+8}:{vW+11}], 0')
        a('s_waitcnt lgkmcnt(0)')
        a(f'v_mfma_f32_16x16x32_bf16 v[{vD+8}:{vD+11}], v[{vD+4}:{vD+7}], v[{vW+4}:{vW+7}], v[{vD+8}:{vD+11}]')
        a(f'v_mfma_f32_16x16x32_bf16 v[{vD+12}:{vD+15}], v[{vD+4}:{vD+7}], v[{vW+12}:{vW+15}], v[{vD+12}:{vD+15}]')
        a('s_nop 6')
        a(f'v_add_f32 v{vD+8}, v{vD+8}, v{vD+9}')
        a(f'v_add_f32 v{vD+10}, v{vD+10}, v{vD+11}')
        a(f'v_add_f32 v{vD+12}, v{vD+12}, v{vD+13}')
        a(f'v_add_f32 v{vD+14}, v{vD+14}, v{vD+15}')
        a(f'v_add_f32 v{vD+8}, v{vD+8}, v{vD+10}')
        a(f'v_add_f32 v{vD+12}, v{vD+12}, v{vD+14}')
        a('s_nop 1')
        a(f'v_permlane16_swap_b32 v{vD+8}, v{vD+12}')
        a(f'v_add_f32 v{vT}, v{vD+8}, v{vD+12}')
        a(f'v_perm_b32 v{vT}, v{vT}, v{vTB}, {sSEL}')
        if 'execst' in self.exp:
            a('s_mov_b32 exec_hi, 0')
        a(f'buffer_store_dword v{vT}, v{vA4}, {SRD_WS}, 0 offen {self.spol}')
        if 'execst' in self.exp:
            a('s_mov_b32 exec_hi, -1')
        self.stamp('spub')
        self.lab('L_hop2')
        if 'h2bar' in self.exp:
            a('s_barrier')
        if 'h2sleep' in self.exp:
            a('s_sleep 8')
        if self.diag:
            i = self.stamp_names.index(self.diag[0]) if self.diag[0] in self.stamp_names else 0
            a(f's_cmp_lg_u32 {sW}, {self.diag[2] if len(self.diag) > 2 else 0}')
            a('s_cbranch_scc1 L_nodg')
            a('s_waitcnt lgkmcnt(0)')
            i0 = self.stamp_names.index(self.diag[3]) if len(self.diag) > 3 else 0
            a(f'v_mov_b32 v{vD}, s{STAMP_BASE+2*i0}')
            a(f'v_mov_b32 v{vD+1}, s{STAMP_BASE+2*i}')
            a(f's_lshl_b32 {sT0}, s2, 3')
            a(f's_add_u32 {sT0}, {sT0}, {hex(STAMP)}')
            a(f'v_mov_b32 v{vD+2}, {sT0}')
            a('s_mov_b64 exec, 1')
            a(f'buffer_store_dwordx2 v[{vD}:{vD+1}], v{vD+2}, {SRD_WS}, 0 offen sc1')
            a('s_mov_b64 exec, -1')
            self.lab('L_nodg')

        a(f's_cmp_ge_u32 s2, {NCONS}')
        a('s_cbranch_scc1 L_exit')
        nl, lpp = 1, 8
        a(f's_lshl_b32 {sT0}, s2, 13')
        if emu:
            nl = 1
            a(f's_mul_i32 {sT0}, s2, {nprod * 128}')
        a(f's_add_u32 {sT0}, {sT0}, {hex(SBOX)}')
        a(f'v_lshl_add_u32 v{vA0}, v0, 4, {sT0}')
        if emu and npw == 1:
            a(f'v_and_b32 v{vA0}, 255, v0')
            a(f'v_lshl_add_u32 v{vA0}, v{vA0}, 4, {sT0}')
        mk = lambda r: f'buffer_load_dwordx4 v[{r}:{r+3}], v{vA0}, {SRD_WS}, 0 offen {self.lpol}'
        P = self.pp2
        a(mk(SG))
        a(f'v_mov_b32 v{vA1}, {sTAG}')
        a(f'v_and_b32 v{vT+1}, 7, v1')
        a(f'v_lshlrev_b32 v{vT+1}, 7, v{vT+1}')
        a(f'v_lshrrev_b32 v{vT+2}, 4, v1')
        a(f'v_lshlrev_b32 v{vT+2}, 5, v{vT+2}')
        a(f's_lshl_b32 {sT0}, {sW}, 2')
        a(f'v_add3_u32 v{vA2}, v{vT+1}, v{vT+2}, {sT0}')
        a(f'v_and_b32 v{vT+1}, 31, v1')
        a(f'v_lshlrev_b32 v{vA3}, 5, v{vT+1}')
        a(f'v_lshlrev_b32 v{vT+2}, 2, v{vT+1}')
        a(f'ds_read_b32 v{vA4}, v{vT+2} offset:{L_GB}')
        a(f'ds_read_b32 v{vA5}, v{vT+2} offset:{L_XB}')
        if P > 2:
            a(mk(SG + 4))
        a(f's_lshl_b32 {sT0}, s2, 6')
        a(f'v_lshl_add_u32 v{vWt}, v{vT+1}, 1, {sT0}')
        a(f'v_mov_b32 v{vT+5}, {L_CT}')
        a(f'v_mov_b32 v{vT+6}, 1')
        if P > 1:
            SG = self.ppoll(mk, lambda r: self.check_quads([r], vA1, vT + 1, vT + 2, vT + 3), SG, P, 2 if P > 2 else 1)
        else:
            a('s_waitcnt vmcnt(0)')
            self.poll([mk(SG)], lambda: self.check_quads([SG], vA1, vT + 1, vT + 2, vT + 3), True)
        self.stamp('gots')
        self.quad_reduce(SG, 8)
        if self.lastwave:
            a(f'ds_write_b32 v{vA2}, v{SG} offset:{L_S2}')
            a('s_mov_b64 exec, 1')
            a(f'ds_add_rtn_u32 v{vT+6}, v{vT+5}, v{vT+6}')
            a('s_mov_b32 exec_lo, -1')
            a(f'ds_read_b128 v[{vD}:{vD+3}], v{vA3} offset:{L_S2}')
            a(f'ds_read_b128 v[{vD+4}:{vD+7}], v{vA3} offset:{L_S2+16}')
            a('s_waitcnt lgkmcnt(0)')
            a(f'v_readfirstlane_b32 {sT0}, v{vT+6}')
            self.sum8(vT, vD)
            a(f's_cmp_lg_u32 {sT0}, 7')
            a('s_cbranch_scc1 L_exit0')
        else:
            a(f'ds_write_b32 v{vA2}, v{SG} offset:{L_S2}')
            self.barrier()
            a(f's_cmp_lg_u32 {sW}, 0')
            a('s_cbranch_scc1 L_exit')
            a(f'ds_read_b128 v[{vD}:{vD+3}], v{vA3} offset:{L_S2}')
            a(f'ds_read_b128 v[{vD+4}:{vD+7}], v{vA3} offset:{L_S2+16}')
            a('s_mov_b32 exec_hi, 0')
            a('s_waitcnt lgkmcnt(0)')
            self.sum8(vT, vD)
        self.bf16r(vT, vT)
        a(f'v_mul_f32 v{vT}, v{vT}, v{vA4}')
        self.bf16r(vT, vT)
        a(f'v_add_f32 v{vT}, v{vT}, v{vA5}')
        a(f'v_cvt_pk_bf16_f32 v{vT}, v{vT}, v{vT}')
        a(f'buffer_store_short v{vT}, v{vWt}, {SRD_OUT}, 0 offen')
        a('s_mov_b64 exec, -1')
        a('s_cmp_lg_u32 s2, 0')
        a('s_cbranch_scc1 L_exit')
        if self.diag:
            a('s_memrealtime s[98:99]')
            a('s_sleep 40')
            a(f'v_lshlrev_b32 v{vT}, 5, v1')
            a(f'v_add_u32 v{vT}, {hex(STAMP)}, v{vT}')
            a(f'buffer_load_dwordx4 v[{vD}:{vD+3}], v{vT}, {SRD_WS}, 0 offen sc1')
            a(f'buffer_load_dwordx4 v[{vD+4}:{vD+7}], v{vT}, {SRD_WS}, 0 offen offset:16 sc1')
            a('s_waitcnt vmcnt(0) lgkmcnt(0)')
            for k in range(8):
                a(f'v_sub_u32 v{vD+k}, s98, v{vD+k}')
            mm = 'min' if len(self.diag) > 3 else 'max'
            a(f'v_{mm}3_u32 v{vT}, v{vD}, v{vD+2}, v{vD+4}')
            a(f'v_{mm}_u32 v{vT}, v{vT}, v{vD+6}')
            self.inrow_allreduce(f'v_{mm}_u32', vT, (8, 4, 2, 1))
            self.rows_allreduce(f'v_{mm}_u32', vT, vT + 2)
            op = {'max': 'v_min_u32', 'min': 'v_max_u32', 'mean': 'v_add_u32'}[self.diag[1]]
            a(f'{op} v{vD+1}, v{vD+1}, v{vD+3}')
            a(f'{op} v{vD+5}, v{vD+5}, v{vD+7}')
            a(f'{op} v{vT+1}, v{vD+1}, v{vD+5}')
            self.inrow_allreduce(op, vT + 1, (8, 4, 2, 1))
            self.rows_allreduce(op, vT + 1, vT + 2)
            if self.diag[1] == 'mean':
                a(f'v_lshrrev_b32 v{vT+1}, 8, v{vT+1}')
            if self.diag[0] == 'end':
                a(f'v_mov_b32 v{vT+1}, 0')
            if self.diag[0] == 'none':
                a(f'v_mov_b32 v{vT+1}, v{vT}')
            if len(self.diag) > 3 and self.diag[3] == self.diag[0]:
                a(f'v_sub_u32 v{vT}, v{vT+1}, v{vT}')
            else:
                a(f'v_sub_u32 v{vT}, v{vT}, v{vT+1}')
            a(f'v_max_i32 v{vT}, 0, v{vT}')
            a('s_nop 1')
            a(f'v_readfirstlane_b32 s96, v{vT}')
            a('s_min_u32 s96, s96, 4000')
            a(f's_lshl_b32 s96, s96, {5 if len(self.diag) > 3 else 2}')
            a('s_add_u32 s96, s96, 200')
            self.lab('L_spin')
            a('s_memrealtime s[94:95]')
            a('s_waitcnt lgkmcnt(0)')
            a('s_sub_u32 s94, s94, s98')
            a('s_cmp_lt_u32 s94, s96')
            a('s_cbranch_scc1 L_spin')
        a(f'v_mov_b32 v{vT}, 0')
        a('s_mov_b64 exec, 1')
        a(f'buffer_store_dword v{vA1}, v{vT}, {SRD_WS}, 0 offen sc1')
        a('s_mov_b64 exec, -1')
        a('s_branch L_exit')

    def far_store(self):
        self.lab('L_far')
        self.a(f'buffer_store_dword v60, v70, {SRD_WS}, 0 offen sc1')
        self.a('s_branch L_near')

    def helpers(self):
        a = self.a
        CPC = self.CPC
        NCONS = 512 // CPC
        lg = int(math.log2(CPC))
        vLane = 1
        vT = 4
        vX = 16
        vA = 24
        vB = 32
        vCol, vTC = 40, 41
        vW = 112
        vTag, vTB = 2, 3
        self.lab('L_helper')
        if self.split:
            a('s_load_dwordx8 s[20:27], s[0:1], 64')
        if self.prio:
            a(f's_setprio {self.prio}')
        a('s_waitcnt lgkmcnt(0)')
        self.stamp('_hstart')
        a(f's_load_dword {sTAG}, s[26:27], 0')
        self.srd(SRD_WS, 26, 256 << 20)
        self.srd(SRD_X, 4, 1024)
        a(f's_cmp_ge_u32 {sW}, 6')
        a('s_cbranch_scc1 L_h23')
        self.vm = []
        sRB, sCB, sPUB = 's60', 's61', 's3'
        a(f's_and_b32 {sRB}, {sJ}, 3')
        a(f's_lshr_b32 {sCB}, {sJ}, 2')
        a(f's_cmp_eq_u32 {sW}, 4')
        a('s_cbranch_scc0 L_h1_setup')
        a(f's_lshl_b32 {sPUB}, {sG}, 13')
        a(f's_lshl_b32 {sT0}, {sRB}, 11')
        a(f's_add_u32 {sPUB}, {sPUB}, {sT0}')
        a(f's_add_u32 {sPUB}, {sPUB}, {hex(QBOX)}')
        a('s_branch L_tile')
        self.lab('L_h1_setup')
        a(f's_cmp_ge_u32 {sJ}, 28')
        a('s_cbranch_scc1 L_h23')
        a(f's_lshl_b32 {sCB}, {sCB}, 3')
        a(f's_add_u32 {sCB}, {sCB}, {sG}')
        a(f's_sub_u32 {sT0}, {sCB}, 28')
        a(f's_cmp_ge_u32 {sCB}, 28')
        a(f's_cselect_b32 {sCB}, {sT0}, {sCB}')
        a(f's_cselect_b32 {sPUB}, {hex(4*7168)}, 0')
        a(f's_add_u32 {sPUB}, {sPUB}, {hex(HBOX)}')
        a(f's_mul_i32 {sT0}, {sRB}, 7168')
        a(f's_add_u32 {sPUB}, {sPUB}, {sT0}')
        self.lab('L_tile')
        a(f'v_lshlrev_b32 v{vT}, 4, v{vLane}')
        self.load('x16', f'buffer_load_dwordx4 v[{vX}:{vX+3}], v{vT}, {SRD_X}, 0 offen')
        a(f's_lshl_b32 {sT0}, {sCB}, 8')
        a(f's_add_u32 {sPUB}, {sPUB}, {sT0}')
        a(f'v_lshrrev_b32 v{vT+4}, 3, v{vLane}')
        a(f'v_lshlrev_b32 v{vT+1}, 4, v{vT+4}')
        a(f's_lshl_b32 {sT0}, {sRB}, 7')
        a(f'v_add_u32 v{vT+1}, {sT0}, v{vT+1}')
        a(f's_sub_u32 {sT0}, {sW}, 4')
        a(f's_lshl_b32 {sT1}, {sT0}, 14')
        a(f'v_add_u32 v{vT+2}, {sT1}, v{vT}')
        a(f's_lshl_b32 {sT0}, {sT0}, 10')
        a(f'v_add_u32 v{vT}, {sT0}, v{vT}')
        a(f'v_lshl_add_u32 v{vT+1}, v{vT+1}, 1, {sT0}')
        a(f'v_and_b32 v{vT+3}, 7, v{vLane}')
        a(f'v_lshlrev_b32 v{vT+3}, 5, v{vT+3}')
        a(f'v_lshl_add_u32 v{vCol}, v{vT+4}, 2, v{vT+3}')
        a(f'v_add_u32 v{vT+3}, {sPUB}, v{vCol}')
        a(f'v_and_b32 v{vT+4}, 3, v{vT+4}')
        a(f'v_lshlrev_b32 v{vT+4}, 3, v{vT+4}')
        a(f's_mov_b32 {sPLO}, 0x05040100')
        a(f's_mov_b32 {sPHI}, 0x07060302')
        self.wait('x16')
        self.stamp('_x16')
        for k in range(4):
            a(f'v_lshlrev_b32 v{vA+2*k}, 16, v{vX+k}')
            a(f'v_and_b32 v{vA+2*k+1}, 0xffff0000, v{vX+k}')
        m, s2, t = vT + 5, vT + 6, vT + 7
        a(f'v_add_f32 v{m}, v{vA}, v{vA+1}')
        for k in range(2, 8):
            a(f'v_add_f32 v{m}, v{m}, v{vA+k}')
        self.inrow_allreduce('v_add_f32', m, (8, 4, 2, 1))
        self.rows_allreduce('v_add_f32', m, t)
        a(f'v_mul_f32 v{m}, {hex(f2u(1/512.))}, v{m}')
        for k in range(8):
            a(f'v_sub_f32 v{vB+k}, v{vA+k}, v{m}')
        a(f'v_mul_f32 v{s2}, v{vB}, v{vB}')
        for k in range(1, 8):
            a(f'v_fmac_f32 v{s2}, v{vB+k}, v{vB+k}')
        self.inrow_allreduce('v_add_f32', s2, (8, 4, 2, 1))
        self.rows_allreduce('v_add_f32', s2, t)
        a(f'v_mul_f32 v{s2}, {hex(f2u(1/512.))}, v{s2}')
        self.bf16r(m, m)
        self.bf16r(s2, s2)
        a(f'v_add_f32 v{s2}, {hex(f2u(1e-5))}, v{s2}')
        self.bf16r(s2, s2)
        a(f'v_sqrt_f32 v{s2}, v{s2}')
        for k in range(8):
            a(f'v_sub_f32 v{vA+k}, v{vA+k}, v{m}')
        self.bf16r(s2, s2)
        a(f'v_rcp_f32 v{s2}, v{s2}')
        for k in range(4):
            a(f'v_cvt_pk_bf16_f32 v{vX+k}, v{vA+2*k}, v{vA+2*k+1}')
        for k in range(4):
            a(f'v_lshlrev_b32 v{vA+2*k}, 16, v{vX+k}')
            a(f'v_and_b32 v{vA+2*k+1}, 0xffff0000, v{vX+k}')
        for k in range(8):
            a(f'v_mul_f32 v{vA+k}, v{vA+k}, v{s2}')
        for k in range(4):
            a(f'v_cvt_pk_bf16_f32 v{vX+k}, v{vA+2*k}, v{vA+2*k+1}')
        a(f'ds_write_b128 v{vT}, v[{vX}:{vX+3}] offset:{L_XN}')
        a('s_waitcnt lgkmcnt(0)')
        a(f'ds_read_b128 v[{vX}:{vX+3}], v{vT+1} offset:{L_XN}')
        a(f'ds_read_b128 v[{vX+4}:{vX+7}], v{vT+1} offset:{L_XN+16}')
        self.make_tag()
        a(f'v_lshrrev_b32 v{vTC}, v{vT+4}, {sTAG}')
        a(f's_mov_b32 {sSEL}, 0x07060500')
        self.stamp('_ln')
        self.barrier()
        a(f's_cmp_eq_u32 {sW}, 4')
        a('s_cbranch_scc1 L_tile2')
        a('s_barrier')
        self.lab('L_tile2')
        for u in range(16):
            a(f'ds_read_b128 v[{vW+4*u}:{vW+4*u+3}], v{vT+2} offset:{L_TL+1024*u}')
        self.tile_dot(8, vW, vX, vA, vB, lambda p: a(f's_waitcnt lgkmcnt({min(15, 14-2*p)})'))
        a(f'v_perm_b32 v{vA+4}, v{vA+4}, v{vTC}, {sSEL}')
        self.stamp('tilepub')
        a(f's_cmp_eq_u32 {sW}, 4')
        a('s_cbranch_scc0 L_h1')
        if 'x_noq' in self.exp:
            for b in 'GABCM':
                a('s_barrier')
            a('s_branch L_Z')
        sXC, sNEAR, sN = 's11', 's10', 's9'
        vQ, vQA = vA + 4, vA + 5
        a(f's_getreg_b32 {sXC}, hwreg(HW_REG_XCC_ID, 0, 4)')
        a(f's_lshl_b32 {sXC}, {sXC}, 8')
        a(f'v_cmp_eq_u32 vcc, 0, v{vT+4}')
        a(f'v_mov_b32 v{vT+5}, 0xf00')
        a(f'v_mov_b32 v{vQA}, v{vT+3}')
        a(f'v_cndmask_b32 v{vT+5}, 0, v{vT+5}, vcc')
        a(f'v_bfi_b32 v{vQ}, v{vT+5}, {sXC}, v{vQ}')
        far = f'buffer_store_dword v{vQ}, v{vQA}, {SRD_WS}, 0 offen sc1'
        a(f'buffer_store_dword v{vQ}, v{vQA}, {SRD_WS}, 0 offen' if self.local else far)

        a(f's_mov_b32 {sSA}, 0x0c0c0400')
        a(f's_mov_b32 {sSB}, 0x04000c0c')
        a(f'v_mov_b32 v{vTag}, {sTAG}')
        a(f's_lshl_b32 {sT0}, {sG}, 13')
        a(f's_add_u32 {sT0}, {sT0}, {hex(QBOX)}')
        a(f'v_lshrrev_b32 v{vT}, 5, v{vLane}')
        a(f'v_and_b32 v{vT+1}, 31, v{vLane}')
        a(f'v_lshlrev_b32 v{vT+2}, 11, v{vT}')
        a(f'v_lshlrev_b32 v{vT+3}, 4, v{vT+1}')
        a(f'v_add3_u32 v{vT+2}, v{vT+2}, v{vT+3}, {sT0}')
        a(f's_movk_i32 {sT2}, 0x1000')
        a(f'v_lshrrev_b32 v{vT+1}, 1, v{vT+1}')
        a(f'v_lshlrev_b32 v{vT+1}, 6, v{vT+1}')
        a(f'v_and_b32 v{vT+3}, 1, v{vLane}')
        a(f'v_lshlrev_b32 v{vT+3}, 3, v{vT+3}')
        a(f'v_lshl_add_u32 v{vT+1}, v{vT}, 2, v{vT+1}')
        a(f'v_add_u32 v{vT+1}, v{vT+1}, v{vT+3}')
        ql = [f'buffer_load_dwordx4 v[{vW+8*h+4*b}:{vW+8*h+4*b+3}], v{vT+2}, {SRD_WS}, {sT2 if b else 0} offen offset:{512*h} sc1'
              for h in range(4) for b in range(2)]
        a(f's_mov_b32 {sN}, {self.qtry}')
        ql = [f's_sub_u32 {sN}, {sN}, 1', f's_cmp_lg_u32 {sN}, 0', 's_cbranch_scc1 L_qtry', far, 'L_qtry:'] + ql
        a('s_barrier')
        self.poll(ql, lambda: self.check_quads([vW + 4 * i for i in range(8)], vTag, vT + 4, vT + 5, vT + 6))
        a(f'v_xor_b32 v{vT+4}, {sXC}, v{vW}')
        for i in range(1, 8):
            a(f'v_bitop3_b32 v{vT+4}, v{vW+4*i}, {sXC}, v{vT+4} bitop3:0xbe')
        a(f'v_and_b32 v{vT+4}, 0xf00, v{vT+4}')
        a(f'v_cmp_ne_u32 vcc, 0, v{vT+4}')
        a(f'v_mov_b32 v{vT+5}, {L_FL}')
        a('s_cmp_eq_u64 vcc, 0')
        a(f's_cselect_b32 {sNEAR}, {1 if self.local else 0}, 0')
        a('s_cbranch_scc1 L_qnear')
        a(far)
        self.lab('L_qnear')
        a(f'v_mov_b32 v{vT+4}, {sNEAR}')
        a(f'ds_write_b32 v{vT+5}, v{vT+4}')
        self.stamp('gotq')
        for h in range(4):
            for k in range(4):
                a(f'v_add_f32 v{vW+8*h+k}, v{vW+8*h+k}, v{vW+8*h+4+k}')
        for h in range(4):
            a(f'v_permlane32_swap_b32 v{vW+8*h}, v{vW+8*h+2}')
            a(f'v_permlane32_swap_b32 v{vW+8*h+1}, v{vW+8*h+3}')
        for h in range(4):
            a(f'v_add_f32 v{vW+8*h}, v{vW+8*h}, v{vW+8*h+2}')
            a(f'v_add_f32 v{vW+8*h+1}, v{vW+8*h+1}, v{vW+8*h+3}')
            a(f'v_cvt_pk_bf16_f32 v{vW+8*h}, v{vW+8*h}, v{vW+8*h+1}')
            a(f'ds_write_b32 v{vT+1}, v{vW+8*h} offset:{L_BQ+16*h}')
        self.barrier()
        if 'x_noml' in self.exp:
            for b in 'BCM':
                a('s_barrier')
            a('s_branch L_Z')
        a(f'v_and_b32 v{vT}, 3, v{vLane}')
        a(f'v_lshlrev_b32 v{vT}, 4, v{vT}')
        a(f's_lshl_b32 {sT2}, {sG}, 11')
        a(f's_add_u32 {sT2}, {sT2}, {hex(MLBOX)}')
        a(f's_lshl_b32 {sT1}, {sJ}, 4')
        a(f's_add_u32 {sT0}, {sT2}, {sT1}')
        a(f'v_lshl_add_u32 v{vT+1}, v{vT}, 5, {sT0}')
        a(f's_lshr_b32 {sT1}, {sJ}, 3')
        a(f's_lshl_b32 {sT1}, {sT1}, 9')
        a(f's_add_u32 {sT0}, {sT2}, {sT1}')
        a(f'v_and_b32 v{vT+2}, 31, v{vLane}')
        a(f'v_lshlrev_b32 v{vT+3}, 2, v{vT+2}')
        a(f'v_lshl_add_u32 v{vT+2}, v{vT+2}, 4, {sT0}')
        a(f'v_mov_b32 v{vX+2}, {sTAG}')
        a(f'v_mov_b32 v{vX+3}, {sTAG}')
        a(f's_mov_b32 {sC}, {hex(f2u(math.log2(math.e) / math.sqrt(128.0)))}')
        a('s_barrier')
        a(f'ds_read_b128 v[{vA}:{vA+3}], v{vT} offset:{L_MB}')
        a('s_waitcnt lgkmcnt(0)')
        a(f'v_max3_f32 v{vX}, v{vA}, v{vA+1}, v{vA+2}')
        a(f'v_max_f32 v{vX}, v{vX}, v{vA+3}')
        a('s_barrier')
        a(f'ds_read_b128 v[{vA}:{vA+3}], v{vT} offset:{L_LB}')
        a('s_waitcnt lgkmcnt(0)')
        a(f'v_add_f32 v{vA}, v{vA}, v{vA+2}')
        a(f'v_add_f32 v{vA+1}, v{vA+1}, v{vA+3}')
        a(f'v_add_f32 v{vX+1}, v{vA}, v{vA+1}')
        a('s_mov_b64 exec, 0xf')
        a(f's_cmp_eq_u32 {sNEAR}, 1')
        a('s_cbranch_scc1 L_mlnear')
        a(f'buffer_store_dwordx4 v[{vX}:{vX+3}], v{vT+1}, {SRD_WS}, 0 offen sc1')
        a('s_branch L_mlfar')
        self.lab('L_mlnear')
        a(f'buffer_store_dwordx4 v[{vX}:{vX+3}], v{vT+1}, {SRD_WS}, 0 offen')
        self.lab('L_mlfar')
        a('s_mov_b64 exec, -1')
        a('s_barrier')

        def chk_ml():
            a(f'v_xor_b32 v{vT+4}, {sTAG}, v{vB+2}')
            a(f'v_xor_b32 v{vT+5}, {sTAG}, v{vB+3}')
            a(f'v_or_b32 v{vT+4}, v{vT+4}, v{vT+5}')
            a(f'v_cmp_ne_u32 vcc, 0, v{vT+4}')
        self.poll([f'buffer_load_dwordx4 v[{vB}:{vB+3}], v{vT+2}, {SRD_WS}, 0 offen sc1'], chk_ml)
        mx, y, t = vT + 4, vT + 5, vT + 6
        a(f'v_mov_b32 v{mx}, v{vB}')
        self.inrow_allreduce('v_max_f32', mx, (8, 4, 2, 1))
        self.rows_allreduce('v_max_f32', mx, t, do32=False)
        a(f'v_sub_f32 v{mx}, v{vB}, v{mx}')
        a(f'v_mul_f32 v{mx}, {sC}, v{mx}')
        a(f'v_exp_f32 v{mx}, v{mx}')
        a('s_nop 0')
        a(f'v_mul_f32 v{y}, v{mx}, v{vB+1}')
        self.inrow_allreduce('v_add_f32', y, (8, 4, 2, 1))
        self.rows_allreduce('v_add_f32', y, t, do32=False)
        a(f'v_rcp_f32 v{y}, v{y}')
        a('s_nop 0')
        a(f'v_mul_f32 v{mx}, v{mx}, v{y}')
        a(f'ds_write_b32 v{vT+3}, v{mx} offset:{L_WB}')
        self.stamp('mlw')
        a('s_waitcnt lgkmcnt(0)')
        a('s_branch L_Z')

        self.lab('L_h1')
        if 'x_noh' in self.exp:
            for b in 'ABCM':
                a('s_barrier')
            a('s_branch L_Z')
        if 'x_nohp' not in self.exp:
            a(f'buffer_store_dword v{vA+4}, v{vT+3}, {SRD_WS}, 0 offen {self.hspol}')
        self.srd(SRD_B, 20, 1792 * 1024)
        sFI, sRD, sCD = 's8', 's9', 's10'
        a(f's_mul_i32 {sFI}, {sG}, 28')
        a(f's_add_u32 {sFI}, {sFI}, {sJ}')
        a(f's_lshr_b32 {sRD}, {sFI}, 3')
        a(f's_and_b32 {sCD}, {sFI}, 7')
        a(f's_lshl_b32 {sT0}, {sRD}, 16')
        a(f's_lshl_b32 {sT1}, {sCD}, 7')
        a(f's_add_u32 {sT0}, {sT0}, {sT1}')
        a(f'v_lshrrev_b32 v{vT+2}, 3, v{vLane}')
        a(f'v_lshlrev_b32 v{vT}, 13, v{vT+2}')
        a(f'v_lshlrev_b32 v{vT+2}, 4, v{vT+2}')
        a(f'v_and_b32 v{vT+1}, 7, v{vLane}')
        a(f'v_lshlrev_b32 v{vT+1}, 4, v{vT+1}')
        a(f'v_add3_u32 v{vT}, v{vT}, v{vT+1}, {sT0}')
        a(f's_movk_i32 {sT2}, 0x1000')
        for e in range(8):
            if 'x_nowd' not in self.exp:
                a(f'buffer_load_dwordx4 v[{vW+4*e}:{vW+4*e+3}], v{vT}, {SRD_B}, {sT2 if e >= 4 else 0} offen offset:{(e & 3)*1024} {self.wpol}')
                if self.wdpace:
                    a(f's_waitcnt vmcnt({self.wdpace - 1})')
        a(f's_lshl_b32 {sT0}, {sRD}, 8')
        a(f's_add_u32 {sT0}, {sT0}, {hex(HBOX)}')
        a(f'v_lshl_add_u32 v{vT+1}, v{vLane}, 2, {sT0}')
        a(f'v_and_b32 v{vT+3}, 3, v{vLane}')
        a(f'v_lshlrev_b32 v{vT+3}, 3, v{vT+3}')
        a(f'v_lshrrev_b32 v{vTB}, v{vT+3}, {sTAG}')
        a(f'v_lshlrev_b32 v{vT+3}, 1, v{vLane}')
        a(f's_lshl_b32 {sT0}, {sCD}, 13')
        a(f's_lshl_b32 {sT1}, {sRD}, 8')
        a(f's_add_u32 {sT0}, {sT0}, {sT1}')
        a(f's_add_u32 {sT0}, {sT0}, {hex(FBOX)}')
        a(f'v_add_u32 v{vCol}, {sT0}, v{vCol}')
        for b in 'ABC':
            a('s_barrier')
        if 'x_nohg' in self.exp:
            a('s_barrier')
            a('s_branch L_Z')
        hl = []
        for k in range(8):
            if k:
                hl.append(f's_movk_i32 {sT2}, {k*7168 - (0 if k < 4 else 0x7000)}')
            if k == 4:
                hl.append(f'v_add_u32 v{vT+4}, 0x7000, v{vT+1}')
            hl.append(f'buffer_load_dword v{vB+k}, v{vT+1 if k < 4 else vT+4}, {SRD_WS}, {sT2 if k else 0} offen sc1')

        def chk_h():
            a(f'v_xor_b32 v{vT+4}, v{vB}, v{vTB}')
            for k in range(1, 8):
                a(f'v_bitop3_b32 v{vT+4}, v{vB+k}, v{vTB}, v{vT+4} bitop3:0xbe')
            a(f'v_and_b32 v{vT+4}, 0xff, v{vT+4}')
            a(f'v_cmp_ne_u32 vcc, 0, v{vT+4}')
        self.poll(hl, chk_h, sleep=0)
        for b in (vB, vB + 4):
            a(f'v_add_f32 v{b}, v{b}, v{b+1}')
            a(f'v_add_f32 v{b+2}, v{b+2}, v{b+3}')
            a(f'v_add_f32 v{b}, v{b}, v{b+2}')
            self.bf16r(b, b)
        self.silu_bf16(vB + 1, vB, vB + 2)
        a(f'v_mul_f32 v{vB+1}, v{vB+1}, v{vB+4}')
        a(f'v_cvt_pk_bf16_f32 v{vB+1}, v{vB+1}, v{vB+1}')
        a(f'ds_write_b16 v{vT+3}, v{vB+1} offset:{L_HB}')
        a('s_waitcnt lgkmcnt(0)')
        a(f'ds_read_b128 v[{vX}:{vX+3}], v{vT+2} offset:{L_HB}')
        a('s_waitcnt lgkmcnt(0)')
        self.tile_dot(4, vW, vX, vA, vB, lambda p: None)
        a(f'v_perm_b32 v{vA+4}, v{vA+4}, v{vTC}, {sSEL}')
        a(f'buffer_store_dword v{vA+4}, v{vCol}, {SRD_WS}, 0 offen sc1')
        self.stamp('fpub')
        a('s_barrier')
        a('s_branch L_Z')

        self.lab('L_h23')
        if self.tlb:
            a(f's_cmp_lg_u32 {sW}, 7')
            a('s_cbranch_scc1 L_h23b')
            a(f's_and_b32 {sT0}, {sJ}, 3')
            a(f's_lshl_b32 {sT1}, {sT0}, 20')
            a(f's_load_dword s28, s[10:11], {sT1}')
            a(f's_mul_i32 {sT1}, {sT0}, {128*3584}')
            a(f's_load_dword s29, s[16:17], {sT1}')
            a(f's_load_dword s30, s[18:19], {sT1}')
            a(f's_lshl_b32 {sT0}, {sG}, 23')
            a(f's_lshl_b32 {sT1}, {sJ}, 18')
            a(f's_add_u32 {sT0}, {sT0}, {sT1}')
            a(f's_load_dword s31, s[8:9], {sT0}')
            a(f's_lshr_b32 {sT0}, {sT0}, 4')
            a(f's_load_dword s32, s[12:13], {sT0}')
            a('s_load_dword s33, s[20:21], 0')
            a('s_load_dword s34, s[20:21], 0xffffc')
            a('s_load_dword s35, s[22:23], 0')
            self.lab('L_h23b')
        a('s_waitcnt lgkmcnt(0)')
        self.make_tag()
        if self.adapt:
            a(f's_cmp_eq_u32 {sW}, 7')
            a('s_cbranch_scc1 L_h3')
        for b in 'TGABCM':
            a('s_barrier')
        if 'x_noh' in self.exp or 'x_nohg' in self.exp or 'x_nofg' in self.exp:
            a('s_branch L_Z')
        a(f's_cmp_lg_u32 {sW}, 6')
        a('s_cbranch_scc1 L_Z')
        a(f's_cmp_ge_u32 s2, {NCONS}')
        a('s_cbranch_scc1 L_Z')
        lpp = CPC // 4
        ppl = 64 // lpp
        nl = -(-28 // ppl)
        last = (28 - (nl - 1) * ppl) * lpp
        a(f'v_mov_b32 v{vTag}, {sTAG}')
        a(f's_mov_b32 {sSA}, 0x0c0c0400')
        a(f's_mov_b32 {sSB}, 0x04000c0c')
        a(f's_lshr_b32 {sT0}, s2, {6-lg}')
        a(f's_lshl_b32 {sT0}, {sT0}, 13')
        a(f's_and_b32 {sT1}, s2, {64//CPC - 1}')
        a(f's_lshl_b32 {sT1}, {sT1}, {lg+2}')
        a(f's_add_u32 {sT0}, {sT0}, {sT1}')
        a(f's_add_u32 {sT0}, {sT0}, {hex(FBOX)}')
        a(f'v_and_b32 v{vT+1}, {lpp-1}, v{vLane}')
        a(f'v_lshlrev_b32 v{vT+2}, 4, v{vT+1}')
        a(f'v_lshrrev_b32 v{vT}, {lg-2}, v{vLane}')
        a(f'v_lshlrev_b32 v{vT}, 8, v{vT}')
        a(f'v_add3_u32 v{vT}, v{vT}, v{vT+2}, {sT0}')
        a(f'v_lshrrev_b32 v{vT+2}, 4, v{vLane}')
        a(f'v_lshl_add_u32 v{vT+1}, v{vT+1}, 2, v{vT+2}')
        a(f's_lshl_b32 {sT0}, s2, {lg+1}')
        a(f'v_lshl_add_u32 v{vT+2}, v{vT+1}, 1, {sT0}')
        a(f'v_lshlrev_b32 v{vT+1}, 2, v{vT+1}')
        a(f'buffer_load_short_d16_hi v{vT+3}, v{vT+2}, {SRD_X}, 0 offen')
        if self.touch:
            self.srd(SRD_OUT, 22, 1024)
            a(f'buffer_load_short_d16_hi v{vT+7}, v{vT+2}, {SRD_OUT}, 0 offen')
        for k in range(4):
            a(f'v_bfe_u32 v{vW+4*(nl-1)+k}, v{vTag}, {8*k}, 8')
        fl = []
        for u in range(nl):
            off = u * ppl * 256
            if u == nl - 1 and last < 64:
                fl.append(f's_mov_b32 exec_lo, {hex(((1 << last) - 1) & 0xffffffff)}')
                fl.append(f's_mov_b32 exec_hi, {hex(((1 << last) - 1) >> 32)}')
            if off >= 4096:
                fl.append(f's_movk_i32 {sT2}, {hex(off & ~4095)}')
            fl.append(f'buffer_load_dwordx4 v[{vW+4*u}:{vW+4*u+3}], v{vT}, {SRD_WS}, {sT2 if off >= 4096 else 0} offen offset:{off & 4095} sc1')
        fl.append('s_mov_b64 exec, -1')
        self.poll(fl, lambda: self.check_quads([vW + 4 * u for u in range(nl)], vTag, vT + 4, vT + 5, vT + 6), sleep=0)
        for u in range(1, nl):
            for k in range(4):
                a(f'v_add_f32 v{vW+k}, v{vW+k}, v{vW+4*u+k}')
        self.quad_reduce(vW, lpp)
        self.bf16r(vW, vW)
        self.silu_bf16(vT + 4, vW, vT + 5)
        a(f'ds_write_b32 v{vT+1}, v{vT+4} offset:{L_GB}')
        a(f'ds_write_b32 v{vT+1}, v{vT+3} offset:{L_XB}')
        a(f'v_mov_b32 v{vT+4}, {L_CT}')
        a(f'v_mov_b32 v{vT+5}, 0')
        a(f'ds_write_b32 v{vT+4}, v{vT+5}')
        a('s_branch L_Z')
        if self.adapt:
            self.lab('L_h3')
            a(f'v_mov_b32 v{vT}, {L_AD}')
            a(f'v_mov_b32 v{vT+1}, 0')
            a(f'ds_write_b32 v{vT}, v{vT+1}')
            a(f's_lshl_b32 {sT1}, {sG}, 7')
            a(f's_add_u32 {sT1}, {sT1}, {hex(RBOX)}')
            a(f'v_and_b32 v{vT+2}, 31, v1')
            a(f'v_lshl_add_u32 v{vT+2}, v{vT+2}, 2, {sT1}')
            a(f's_lshl_b32 {sT0}, {sJ}, 2')
            a(f's_add_u32 {sT1}, {sT1}, {sT0}')
            a(f'v_mov_b32 v{vT+3}, {sT1}')
            a(f'v_mov_b32 v{vT+4}, {sTAG}')
            a('s_waitcnt lgkmcnt(0)')
            k = 0
            for b in 'TGABCM':
                a('s_barrier')
                if b in self.adapt[2]:
                    a('s_mov_b64 exec, 1')
                    a(f'buffer_store_dword v{vT+4}, v{vT+3}, {SRD_WS}, 0 offen offset:{1024*k}')
                    a('s_mov_b64 exec, -1')
                    a(f'buffer_load_dword v{vT+5}, v{vT+2}, {SRD_WS}, 0 offen offset:{1024*k} sc1')
                    a('s_waitcnt vmcnt(0)')
                    a(f'v_cmp_eq_u32 vcc, v{vT+4}, v{vT+5}')
                    a(f's_bcnt1_i32_b32 {sT0}, vcc_lo')
                    a(f's_cmp_gt_u32 {sT0}, {self.adapt[1]}')
                    a(f's_cselect_b32 {sT0}, 1, 0')
                    a(f'v_mov_b32 v{vT+1}, {sT0}')
                    a(f'ds_write_b32 v{vT}, v{vT+1}')
                    k += 1
            a('s_branch L_Z')


def gen(**kw):
    g = G(**kw)
    s = g.gen()
    return s, g.stamp_names


if __name__ == '__main__':
    kw = eval('dict(' + (sys.argv[2] if len(sys.argv) > 2 else '') + ')')
    s, _ = gen(**kw)
    open(sys.argv[1], 'w').write(s)
```

```python
import math, struct, sys

NAME = 'recurrent_scan__gqa_block_cached__swiglu_ffn__decode_kernel'

HEADER = """; Kernarg layout for this problem (96 bytes, ptrs only, base s[0:1]):
;
"""


def f2u(x):
    return struct.unpack('<I', struct.pack('<f', x))[0]


QBOX  = 0x000000
HBOX  = 0x010000
MLBOX = 0x020000
RBOX  = 0x024000
XBOX  = 0x028000
FBOX  = 0x030000
SBOX  = 0x040000
OBOX  = 0x060000
EPOCH = 0x0e0000
STAMP = 0x800000

L_BQ = 0
L_XN = 1024
L_MB = 3072
L_LB = 3200
L_WB = 3312
L_GB = 3440
L_XB = 3568
L_O2 = 3696
L_S2 = 4208
L_CT = 5236
L_AD = 5240
L_FL = 5244
L_HB = 5248
L_A  = 1024
L_OB = 5376
L_WO = 5376 + 16384
L_TL = 5376
LDS_BYTES = L_TL + 2 * 16384

SRD_A, SRD_B, SRD_X, SRD_C, SRD_OUT, SRD_WS = [f's[{b}:{b+3}]' for b in range(28, 52, 4)]
sG, sJ, sW, sTAG, sOFF, sT0, sT1, sT2, sPLO, sPHI, sC, sCNT = [f's{i}' for i in range(52, 64)]
sL2E, sSEL, sSA, sSB, sLOC = 's3', 's64', 's65', 's66', 's67'
STAMP_BASE = 68
NVGPR = 256
RING = 44
RING0 = NVGPR - 4 * RING


class G:
    def __init__(self, Ds=((0, 7), (16, 5), (110, 8)), kfirst=1, nT=12, nG=24, nA=44, nM=44, late=22, pick=6,
                 qtry=4, spin=200000, stamps=False):
        self.__dict__.update(locals())
        self.L = []
        self.vm = []
        self.nlab = 0
        self.stamp_names = []

    def a(self, s, note=None):
        self.L.append('    ' + s + (f'    ; {note}' if note else ''))

    def c(self, text):
        for line in text.split('\n'):
            self.L.append('    ; ' + line)

    def lab(self, s):
        self.L.append(s + ':')

    def newlab(self, p):
        self.nlab += 1
        return f'L_{p}_{self.nlab}'

    def load(self, name, text):
        self.a(text)
        self.vm.append(name)

    def wait(self, name):
        n = len(self.vm) - 1 - self.vm.index(name)
        assert n <= 63
        self.a(f's_waitcnt vmcnt({n})')

    def stamp(self, name):
        if not self.stamps:
            return
        if self.stamps is True:
            if name.startswith('_'):
                return
        elif name not in self.stamps and name not in ('start', 'end'):
            return
        i = len(self.stamp_names)
        assert STAMP_BASE + 2 * i + 1 <= 101
        self.a(f's_memrealtime s[{STAMP_BASE+2*i}:{STAMP_BASE+2*i+1}]')
        self.stamp_names.append(name)

    def dpp(self, op, d, s0, s1, ctl, bank=0xf):
        self.a(f'{op}_dpp v{d}, v{s0}, v{s1} {ctl} row_mask:0xf bank_mask:{hex(bank)}')

    def rows_allreduce(self, op, v, t, do16=True, do32=True):
        if do16:
            self.a(f'v_mov_b32 v{t}, v{v}')
            self.a('s_nop 1')
            self.a(f'v_permlane16_swap_b32 v{v}, v{t}')
            self.a(f'{op} v{v}, v{v}, v{t}')
        if do32:
            self.a(f'v_mov_b32 v{t}, v{v}')
            self.a('s_nop 1')
            self.a(f'v_permlane32_swap_b32 v{v}, v{t}')
            self.a(f'{op} v{v}, v{v}, v{t}')

    def inrow_allreduce(self, op, v, rots):
        for r in rots:
            self.a('s_nop 1')
            self.dpp(op, v, v, v, f'row_ror:{r}')

    def bf16r(self, d, s):
        self.a(f'v_cvt_pk_bf16_f32 v{d}, v{s}, v{s}')
        self.a(f'v_and_b32 v{d}, 0xffff0000, v{d}')

    def sum8(self, d, b):
        for k in range(4):
            self.a(f'v_add_f32 v{b+k}, v{b+k}, v{b+4+k}')
        self.a(f'v_add_f32 v{b}, v{b}, v{b+2}')
        self.a(f'v_add_f32 v{b+1}, v{b+1}, v{b+3}')
        self.a(f'v_add_f32 v{d}, v{b}, v{b+1}')

    def max8(self, d, b, t):
        self.a(f'v_max3_f32 v{d}, v{b}, v{b+1}, v{b+2}')
        self.a(f'v_max3_f32 v{t}, v{b+3}, v{b+4}, v{b+5}')
        self.a(f'v_max3_f32 v{d}, v{d}, v{b+6}, v{b+7}')
        self.a(f'v_max_f32 v{d}, v{d}, v{t}')

    def silu_bf16(self, d, x, t):
        self.a(f'v_mul_f32 v{t}, {hex(f2u(math.log2(math.e)))}, v{x}')
        self.a(f'v_exp_f32 v{t}, -v{t}')
        self.a('s_nop 0')
        self.a(f'v_add_f32 v{t}, 1.0, v{t}')
        self.a(f'v_rcp_f32 v{t}, v{t}')
        self.a('s_nop 0')
        self.a(f'v_mul_f32 v{t}, v{x}, v{t}')
        self.bf16r(d, t)

    def make_tag(self):
        self.a(f's_and_b32 {sT0}, {sTAG}, 0x7f7f7f7f')
        self.a(f's_add_u32 {sT0}, {sT0}, 0x47611b35')
        self.a(f's_and_b32 {sTAG}, {sTAG}, 0x80808080')
        self.a(f's_xor_b32 {sTAG}, {sTAG}, {sT0}')

    def untag(self, regs):
        for r in regs:
            self.a(f'v_and_b32 v{r}, 0xffffff00, v{r}')

    def check_quads(self, quads, vtag, t0, t1, t2, cmp=True):
        for i, q in enumerate(quads):
            self.a(f'v_perm_b32 v{t0}, v{q+1}, v{q}, {sSA}')
            self.a(f'v_perm_b32 v{t1}, v{q+3}, v{q+2}, {sSB}')
            if i == 0:
                self.a(f'v_bitop3_b32 v{t2}, v{t0}, v{t1}, v{vtag} bitop3:0x56')
            else:
                self.a(f'v_bitop3_b32 v{t0}, v{t0}, v{t1}, v{vtag} bitop3:0x56')
                self.a(f'v_or_b32 v{t2}, v{t2}, v{t0}')
        if cmp:
            self.a(f'v_cmp_ne_u32 vcc, 0, v{t2}')

    def poll(self, loads, check, first_issued=False):
        again, done = self.newlab('again'), self.newlab('done')
        self.a(f's_mov_b32 {sCNT}, {self.spin}')
        if first_issued:
            check()
            self.a(f's_cbranch_vccz {done}')
        self.lab(again)
        for x in loads:
            self.lab(x[:-1]) if x.endswith(':') else self.a(x)
        self.a(f's_sub_u32 {sCNT}, {sCNT}, 1')
        self.a('s_waitcnt vmcnt(0)')
        self.a(f's_cbranch_scc1 {done}')
        check()
        self.a(f's_cbranch_vccnz {again}')
        self.lab(done)

    def quad_reduce(self, v, lpp):
        self.a('s_nop 1')
        self.a(f'v_permlane32_swap_b32 v{v}, v{v+2}')
        self.a(f'v_permlane32_swap_b32 v{v+1}, v{v+3}')
        self.a(f'v_add_f32 v{v}, v{v}, v{v+2}')
        self.a(f'v_add_f32 v{v+1}, v{v+1}, v{v+3}')
        self.a('s_nop 1')
        self.a(f'v_permlane16_swap_b32 v{v}, v{v+1}')
        self.a(f'v_add_f32 v{v}, v{v}, v{v+1}')
        self.inrow_allreduce('v_add_f32', v, [r for r in (8, 4, 2) if r >= lpp])

    def tile_dot(self, npairs, vW, vX, vA, vB, waitp):
        a = self.a
        for p in range(npairs):
            waitp(p)
            w0, w1 = vW + 8 * p, vW + 8 * p + 4
            for e in range(8):
                a(f'v_perm_b32 v{vB+e}, v{w1+(e>>1)}, v{w0+(e>>1)}, {sPHI if e & 1 else sPLO}')
            for e in range(8):
                a(f'v_dot2_f32_bf16 v{vA+e}, v{vB+e}, v{vX+p}, {"0" if p == 0 else f"v{vA+e}"}')
        a('s_nop 2')
        for e in range(4):
            a(f'v_permlane32_swap_b32 v{vA+e}, v{vA+e+4}')
        for e in range(4):
            a(f'v_add_f32 v{vA+e}, v{vA+e}, v{vA+e+4}')
        a('s_nop 0')
        for e in range(2):
            a(f'v_permlane16_swap_b32 v{vA+e}, v{vA+e+2}')
        for e in range(2):
            a(f'v_add_f32 v{vA+e}, v{vA+e}, v{vA+e+2}')
        a('s_nop 0')
        self.dpp('v_add_f32', vA + 4, vA, vA, 'row_ror:8', 0x3)
        a('s_nop 1')
        self.dpp('v_add_f32', vA + 4, vA + 1, vA + 1, 'row_ror:8', 0xc)

    def srd(self, srd, p, nbytes):
        b = int(srd[2:srd.index(':')])
        self.a(f's_mov_b64 s[{b}:{b+1}], s[{p}:{p+1}]')
        self.a(f's_mov_b32 s{b+2}, {hex(nbytes)}')
        self.a(f's_mov_b32 s{b+3}, 0x20000')

    def barrier(self, note):
        self.a('s_waitcnt lgkmcnt(0)')
        self.a('s_barrier', note)

    def slot(self, n):
        return RING0 + 4 * (n % RING)

    def depth(self, m):
        return [d for f, d in self.Ds if m >= f][-1]

    def need(self, name):
        k = self.seq.index(name)
        assert k < self.m, name
        if k > self.landed:
            self.wait(name)
            self.landed = k

    def has(self, name):
        return self.seq.index(name) <= self.landed

    def step(self):
        if self.m >= len(self.seq):
            return
        k = self.m - self.depth(self.m)
        if self.adapting:
            k2 = k - 1
            if k2 > self.landed:
                self.wait(self.seq[k2])
                self.landed = k2
            if k > self.landed:
                skip = self.newlab('deep')
                self.a(f's_cbranch_vccnz {skip}')
                self.wait(self.seq[k])
                self.lab(skip)
        elif k > self.landed:
            self.wait(self.seq[k])
            self.landed = k
        if self.m in self.picks:
            self.a(f'ds_read_b32 v78, v79')
        if self.m - 1 in self.picks:
            self.a('s_waitcnt lgkmcnt(0)')
            self.a('v_cmp_ne_u32 vcc, 0, v78', 'vcc: this workgroup is late, keep one more load in flight')
            self.adapting = True
        name = self.seq[self.m]
        kind, i = name[0], int(name[1:])
        if kind in 'KV':
            n = i + (64 if kind == 'V' else 0)
            old = n - RING
            assert old < 0 or (old < 64 and old < 4 * self.beta) or (old >= 64 and old - 64 < 4 * self.tau), name
            r = self.slot(n)
            srd, vo, off, dst, tailtxt = (SRD_A if kind == 'K' else SRD_B), (2 if kind == 'K' else 3), i * 4096, f'v[{r}:{r+3}], ', 'nt'
        else:
            if i == 0:
                self.tile_setup(kind)
            srd, vo = (SRD_X, 76) if kind == 'Q' else (SRD_C, 77)
            off, dst, tailtxt = i * ((8192 if kind == 'Q' else 3584) - 1024), '', f'offset:{i*1024} nt lds'
        so = '0'
        if off:
            self.a(f's_mov_b32 {sOFF}, {hex(off)}')
            so = sOFF
        self.load(name, f'buffer_load_dwordx4 {dst}v{vo}, {srd}, {so} offen {tailtxt}')
        self.stamp('_' + name)
        self.m += 1

    def steps_until(self, name):
        while self.seq[self.m] != name:
            self.step()

    def tile_setup(self, kind):
        a, vT = self.a, 60
        if kind == 'Q':
            self.srd(SRD_X, 10, 4 << 20)
            a(f's_and_b32 {sT0}, {sJ}, 3')
            a(f's_lshl_b32 {sT0}, {sT0}, 7')
            a(f's_lshl_b32 {sT1}, {sW}, 2')
            a(f's_add_u32 {sT0}, {sT0}, {sT1}')
            a(f'v_lshrrev_b32 v{vT}, 3, v1')
            a(f'v_lshl_add_u32 v{vT}, v{vT}, 4, {sT0}', 'row = 128*rb + 16*(l>>3) + 4w')
            a(f'v_and_b32 v{vT+1}, 7, v1')
            a(f'v_lshlrev_b32 v{vT+1}, 4, v{vT+1}')
            a(f's_lshr_b32 {sT2}, {sJ}, 2')
            a(f's_lshl_b32 {sT0}, {sG}, 10')
            a(f's_lshl_b32 {sT1}, {sT2}, 7')
            a(f's_add_u32 {sT0}, {sT0}, {sT1}')
            a(f'v_lshlrev_b32 v76, 13, v{vT}')
            a(f'v_add3_u32 v76, v76, v{vT+1}, {sT0}')
            a(f's_lshl_b32 {sT1}, {sW}, 12')
            a(f's_add_u32 m0, {sT1}, {L_TL}')
            a('s_nop 0')
        else:
            a(f's_lshl_b32 {sT2}, {sT2}, 3')
            a(f's_add_u32 {sT2}, {sT2}, {sG}')
            a(f's_sub_u32 {sT0}, {sT2}, 28')
            a(f's_cmp_ge_u32 {sT2}, 28')
            a(f's_cselect_b32 {sT2}, {sT0}, {sT2}')
            a('s_cselect_b64 s[40:41], s[18:19], s[16:17]')
            a(f's_mov_b32 s42, {hex(512*3584)}')
            a('s_mov_b32 s43, 0x20000')
            a(f's_lshl_b32 {sT2}, {sT2}, 7')
            a(f's_cmp_ge_u32 {sJ}, 28')
            a(f's_cselect_b32 {sT2}, 0x10000000, {sT2}', 'no FFN tile: out of range, nothing is fetched')
            a(f's_add_u32 m0, {sT1}, {L_TL + 16384}')
            a(f'v_mul_u32_u24 v77, 3584, v{vT}')
            a(f'v_add3_u32 v77, v77, v{vT+1}, {sT2}')

    def qk_batch(self):
        beta = self.beta
        half, t = beta >> 2, beta & 3
        Dr, P0, Bq = 36, 4, 52
        self.need(f'K{4*beta+3}')
        self.beta += 1
        self.c(f'scores of K tiles {4*beta}..{4*beta+3}: the valid quarter of each product, summed into bank {t}')
        for gam in range(4):
            r = self.slot(4 * beta + gam)
            self.a(f'v_mfma_f32_16x16x32_bf16 v[{Dr+4*gam}:{Dr+4*gam+3}], v[{r}:{r+3}], v[{Bq}:{Bq+3}], 0')
        self.a('s_nop 5')
        for k in (1, 2, 3):
            for gam in range(4):
                P = P0 + 4 * half + gam
                d = Dr + 4 * gam
                self.dpp('v_add_f32', P, d + ((t + k) & 3), d + t if k == 1 else P, f'row_ror:{16-4*k}', 1 << t)

    def pv_group(self):
        tau = self.tau
        B = 36
        self.tau += 1
        self.c(f'P.V of V tiles {4*tau}..{4*tau+3}')
        for pair in range(2):
            v0 = self.slot(64 + 4 * tau + 2 * pair)
            v1 = self.slot(64 + 4 * tau + 2 * pair + 1)
            self.need(f'V{4*tau+2*pair+1}')
            for e in range(8):
                self.a(f'v_perm_b32 v{B+2*e+pair}, v{v1+(e>>1)}, v{v0+(e>>1)}, {sPHI if e & 1 else sPLO}')
        PA = 52 + 2 * (tau >> 2)
        for e in range(8):
            ac = 4 + 4 * e
            c = '0' if tau == 0 else f'v[{ac}:{ac+3}]'
            self.a(f'v_mfma_f32_4x4x4_16b_bf16 v[{ac}:{ac+3}], v[{PA}:{PA+1}], v[{B+2*e}:{B+2*e+1}], {c} cbsz:2 abid:{tau & 3}')

    def gen(self):
        a = self.a
        self.L.append(f'; @launch grid=(256,1,1) block=(512,1,1) lds={LDS_BYTES}')
        self.L.append('.amdgcn_target "amdgcn-amd-amdhsa--gfx950"')
        self.L.append('.text')
        self.L.append(f'.globl {NAME}')
        self.L.append('.p2align 8')
        self.L.append(f'.type {NAME},@function')
        self.lab(NAME)
        a('s_load_dwordx16 s[4:19], s[0:1], 0')
        a('s_load_dwordx8 s[20:27], s[0:1], 64')
        if self.stamps:
            for i in range(STAMP_BASE, 102, 2):
                a(f's_mov_b64 s[{i}:{i+1}], 0')
            self.stamp('start')
        a('s_cmp_ge_u32 s2, 0x100')
        a('s_cbranch_scc1 L_end')
        a('v_lshrrev_b32 v4, 6, v0')
        a('v_and_b32 v1, 63, v0')
        a(f'v_readfirstlane_b32 {sW}, v4')
        a(f's_and_b32 {sG}, s2, 7')
        a(f's_lshr_b32 {sJ}, s2, 3')
        a(f's_cmp_ge_u32 {sW}, 4')
        a('s_cbranch_scc1 L_helper')
        self.stream_wave()
        self.tail()
        self.far_store()
        self.helper_join()
        self.helpers()
        self.lab('L_exit0')
        if self.stamps:
            a('s_mov_b64 exec, -1')
        self.lab('L_exit')
        if self.stamps:
            self.stamp('end')
            a('s_waitcnt lgkmcnt(0)')
            a('v_mov_b32 v4, 0')
            for i in range(len(self.stamp_names)):
                a(f'v_writelane_b32 v4, s{STAMP_BASE+2*i}, {i}')
            a(f's_getreg_b32 {sT1}, hwreg(HW_REG_XCC_ID)')
            a(f'v_writelane_b32 v4, {sT1}, 63')
            a(f's_getreg_b32 {sT1}, hwreg(HW_REG_HW_ID)')
            a(f'v_writelane_b32 v4, {sT1}, 62')
            a(f's_lshl_b32 {sT0}, s2, 3')
            a(f's_add_u32 {sT0}, {sT0}, {sW}')
            a(f's_lshl_b32 {sT0}, {sT0}, 8')
            a(f's_add_u32 {sT0}, {sT0}, {hex(STAMP)}')
            a(f'v_lshl_add_u32 v5, v1, 2, {sT0}')
            a(f'buffer_store_dword v4, v5, {SRD_WS}, 0 offen')
        self.lab('L_end')
        a('s_endpgm')
        self.L += ['.section .rodata,"a"', '.p2align 6', f'.amdhsa_kernel {NAME}',
                   f'  .amdhsa_next_free_vgpr {NVGPR}', '  .amdhsa_next_free_sgpr 102', f'  .amdhsa_accum_offset {NVGPR}',
                   '  .amdhsa_group_segment_fixed_size 0', '  .amdhsa_kernarg_size 96',
                   '  .amdhsa_user_sgpr_count 2', '  .amdhsa_user_sgpr_kernarg_segment_ptr 1',
                   '  .amdhsa_system_sgpr_workgroup_id_x 1',
                   '  .amdhsa_float_denorm_mode_32 3', '.end_amdhsa_kernel']
        return HEADER + '\n'.join(self.L) + '\n'

    def stream_wave(self):
        a = self.a
        vP, vD, vPA, vBq, vT = 4, 36, 52, 52, 60
        assert RING0 == 80
        kf = self.kfirst
        self.seq = [f'K{i}' for i in range(kf)] + [f'Q{i}' for i in range(4)] + [f'F{i}' for i in range(4)] + \
                   [f'K{i}' for i in range(kf, 64)] + [f'V{i}' for i in range(64)]
        self.m = self.beta = self.tau = 0
        self.landed = -1
        self.adapting = False
        self.picks = set()
        self.vm = []
        a(f's_lshl_b32 {sT0}, {sG}, 23')
        a(f's_lshl_b32 {sT1}, {sJ}, 18')
        a(f's_add_u32 {sT0}, {sT0}, {sT1}')
        a(f's_lshl_b32 {sT1}, {sW}, 10')
        a(f's_add_u32 {sT0}, {sT0}, {sT1}')
        self.c('K lane offset: key (l&15)>>2, 16-byte chunk (l&3) + 4*(l>>4)')
        a(f'v_bfe_u32 v{vT}, v1, 2, 2')
        a(f'v_lshlrev_b32 v{vT}, 8, v{vT}')
        a(f'v_and_b32 v{vT+1}, 3, v1')
        a(f'v_lshl_add_u32 v{vT}, v{vT+1}, 4, v{vT}')
        a(f'v_lshrrev_b32 v{vT+2}, 4, v1')
        a(f'v_lshlrev_b32 v{vT+2}, 6, v{vT+2}')
        a(f'v_add3_u32 v2, v{vT}, v{vT+2}, {sT0}')
        a(f'v_lshl_add_u32 v3, v1, 4, {sT0}')
        a('s_waitcnt lgkmcnt(0)')
        self.srd(SRD_A, 6, 64 << 20)
        self.steps_until('F0')
        self.stamp('issued0')
        a(f's_load_dword {sTAG}, s[26:27], {hex(EPOCH)}')
        self.srd(SRD_WS, 26, 256 << 20)
        self.srd(SRD_B, 8, 64 << 20)
        a(f's_mov_b32 {sPLO}, 0x05040100')
        a(f's_mov_b32 {sPHI}, 0x07060302')
        a(f's_mov_b32 {sC}, {hex(f2u(math.log2(math.e)))}')
        while not self.has('Q3'):
            self.step()
        self.steps_until(f'K{self.nT}')
        self.stamp('preT')
        a('s_barrier', 'T: the wq tile is in LDS')
        self.stamp('_postT')
        self.steps_until(f'K{self.nG}')
        assert self.has('F3')
        self.stamp('_preG')
        a('s_barrier', 'G: FFN tile in LDS; late enough to look for q')
        self.stamp('_postG')
        a(f'v_mov_b32 v79, {L_AD}')
        self.picks.add(self.m + self.pick)
        self.steps_until(f'K{self.nA}')
        a(f'v_lshlrev_b32 v{vT}, 4, v1')
        self.stamp('preA')
        self.barrier('A: q is in LDS')
        a(f'ds_read_b128 v[{vBq}:{vBq+3}], v{vT} offset:{L_BQ}')
        self.stamp('A')
        self.picks.add(self.m + self.pick)
        self.make_tag()
        a(f'v_and_b32 v{vT+6}, 3, v1')
        a(f'v_lshlrev_b32 v{vT+6}, 4, v{vT+6}', 'h*16')
        a(f's_lshl_b32 {sT0}, {sW}, 2')
        a(f'v_add_u32 v{vT+7}, {sT0}, v{vT+6}')
        a('s_waitcnt lgkmcnt(0)')
        self.c('---- scores ----')
        while self.beta < 16:
            nxt = self.seq[self.m]
            if int(nxt[1:]) + (64 if nxt[0] == 'V' else 0) - RING >= 4 * self.beta:
                self.qk_batch()
            self.step()
            if self.beta < 16 and self.has(f'K{4*self.beta+3}'):
                self.qk_batch()
        self.c('---- softmax: workgroup max, exponentials, sums ----')
        self.c('the reference keeps q.k and q.k / sqrt(128) in bf16')
        for rnd in range(2):
            for i in range(8):
                a(f'v_cvt_pk_bf16_f32 v{vD+i}, v{vP+2*i}, v{vP+2*i+1}')
            for i in range(8):
                a(f'v_lshlrev_b32 v{vP+2*i}, 16, v{vD+i}')
                a(f'v_and_b32 v{vP+2*i+1}, 0xffff0000, v{vD+i}')
            if rnd == 0:
                self.step()
                for i in range(16):
                    a(f'v_mul_f32 v{vP+i}, {hex(f2u(128.0 ** -0.5))}, v{vP+i}')
        self.step()
        self.max8(vT, vP, vT + 1)
        self.max8(vT + 2, vP + 8, vT + 1)
        a(f'v_max_f32 v{vT}, v{vT}, v{vT+2}')
        self.inrow_allreduce('v_max_f32', vT, (8, 4))
        self.rows_allreduce('v_max_f32', vT, vT + 1)
        a(f'ds_write_b32 v{vT+7}, v{vT} offset:{L_MB}')
        self.step()
        self.stamp('_preB')
        self.barrier('B')
        self.stamp('_postB')
        a(f'ds_read_b128 v[{vD}:{vD+3}], v{vT+6} offset:{L_MB}')
        a('s_waitcnt lgkmcnt(0)')
        a(f'v_max3_f32 v{vT}, v{vD}, v{vD+1}, v{vD+2}')
        a(f'v_max_f32 v{vT}, v{vT}, v{vD+3}')
        a(f'v_mul_f32 v{vT}, {sC}, v{vT}')
        for i in range(16):
            a(f'v_fma_f32 v{vP+i}, v{vP+i}, {sC}, -v{vT}')
        self.step()
        for i in range(16):
            a(f'v_exp_f32 v{vP+i}, v{vP+i}')
        self.step()
        for i in range(8):
            a(f'v_cvt_pk_bf16_f32 v{vPA+i}, v{vP+2*i}, v{vP+2*i+1}')
        for i in range(8):
            a(f'v_add_f32 v{vP+i}, v{vP+i}, v{vP+8+i}')
        self.sum8(vT, vP)
        self.inrow_allreduce('v_add_f32', vT, (8, 4))
        self.rows_allreduce('v_add_f32', vT, vT + 1)
        a(f'ds_write_b32 v{vT+7}, v{vT} offset:{L_LB}')
        self.step()
        self.barrier('C')
        self.stamp('C')
        self.picks.add(self.m + self.pick)
        self.c('---- P.V ----')
        while self.m < len(self.seq):
            if self.seq[self.m] == f'V{self.nM}':
                self.stamp('_preM')
                a('s_barrier', "M: late enough to look for the other splits' sums")
                self.stamp('_postM')
                self.picks.add(self.m + self.pick)
            if int(self.seq[self.m][1:]) - RING >= 4 * self.tau:
                self.pv_group()
            self.step()
            if self.has(f'V{4*self.tau+3}'):
                self.pv_group()
        self.stamp('allissued')

    def tail_setup(self, pause=lambda: None):
        a = self.a
        vT = 60
        vA0, vA1, vA2, vA3, vA4, vA5, vTB, vWt = range(68, 76)
        self.srd(SRD_OUT, 22, 1024)
        a(f's_mov_b32 {sSEL}, 0x07060500')
        a(f's_mov_b32 {sSA}, 0x0c0c0400')
        a(f's_mov_b32 {sSB}, 0x04000c0c')
        a(f'v_and_b32 v{vT+3}, 3, v1')
        a(f'v_lshlrev_b32 v{vT}, 3, v{vT+3}')
        a(f'v_lshrrev_b32 v{vTB}, v{vT}, {sTAG}', 'tag byte of column lane & 3')
        a(f'v_lshrrev_b32 v{vT}, 4, v0')
        a(f'v_lshlrev_b32 v{vWt}, 2, v{vT}')
        a(f'v_mov_b32 v{vT+5}, {L_FL}')
        self.c('A0: LDS writer of the key-row sums (position 4*(l&15) + (l>>4)); vT+7: writer of the weighted columns')
        a(f'v_lshrrev_b32 v{vT}, 4, v1')
        a(f'v_and_b32 v{vT+1}, 15, v1')
        a(f'v_lshl_add_u32 v{vT+2}, v{vT+1}, 2, v{vT}')
        a(f's_lshl_b32 {sT0}, {sW}, 11')
        a(f's_add_u32 {sT0}, {sT0}, {L_OB}')
        a(f'v_lshl_add_u32 v{vA0}, v{vT+2}, 2, {sT0}')
        a(f's_mul_i32 {sT0}, {sW}, 144')
        a(f'v_lshl_add_u32 v{vT+7}, v{vT+2}, 1, {sT0}')
        pause()
        self.c('vT+6: reader of the weighted columns as an MFMA A operand')
        a(f'v_and_b32 v{vT+2}, 7, v1')
        a(f'v_mul_u32_u24 v{vT+2}, 144, v{vT+2}')
        a(f'v_lshl_add_u32 v{vT+6}, v{vT}, 4, v{vT+2}')
        self.c('A5: transposing reader of the wo tile: row 8*(l>>4) + ((l>>2)&3), 8 bytes (l&3)')
        a(f'v_lshlrev_b32 v{vT}, 9, v{vT}')
        a(f'v_bfe_u32 v{vT+2}, v1, 2, 2')
        a(f'v_lshl_add_u32 v{vT}, v{vT+2}, 6, v{vT}')
        a(f'v_lshl_add_u32 v{vT}, v{vT+3}, 3, v{vT}')
        a(f's_and_b32 {sT2}, {sW}, 3')
        a(f's_lshl_b32 {sT0}, {sT2}, 12')
        a(f'v_add_u32 v{vA5}, {sT0}, v{vT}')
        pause()
        self.c('A1: LDS reader of column tid: head tid>>7, parity tid&1, position (tid&127)>>1')
        a(f'v_lshrrev_b32 v{vT}, 7, v0')
        a(f'v_lshlrev_b32 v{vT}, 9, v{vT}')
        a(f'v_and_b32 v{vT+2}, 1, v0')
        a(f'v_lshl_add_u32 v{vT}, v{vT+2}, 8, v{vT}')
        a(f'v_bfe_u32 v{vT+2}, v0, 1, 6')
        a(f'v_lshl_add_u32 v{vA1}, v{vT+2}, 2, v{vT}')
        a(f'v_add_u32 v{vA1}, {L_OB}, v{vA1}')
        pause()
        self.c('A2: o publish  OBOX + g*64K + w*8K + j*256 + l*4 ; A3: o gather  OBOX + g*64K + (j>>2)*8K + tid*16')
        a(f's_lshl_b32 {sT1}, {sG}, 16')
        a(f's_add_u32 {sT1}, {sT1}, {hex(OBOX)}')
        a(f's_lshl_b32 {sT0}, {sW}, 13')
        a(f's_add_u32 {sT0}, {sT0}, {sT1}')
        a(f's_lshl_b32 {sCNT}, {sJ}, 8')
        a(f's_add_u32 {sT0}, {sT0}, {sCNT}')
        a(f'v_lshl_add_u32 v{vA2}, v1, 2, {sT0}')
        a(f's_lshr_b32 {sCNT}, {sJ}, 2')
        a(f's_lshl_b32 {sT0}, {sCNT}, 13')
        a(f's_add_u32 {sT0}, {sT0}, {sT1}')
        a(f'v_lshl_add_u32 v{vA3}, v0, 4, {sT0}')
        pause()
        self.c('A4: s publish  SBOX + (4*(j&3) + (w&3))*8K + (8g + (j>>2))*128 + l*4, lanes 32..63 out of range')
        a(f's_and_b32 {sT0}, {sJ}, 3')
        a(f's_lshl_b32 {sT0}, {sT0}, 2')
        a(f's_add_u32 {sT0}, {sT0}, {sT2}')
        a(f's_lshl_b32 {sT0}, {sT0}, 6')
        a(f's_lshl_b32 {sT1}, {sG}, 3')
        a(f's_add_u32 {sT0}, {sT0}, {sT1}')
        a(f's_add_u32 {sT0}, {sT0}, {sCNT}')
        a(f's_lshl_b32 {sT0}, {sT0}, 7')
        a(f's_add_u32 {sT0}, {sT0}, {hex(SBOX)}')
        a(f'v_lshrrev_b32 v{vT}, 5, v1')
        a(f'v_lshlrev_b32 v{vT}, 29, v{vT}')
        a(f'v_lshl_add_u32 v{vT}, v1, 2, v{vT}')
        a(f'v_add_u32 v{vA4}, {sT0}, v{vT}')
        a(f'v_mov_b32 v{vT+4}, {sTAG}')

    def tail(self):
        a = self.a
        CPC = 32
        assert CPC == 32
        NCONS = 16
        lg = 5
        emu = None
        vAcc, vD, vT = 4, 36, 60
        vA0, vA1, vA2, vA3, vA4, vA5, vTB, vWt = range(68, 76)
        vW, SG = 80, 96
        vZ = 20
        AM = (52, 54, 56, 76)
        assert self.tau >= 12
        a('s_barrier', 'Z')
        self.stamp('_postZ')
        self.lab('L_Z2')
        self.tail_setup()
        a(f'ds_read_b32 v{vWt}, v{vWt} offset:{L_WB}', "this thread's split weight")
        a(f'ds_read_b32 v{vT+5}, v{vT+5}')
        a('s_waitcnt lgkmcnt(0)')
        a(f'v_readfirstlane_b32 {sLOC}, v{vT+5}')
        a(f's_cmp_ge_u32 {sW}, 4')
        a('s_cbranch_scc1 L_D')
        self.c('P operand of the last group, one copy per block of four rows with the other rows zero')
        for b in range(4):
            a(f'v_mov_b32 v{AM[b]}, 0')
            a(f'v_mov_b32 v{AM[b]+1}, 0')
        while self.tau < 15:
            self.pv_group()
        for b in range(4):
            for k in range(2):
                ctl = f'row_ror:{4*(b+1)}' if b < 3 else 'quad_perm:[0,1,2,3]'
                a(f'v_mov_b32_dpp v{AM[b]+k}, v{58+k} {ctl} row_mask:0xf bank_mask:{hex(1 << b)}')
        self.c('---- sum the four key rows of everything so far while the last tiles arrive ----')
        for e in range(4):
            for h in range(4):
                a(f'v_permlane32_swap_b32 v{vAcc+4*e+h}, v{vAcc+4*(e+4)+h}')
        for e in range(4):
            for h in range(4):
                a(f'v_add_f32 v{vAcc+4*e+h}, v{vAcc+4*e+h}, v{vAcc+4*(e+4)+h}')
        for e in range(2):
            for h in range(4):
                a(f'v_permlane16_swap_b32 v{vAcc+4*e+h}, v{vAcc+4*(e+2)+h}')
        for e in range(2):
            for h in range(4):
                a(f'v_add_f32 v{vZ+4*e+h}, v{vAcc+4*e+h}, v{vAcc+4*(e+2)+h}')
        for pair in range(2):
            v0, v1 = self.slot(64 + 60 + 2 * pair), self.slot(64 + 61 + 2 * pair)
            self.need(f'V{61+2*pair}')
            for e in range(8):
                a(f'v_perm_b32 v{vD+2*e+pair}, v{v1+(e>>1)}, v{v0+(e>>1)}, {sPHI if e & 1 else sPLO}')
        for e in range(8):
            z = vZ + 4 * (e & 1)
            a(f'v_mfma_f32_16x16x16_bf16 v[{z}:{z+3}], v[{AM[e>>1]}:{AM[e>>1]+1}], v[{vD+2*e}:{vD+2*e+1}], v[{z}:{z+3}]')
        self.stamp('pvdone')
        a('s_nop 7')
        for h in range(4):
            a(f'ds_write2st64_b32 v{vA0}, v{vZ+h}, v{vZ+4+h} offset0:{2*h} offset1:{2*h+1}')
        self.lab('L_D')
        self.barrier('D')
        for k in range(2):
            a(f'ds_read2st64_b32 v[{vD+2*k}:{vD+2*k+1}], v{vA1} offset0:{16*k} offset1:{16*k+8}')
        a(f's_cmp_eq_u32 {sLOC}, 1')
        a('s_waitcnt lgkmcnt(0)')
        a(f'v_add_f32 v{vD}, v{vD}, v{vD+2}')
        a(f'v_add_f32 v{vD+1}, v{vD+1}, v{vD+3}')
        a(f'v_add_f32 v{vT}, v{vD}, v{vD+1}')
        a(f'v_perm_b32 v{vT}, v{vT}, v{vTB}, {sSEL}')
        a('s_cbranch_scc0 L_far')
        a(f'buffer_store_dword v{vT}, v{vA2}, {SRD_WS}, 0 offen')
        self.lab('L_near')
        self.stamp('opub')

        self.c("---- hop 1: the 64 attention output columns of this workgroup's wo tile ----")
        ol = [f'buffer_load_dwordx4 v[{SG}:{SG+3}], v{vA3}, {SRD_WS}, 0 offen sc1']
        a(ol[0])
        a('s_waitcnt vmcnt(0)')
        self.stamp('poll1')
        for t2 in range(2):
            for kh in range(2):
                for m in range(2):
                    r = vW + 8 * t2 + 4 * kh + 2 * m
                    a(f'ds_read_b64_tr_b16 v[{r}:{r+1}], v{vA5} offset:{L_WO + kh*2048 + m*256 + t2*32}')
        self.poll(ol, lambda: self.check_quads([SG], vT + 4, vT + 1, vT + 2, vT + 3), True)
        R = SG
        self.stamp('goto')
        self.untag(range(R, R + 4))
        for k in range(4):
            a(f'v_mul_f32 v{R+k}, v{R+k}, v{vWt}')
        self.quad_reduce(R, 16)
        a(f'v_cvt_pk_bf16_f32 v{R}, v{R}, v{R}')
        a(f'ds_write_b16 v{vT+7}, v{R} offset:{L_A}')
        SG = 120
        self.barrier('E')
        a(f's_cmp_lt_u32 {sW}, 4')
        a('s_cbranch_scc1 L_hop2')
        a(f'ds_read_b128 v[{vD}:{vD+3}], v{vT+6} offset:{L_A}')
        a(f'ds_read_b128 v[{vD+4}:{vD+7}], v{vT+6} offset:{L_A+64}')
        a('s_waitcnt lgkmcnt(1)')
        a(f'v_mfma_f32_16x16x32_bf16 v[{vD+8}:{vD+11}], v[{vD}:{vD+3}], v[{vW}:{vW+3}], 0')
        a(f'v_mfma_f32_16x16x32_bf16 v[{vD+12}:{vD+15}], v[{vD}:{vD+3}], v[{vW+8}:{vW+11}], 0')
        a('s_waitcnt lgkmcnt(0)')
        a(f'v_mfma_f32_16x16x32_bf16 v[{vD+8}:{vD+11}], v[{vD+4}:{vD+7}], v[{vW+4}:{vW+7}], v[{vD+8}:{vD+11}]')
        a(f'v_mfma_f32_16x16x32_bf16 v[{vD+12}:{vD+15}], v[{vD+4}:{vD+7}], v[{vW+12}:{vW+15}], v[{vD+12}:{vD+15}]')
        a('s_nop 6')
        a(f'v_add_f32 v{vD+8}, v{vD+8}, v{vD+9}')
        a(f'v_add_f32 v{vD+10}, v{vD+10}, v{vD+11}')
        a(f'v_add_f32 v{vD+12}, v{vD+12}, v{vD+13}')
        a(f'v_add_f32 v{vD+14}, v{vD+14}, v{vD+15}')
        a(f'v_add_f32 v{vD+8}, v{vD+8}, v{vD+10}')
        a(f'v_add_f32 v{vD+12}, v{vD+12}, v{vD+14}')
        a('s_nop 1')
        a(f'v_permlane16_swap_b32 v{vD+8}, v{vD+12}')
        a(f'v_add_f32 v{vT}, v{vD+8}, v{vD+12}')
        a(f'v_perm_b32 v{vT}, v{vT}, v{vTB}, {sSEL}')
        a(f'buffer_store_dword v{vT}, v{vA4}, {SRD_WS}, 0 offen sc1')
        self.stamp('spub')
        self.lab('L_hop2')

        self.c('---- hop 2: final consumers ----')
        a(f's_cmp_ge_u32 s2, {NCONS}')
        a('s_cbranch_scc1 L_exit')
        nl, lpp = 1, 8
        a(f's_lshl_b32 {sT0}, s2, 13')
        a(f's_add_u32 {sT0}, {sT0}, {hex(SBOX)}')
        a(f'v_lshl_add_u32 v{vA0}, v0, 4, {sT0}')
        mk = lambda r: f'buffer_load_dwordx4 v[{r}:{r+3}], v{vA0}, {SRD_WS}, 0 offen sc1'
        a(mk(SG))
        a(f'v_mov_b32 v{vA1}, {sTAG}')
        a(f'v_and_b32 v{vT+1}, 7, v1')
        a(f'v_lshlrev_b32 v{vT+1}, 7, v{vT+1}')
        a(f'v_lshrrev_b32 v{vT+2}, 4, v1')
        a(f'v_lshlrev_b32 v{vT+2}, 5, v{vT+2}')
        a(f's_lshl_b32 {sT0}, {sW}, 2')
        a(f'v_add3_u32 v{vA2}, v{vT+1}, v{vT+2}, {sT0}', 'LDS writer [col][wave]')
        a(f'v_and_b32 v{vT+1}, 31, v1')
        a(f'v_lshlrev_b32 v{vA3}, 5, v{vT+1}', 'LDS reader')
        a(f'v_lshlrev_b32 v{vT+2}, 2, v{vT+1}')
        a(f'ds_read_b32 v{vA4}, v{vT+2} offset:{L_GB}')
        a(f'ds_read_b32 v{vA5}, v{vT+2} offset:{L_XB}')
        a(f's_lshl_b32 {sT0}, s2, 6')
        a(f'v_lshl_add_u32 v{vWt}, v{vT+1}, 1, {sT0}', 'output byte offset')
        a(f'v_mov_b32 v{vT+5}, {L_CT}')
        a(f'v_mov_b32 v{vT+6}, 1')
        a('s_waitcnt vmcnt(0)')
        self.poll([mk(SG)], lambda: self.check_quads([SG], vA1, vT + 1, vT + 2, vT + 3), True)
        self.stamp('gots')
        self.untag(range(SG, SG + 4))
        self.quad_reduce(SG, 8)
        self.c('the wave that delivers last finds every sum in LDS and finishes the 32 columns')
        a(f'ds_write_b32 v{vA2}, v{SG} offset:{L_S2}')
        a('s_mov_b64 exec, 1')
        a(f'ds_add_rtn_u32 v{vT+6}, v{vT+5}, v{vT+6}')
        a('s_mov_b32 exec_lo, -1')
        a(f'ds_read_b128 v[{vD}:{vD+3}], v{vA3} offset:{L_S2}')
        a(f'ds_read_b128 v[{vD+4}:{vD+7}], v{vA3} offset:{L_S2+16}')
        a('s_waitcnt lgkmcnt(0)')
        a(f'v_readfirstlane_b32 {sT0}, v{vT+6}')
        self.sum8(vT, vD)
        a(f's_cmp_lg_u32 {sT0}, 7')
        a('s_cbranch_scc1 L_exit0')
        self.bf16r(vT, vT)
        a(f'v_mul_f32 v{vT}, v{vT}, v{vA4}')
        self.bf16r(vT, vT)
        a(f'v_add_f32 v{vT}, v{vT}, v{vA5}')
        a(f'v_cvt_pk_bf16_f32 v{vT}, v{vT}, v{vT}')
        a(f'buffer_store_short v{vT}, v{vWt}, {SRD_OUT}, 0 offen')
        a('s_mov_b64 exec, -1')
        a('s_cmp_lg_u32 s2, 0')
        a('s_cbranch_scc1 L_exit')
        self.c("every workgroup has read the old word by now: leave this launch's tag for the next one")
        a(f'v_mov_b32 v{vT}, {hex(EPOCH)}')
        a('s_mov_b64 exec, 1')
        a(f'buffer_store_dword v{vA1}, v{vT}, {SRD_WS}, 0 offen sc1')
        a('s_mov_b64 exec, -1')
        a('s_branch L_exit')

    def helper_join(self):
        a = self.a
        vT = 60
        self.lab('L_Z')
        self.c('waves 4..7: 64 rows x 32 columns of wo straight to LDS')
        self.srd(SRD_C, 12, 4 << 20)
        a(f's_lshl_b32 {sT0}, {sG}, 19')
        a(f's_lshr_b32 {sT1}, {sJ}, 2')
        a(f's_lshl_b32 {sT1}, {sT1}, 16')
        a(f's_add_u32 {sT0}, {sT0}, {sT1}')
        a(f's_and_b32 {sT1}, {sJ}, 3')
        a(f's_lshl_b32 {sT1}, {sT1}, 8')
        a(f's_add_u32 {sT0}, {sT0}, {sT1}')
        a(f's_and_b32 {sT2}, {sW}, 3')
        a(f's_lshl_b32 {sT1}, {sT2}, 6')
        a(f's_add_u32 {sT0}, {sT0}, {sT1}')
        a(f'v_lshrrev_b32 v{vT}, 2, v1')
        a(f'v_lshlrev_b32 v{vT}, 10, v{vT}')
        a(f'v_and_b32 v{vT+1}, 3, v1')
        a(f'v_lshlrev_b32 v{vT+1}, 4, v{vT+1}')
        a(f'v_add3_u32 v{vT}, v{vT}, v{vT+1}, {sT0}')
        a(f's_lshl_b32 {sT2}, {sT2}, 12')
        a(f's_add_u32 m0, {sT2}, {L_WO}')
        a('s_barrier', 'Z: the last V tile has been requested')
        for i in range(4):
            if i:
                a(f's_mov_b32 {sOFF}, {i*(16384-1024)}')
            a(f'buffer_load_dwordx4 v{vT}, {SRD_C}, {sOFF if i else 0} offen offset:{i*1024} nt lds')
        a('s_branch L_Z2')

    def far_store(self):
        self.lab('L_far')
        self.a(f'buffer_store_dword v60, v70, {SRD_WS}, 0 offen sc1')
        self.a('s_branch L_near')

    def helpers(self):
        a = self.a
        CPC = 32
        NCONS = 512 // CPC
        lg = int(math.log2(CPC))
        vLane = 1
        vT = 4
        vX = 16
        vA = 24
        vB = 32
        vCol, vTC = 40, 41
        vW = 112
        vTag, vTB = 2, 3
        self.lab('L_helper')
        a('s_waitcnt lgkmcnt(0)')
        self.stamp('_hstart')
        a(f's_load_dword {sTAG}, s[26:27], {hex(EPOCH)}')
        self.srd(SRD_WS, 26, 256 << 20)
        self.srd(SRD_X, 4, 1024)
        a(f's_cmp_ge_u32 {sW}, 6')
        a('s_cbranch_scc1 L_h23')
        self.c('---- projection tile: 128 rows x 64 columns; wave 4: wq, wave 5: w_gate / w_up ----')
        self.vm = []
        sRB, sCB, sPUB = 's60', 's61', 's3'
        a(f's_and_b32 {sRB}, {sJ}, 3')
        a(f's_lshr_b32 {sCB}, {sJ}, 2')
        a(f's_cmp_eq_u32 {sW}, 4')
        a('s_cbranch_scc0 L_h1_setup')
        a(f's_lshl_b32 {sPUB}, {sG}, 13')
        a(f's_lshl_b32 {sT0}, {sRB}, 11')
        a(f's_add_u32 {sPUB}, {sPUB}, {sT0}')
        a(f's_add_u32 {sPUB}, {sPUB}, {hex(QBOX)}')
        a('s_branch L_tile')
        self.lab('L_h1_setup')
        a(f's_cmp_ge_u32 {sJ}, 28')
        a('s_cbranch_scc1 L_h23')
        a(f's_lshl_b32 {sCB}, {sCB}, 3')
        a(f's_add_u32 {sCB}, {sCB}, {sG}')
        a(f's_sub_u32 {sT0}, {sCB}, 28')
        a(f's_cmp_ge_u32 {sCB}, 28')
        a(f's_cselect_b32 {sCB}, {sT0}, {sCB}')
        a(f's_cselect_b32 {sPUB}, {hex(4*7168)}, 0')
        a(f's_add_u32 {sPUB}, {sPUB}, {hex(HBOX)}')
        a(f's_mul_i32 {sT0}, {sRB}, 7168')
        a(f's_add_u32 {sPUB}, {sPUB}, {sT0}')
        self.lab('L_tile')
        a(f'v_lshlrev_b32 v{vT}, 4, v{vLane}')
        self.load('x16', f'buffer_load_dwordx4 v[{vX}:{vX+3}], v{vT}, {SRD_X}, 0 offen')
        a(f's_lshl_b32 {sT0}, {sCB}, 8')
        a(f's_add_u32 {sPUB}, {sPUB}, {sT0}')
        a(f'v_lshrrev_b32 v{vT+4}, 3, v{vLane}')
        a(f'v_lshlrev_b32 v{vT+1}, 4, v{vT+4}')
        a(f's_lshl_b32 {sT0}, {sRB}, 7')
        a(f'v_add_u32 v{vT+1}, {sT0}, v{vT+1}', 'first row of this lane')
        a(f's_sub_u32 {sT0}, {sW}, 4')
        a(f's_lshl_b32 {sT1}, {sT0}, 14')
        a(f'v_add_u32 v{vT+2}, {sT1}, v{vT}', 'LDS reader of the tile')
        a(f's_lshl_b32 {sT0}, {sT0}, 10')
        a(f'v_add_u32 v{vT}, {sT0}, v{vT}', 'LDS writer of xn')
        a(f'v_lshl_add_u32 v{vT+1}, v{vT+1}, 1, {sT0}', 'LDS reader of xn')
        self.c('column of this lane after the reduction: 8*(l&7) + (l>>3)')
        a(f'v_and_b32 v{vT+3}, 7, v{vLane}')
        a(f'v_lshlrev_b32 v{vT+3}, 5, v{vT+3}')
        a(f'v_lshl_add_u32 v{vCol}, v{vT+4}, 2, v{vT+3}')
        a(f'v_add_u32 v{vT+3}, {sPUB}, v{vCol}')
        a(f'v_and_b32 v{vT+4}, 3, v{vT+4}')
        a(f'v_lshlrev_b32 v{vT+4}, 3, v{vT+4}')
        a(f's_mov_b32 {sPLO}, 0x05040100')
        a(f's_mov_b32 {sPHI}, 0x07060302')
        self.c("layernorm with the reference's bf16 rounding points")
        self.wait('x16')
        self.stamp('_x16')
        for k in range(4):
            a(f'v_lshlrev_b32 v{vA+2*k}, 16, v{vX+k}')
            a(f'v_and_b32 v{vA+2*k+1}, 0xffff0000, v{vX+k}')
        m, s2, t = vT + 5, vT + 6, vT + 7
        a(f'v_add_f32 v{m}, v{vA}, v{vA+1}')
        for k in range(2, 8):
            a(f'v_add_f32 v{m}, v{m}, v{vA+k}')
        self.inrow_allreduce('v_add_f32', m, (8, 4, 2, 1))
        self.rows_allreduce('v_add_f32', m, t)
        a(f'v_mul_f32 v{m}, {hex(f2u(1/512.))}, v{m}')
        for k in range(8):
            a(f'v_sub_f32 v{vB+k}, v{vA+k}, v{m}')
        a(f'v_mul_f32 v{s2}, v{vB}, v{vB}')
        for k in range(1, 8):
            a(f'v_fmac_f32 v{s2}, v{vB+k}, v{vB+k}')
        self.inrow_allreduce('v_add_f32', s2, (8, 4, 2, 1))
        self.rows_allreduce('v_add_f32', s2, t)
        a(f'v_mul_f32 v{s2}, {hex(f2u(1/512.))}, v{s2}')
        self.bf16r(m, m)
        self.bf16r(s2, s2)
        a(f'v_add_f32 v{s2}, {hex(f2u(1e-5))}, v{s2}')
        self.bf16r(s2, s2)
        a(f'v_sqrt_f32 v{s2}, v{s2}')
        for k in range(8):
            a(f'v_sub_f32 v{vA+k}, v{vA+k}, v{m}')
        self.bf16r(s2, s2)
        a(f'v_rcp_f32 v{s2}, v{s2}')
        for k in range(4):
            a(f'v_cvt_pk_bf16_f32 v{vX+k}, v{vA+2*k}, v{vA+2*k+1}')
        for k in range(4):
            a(f'v_lshlrev_b32 v{vA+2*k}, 16, v{vX+k}')
            a(f'v_and_b32 v{vA+2*k+1}, 0xffff0000, v{vX+k}')
        for k in range(8):
            a(f'v_mul_f32 v{vA+k}, v{vA+k}, v{s2}')
        for k in range(4):
            a(f'v_cvt_pk_bf16_f32 v{vX+k}, v{vA+2*k}, v{vA+2*k+1}')
        a(f'ds_write_b128 v{vT}, v[{vX}:{vX+3}] offset:{L_XN}')
        a('s_waitcnt lgkmcnt(0)')
        a(f'ds_read_b128 v[{vX}:{vX+3}], v{vT+1} offset:{L_XN}')
        a(f'ds_read_b128 v[{vX+4}:{vX+7}], v{vT+1} offset:{L_XN+16}')
        self.make_tag()
        a(f'v_lshrrev_b32 v{vTC}, v{vT+4}, {sTAG}')
        a(f's_mov_b32 {sSEL}, 0x07060500')
        self.stamp('_ln')
        self.barrier('T')
        a(f's_cmp_eq_u32 {sW}, 4')
        a('s_cbranch_scc1 L_tile2')
        a('s_barrier', 'G (wave 5)')
        self.lab('L_tile2')
        for u in range(16):
            a(f'ds_read_b128 v[{vW+4*u}:{vW+4*u+3}], v{vT+2} offset:{L_TL+1024*u}')
        self.tile_dot(8, vW, vX, vA, vB, lambda p: a(f's_waitcnt lgkmcnt({min(15, 14-2*p)})'))
        a(f'v_perm_b32 v{vA+4}, v{vA+4}, v{vTC}, {sSEL}')
        self.stamp('tilepub')
        a(f's_cmp_eq_u32 {sW}, 4')
        a('s_cbranch_scc0 L_h1')
        self.c('The first stores leave the lines in this die\'s L2, enough for readers on the same die; they are repeated')
        self.c('with write-through when a reader turns out to run elsewhere or when the gather below keeps missing.')
        sXC, sNEAR, sN = 's11', 's10', 's9'
        vQ, vQA, vXW, vXA, vXR, vXG = vA + 4, vA + 5, vA + 6, vA + 7, vB, vB + 1
        a(f's_getreg_b32 {sXC}, hwreg(HW_REG_XCC_ID, 0, 4)')
        a(f's_and_b32 {sT0}, {sTAG}, 0xfffffff0')
        a(f's_or_b32 {sXC}, {sXC}, {sT0}', '28 tag bits and the die this workgroup runs on')
        a(f'v_mov_b32 v{vXW}, {sXC}')
        a(f'v_mov_b32 v{vQA}, v{vT+3}')
        a(f's_lshl_b32 {sT0}, {sG}, 12')
        a(f's_add_u32 {sT0}, {sT0}, {hex(XBOX)}')
        a(f'v_and_b32 v{vXR}, 31, v{vLane}')
        a(f's_lshl_b32 {sT1}, {sJ}, 7')
        a(f's_add_u32 {sT1}, {sT1}, {sT0}')
        a(f'v_lshl_add_u32 v{vXA}, v{vXR}, 2, {sT1}')
        a(f'v_lshl_add_u32 v{vXR}, v{vXR}, 7, {sT0}')
        near = [f'buffer_store_dword v{vQ}, v{vQA}, {SRD_WS}, 0 offen', f'buffer_store_dword v{vXW}, v{vXA}, {SRD_WS}, 0 offen']
        far = [x + ' sc1' for x in near]
        for x in near:
            a(x)

        self.c('---- wave 4: gather q, then the softmax statistics of the 32 splits ----')
        a(f's_mov_b32 {sSA}, 0x0c0c0400')
        a(f's_mov_b32 {sSB}, 0x04000c0c')
        a(f'v_mov_b32 v{vTag}, {sTAG}')
        a(f's_lshl_b32 {sT0}, {sG}, 13')
        a(f's_add_u32 {sT0}, {sT0}, {hex(QBOX)}')
        a(f'v_lshrrev_b32 v{vT}, 5, v{vLane}')
        a(f'v_and_b32 v{vT+1}, 31, v{vLane}')
        a(f'v_lshlrev_b32 v{vT+2}, 11, v{vT}')
        a(f'v_lshlrev_b32 v{vT+3}, 4, v{vT+1}')
        a(f'v_add3_u32 v{vT+2}, v{vT+2}, v{vT+3}, {sT0}')
        a(f's_movk_i32 {sT2}, 0x1000')
        self.c('LDS address: chunk*64 + idx*4, chunk = (l&31)>>1, idx = 2*(l&1) + (l>>5)')
        a(f'v_lshrrev_b32 v{vT+1}, 1, v{vT+1}')
        a(f'v_lshlrev_b32 v{vT+1}, 6, v{vT+1}')
        a(f'v_and_b32 v{vT+3}, 1, v{vLane}')
        a(f'v_lshlrev_b32 v{vT+3}, 3, v{vT+3}')
        a(f'v_lshl_add_u32 v{vT+1}, v{vT}, 2, v{vT+1}')
        a(f'v_add_u32 v{vT+1}, v{vT+1}, v{vT+3}')
        ql = [f'buffer_load_dwordx4 v[{vW+8*h+4*b}:{vW+8*h+4*b+3}], v{vT+2}, {SRD_WS}, {sT2 if b else 0} offen offset:{512*h} sc1'
              for h in range(4) for b in range(2)]
        a(f's_mov_b32 {sN}, {self.qtry}')
        ql = [f's_sub_u32 {sN}, {sN}, 1', f's_cmp_lg_u32 {sN}, 0', 's_cbranch_scc1 L_qtry'] + far + ['L_qtry:'] + ql
        ql.append(f'buffer_load_dword v{vXG}, v{vXR}, {SRD_WS}, 0 offen sc1')
        a('s_barrier', 'G')

        def chk_q():
            self.check_quads([vW + 4 * i for i in range(8)], vTag, vT + 4, vT + 5, vT + 6, cmp=False)
            a(f'v_xor_b32 v{vT+4}, {sTAG}, v{vXG}')
            a(f'v_lshrrev_b32 v{vT+4}, 4, v{vT+4}')
            a(f'v_or_b32 v{vT+6}, v{vT+6}, v{vT+4}')
            a(f'v_cmp_ne_u32 vcc, 0, v{vT+6}')
        self.poll(ql, chk_q)
        a(f'v_cmp_ne_u32 vcc, {sXC}, v{vXG}')
        a(f'v_mov_b32 v{vT+5}, {L_FL}')
        a('s_cmp_eq_u64 vcc, 0')
        a(f's_cselect_b32 {sNEAR}, 1, 0')
        a('s_cbranch_scc1 L_qnear')
        for x in far:
            a(x)
        self.lab('L_qnear')
        a(f'v_mov_b32 v{vT+4}, {sNEAR}')
        a(f'ds_write_b32 v{vT+5}, v{vT+4}', '1: hand-offs inside the group may stay in this L2')
        self.stamp('gotq')
        self.untag(range(vW, vW + 32))
        for h in range(4):
            for k in range(4):
                a(f'v_add_f32 v{vW+8*h+k}, v{vW+8*h+k}, v{vW+8*h+4+k}')
        for h in range(4):
            a(f'v_permlane32_swap_b32 v{vW+8*h}, v{vW+8*h+2}')
            a(f'v_permlane32_swap_b32 v{vW+8*h+1}, v{vW+8*h+3}')
        for h in range(4):
            a(f'v_add_f32 v{vW+8*h}, v{vW+8*h}, v{vW+8*h+2}')
            a(f'v_add_f32 v{vW+8*h+1}, v{vW+8*h+1}, v{vW+8*h+3}')
            a(f'v_cvt_pk_bf16_f32 v{vW+8*h}, v{vW+8*h}, v{vW+8*h+1}')
            a(f'ds_write_b32 v{vT+1}, v{vW+8*h} offset:{L_BQ+16*h}')
        self.barrier('A')
        a(f'v_and_b32 v{vT}, 3, v{vLane}')
        a(f'v_lshlrev_b32 v{vT}, 4, v{vT}')
        a(f's_lshl_b32 {sT2}, {sG}, 11')
        a(f's_add_u32 {sT2}, {sT2}, {hex(MLBOX)}')
        a(f's_lshl_b32 {sT1}, {sJ}, 4')
        a(f's_add_u32 {sT0}, {sT2}, {sT1}')
        a(f'v_lshl_add_u32 v{vT+1}, v{vT}, 5, {sT0}', 'publish: h*512 + j*16')
        a(f's_lshr_b32 {sT1}, {sJ}, 3')
        a(f's_lshl_b32 {sT1}, {sT1}, 9')
        a(f's_add_u32 {sT0}, {sT2}, {sT1}')
        a(f'v_and_b32 v{vT+2}, 31, v{vLane}')
        a(f'v_lshlrev_b32 v{vT+3}, 2, v{vT+2}', 'LDS address of weight l&31')
        a(f'v_lshl_add_u32 v{vT+2}, v{vT+2}, 4, {sT0}', 'gather: head j>>3, split l&31')
        a(f'v_mov_b32 v{vX+2}, {sTAG}')
        a(f'v_mov_b32 v{vX+3}, {sTAG}')
        a(f's_mov_b32 {sC}, {hex(f2u(math.log2(math.e)))}')
        a('s_barrier', 'B')
        a(f'ds_read_b128 v[{vA}:{vA+3}], v{vT} offset:{L_MB}')
        a('s_waitcnt lgkmcnt(0)')
        a(f'v_max3_f32 v{vX}, v{vA}, v{vA+1}, v{vA+2}')
        a(f'v_max_f32 v{vX}, v{vX}, v{vA+3}')
        a('s_barrier', 'C')
        a(f'ds_read_b128 v[{vA}:{vA+3}], v{vT} offset:{L_LB}')
        a('s_waitcnt lgkmcnt(0)')
        a(f'v_add_f32 v{vA}, v{vA}, v{vA+2}')
        a(f'v_add_f32 v{vA+1}, v{vA+1}, v{vA+3}')
        a(f'v_add_f32 v{vX+1}, v{vA}, v{vA+1}')
        a('s_mov_b64 exec, 0xf')
        a(f's_cmp_eq_u32 {sNEAR}, 1')
        a('s_cbranch_scc1 L_mlnear')
        a(f'buffer_store_dwordx4 v[{vX}:{vX+3}], v{vT+1}, {SRD_WS}, 0 offen sc1')
        a('s_branch L_mlfar')
        self.lab('L_mlnear')
        a(f'buffer_store_dwordx4 v[{vX}:{vX+3}], v{vT+1}, {SRD_WS}, 0 offen')
        self.lab('L_mlfar')
        a('s_mov_b64 exec, -1')
        a('s_barrier', 'M')

        def chk_ml():
            a(f'v_xor_b32 v{vT+4}, {sTAG}, v{vB+2}')
            a(f'v_xor_b32 v{vT+5}, {sTAG}, v{vB+3}')
            a(f'v_or_b32 v{vT+4}, v{vT+4}, v{vT+5}')
            a(f'v_cmp_ne_u32 vcc, 0, v{vT+4}')
        self.poll([f'buffer_load_dwordx4 v[{vB}:{vB+3}], v{vT+2}, {SRD_WS}, 0 offen sc1'], chk_ml)
        mx, y, t = vT + 4, vT + 5, vT + 6
        a(f'v_mov_b32 v{mx}, v{vB}')
        self.inrow_allreduce('v_max_f32', mx, (8, 4, 2, 1))
        self.rows_allreduce('v_max_f32', mx, t, do32=False)
        a(f'v_sub_f32 v{mx}, v{vB}, v{mx}')
        a(f'v_mul_f32 v{mx}, {sC}, v{mx}')
        a(f'v_exp_f32 v{mx}, v{mx}')
        a('s_nop 0')
        a(f'v_mul_f32 v{y}, v{mx}, v{vB+1}')
        self.inrow_allreduce('v_add_f32', y, (8, 4, 2, 1))
        self.rows_allreduce('v_add_f32', y, t, do32=False)
        a(f'v_rcp_f32 v{y}, v{y}')
        a('s_nop 0')
        a(f'v_mul_f32 v{mx}, v{mx}, v{y}')
        a(f'ds_write_b32 v{vT+3}, v{mx} offset:{L_WB}')
        self.stamp('mlw')
        a('s_waitcnt lgkmcnt(0)')
        a('s_branch L_Z')

        self.c('---- wave 5: hidden values and one 64 x 64 tile of the down projection ----')
        self.lab('L_h1')
        a(f'buffer_store_dword v{vA+4}, v{vT+3}, {SRD_WS}, 0 offen sc1')
        self.srd(SRD_B, 20, 1792 * 1024)
        sFI, sRD, sCD = 's8', 's9', 's10'
        a(f's_mul_i32 {sFI}, {sG}, 28')
        a(f's_add_u32 {sFI}, {sFI}, {sJ}')
        a(f's_lshr_b32 {sRD}, {sFI}, 3')
        a(f's_and_b32 {sCD}, {sFI}, 7')
        a(f's_lshl_b32 {sT0}, {sRD}, 16')
        a(f's_lshl_b32 {sT1}, {sCD}, 7')
        a(f's_add_u32 {sT0}, {sT0}, {sT1}')
        a(f'v_lshrrev_b32 v{vT+2}, 3, v{vLane}')
        a(f'v_lshlrev_b32 v{vT}, 13, v{vT+2}')
        a(f'v_lshlrev_b32 v{vT+2}, 4, v{vT+2}', 'LDS reader of h')
        a(f'v_and_b32 v{vT+1}, 7, v{vLane}')
        a(f'v_lshlrev_b32 v{vT+1}, 4, v{vT+1}')
        a(f'v_add3_u32 v{vT}, v{vT}, v{vT+1}, {sT0}')
        a(f's_movk_i32 {sT2}, 0x1000')
        for e in range(8):
            a(f'buffer_load_dwordx4 v[{vW+4*e}:{vW+4*e+3}], v{vT}, {SRD_B}, {sT2 if e >= 4 else 0} offen offset:{(e & 3)*1024} nt')
        a(f's_lshl_b32 {sT0}, {sRD}, 8')
        a(f's_add_u32 {sT0}, {sT0}, {hex(HBOX)}')
        a(f'v_lshl_add_u32 v{vT+1}, v{vLane}, 2, {sT0}', 'hidden unit 64*rd + lane')
        a(f'v_and_b32 v{vT+3}, 3, v{vLane}')
        a(f'v_lshlrev_b32 v{vT+3}, 3, v{vT+3}')
        a(f'v_lshrrev_b32 v{vTB}, v{vT+3}, {sTAG}')
        a(f'v_lshlrev_b32 v{vT+3}, 1, v{vLane}', 'LDS writer of h')
        a(f's_lshl_b32 {sT0}, {sCD}, 13')
        a(f's_lshl_b32 {sT1}, {sRD}, 8')
        a(f's_add_u32 {sT0}, {sT0}, {sT1}')
        a(f's_add_u32 {sT0}, {sT0}, {hex(FBOX)}')
        a(f'v_add_u32 v{vCol}, {sT0}, v{vCol}')
        for b in 'ABC':
            a('s_barrier', b)
        hl = []
        for k in range(8):
            if k:
                hl.append(f's_movk_i32 {sT2}, {k*7168 - (0 if k < 4 else 0x7000)}')
            if k == 4:
                hl.append(f'v_add_u32 v{vT+4}, 0x7000, v{vT+1}')
            hl.append(f'buffer_load_dword v{vB+k}, v{vT+1 if k < 4 else vT+4}, {SRD_WS}, {sT2 if k else 0} offen sc1')

        def chk_h():
            a(f'v_xor_b32 v{vT+4}, v{vB}, v{vTB}')
            for k in range(1, 8):
                a(f'v_bitop3_b32 v{vT+4}, v{vB+k}, v{vTB}, v{vT+4} bitop3:0xbe')
            a(f'v_and_b32 v{vT+4}, 0xff, v{vT+4}')
            a(f'v_cmp_ne_u32 vcc, 0, v{vT+4}')
        self.poll(hl, chk_h)
        self.untag(range(vB, vB + 8))
        for b in (vB, vB + 4):
            a(f'v_add_f32 v{b}, v{b}, v{b+1}')
            a(f'v_add_f32 v{b+2}, v{b+2}, v{b+3}')
            a(f'v_add_f32 v{b}, v{b}, v{b+2}')
            self.bf16r(b, b)
        self.silu_bf16(vB + 1, vB, vB + 2)
        a(f'v_mul_f32 v{vB+1}, v{vB+1}, v{vB+4}')
        a(f'v_cvt_pk_bf16_f32 v{vB+1}, v{vB+1}, v{vB+1}')
        a(f'ds_write_b16 v{vT+3}, v{vB+1} offset:{L_HB}')
        a('s_waitcnt lgkmcnt(0)')
        a(f'ds_read_b128 v[{vX}:{vX+3}], v{vT+2} offset:{L_HB}')
        a('s_waitcnt lgkmcnt(0)')
        self.tile_dot(4, vW, vX, vA, vB, lambda p: None)
        a(f'v_perm_b32 v{vA+4}, v{vA+4}, v{vTC}, {sSEL}')
        a(f'buffer_store_dword v{vA+4}, v{vCol}, {SRD_WS}, 0 offen sc1')
        self.stamp('fpub')
        a('s_barrier', 'M')
        a('s_branch L_Z')

        self.c('---- waves 6, 7 (and wave 5 without a tile); wave 6 of a final consumer sums the FFN output ----')
        self.lab('L_h23')
        a('s_waitcnt lgkmcnt(0)')
        self.make_tag()
        a(f's_cmp_eq_u32 {sW}, 7')
        a('s_cbranch_scc1 L_h3')
        for b in 'TGABCM':
            a('s_barrier', b)
        a(f's_cmp_lg_u32 {sW}, 6')
        a('s_cbranch_scc1 L_Z')
        a(f's_cmp_ge_u32 s2, {NCONS}')
        a('s_cbranch_scc1 L_Z')
        lpp = CPC // 4
        ppl = 64 // lpp
        nl = -(-28 // ppl)
        last = (28 - (nl - 1) * ppl) * lpp
        a(f'v_mov_b32 v{vTag}, {sTAG}')
        a(f's_mov_b32 {sSA}, 0x0c0c0400')
        a(f's_mov_b32 {sSB}, 0x04000c0c')
        a(f's_lshr_b32 {sT0}, s2, {6-lg}')
        a(f's_lshl_b32 {sT0}, {sT0}, 13')
        a(f's_and_b32 {sT1}, s2, {64//CPC - 1}')
        a(f's_lshl_b32 {sT1}, {sT1}, {lg+2}')
        a(f's_add_u32 {sT0}, {sT0}, {sT1}')
        a(f's_add_u32 {sT0}, {sT0}, {hex(FBOX)}')
        a(f'v_and_b32 v{vT+1}, {lpp-1}, v{vLane}')
        a(f'v_lshlrev_b32 v{vT+2}, 4, v{vT+1}')
        a(f'v_lshrrev_b32 v{vT}, {lg-2}, v{vLane}')
        a(f'v_lshlrev_b32 v{vT}, 8, v{vT}')
        a(f'v_add3_u32 v{vT}, v{vT}, v{vT+2}, {sT0}')
        self.c('column of this lane after the reduction: 4*(l % lpp) + (l >> 4)')
        a(f'v_lshrrev_b32 v{vT+2}, 4, v{vLane}')
        a(f'v_lshl_add_u32 v{vT+1}, v{vT+1}, 2, v{vT+2}')
        a(f's_lshl_b32 {sT0}, s2, {lg+1}')
        a(f'v_lshl_add_u32 v{vT+2}, v{vT+1}, 1, {sT0}')
        a(f'v_lshlrev_b32 v{vT+1}, 2, v{vT+1}')
        a(f'buffer_load_short_d16_hi v{vT+3}, v{vT+2}, {SRD_X}, 0 offen')
        for k in range(4):
            a(f'v_bfe_u32 v{vW+4*(nl-1)+k}, v{vTag}, {8*k}, 8')
        fl = []
        for u in range(nl):
            off = u * ppl * 256
            if u == nl - 1 and last < 64:
                fl.append(f's_mov_b32 exec_lo, {hex(((1 << last) - 1) & 0xffffffff)}')
                fl.append(f's_mov_b32 exec_hi, {hex(((1 << last) - 1) >> 32)}')
            if off >= 4096:
                fl.append(f's_movk_i32 {sT2}, {hex(off & ~4095)}')
            fl.append(f'buffer_load_dwordx4 v[{vW+4*u}:{vW+4*u+3}], v{vT}, {SRD_WS}, {sT2 if off >= 4096 else 0} offen offset:{off & 4095} sc1')
        fl.append('s_mov_b64 exec, -1')
        self.poll(fl, lambda: self.check_quads([vW + 4 * u for u in range(nl)], vTag, vT + 4, vT + 5, vT + 6))
        self.untag(range(vW, vW + 4 * nl))
        for u in range(1, nl):
            for k in range(4):
                a(f'v_add_f32 v{vW+k}, v{vW+k}, v{vW+4*u+k}')
        self.quad_reduce(vW, lpp)
        self.bf16r(vW, vW)
        self.silu_bf16(vT + 4, vW, vT + 5)
        a(f'ds_write_b32 v{vT+1}, v{vT+4} offset:{L_GB}')
        a(f'ds_write_b32 v{vT+1}, v{vT+3} offset:{L_XB}')
        a(f'v_mov_b32 v{vT+4}, {L_CT}')
        a(f'v_mov_b32 v{vT+5}, 0')
        a(f'ds_write_b32 v{vT+4}, v{vT+5}')
        a('s_branch L_Z')
        self.c('wave 7: arrival order inside the group at a few marks of the stream (a hint: it only sets the prefetch depth)')
        self.lab('L_h3')
        a(f'v_mov_b32 v{vT}, {L_AD}')
        a(f'v_mov_b32 v{vT+1}, 0')
        a(f'ds_write_b32 v{vT}, v{vT+1}')
        a(f's_lshl_b32 {sT1}, {sG}, 7')
        a(f's_add_u32 {sT1}, {sT1}, {hex(RBOX)}')
        a(f'v_and_b32 v{vT+2}, 31, v1')
        a(f'v_lshl_add_u32 v{vT+2}, v{vT+2}, 2, {sT1}')
        a(f's_lshl_b32 {sT0}, {sJ}, 2')
        a(f's_add_u32 {sT1}, {sT1}, {sT0}')
        a(f'v_mov_b32 v{vT+3}, {sT1}')
        a(f'v_mov_b32 v{vT+4}, {sTAG}')
        a('s_waitcnt lgkmcnt(0)')
        k = 0
        for b in 'TGABCM':
            a('s_barrier', b)
            if b in 'GACM':
                a('s_mov_b64 exec, 1')
                a(f'buffer_store_dword v{vT+4}, v{vT+3}, {SRD_WS}, 0 offen offset:{1024*k}')
                a('s_mov_b64 exec, -1')
                a(f'buffer_load_dword v{vT+5}, v{vT+2}, {SRD_WS}, 0 offen offset:{1024*k} sc1')
                a('s_waitcnt vmcnt(0)')
                a(f'v_cmp_eq_u32 vcc, v{vT+4}, v{vT+5}')
                a(f's_bcnt1_i32_b32 {sT0}, vcc_lo')
                a(f's_cmp_gt_u32 {sT0}, {self.late}')
                a(f's_cselect_b32 {sT1}, 1, 0')
                a(f'v_mov_b32 v{vT+1}, {sT1}')
                a(f'ds_write_b32 v{vT}, v{vT+1}')
                k += 1
        a('s_branch L_Z')


def gen(**kw):
    g = G(**kw)
    s = g.gen()
    return s, g.stamp_names


if __name__ == '__main__':
    kw = eval('dict(' + (sys.argv[2] if len(sys.argv) > 2 else '') + ')')
    s, _ = gen(**kw)
    open(sys.argv[1], 'w').write(s)
```

```python
import math, struct, sys

NAME = 'recurrent_scan__gqa_block_cached__swiglu_ffn__decode_kernel'

HEADER = """; Kernarg layout for this problem (96 bytes, ptrs only, base s[0:1]):
;
"""


def f2u(x):
    return struct.unpack('<I', struct.pack('<f', x))[0]


QBOX  = 0x000000
HBOX  = 0x010000
MLBOX = 0x020000
RBOX  = 0x024000
XBOX  = 0x028000
FBOX  = 0x030000
SBOX  = 0x040000
OBOX  = 0x060000
EPOCH = 0x0e0000
STAMP = 0x800000

L_BQ = 0
L_XN = 1024
L_MB = 3072
L_LB = 3200
L_WB = 3312
L_GB = 3440
L_XB = 3568
L_O2 = 3696
L_S2 = 4208
L_CT = 5236
L_AD = 5240
L_FL = 5244
L_HB = 5248
L_A  = 1024
L_OB = 5376
L_WO = 5376 + 16384
L_TL = 5376
LDS_BYTES = L_TL + 2 * 16384

SRD_A, SRD_B, SRD_X, SRD_C, SRD_OUT, SRD_WS = [f's[{b}:{b+3}]' for b in range(28, 52, 4)]
sG, sJ, sW, sTAG, sOFF, sT0, sT1, sT2, sPLO, sPHI, sC, sCNT = [f's{i}' for i in range(52, 64)]
sL2E, sSEL, sSA, sSB, sLOC = 's3', 's64', 's65', 's66', 's67'
STAMP_BASE = 68
NVGPR = 256
RING = 44
RING0 = NVGPR - 4 * RING


class G:
    def __init__(self, Ds=((0, 7), (16, 5), (110, 8)), kfirst=1, nT=12, nG=24, nA=44, nM=44, nZ=64, late=22, pick=6,
                 qtry=4, spin=200000, stamps=False):
        self.__dict__.update(locals())
        self.L = []
        self.vm = []
        self.nlab = 0
        self.stamp_names = []

    def a(self, s, note=None):
        self.L.append('    ' + s + (f'    ; {note}' if note else ''))

    def c(self, text):
        for line in text.split('\n'):
            self.L.append('    ; ' + line)

    def lab(self, s):
        self.L.append(s + ':')

    def newlab(self, p):
        self.nlab += 1
        return f'L_{p}_{self.nlab}'

    def load(self, name, text):
        self.a(text)
        self.vm.append(name)

    def wait(self, name):
        n = len(self.vm) - 1 - self.vm.index(name)
        assert n <= 63
        self.a(f's_waitcnt vmcnt({n})')

    def stamp(self, name):
        if not self.stamps:
            return
        if self.stamps is True:
            if name.startswith('_'):
                return
        elif name not in self.stamps and name not in ('start', 'end'):
            return
        i = len(self.stamp_names)
        assert STAMP_BASE + 2 * i + 1 <= 101
        self.a(f's_memrealtime s[{STAMP_BASE+2*i}:{STAMP_BASE+2*i+1}]')
        self.stamp_names.append(name)

    def dpp(self, op, d, s0, s1, ctl, bank=0xf):
        self.a(f'{op}_dpp v{d}, v{s0}, v{s1} {ctl} row_mask:0xf bank_mask:{hex(bank)}')

    def rows_allreduce(self, op, v, t, do16=True, do32=True):
        if do16:
            self.a(f'v_mov_b32 v{t}, v{v}')
            self.a('s_nop 1')
            self.a(f'v_permlane16_swap_b32 v{v}, v{t}')
            self.a(f'{op} v{v}, v{v}, v{t}')
        if do32:
            self.a(f'v_mov_b32 v{t}, v{v}')
            self.a('s_nop 1')
            self.a(f'v_permlane32_swap_b32 v{v}, v{t}')
            self.a(f'{op} v{v}, v{v}, v{t}')

    def inrow_allreduce(self, op, v, rots):
        for r in rots:
            self.a('s_nop 1')
            self.dpp(op, v, v, v, f'row_ror:{r}')

    def bf16r(self, d, s):
        self.a(f'v_cvt_pk_bf16_f32 v{d}, v{s}, v{s}')
        self.a(f'v_and_b32 v{d}, 0xffff0000, v{d}')

    def sum8(self, d, b):
        for k in range(4):
            self.a(f'v_add_f32 v{b+k}, v{b+k}, v{b+4+k}')
        self.a(f'v_add_f32 v{b}, v{b}, v{b+2}')
        self.a(f'v_add_f32 v{b+1}, v{b+1}, v{b+3}')
        self.a(f'v_add_f32 v{d}, v{b}, v{b+1}')

    def max8(self, d, b, t):
        self.a(f'v_max3_f32 v{d}, v{b}, v{b+1}, v{b+2}')
        self.a(f'v_max3_f32 v{t}, v{b+3}, v{b+4}, v{b+5}')
        self.a(f'v_max3_f32 v{d}, v{d}, v{b+6}, v{b+7}')
        self.a(f'v_max_f32 v{d}, v{d}, v{t}')

    def silu_bf16(self, d, x, t):
        self.a(f'v_mul_f32 v{t}, {hex(f2u(math.log2(math.e)))}, v{x}')
        self.a(f'v_exp_f32 v{t}, -v{t}')
        self.a('s_nop 0')
        self.a(f'v_add_f32 v{t}, 1.0, v{t}')
        self.a(f'v_rcp_f32 v{t}, v{t}')
        self.a('s_nop 0')
        self.a(f'v_mul_f32 v{t}, v{x}, v{t}')
        self.bf16r(d, t)

    def make_tag(self):
        self.a(f's_and_b32 {sT0}, {sTAG}, 0x7f7f7f7f')
        self.a(f's_add_u32 {sT0}, {sT0}, 0x47611b35')
        self.a(f's_and_b32 {sTAG}, {sTAG}, 0x80808080')
        self.a(f's_xor_b32 {sTAG}, {sTAG}, {sT0}')

    def untag(self, regs):
        for r in regs:
            self.a(f'v_and_b32 v{r}, 0xffffff00, v{r}')

    def check_quads(self, quads, vtag, t0, t1, t2, cmp=True):
        for i, q in enumerate(quads):
            self.a(f'v_perm_b32 v{t0}, v{q+1}, v{q}, {sSA}')
            self.a(f'v_perm_b32 v{t1}, v{q+3}, v{q+2}, {sSB}')
            if i == 0:
                self.a(f'v_bitop3_b32 v{t2}, v{t0}, v{t1}, v{vtag} bitop3:0x56')
            else:
                self.a(f'v_bitop3_b32 v{t0}, v{t0}, v{t1}, v{vtag} bitop3:0x56')
                self.a(f'v_or_b32 v{t2}, v{t2}, v{t0}')
        if cmp:
            self.a(f'v_cmp_ne_u32 vcc, 0, v{t2}')

    def poll(self, loads, check, first_issued=False):
        again, done = self.newlab('again'), self.newlab('done')
        self.a(f's_mov_b32 {sCNT}, {self.spin}')
        if first_issued:
            check()
            self.a(f's_cbranch_vccz {done}')
        self.lab(again)
        for x in loads:
            self.lab(x[:-1]) if x.endswith(':') else self.a(x)
        self.a(f's_sub_u32 {sCNT}, {sCNT}, 1')
        self.a('s_waitcnt vmcnt(0)')
        self.a(f's_cbranch_scc1 {done}')
        check()
        self.a(f's_cbranch_vccnz {again}')
        self.lab(done)

    def quad_reduce(self, v, lpp):
        self.a('s_nop 1')
        self.a(f'v_permlane32_swap_b32 v{v}, v{v+2}')
        self.a(f'v_permlane32_swap_b32 v{v+1}, v{v+3}')
        self.a(f'v_add_f32 v{v}, v{v}, v{v+2}')
        self.a(f'v_add_f32 v{v+1}, v{v+1}, v{v+3}')
        self.a('s_nop 1')
        self.a(f'v_permlane16_swap_b32 v{v}, v{v+1}')
        self.a(f'v_add_f32 v{v}, v{v}, v{v+1}')
        self.inrow_allreduce('v_add_f32', v, [r for r in (8, 4, 2) if r >= lpp])

    def tile_dot(self, npairs, vW, vX, vA, vB, waitp):
        a = self.a
        for p in range(npairs):
            waitp(p)
            w0, w1 = vW + 8 * p, vW + 8 * p + 4
            for e in range(8):
                a(f'v_perm_b32 v{vB+e}, v{w1+(e>>1)}, v{w0+(e>>1)}, {sPHI if e & 1 else sPLO}')
            for e in range(8):
                a(f'v_dot2_f32_bf16 v{vA+e}, v{vB+e}, v{vX+p}, {"0" if p == 0 else f"v{vA+e}"}')
        a('s_nop 2')
        for e in range(4):
            a(f'v_permlane32_swap_b32 v{vA+e}, v{vA+e+4}')
        for e in range(4):
            a(f'v_add_f32 v{vA+e}, v{vA+e}, v{vA+e+4}')
        a('s_nop 0')
        for e in range(2):
            a(f'v_permlane16_swap_b32 v{vA+e}, v{vA+e+2}')
        for e in range(2):
            a(f'v_add_f32 v{vA+e}, v{vA+e}, v{vA+e+2}')
        a('s_nop 0')
        self.dpp('v_add_f32', vA + 4, vA, vA, 'row_ror:8', 0x3)
        a('s_nop 1')
        self.dpp('v_add_f32', vA + 4, vA + 1, vA + 1, 'row_ror:8', 0xc)

    def srd(self, srd, p, nbytes):
        b = int(srd[2:srd.index(':')])
        self.a(f's_mov_b64 s[{b}:{b+1}], s[{p}:{p+1}]')
        self.a(f's_mov_b32 s{b+2}, {hex(nbytes)}')
        self.a(f's_mov_b32 s{b+3}, 0x20000')

    def barrier(self, note):
        self.a('s_waitcnt lgkmcnt(0)')
        self.a('s_barrier', note)

    def slot(self, n):
        return RING0 + 4 * (n % RING)

    def depth(self, m):
        return [d for f, d in self.Ds if m >= f][-1]

    def need(self, name):
        k = self.seq.index(name)
        assert k < self.m, name
        if k > self.landed:
            self.wait(name)
            self.landed = k

    def has(self, name):
        return self.seq.index(name) <= self.landed

    def step(self):
        if self.m >= len(self.seq):
            return
        k = self.m - self.depth(self.m)
        if self.adapting:
            k2 = k - 1
            if k2 > self.landed:
                self.wait(self.seq[k2])
                self.landed = k2
            if k > self.landed:
                skip = self.newlab('deep')
                self.a(f's_cbranch_vccnz {skip}')
                self.wait(self.seq[k])
                self.lab(skip)
        elif k > self.landed:
            self.wait(self.seq[k])
            self.landed = k
        if self.m in self.picks:
            self.a(f'ds_read_b32 v78, v79')
        if self.m - 1 in self.picks:
            self.a('s_waitcnt lgkmcnt(0)')
            self.a('v_cmp_ne_u32 vcc, 0, v78', 'vcc: this workgroup is late, keep one more load in flight')
            self.adapting = True
        name = self.seq[self.m]
        kind, i = name[0], int(name[1:])
        if kind in 'KV':
            n = i + (64 if kind == 'V' else 0)
            old = n - RING
            assert old < 0 or (old < 64 and old < 4 * self.beta) or (old >= 64 and old - 64 < 4 * self.tau), name
            r = self.slot(n)
            srd, vo, off, dst, tailtxt = (SRD_A if kind == 'K' else SRD_B), (2 if kind == 'K' else 3), i * 4096, f'v[{r}:{r+3}], ', 'nt'
        else:
            if i == 0:
                self.tile_setup(kind)
            srd, vo = (SRD_X, 76) if kind == 'Q' else (SRD_C, 77)
            off, dst, tailtxt = i * ((8192 if kind == 'Q' else 3584) - 1024), '', f'offset:{i*1024} nt lds'
        so = '0'
        if off:
            self.a(f's_mov_b32 {sOFF}, {hex(off)}')
            so = sOFF
        self.load(name, f'buffer_load_dwordx4 {dst}v{vo}, {srd}, {so} offen {tailtxt}')
        self.stamp('_' + name)
        self.m += 1

    def steps_until(self, name):
        while self.seq[self.m] != name:
            self.step()

    def tile_setup(self, kind):
        a, vT = self.a, 60
        if kind == 'Q':
            self.srd(SRD_X, 10, 4 << 20)
            a(f's_and_b32 {sT0}, {sJ}, 3')
            a(f's_lshl_b32 {sT0}, {sT0}, 7')
            a(f's_lshl_b32 {sT1}, {sW}, 2')
            a(f's_add_u32 {sT0}, {sT0}, {sT1}')
            a(f'v_lshrrev_b32 v{vT}, 3, v1')
            a(f'v_lshl_add_u32 v{vT}, v{vT}, 4, {sT0}', 'row = 128*rb + 16*(l>>3) + 4w')
            a(f'v_and_b32 v{vT+1}, 7, v1')
            a(f'v_lshlrev_b32 v{vT+1}, 4, v{vT+1}')
            a(f's_lshr_b32 {sT2}, {sJ}, 2')
            a(f's_lshl_b32 {sT0}, {sG}, 10')
            a(f's_lshl_b32 {sT1}, {sT2}, 7')
            a(f's_add_u32 {sT0}, {sT0}, {sT1}')
            a(f'v_lshlrev_b32 v76, 13, v{vT}')
            a(f'v_add3_u32 v76, v76, v{vT+1}, {sT0}')
            a(f's_lshl_b32 {sT1}, {sW}, 12')
            a(f's_add_u32 m0, {sT1}, {L_TL}')
            a('s_nop 0')
        else:
            a(f's_lshl_b32 {sT2}, {sT2}, 3')
            a(f's_add_u32 {sT2}, {sT2}, {sG}')
            a(f's_sub_u32 {sT0}, {sT2}, 28')
            a(f's_cmp_ge_u32 {sT2}, 28')
            a(f's_cselect_b32 {sT2}, {sT0}, {sT2}')
            a('s_cselect_b64 s[40:41], s[18:19], s[16:17]')
            a(f's_mov_b32 s42, {hex(512*3584)}')
            a('s_mov_b32 s43, 0x20000')
            a(f's_lshl_b32 {sT2}, {sT2}, 7')
            a(f's_cmp_ge_u32 {sJ}, 28')
            a(f's_cselect_b32 {sT2}, 0x10000000, {sT2}', 'no FFN tile: out of range, nothing is fetched')
            a(f's_add_u32 m0, {sT1}, {L_TL + 16384}')
            a(f'v_mul_u32_u24 v77, 3584, v{vT}')
            a(f'v_add3_u32 v77, v77, v{vT+1}, {sT2}')

    def qk_batch(self):
        beta = self.beta
        half, t = beta >> 2, beta & 3
        Dr, P0, Bq = 36, 4, 52
        self.need(f'K{4*beta+3}')
        self.beta += 1
        self.c(f'scores of K tiles {4*beta}..{4*beta+3}: the valid quarter of each product, summed into bank {t}')
        for gam in range(4):
            r = self.slot(4 * beta + gam)
            self.a(f'v_mfma_f32_16x16x32_bf16 v[{Dr+4*gam}:{Dr+4*gam+3}], v[{r}:{r+3}], v[{Bq}:{Bq+3}], 0')
        self.a('s_nop 5')
        for k in (1, 2, 3):
            for gam in range(4):
                P = P0 + 4 * half + gam
                d = Dr + 4 * gam
                self.dpp('v_add_f32', P, d + ((t + k) & 3), d + t if k == 1 else P, f'row_ror:{16-4*k}', 1 << t)

    def pv_group(self):
        tau = self.tau
        B = 36
        self.tau += 1
        self.c(f'P.V of V tiles {4*tau}..{4*tau+3}')
        for pair in range(2):
            v0 = self.slot(64 + 4 * tau + 2 * pair)
            v1 = self.slot(64 + 4 * tau + 2 * pair + 1)
            self.need(f'V{4*tau+2*pair+1}')
            for e in range(8):
                self.a(f'v_perm_b32 v{B+2*e+pair}, v{v1+(e>>1)}, v{v0+(e>>1)}, {sPHI if e & 1 else sPLO}')
        PA = 52 + 2 * (tau >> 2)
        for e in range(8):
            ac = 4 + 4 * e
            c = '0' if tau == 0 else f'v[{ac}:{ac+3}]'
            self.a(f'v_mfma_f32_4x4x4_16b_bf16 v[{ac}:{ac+3}], v[{PA}:{PA+1}], v[{B+2*e}:{B+2*e+1}], {c} cbsz:2 abid:{tau & 3}')

    def gen(self):
        a = self.a
        self.L.append(f'; @launch grid=(256,1,1) block=(512,1,1) lds={LDS_BYTES}')
        self.L.append('.amdgcn_target "amdgcn-amd-amdhsa--gfx950"')
        self.L.append('.text')
        self.L.append(f'.globl {NAME}')
        self.L.append('.p2align 8')
        self.L.append(f'.type {NAME},@function')
        self.lab(NAME)
        a('s_load_dwordx16 s[4:19], s[0:1], 0')
        a('s_load_dwordx8 s[20:27], s[0:1], 64')
        if self.stamps:
            for i in range(STAMP_BASE, 102, 2):
                a(f's_mov_b64 s[{i}:{i+1}], 0')
            self.stamp('start')
        a('s_cmp_ge_u32 s2, 0x100')
        a('s_cbranch_scc1 L_end')
        a('v_lshrrev_b32 v4, 6, v0')
        a('v_and_b32 v1, 63, v0')
        a(f'v_readfirstlane_b32 {sW}, v4')
        a(f's_and_b32 {sG}, s2, 7')
        a(f's_lshr_b32 {sJ}, s2, 3')
        a(f's_cmp_ge_u32 {sW}, 4')
        a('s_cbranch_scc1 L_helper')
        self.stream_wave()
        self.tail()
        self.far_store()
        self.helper_join()
        self.helpers()
        self.lab('L_exit0')
        if self.stamps:
            a('s_mov_b64 exec, -1')
        self.lab('L_exit')
        if self.stamps:
            self.stamp('end')
            a('s_waitcnt lgkmcnt(0)')
            a('v_mov_b32 v4, 0')
            for i in range(len(self.stamp_names)):
                a(f'v_writelane_b32 v4, s{STAMP_BASE+2*i}, {i}')
            a(f's_getreg_b32 {sT1}, hwreg(HW_REG_XCC_ID)')
            a(f'v_writelane_b32 v4, {sT1}, 63')
            a(f's_getreg_b32 {sT1}, hwreg(HW_REG_HW_ID)')
            a(f'v_writelane_b32 v4, {sT1}, 62')
            a(f's_lshl_b32 {sT0}, s2, 3')
            a(f's_add_u32 {sT0}, {sT0}, {sW}')
            a(f's_lshl_b32 {sT0}, {sT0}, 8')
            a(f's_add_u32 {sT0}, {sT0}, {hex(STAMP)}')
            a(f'v_lshl_add_u32 v5, v1, 2, {sT0}')
            a(f'buffer_store_dword v4, v5, {SRD_WS}, 0 offen')
        self.lab('L_end')
        a('s_endpgm')
        self.L += ['.section .rodata,"a"', '.p2align 6', f'.amdhsa_kernel {NAME}',
                   f'  .amdhsa_next_free_vgpr {NVGPR}', '  .amdhsa_next_free_sgpr 102', f'  .amdhsa_accum_offset {NVGPR}',
                   '  .amdhsa_group_segment_fixed_size 0', '  .amdhsa_kernarg_size 96',
                   '  .amdhsa_user_sgpr_count 2', '  .amdhsa_user_sgpr_kernarg_segment_ptr 1',
                   '  .amdhsa_system_sgpr_workgroup_id_x 1',
                   '  .amdhsa_float_denorm_mode_32 3', '.end_amdhsa_kernel']
        return HEADER + '\n'.join(self.L) + '\n'

    def stream_wave(self):
        a = self.a
        vP, vD, vPA, vBq, vT = 4, 36, 52, 52, 60
        assert RING0 == 80
        kf = self.kfirst
        self.seq = [f'K{i}' for i in range(kf)] + [f'Q{i}' for i in range(4)] + [f'F{i}' for i in range(4)] + \
                   [f'K{i}' for i in range(kf, 64)] + [f'V{i}' for i in range(64)]
        self.m = self.beta = self.tau = 0
        self.landed = -1
        self.adapting = False
        self.picks = set()
        self.vm = []
        a(f's_lshl_b32 {sT0}, {sG}, 23')
        a(f's_lshl_b32 {sT1}, {sJ}, 18')
        a(f's_add_u32 {sT0}, {sT0}, {sT1}')
        a(f's_lshl_b32 {sT1}, {sW}, 10')
        a(f's_add_u32 {sT0}, {sT0}, {sT1}')
        self.c('K lane offset: key (l&15)>>2, 16-byte chunk (l&3) + 4*(l>>4)')
        a(f'v_bfe_u32 v{vT}, v1, 2, 2')
        a(f'v_lshlrev_b32 v{vT}, 8, v{vT}')
        a(f'v_and_b32 v{vT+1}, 3, v1')
        a(f'v_lshl_add_u32 v{vT}, v{vT+1}, 4, v{vT}')
        a(f'v_lshrrev_b32 v{vT+2}, 4, v1')
        a(f'v_lshlrev_b32 v{vT+2}, 6, v{vT+2}')
        a(f'v_add3_u32 v2, v{vT}, v{vT+2}, {sT0}')
        a(f'v_lshl_add_u32 v3, v1, 4, {sT0}')
        a('s_waitcnt lgkmcnt(0)')
        self.srd(SRD_A, 6, 64 << 20)
        self.steps_until('F0')
        self.stamp('issued0')
        a(f's_load_dword {sTAG}, s[26:27], {hex(EPOCH)}')
        self.srd(SRD_WS, 26, 256 << 20)
        self.srd(SRD_B, 8, 64 << 20)
        a(f's_mov_b32 {sPLO}, 0x05040100')
        a(f's_mov_b32 {sPHI}, 0x07060302')
        a(f's_mov_b32 {sC}, {hex(f2u(math.log2(math.e)))}')
        while not self.has('Q3'):
            self.step()
        self.steps_until(f'K{self.nT}')
        self.stamp('preT')
        a('s_barrier', 'T: the wq tile is in LDS')
        self.stamp('_postT')
        self.steps_until(f'K{self.nG}')
        assert self.has('F3')
        self.stamp('_preG')
        a('s_barrier', 'G: FFN tile in LDS; late enough to look for q')
        self.stamp('_postG')
        a(f'v_mov_b32 v79, {L_AD}')
        self.picks.add(self.m + self.pick)
        self.steps_until(f'K{self.nA}')
        a(f'v_lshlrev_b32 v{vT}, 4, v1')
        self.stamp('preA')
        self.barrier('A: q is in LDS')
        a(f'ds_read_b128 v[{vBq}:{vBq+3}], v{vT} offset:{L_BQ}')
        self.stamp('A')
        self.picks.add(self.m + self.pick)
        self.make_tag()
        a(f'v_and_b32 v{vT+6}, 3, v1')
        a(f'v_lshlrev_b32 v{vT+6}, 4, v{vT+6}', 'h*16')
        a(f's_lshl_b32 {sT0}, {sW}, 2')
        a(f'v_add_u32 v{vT+7}, {sT0}, v{vT+6}')
        a('s_waitcnt lgkmcnt(0)')
        self.c('---- scores ----')
        while self.beta < 16:
            nxt = self.seq[self.m]
            if int(nxt[1:]) + (64 if nxt[0] == 'V' else 0) - RING >= 4 * self.beta:
                self.qk_batch()
            self.step()
            if self.beta < 16 and self.has(f'K{4*self.beta+3}'):
                self.qk_batch()
        self.c('---- softmax: workgroup max, exponentials, sums ----')
        self.c('the reference keeps q.k and q.k / sqrt(128) in bf16')
        for rnd in range(2):
            for i in range(8):
                a(f'v_cvt_pk_bf16_f32 v{vD+i}, v{vP+2*i}, v{vP+2*i+1}')
            for i in range(8):
                a(f'v_lshlrev_b32 v{vP+2*i}, 16, v{vD+i}')
                a(f'v_and_b32 v{vP+2*i+1}, 0xffff0000, v{vD+i}')
            if rnd == 0:
                self.step()
                for i in range(16):
                    a(f'v_mul_f32 v{vP+i}, {hex(f2u(128.0 ** -0.5))}, v{vP+i}')
        self.step()
        self.max8(vT, vP, vT + 1)
        self.max8(vT + 2, vP + 8, vT + 1)
        a(f'v_max_f32 v{vT}, v{vT}, v{vT+2}')
        self.inrow_allreduce('v_max_f32', vT, (8, 4))
        self.rows_allreduce('v_max_f32', vT, vT + 1)
        a(f'ds_write_b32 v{vT+7}, v{vT} offset:{L_MB}')
        self.step()
        self.stamp('_preB')
        self.barrier('B')
        self.stamp('_postB')
        a(f'ds_read_b128 v[{vD}:{vD+3}], v{vT+6} offset:{L_MB}')
        a('s_waitcnt lgkmcnt(0)')
        a(f'v_max3_f32 v{vT}, v{vD}, v{vD+1}, v{vD+2}')
        a(f'v_max_f32 v{vT}, v{vT}, v{vD+3}')
        a(f'v_mul_f32 v{vT}, {sC}, v{vT}')
        for i in range(16):
            a(f'v_fma_f32 v{vP+i}, v{vP+i}, {sC}, -v{vT}')
        self.step()
        for i in range(16):
            a(f'v_exp_f32 v{vP+i}, v{vP+i}')
        self.step()
        for i in range(8):
            a(f'v_cvt_pk_bf16_f32 v{vPA+i}, v{vP+2*i}, v{vP+2*i+1}')
        for i in range(8):
            a(f'v_add_f32 v{vP+i}, v{vP+i}, v{vP+8+i}')
        self.sum8(vT, vP)
        self.inrow_allreduce('v_add_f32', vT, (8, 4))
        self.rows_allreduce('v_add_f32', vT, vT + 1)
        a(f'ds_write_b32 v{vT+7}, v{vT} offset:{L_LB}')
        self.step()
        self.barrier('C')
        self.stamp('C')
        self.picks.add(self.m + self.pick)
        self.c('---- P.V ----')
        while self.m < len(self.seq):
            if self.seq[self.m] == f'V{self.nM}':
                self.stamp('_preM')
                a('s_barrier', "M: late enough to look for the other splits' sums")
                self.stamp('_postM')
                self.picks.add(self.m + self.pick)
            if self.seq[self.m] == f'V{self.nZ}':
                a('s_barrier', 'Z: waves 4..7 may ask for wo')
            if int(self.seq[self.m][1:]) - RING >= 4 * self.tau:
                self.pv_group()
            self.step()
            if self.has(f'V{4*self.tau+3}'):
                self.pv_group()
        self.stamp('allissued')

    def tail_setup(self, pause=lambda: None):
        a = self.a
        vT = 60
        vA0, vA1, vA2, vA3, vA4, vA5, vTB, vWt = range(68, 76)
        self.srd(SRD_OUT, 22, 1024)
        a(f's_mov_b32 {sSEL}, 0x07060500')
        a(f's_mov_b32 {sSA}, 0x0c0c0400')
        a(f's_mov_b32 {sSB}, 0x04000c0c')
        a(f'v_and_b32 v{vT+3}, 3, v1')
        a(f'v_lshlrev_b32 v{vT}, 3, v{vT+3}')
        a(f'v_lshrrev_b32 v{vTB}, v{vT}, {sTAG}', 'tag byte of column lane & 3')
        a(f'v_lshrrev_b32 v{vT}, 4, v0')
        a(f'v_lshlrev_b32 v{vWt}, 2, v{vT}')
        a(f'v_mov_b32 v{vT+5}, {L_FL}')
        self.c('A0: LDS writer of the key-row sums (position 4*(l&15) + (l>>4)); vT+7: writer of the weighted columns')
        a(f'v_lshrrev_b32 v{vT}, 4, v1')
        a(f'v_and_b32 v{vT+1}, 15, v1')
        a(f'v_lshl_add_u32 v{vT+2}, v{vT+1}, 2, v{vT}')
        a(f's_lshl_b32 {sT0}, {sW}, 11')
        a(f's_add_u32 {sT0}, {sT0}, {L_OB}')
        a(f'v_lshl_add_u32 v{vA0}, v{vT+2}, 2, {sT0}')
        a(f's_mul_i32 {sT0}, {sW}, 144')
        a(f'v_lshl_add_u32 v{vT+7}, v{vT+2}, 1, {sT0}')
        pause()
        self.c('vT+6: reader of the weighted columns as an MFMA A operand')
        a(f'v_and_b32 v{vT+2}, 7, v1')
        a(f'v_mul_u32_u24 v{vT+2}, 144, v{vT+2}')
        a(f'v_lshl_add_u32 v{vT+6}, v{vT}, 4, v{vT+2}')
        self.c('A5: transposing reader of the wo tile: row 8*(l>>4) + ((l>>2)&3), 8 bytes (l&3)')
        a(f'v_lshlrev_b32 v{vT}, 9, v{vT}')
        a(f'v_bfe_u32 v{vT+2}, v1, 2, 2')
        a(f'v_lshl_add_u32 v{vT}, v{vT+2}, 6, v{vT}')
        a(f'v_lshl_add_u32 v{vT}, v{vT+3}, 3, v{vT}')
        a(f's_and_b32 {sT2}, {sW}, 3')
        a(f's_lshl_b32 {sT0}, {sT2}, 12')
        a(f'v_add_u32 v{vA5}, {sT0}, v{vT}')
        pause()
        self.c('A1: LDS reader of column tid: head tid>>7, parity tid&1, position (tid&127)>>1')
        a(f'v_lshrrev_b32 v{vT}, 7, v0')
        a(f'v_lshlrev_b32 v{vT}, 9, v{vT}')
        a(f'v_and_b32 v{vT+2}, 1, v0')
        a(f'v_lshl_add_u32 v{vT}, v{vT+2}, 8, v{vT}')
        a(f'v_bfe_u32 v{vT+2}, v0, 1, 6')
        a(f'v_lshl_add_u32 v{vA1}, v{vT+2}, 2, v{vT}')
        a(f'v_add_u32 v{vA1}, {L_OB}, v{vA1}')
        pause()
        self.c('A2: o publish  OBOX + g*64K + w*8K + j*256 + l*4 ; A3: o gather  OBOX + g*64K + (j>>2)*8K + tid*16')
        a(f's_lshl_b32 {sT1}, {sG}, 16')
        a(f's_add_u32 {sT1}, {sT1}, {hex(OBOX)}')
        a(f's_lshl_b32 {sT0}, {sW}, 13')
        a(f's_add_u32 {sT0}, {sT0}, {sT1}')
        a(f's_lshl_b32 {sCNT}, {sJ}, 8')
        a(f's_add_u32 {sT0}, {sT0}, {sCNT}')
        a(f'v_lshl_add_u32 v{vA2}, v1, 2, {sT0}')
        a(f's_lshr_b32 {sCNT}, {sJ}, 2')
        a(f's_lshl_b32 {sT0}, {sCNT}, 13')
        a(f's_add_u32 {sT0}, {sT0}, {sT1}')
        a(f'v_lshl_add_u32 v{vA3}, v0, 4, {sT0}')
        pause()
        self.c('A4: s publish  SBOX + (4*(j&3) + (w&3))*8K + (8g + (j>>2))*128 + l*4, lanes 32..63 out of range')
        a(f's_and_b32 {sT0}, {sJ}, 3')
        a(f's_lshl_b32 {sT0}, {sT0}, 2')
        a(f's_add_u32 {sT0}, {sT0}, {sT2}')
        a(f's_lshl_b32 {sT0}, {sT0}, 6')
        a(f's_lshl_b32 {sT1}, {sG}, 3')
        a(f's_add_u32 {sT0}, {sT0}, {sT1}')
        a(f's_add_u32 {sT0}, {sT0}, {sCNT}')
        a(f's_lshl_b32 {sT0}, {sT0}, 7')
        a(f's_add_u32 {sT0}, {sT0}, {hex(SBOX)}')
        a(f'v_lshrrev_b32 v{vT}, 5, v1')
        a(f'v_lshlrev_b32 v{vT}, 29, v{vT}')
        a(f'v_lshl_add_u32 v{vT}, v1, 2, v{vT}')
        a(f'v_add_u32 v{vA4}, {sT0}, v{vT}')
        a(f'v_mov_b32 v{vT+4}, {sTAG}')

    def tail(self):
        a = self.a
        CPC = 32
        assert CPC == 32
        NCONS = 16
        lg = 5
        emu = None
        vAcc, vD, vT = 4, 36, 60
        vA0, vA1, vA2, vA3, vA4, vA5, vTB, vWt = range(68, 76)
        vW, SG = 80, 96
        vZ = 20
        AM = (52, 54, 56, 76)
        assert self.tau >= 12
        if self.nZ >= 64:
            a('s_barrier', 'Z')
        self.stamp('_postZ')
        self.lab('L_Z2')
        self.tail_setup()
        a(f'ds_read_b32 v{vWt}, v{vWt} offset:{L_WB}', "this thread's split weight")
        a(f'ds_read_b32 v{vT+5}, v{vT+5}')
        a('s_waitcnt lgkmcnt(0)')
        a(f'v_readfirstlane_b32 {sLOC}, v{vT+5}')
        a(f's_cmp_ge_u32 {sW}, 4')
        a('s_cbranch_scc1 L_D')
        self.c('P operand of the last group, one copy per block of four rows with the other rows zero')
        for b in range(4):
            a(f'v_mov_b32 v{AM[b]}, 0')
            a(f'v_mov_b32 v{AM[b]+1}, 0')
        while self.tau < 15:
            self.pv_group()
        for b in range(4):
            for k in range(2):
                ctl = f'row_ror:{4*(b+1)}' if b < 3 else 'quad_perm:[0,1,2,3]'
                a(f'v_mov_b32_dpp v{AM[b]+k}, v{58+k} {ctl} row_mask:0xf bank_mask:{hex(1 << b)}')
        self.c('---- sum the four key rows of everything so far while the last tiles arrive ----')
        for e in range(4):
            for h in range(4):
                a(f'v_permlane32_swap_b32 v{vAcc+4*e+h}, v{vAcc+4*(e+4)+h}')
        for e in range(4):
            for h in range(4):
                a(f'v_add_f32 v{vAcc+4*e+h}, v{vAcc+4*e+h}, v{vAcc+4*(e+4)+h}')
        for e in range(2):
            for h in range(4):
                a(f'v_permlane16_swap_b32 v{vAcc+4*e+h}, v{vAcc+4*(e+2)+h}')
        for e in range(2):
            for h in range(4):
                a(f'v_add_f32 v{vZ+4*e+h}, v{vAcc+4*e+h}, v{vAcc+4*(e+2)+h}')
        for pair in range(2):
            v0, v1 = self.slot(64 + 60 + 2 * pair), self.slot(64 + 61 + 2 * pair)
            self.need(f'V{61+2*pair}')
            for e in range(8):
                a(f'v_perm_b32 v{vD+2*e+pair}, v{v1+(e>>1)}, v{v0+(e>>1)}, {sPHI if e & 1 else sPLO}')
        for e in range(8):
            z = vZ + 4 * (e & 1)
            a(f'v_mfma_f32_16x16x16_bf16 v[{z}:{z+3}], v[{AM[e>>1]}:{AM[e>>1]+1}], v[{vD+2*e}:{vD+2*e+1}], v[{z}:{z+3}]')
        self.stamp('pvdone')
        a('s_nop 7')
        for h in range(4):
            a(f'ds_write2st64_b32 v{vA0}, v{vZ+h}, v{vZ+4+h} offset0:{2*h} offset1:{2*h+1}')
        self.lab('L_D')
        self.barrier('D')
        for k in range(2):
            a(f'ds_read2st64_b32 v[{vD+2*k}:{vD+2*k+1}], v{vA1} offset0:{16*k} offset1:{16*k+8}')
        a(f's_cmp_eq_u32 {sLOC}, 1')
        a('s_waitcnt lgkmcnt(0)')
        a(f'v_add_f32 v{vD}, v{vD}, v{vD+2}')
        a(f'v_add_f32 v{vD+1}, v{vD+1}, v{vD+3}')
        a(f'v_add_f32 v{vT}, v{vD}, v{vD+1}')
        a(f'v_perm_b32 v{vT}, v{vT}, v{vTB}, {sSEL}')
        a('s_cbranch_scc0 L_far')
        a(f'buffer_store_dword v{vT}, v{vA2}, {SRD_WS}, 0 offen')
        self.lab('L_near')
        self.stamp('opub')

        self.c("---- hop 1: the 64 attention output columns of this workgroup's wo tile ----")
        ol = [f'buffer_load_dwordx4 v[{SG}:{SG+3}], v{vA3}, {SRD_WS}, 0 offen sc1']
        a(ol[0])
        a('s_waitcnt vmcnt(0)')
        self.stamp('poll1')
        for t2 in range(2):
            for kh in range(2):
                for m in range(2):
                    r = vW + 8 * t2 + 4 * kh + 2 * m
                    a(f'ds_read_b64_tr_b16 v[{r}:{r+1}], v{vA5} offset:{L_WO + kh*2048 + m*256 + t2*32}')
        self.poll(ol, lambda: self.check_quads([SG], vT + 4, vT + 1, vT + 2, vT + 3), True)
        R = SG
        self.stamp('goto')
        self.untag(range(R, R + 4))
        for k in range(4):
            a(f'v_mul_f32 v{R+k}, v{R+k}, v{vWt}')
        self.quad_reduce(R, 16)
        a(f'v_cvt_pk_bf16_f32 v{R}, v{R}, v{R}')
        a(f'ds_write_b16 v{vT+7}, v{R} offset:{L_A}')
        SG = 120
        self.barrier('E')
        a(f's_cmp_lt_u32 {sW}, 4')
        a('s_cbranch_scc1 L_hop2')
        a(f'ds_read_b128 v[{vD}:{vD+3}], v{vT+6} offset:{L_A}')
        a(f'ds_read_b128 v[{vD+4}:{vD+7}], v{vT+6} offset:{L_A+64}')
        a('s_waitcnt lgkmcnt(1)')
        a(f'v_mfma_f32_16x16x32_bf16 v[{vD+8}:{vD+11}], v[{vD}:{vD+3}], v[{vW}:{vW+3}], 0')
        a(f'v_mfma_f32_16x16x32_bf16 v[{vD+12}:{vD+15}], v[{vD}:{vD+3}], v[{vW+8}:{vW+11}], 0')
        a('s_waitcnt lgkmcnt(0)')
        a(f'v_mfma_f32_16x16x32_bf16 v[{vD+8}:{vD+11}], v[{vD+4}:{vD+7}], v[{vW+4}:{vW+7}], v[{vD+8}:{vD+11}]')
        a(f'v_mfma_f32_16x16x32_bf16 v[{vD+12}:{vD+15}], v[{vD+4}:{vD+7}], v[{vW+12}:{vW+15}], v[{vD+12}:{vD+15}]')
        a('s_nop 6')
        a(f'v_add_f32 v{vD+8}, v{vD+8}, v{vD+9}')
        a(f'v_add_f32 v{vD+10}, v{vD+10}, v{vD+11}')
        a(f'v_add_f32 v{vD+12}, v{vD+12}, v{vD+13}')
        a(f'v_add_f32 v{vD+14}, v{vD+14}, v{vD+15}')
        a(f'v_add_f32 v{vD+8}, v{vD+8}, v{vD+10}')
        a(f'v_add_f32 v{vD+12}, v{vD+12}, v{vD+14}')
        a('s_nop 1')
        a(f'v_permlane16_swap_b32 v{vD+8}, v{vD+12}')
        a(f'v_add_f32 v{vT}, v{vD+8}, v{vD+12}')
        a(f'v_perm_b32 v{vT}, v{vT}, v{vTB}, {sSEL}')
        a(f'buffer_store_dword v{vT}, v{vA4}, {SRD_WS}, 0 offen sc1')
        self.stamp('spub')
        self.lab('L_hop2')

        self.c('---- hop 2: final consumers ----')
        a(f's_cmp_ge_u32 s2, {NCONS}')
        a('s_cbranch_scc1 L_exit')
        nl, lpp = 1, 8
        a(f's_lshl_b32 {sT0}, s2, 13')
        a(f's_add_u32 {sT0}, {sT0}, {hex(SBOX)}')
        a(f'v_lshl_add_u32 v{vA0}, v0, 4, {sT0}')
        mk = lambda r: f'buffer_load_dwordx4 v[{r}:{r+3}], v{vA0}, {SRD_WS}, 0 offen sc1'
        a(mk(SG))
        a(f'v_mov_b32 v{vA1}, {sTAG}')
        a(f'v_and_b32 v{vT+1}, 7, v1')
        a(f'v_lshlrev_b32 v{vT+1}, 7, v{vT+1}')
        a(f'v_lshrrev_b32 v{vT+2}, 4, v1')
        a(f'v_lshlrev_b32 v{vT+2}, 5, v{vT+2}')
        a(f's_lshl_b32 {sT0}, {sW}, 2')
        a(f'v_add3_u32 v{vA2}, v{vT+1}, v{vT+2}, {sT0}', 'LDS writer [col][wave]')
        a(f'v_and_b32 v{vT+1}, 31, v1')
        a(f'v_lshlrev_b32 v{vA3}, 5, v{vT+1}', 'LDS reader')
        a(f'v_lshlrev_b32 v{vT+2}, 2, v{vT+1}')
        a(f'ds_read_b32 v{vA4}, v{vT+2} offset:{L_GB}')
        a(f'ds_read_b32 v{vA5}, v{vT+2} offset:{L_XB}')
        a(f's_lshl_b32 {sT0}, s2, 6')
        a(f'v_lshl_add_u32 v{vWt}, v{vT+1}, 1, {sT0}', 'output byte offset')
        a(f'v_mov_b32 v{vT+5}, {L_CT}')
        a(f'v_mov_b32 v{vT+6}, 1')
        a('s_waitcnt vmcnt(0)')
        self.poll([mk(SG)], lambda: self.check_quads([SG], vA1, vT + 1, vT + 2, vT + 3), True)
        self.stamp('gots')
        self.untag(range(SG, SG + 4))
        self.quad_reduce(SG, 8)
        self.c('the wave that delivers last finds every sum in LDS and finishes the 32 columns')
        a(f'ds_write_b32 v{vA2}, v{SG} offset:{L_S2}')
        a('s_mov_b64 exec, 1')
        a(f'ds_add_rtn_u32 v{vT+6}, v{vT+5}, v{vT+6}')
        a('s_mov_b32 exec_lo, -1')
        a(f'ds_read_b128 v[{vD}:{vD+3}], v{vA3} offset:{L_S2}')
        a(f'ds_read_b128 v[{vD+4}:{vD+7}], v{vA3} offset:{L_S2+16}')
        a('s_waitcnt lgkmcnt(0)')
        a(f'v_readfirstlane_b32 {sT0}, v{vT+6}')
        self.sum8(vT, vD)
        a(f's_cmp_lg_u32 {sT0}, 7')
        a('s_cbranch_scc1 L_exit0')
        self.bf16r(vT, vT)
        a(f'v_mul_f32 v{vT}, v{vT}, v{vA4}')
        self.bf16r(vT, vT)
        a(f'v_add_f32 v{vT}, v{vT}, v{vA5}')
        a(f'v_cvt_pk_bf16_f32 v{vT}, v{vT}, v{vT}')
        a(f'buffer_store_short v{vT}, v{vWt}, {SRD_OUT}, 0 offen')
        a('s_mov_b64 exec, -1')
        a('s_cmp_lg_u32 s2, 0')
        a('s_cbranch_scc1 L_exit')
        self.c("every workgroup has read the old word by now: leave this launch's tag for the next one")
        a(f'v_mov_b32 v{vT}, {hex(EPOCH)}')
        a('s_mov_b64 exec, 1')
        a(f'buffer_store_dword v{vA1}, v{vT}, {SRD_WS}, 0 offen sc1')
        a('s_mov_b64 exec, -1')
        a('s_branch L_exit')

    def helper_join(self):
        a = self.a
        vT = 60
        self.lab('L_Z')
        self.c('waves 4..7: 64 rows x 32 columns of wo straight to LDS')
        self.srd(SRD_C, 12, 4 << 20)
        a(f's_lshl_b32 {sT0}, {sG}, 19')
        a(f's_lshr_b32 {sT1}, {sJ}, 2')
        a(f's_lshl_b32 {sT1}, {sT1}, 16')
        a(f's_add_u32 {sT0}, {sT0}, {sT1}')
        a(f's_and_b32 {sT1}, {sJ}, 3')
        a(f's_lshl_b32 {sT1}, {sT1}, 8')
        a(f's_add_u32 {sT0}, {sT0}, {sT1}')
        a(f's_and_b32 {sT2}, {sW}, 3')
        a(f's_lshl_b32 {sT1}, {sT2}, 6')
        a(f's_add_u32 {sT0}, {sT0}, {sT1}')
        a(f'v_lshrrev_b32 v{vT}, 2, v1')
        a(f'v_lshlrev_b32 v{vT}, 10, v{vT}')
        a(f'v_and_b32 v{vT+1}, 3, v1')
        a(f'v_lshlrev_b32 v{vT+1}, 4, v{vT+1}')
        a(f'v_add3_u32 v{vT}, v{vT}, v{vT+1}, {sT0}')
        a(f's_lshl_b32 {sT2}, {sT2}, 12')
        a(f's_add_u32 m0, {sT2}, {L_WO}')
        a('s_barrier', 'Z: the last V tile has been requested')
        for i in range(4):
            if i:
                a(f's_mov_b32 {sOFF}, {i*(16384-1024)}')
            a(f'buffer_load_dwordx4 v{vT}, {SRD_C}, {sOFF if i else 0} offen offset:{i*1024} nt lds')
        a('s_branch L_Z2')

    def far_store(self):
        self.lab('L_far')
        self.a(f'buffer_store_dword v60, v70, {SRD_WS}, 0 offen sc1')
        self.a('s_branch L_near')

    def helpers(self):
        a = self.a
        CPC = 32
        NCONS = 512 // CPC
        lg = int(math.log2(CPC))
        vLane = 1
        vT = 4
        vX = 16
        vA = 24
        vB = 32
        vCol, vTC = 40, 41
        vW = 112
        vTag, vTB = 2, 3
        self.lab('L_helper')
        a('s_waitcnt lgkmcnt(0)')
        self.stamp('_hstart')
        a(f's_load_dword {sTAG}, s[26:27], {hex(EPOCH)}')
        self.srd(SRD_WS, 26, 256 << 20)
        self.srd(SRD_X, 4, 1024)
        a(f's_cmp_ge_u32 {sW}, 6')
        a('s_cbranch_scc1 L_h23')
        self.c('---- projection tile: 128 rows x 64 columns; wave 4: wq, wave 5: w_gate / w_up ----')
        self.vm = []
        sRB, sCB, sPUB = 's60', 's61', 's3'
        a(f's_and_b32 {sRB}, {sJ}, 3')
        a(f's_lshr_b32 {sCB}, {sJ}, 2')
        a(f's_cmp_eq_u32 {sW}, 4')
        a('s_cbranch_scc0 L_h1_setup')
        a(f's_lshl_b32 {sPUB}, {sG}, 13')
        a(f's_lshl_b32 {sT0}, {sRB}, 11')
        a(f's_add_u32 {sPUB}, {sPUB}, {sT0}')
        a(f's_add_u32 {sPUB}, {sPUB}, {hex(QBOX)}')
        a('s_branch L_tile')
        self.lab('L_h1_setup')
        a(f's_cmp_ge_u32 {sJ}, 28')
        a('s_cbranch_scc1 L_h23')
        a(f's_lshl_b32 {sCB}, {sCB}, 3')
        a(f's_add_u32 {sCB}, {sCB}, {sG}')
        a(f's_sub_u32 {sT0}, {sCB}, 28')
        a(f's_cmp_ge_u32 {sCB}, 28')
        a(f's_cselect_b32 {sCB}, {sT0}, {sCB}')
        a(f's_cselect_b32 {sPUB}, {hex(4*7168)}, 0')
        a(f's_add_u32 {sPUB}, {sPUB}, {hex(HBOX)}')
        a(f's_mul_i32 {sT0}, {sRB}, 7168')
        a(f's_add_u32 {sPUB}, {sPUB}, {sT0}')
        self.lab('L_tile')
        a(f'v_lshlrev_b32 v{vT}, 4, v{vLane}')
        self.load('x16', f'buffer_load_dwordx4 v[{vX}:{vX+3}], v{vT}, {SRD_X}, 0 offen')
        a(f's_lshl_b32 {sT0}, {sCB}, 8')
        a(f's_add_u32 {sPUB}, {sPUB}, {sT0}')
        a(f'v_lshrrev_b32 v{vT+4}, 3, v{vLane}')
        a(f'v_lshlrev_b32 v{vT+1}, 4, v{vT+4}')
        a(f's_lshl_b32 {sT0}, {sRB}, 7')
        a(f'v_add_u32 v{vT+1}, {sT0}, v{vT+1}', 'first row of this lane')
        a(f's_sub_u32 {sT0}, {sW}, 4')
        a(f's_lshl_b32 {sT1}, {sT0}, 14')
        a(f'v_add_u32 v{vT+2}, {sT1}, v{vT}', 'LDS reader of the tile')
        a(f's_lshl_b32 {sT0}, {sT0}, 10')
        a(f'v_add_u32 v{vT}, {sT0}, v{vT}', 'LDS writer of xn')
        a(f'v_lshl_add_u32 v{vT+1}, v{vT+1}, 1, {sT0}', 'LDS reader of xn')
        self.c('column of this lane after the reduction: 8*(l&7) + (l>>3)')
        a(f'v_and_b32 v{vT+3}, 7, v{vLane}')
        a(f'v_lshlrev_b32 v{vT+3}, 5, v{vT+3}')
        a(f'v_lshl_add_u32 v{vCol}, v{vT+4}, 2, v{vT+3}')
        a(f'v_add_u32 v{vT+3}, {sPUB}, v{vCol}')
        a(f'v_and_b32 v{vT+4}, 3, v{vT+4}')
        a(f'v_lshlrev_b32 v{vT+4}, 3, v{vT+4}')
        a(f's_mov_b32 {sPLO}, 0x05040100')
        a(f's_mov_b32 {sPHI}, 0x07060302')
        self.c("layernorm with the reference's bf16 rounding points")
        self.wait('x16')
        self.stamp('_x16')
        for k in range(4):
            a(f'v_lshlrev_b32 v{vA+2*k}, 16, v{vX+k}')
            a(f'v_and_b32 v{vA+2*k+1}, 0xffff0000, v{vX+k}')
        m, s2, t = vT + 5, vT + 6, vT + 7
        a(f'v_add_f32 v{m}, v{vA}, v{vA+1}')
        for k in range(2, 8):
            a(f'v_add_f32 v{m}, v{m}, v{vA+k}')
        self.inrow_allreduce('v_add_f32', m, (8, 4, 2, 1))
        self.rows_allreduce('v_add_f32', m, t)
        a(f'v_mul_f32 v{m}, {hex(f2u(1/512.))}, v{m}')
        for k in range(8):
            a(f'v_sub_f32 v{vB+k}, v{vA+k}, v{m}')
        a(f'v_mul_f32 v{s2}, v{vB}, v{vB}')
        for k in range(1, 8):
            a(f'v_fmac_f32 v{s2}, v{vB+k}, v{vB+k}')
        self.inrow_allreduce('v_add_f32', s2, (8, 4, 2, 1))
        self.rows_allreduce('v_add_f32', s2, t)
        a(f'v_mul_f32 v{s2}, {hex(f2u(1/512.))}, v{s2}')
        self.bf16r(m, m)
        self.bf16r(s2, s2)
        a(f'v_add_f32 v{s2}, {hex(f2u(1e-5))}, v{s2}')
        self.bf16r(s2, s2)
        a(f'v_sqrt_f32 v{s2}, v{s2}')
        for k in range(8):
            a(f'v_sub_f32 v{vA+k}, v{vA+k}, v{m}')
        self.bf16r(s2, s2)
        a(f'v_rcp_f32 v{s2}, v{s2}')
        for k in range(4):
            a(f'v_cvt_pk_bf16_f32 v{vX+k}, v{vA+2*k}, v{vA+2*k+1}')
        for k in range(4):
            a(f'v_lshlrev_b32 v{vA+2*k}, 16, v{vX+k}')
            a(f'v_and_b32 v{vA+2*k+1}, 0xffff0000, v{vX+k}')
        for k in range(8):
            a(f'v_mul_f32 v{vA+k}, v{vA+k}, v{s2}')
        for k in range(4):
            a(f'v_cvt_pk_bf16_f32 v{vX+k}, v{vA+2*k}, v{vA+2*k+1}')
        a(f'ds_write_b128 v{vT}, v[{vX}:{vX+3}] offset:{L_XN}')
        a('s_waitcnt lgkmcnt(0)')
        a(f'ds_read_b128 v[{vX}:{vX+3}], v{vT+1} offset:{L_XN}')
        a(f'ds_read_b128 v[{vX+4}:{vX+7}], v{vT+1} offset:{L_XN+16}')
        self.make_tag()
        a(f'v_lshrrev_b32 v{vTC}, v{vT+4}, {sTAG}')
        a(f's_mov_b32 {sSEL}, 0x07060500')
        self.stamp('_ln')
        self.barrier('T')
        a(f's_cmp_eq_u32 {sW}, 4')
        a('s_cbranch_scc1 L_tile2')
        a('s_barrier', 'G (wave 5)')
        self.lab('L_tile2')
        for u in range(16):
            a(f'ds_read_b128 v[{vW+4*u}:{vW+4*u+3}], v{vT+2} offset:{L_TL+1024*u}')
        self.tile_dot(8, vW, vX, vA, vB, lambda p: a(f's_waitcnt lgkmcnt({min(15, 14-2*p)})'))
        a(f'v_perm_b32 v{vA+4}, v{vA+4}, v{vTC}, {sSEL}')
        self.stamp('tilepub')
        a(f's_cmp_eq_u32 {sW}, 4')
        a('s_cbranch_scc0 L_h1')
        self.c('The first stores leave the lines in this die\'s L2, enough for readers on the same die; they are repeated')
        self.c('with write-through when a reader turns out to run elsewhere or when the gather below keeps missing.')
        sXC, sNEAR, sN = 's11', 's10', 's9'
        vQ, vQA, vXW, vXA, vXR, vXG = vA + 4, vA + 5, vA + 6, vA + 7, vB, vB + 1
        a(f's_getreg_b32 {sXC}, hwreg(HW_REG_XCC_ID, 0, 4)')
        a(f's_and_b32 {sT0}, {sTAG}, 0xfffffff0')
        a(f's_or_b32 {sXC}, {sXC}, {sT0}', '28 tag bits and the die this workgroup runs on')
        a(f'v_mov_b32 v{vXW}, {sXC}')
        a(f'v_mov_b32 v{vQA}, v{vT+3}')
        a(f's_lshl_b32 {sT0}, {sG}, 12')
        a(f's_add_u32 {sT0}, {sT0}, {hex(XBOX)}')
        a(f'v_and_b32 v{vXR}, 31, v{vLane}')
        a(f's_lshl_b32 {sT1}, {sJ}, 7')
        a(f's_add_u32 {sT1}, {sT1}, {sT0}')
        a(f'v_lshl_add_u32 v{vXA}, v{vXR}, 2, {sT1}')
        a(f'v_lshl_add_u32 v{vXR}, v{vXR}, 7, {sT0}')
        near = [f'buffer_store_dword v{vQ}, v{vQA}, {SRD_WS}, 0 offen', f'buffer_store_dword v{vXW}, v{vXA}, {SRD_WS}, 0 offen']
        far = [x + ' sc1' for x in near]
        for x in near:
            a(x)

        self.c('---- wave 4: gather q, then the softmax statistics of the 32 splits ----')
        a(f's_mov_b32 {sSA}, 0x0c0c0400')
        a(f's_mov_b32 {sSB}, 0x04000c0c')
        a(f'v_mov_b32 v{vTag}, {sTAG}')
        a(f's_lshl_b32 {sT0}, {sG}, 13')
        a(f's_add_u32 {sT0}, {sT0}, {hex(QBOX)}')
        a(f'v_lshrrev_b32 v{vT}, 5, v{vLane}')
        a(f'v_and_b32 v{vT+1}, 31, v{vLane}')
        a(f'v_lshlrev_b32 v{vT+2}, 11, v{vT}')
        a(f'v_lshlrev_b32 v{vT+3}, 4, v{vT+1}')
        a(f'v_add3_u32 v{vT+2}, v{vT+2}, v{vT+3}, {sT0}')
        a(f's_movk_i32 {sT2}, 0x1000')
        self.c('LDS address: chunk*64 + idx*4, chunk = (l&31)>>1, idx = 2*(l&1) + (l>>5)')
        a(f'v_lshrrev_b32 v{vT+1}, 1, v{vT+1}')
        a(f'v_lshlrev_b32 v{vT+1}, 6, v{vT+1}')
        a(f'v_and_b32 v{vT+3}, 1, v{vLane}')
        a(f'v_lshlrev_b32 v{vT+3}, 3, v{vT+3}')
        a(f'v_lshl_add_u32 v{vT+1}, v{vT}, 2, v{vT+1}')
        a(f'v_add_u32 v{vT+1}, v{vT+1}, v{vT+3}')
        ql = [f'buffer_load_dwordx4 v[{vW+8*h+4*b}:{vW+8*h+4*b+3}], v{vT+2}, {SRD_WS}, {sT2 if b else 0} offen offset:{512*h} sc1'
              for h in range(4) for b in range(2)]
        a(f's_mov_b32 {sN}, {self.qtry}')
        ql = [f's_sub_u32 {sN}, {sN}, 1', f's_cmp_lg_u32 {sN}, 0', 's_cbranch_scc1 L_qtry'] + far + ['L_qtry:'] + ql
        ql.append(f'buffer_load_dword v{vXG}, v{vXR}, {SRD_WS}, 0 offen sc1')
        a('s_barrier', 'G')

        def chk_q():
            self.check_quads([vW + 4 * i for i in range(8)], vTag, vT + 4, vT + 5, vT + 6, cmp=False)
            a(f'v_xor_b32 v{vT+4}, {sTAG}, v{vXG}')
            a(f'v_lshrrev_b32 v{vT+4}, 4, v{vT+4}')
            a(f'v_or_b32 v{vT+6}, v{vT+6}, v{vT+4}')
            a(f'v_cmp_ne_u32 vcc, 0, v{vT+6}')
        self.poll(ql, chk_q)
        a(f'v_cmp_ne_u32 vcc, {sXC}, v{vXG}')
        a(f'v_mov_b32 v{vT+5}, {L_FL}')
        a('s_cmp_eq_u64 vcc, 0')
        a(f's_cselect_b32 {sNEAR}, 1, 0')
        a('s_cbranch_scc1 L_qnear')
        for x in far:
            a(x)
        self.lab('L_qnear')
        a(f'v_mov_b32 v{vT+4}, {sNEAR}')
        a(f'ds_write_b32 v{vT+5}, v{vT+4}', '1: hand-offs inside the group may stay in this L2')
        self.stamp('gotq')
        self.untag(range(vW, vW + 32))
        for h in range(4):
            for k in range(4):
                a(f'v_add_f32 v{vW+8*h+k}, v{vW+8*h+k}, v{vW+8*h+4+k}')
        for h in range(4):
            a(f'v_permlane32_swap_b32 v{vW+8*h}, v{vW+8*h+2}')
            a(f'v_permlane32_swap_b32 v{vW+8*h+1}, v{vW+8*h+3}')
        for h in range(4):
            a(f'v_add_f32 v{vW+8*h}, v{vW+8*h}, v{vW+8*h+2}')
            a(f'v_add_f32 v{vW+8*h+1}, v{vW+8*h+1}, v{vW+8*h+3}')
            a(f'v_cvt_pk_bf16_f32 v{vW+8*h}, v{vW+8*h}, v{vW+8*h+1}')
            a(f'ds_write_b32 v{vT+1}, v{vW+8*h} offset:{L_BQ+16*h}')
        self.barrier('A')
        a(f'v_and_b32 v{vT}, 3, v{vLane}')
        a(f'v_lshlrev_b32 v{vT}, 4, v{vT}')
        a(f's_lshl_b32 {sT2}, {sG}, 11')
        a(f's_add_u32 {sT2}, {sT2}, {hex(MLBOX)}')
        a(f's_lshl_b32 {sT1}, {sJ}, 4')
        a(f's_add_u32 {sT0}, {sT2}, {sT1}')
        a(f'v_lshl_add_u32 v{vT+1}, v{vT}, 5, {sT0}', 'publish: h*512 + j*16')
        a(f's_lshr_b32 {sT1}, {sJ}, 3')
        a(f's_lshl_b32 {sT1}, {sT1}, 9')
        a(f's_add_u32 {sT0}, {sT2}, {sT1}')
        a(f'v_and_b32 v{vT+2}, 31, v{vLane}')
        a(f'v_lshlrev_b32 v{vT+3}, 2, v{vT+2}', 'LDS address of weight l&31')
        a(f'v_lshl_add_u32 v{vT+2}, v{vT+2}, 4, {sT0}', 'gather: head j>>3, split l&31')
        a(f'v_mov_b32 v{vX+2}, {sTAG}')
        a(f'v_mov_b32 v{vX+3}, {sTAG}')
        a(f's_mov_b32 {sC}, {hex(f2u(math.log2(math.e)))}')
        a('s_barrier', 'B')
        a(f'ds_read_b128 v[{vA}:{vA+3}], v{vT} offset:{L_MB}')
        a('s_waitcnt lgkmcnt(0)')
        a(f'v_max3_f32 v{vX}, v{vA}, v{vA+1}, v{vA+2}')
        a(f'v_max_f32 v{vX}, v{vX}, v{vA+3}')
        a('s_barrier', 'C')
        a(f'ds_read_b128 v[{vA}:{vA+3}], v{vT} offset:{L_LB}')
        a('s_waitcnt lgkmcnt(0)')
        a(f'v_add_f32 v{vA}, v{vA}, v{vA+2}')
        a(f'v_add_f32 v{vA+1}, v{vA+1}, v{vA+3}')
        a(f'v_add_f32 v{vX+1}, v{vA}, v{vA+1}')
        a('s_mov_b64 exec, 0xf')
        a(f's_cmp_eq_u32 {sNEAR}, 1')
        a('s_cbranch_scc1 L_mlnear')
        a(f'buffer_store_dwordx4 v[{vX}:{vX+3}], v{vT+1}, {SRD_WS}, 0 offen sc1')
        a('s_branch L_mlfar')
        self.lab('L_mlnear')
        a(f'buffer_store_dwordx4 v[{vX}:{vX+3}], v{vT+1}, {SRD_WS}, 0 offen')
        self.lab('L_mlfar')
        a('s_mov_b64 exec, -1')
        a('s_barrier', 'M')

        def chk_ml():
            a(f'v_xor_b32 v{vT+4}, {sTAG}, v{vB+2}')
            a(f'v_xor_b32 v{vT+5}, {sTAG}, v{vB+3}')
            a(f'v_or_b32 v{vT+4}, v{vT+4}, v{vT+5}')
            a(f'v_cmp_ne_u32 vcc, 0, v{vT+4}')
        self.poll([f'buffer_load_dwordx4 v[{vB}:{vB+3}], v{vT+2}, {SRD_WS}, 0 offen sc1'], chk_ml)
        mx, y, t = vT + 4, vT + 5, vT + 6
        a(f'v_mov_b32 v{mx}, v{vB}')
        self.inrow_allreduce('v_max_f32', mx, (8, 4, 2, 1))
        self.rows_allreduce('v_max_f32', mx, t, do32=False)
        a(f'v_sub_f32 v{mx}, v{vB}, v{mx}')
        a(f'v_mul_f32 v{mx}, {sC}, v{mx}')
        a(f'v_exp_f32 v{mx}, v{mx}')
        a('s_nop 0')
        a(f'v_mul_f32 v{y}, v{mx}, v{vB+1}')
        self.inrow_allreduce('v_add_f32', y, (8, 4, 2, 1))
        self.rows_allreduce('v_add_f32', y, t, do32=False)
        a(f'v_rcp_f32 v{y}, v{y}')
        a('s_nop 0')
        a(f'v_mul_f32 v{mx}, v{mx}, v{y}')
        a(f'ds_write_b32 v{vT+3}, v{mx} offset:{L_WB}')
        self.stamp('mlw')
        a('s_waitcnt lgkmcnt(0)')
        a('s_branch L_Z')

        self.c('---- wave 5: hidden values and one 64 x 64 tile of the down projection ----')
        self.lab('L_h1')
        a(f'buffer_store_dword v{vA+4}, v{vT+3}, {SRD_WS}, 0 offen sc1')
        self.srd(SRD_B, 20, 1792 * 1024)
        sFI, sRD, sCD = 's8', 's9', 's10'
        a(f's_mul_i32 {sFI}, {sG}, 28')
        a(f's_add_u32 {sFI}, {sFI}, {sJ}')
        a(f's_lshr_b32 {sRD}, {sFI}, 3')
        a(f's_and_b32 {sCD}, {sFI}, 7')
        a(f's_lshl_b32 {sT0}, {sRD}, 16')
        a(f's_lshl_b32 {sT1}, {sCD}, 7')
        a(f's_add_u32 {sT0}, {sT0}, {sT1}')
        a(f'v_lshrrev_b32 v{vT+2}, 3, v{vLane}')
        a(f'v_lshlrev_b32 v{vT}, 13, v{vT+2}')
        a(f'v_lshlrev_b32 v{vT+2}, 4, v{vT+2}', 'LDS reader of h')
        a(f'v_and_b32 v{vT+1}, 7, v{vLane}')
        a(f'v_lshlrev_b32 v{vT+1}, 4, v{vT+1}')
        a(f'v_add3_u32 v{vT}, v{vT}, v{vT+1}, {sT0}')
        a(f's_movk_i32 {sT2}, 0x1000')
        for e in range(8):
            a(f'buffer_load_dwordx4 v[{vW+4*e}:{vW+4*e+3}], v{vT}, {SRD_B}, {sT2 if e >= 4 else 0} offen offset:{(e & 3)*1024} nt')
        a(f's_lshl_b32 {sT0}, {sRD}, 8')
        a(f's_add_u32 {sT0}, {sT0}, {hex(HBOX)}')
        a(f'v_lshl_add_u32 v{vT+1}, v{vLane}, 2, {sT0}', 'hidden unit 64*rd + lane')
        a(f'v_and_b32 v{vT+3}, 3, v{vLane}')
        a(f'v_lshlrev_b32 v{vT+3}, 3, v{vT+3}')
        a(f'v_lshrrev_b32 v{vTB}, v{vT+3}, {sTAG}')
        a(f'v_lshlrev_b32 v{vT+3}, 1, v{vLane}', 'LDS writer of h')
        a(f's_lshl_b32 {sT0}, {sCD}, 13')
        a(f's_lshl_b32 {sT1}, {sRD}, 8')
        a(f's_add_u32 {sT0}, {sT0}, {sT1}')
        a(f's_add_u32 {sT0}, {sT0}, {hex(FBOX)}')
        a(f'v_add_u32 v{vCol}, {sT0}, v{vCol}')
        for b in 'ABC':
            a('s_barrier', b)
        hl = []
        for k in range(8):
            if k:
                hl.append(f's_movk_i32 {sT2}, {k*7168 - (0 if k < 4 else 0x7000)}')
            if k == 4:
                hl.append(f'v_add_u32 v{vT+4}, 0x7000, v{vT+1}')
            hl.append(f'buffer_load_dword v{vB+k}, v{vT+1 if k < 4 else vT+4}, {SRD_WS}, {sT2 if k else 0} offen sc1')

        def chk_h():
            a(f'v_xor_b32 v{vT+4}, v{vB}, v{vTB}')
            for k in range(1, 8):
                a(f'v_bitop3_b32 v{vT+4}, v{vB+k}, v{vTB}, v{vT+4} bitop3:0xbe')
            a(f'v_and_b32 v{vT+4}, 0xff, v{vT+4}')
            a(f'v_cmp_ne_u32 vcc, 0, v{vT+4}')
        self.poll(hl, chk_h)
        self.untag(range(vB, vB + 8))
        for b in (vB, vB + 4):
            a(f'v_add_f32 v{b}, v{b}, v{b+1}')
            a(f'v_add_f32 v{b+2}, v{b+2}, v{b+3}')
            a(f'v_add_f32 v{b}, v{b}, v{b+2}')
            self.bf16r(b, b)
        self.silu_bf16(vB + 1, vB, vB + 2)
        a(f'v_mul_f32 v{vB+1}, v{vB+1}, v{vB+4}')
        a(f'v_cvt_pk_bf16_f32 v{vB+1}, v{vB+1}, v{vB+1}')
        a(f'ds_write_b16 v{vT+3}, v{vB+1} offset:{L_HB}')
        a('s_waitcnt lgkmcnt(0)')
        a(f'ds_read_b128 v[{vX}:{vX+3}], v{vT+2} offset:{L_HB}')
        a('s_waitcnt lgkmcnt(0)')
        self.tile_dot(4, vW, vX, vA, vB, lambda p: None)
        a(f'v_perm_b32 v{vA+4}, v{vA+4}, v{vTC}, {sSEL}')
        a(f'buffer_store_dword v{vA+4}, v{vCol}, {SRD_WS}, 0 offen sc1')
        self.stamp('fpub')
        a('s_barrier', 'M')
        a('s_branch L_Z')

        self.c('---- waves 6, 7 (and wave 5 without a tile); wave 6 of a final consumer sums the FFN output ----')
        self.lab('L_h23')
        a('s_waitcnt lgkmcnt(0)')
        self.make_tag()
        a(f's_cmp_eq_u32 {sW}, 7')
        a('s_cbranch_scc1 L_h3')
        for b in 'TGABCM':
            a('s_barrier', b)
        a(f's_cmp_lg_u32 {sW}, 6')
        a('s_cbranch_scc1 L_Z')
        a(f's_cmp_ge_u32 s2, {NCONS}')
        a('s_cbranch_scc1 L_Z')
        lpp = CPC // 4
        ppl = 64 // lpp
        nl = -(-28 // ppl)
        last = (28 - (nl - 1) * ppl) * lpp
        a(f'v_mov_b32 v{vTag}, {sTAG}')
        a(f's_mov_b32 {sSA}, 0x0c0c0400')
        a(f's_mov_b32 {sSB}, 0x04000c0c')
        a(f's_lshr_b32 {sT0}, s2, {6-lg}')
        a(f's_lshl_b32 {sT0}, {sT0}, 13')
        a(f's_and_b32 {sT1}, s2, {64//CPC - 1}')
        a(f's_lshl_b32 {sT1}, {sT1}, {lg+2}')
        a(f's_add_u32 {sT0}, {sT0}, {sT1}')
        a(f's_add_u32 {sT0}, {sT0}, {hex(FBOX)}')
        a(f'v_and_b32 v{vT+1}, {lpp-1}, v{vLane}')
        a(f'v_lshlrev_b32 v{vT+2}, 4, v{vT+1}')
        a(f'v_lshrrev_b32 v{vT}, {lg-2}, v{vLane}')
        a(f'v_lshlrev_b32 v{vT}, 8, v{vT}')
        a(f'v_add3_u32 v{vT}, v{vT}, v{vT+2}, {sT0}')
        self.c('column of this lane after the reduction: 4*(l % lpp) + (l >> 4)')
        a(f'v_lshrrev_b32 v{vT+2}, 4, v{vLane}')
        a(f'v_lshl_add_u32 v{vT+1}, v{vT+1}, 2, v{vT+2}')
        a(f's_lshl_b32 {sT0}, s2, {lg+1}')
        a(f'v_lshl_add_u32 v{vT+2}, v{vT+1}, 1, {sT0}')
        a(f'v_lshlrev_b32 v{vT+1}, 2, v{vT+1}')
        a(f'buffer_load_short_d16_hi v{vT+3}, v{vT+2}, {SRD_X}, 0 offen')
        for k in range(4):
            a(f'v_bfe_u32 v{vW+4*(nl-1)+k}, v{vTag}, {8*k}, 8')
        fl = []
        for u in range(nl):
            off = u * ppl * 256
            if u == nl - 1 and last < 64:
                fl.append(f's_mov_b32 exec_lo, {hex(((1 << last) - 1) & 0xffffffff)}')
                fl.append(f's_mov_b32 exec_hi, {hex(((1 << last) - 1) >> 32)}')
            if off >= 4096:
                fl.append(f's_movk_i32 {sT2}, {hex(off & ~4095)}')
            fl.append(f'buffer_load_dwordx4 v[{vW+4*u}:{vW+4*u+3}], v{vT}, {SRD_WS}, {sT2 if off >= 4096 else 0} offen offset:{off & 4095} sc1')
        fl.append('s_mov_b64 exec, -1')
        self.poll(fl, lambda: self.check_quads([vW + 4 * u for u in range(nl)], vTag, vT + 4, vT + 5, vT + 6))
        self.untag(range(vW, vW + 4 * nl))
        for u in range(1, nl):
            for k in range(4):
                a(f'v_add_f32 v{vW+k}, v{vW+k}, v{vW+4*u+k}')
        self.quad_reduce(vW, lpp)
        self.bf16r(vW, vW)
        self.silu_bf16(vT + 4, vW, vT + 5)
        a(f'ds_write_b32 v{vT+1}, v{vT+4} offset:{L_GB}')
        a(f'ds_write_b32 v{vT+1}, v{vT+3} offset:{L_XB}')
        a(f'v_mov_b32 v{vT+4}, {L_CT}')
        a(f'v_mov_b32 v{vT+5}, 0')
        a(f'ds_write_b32 v{vT+4}, v{vT+5}')
        a('s_branch L_Z')
        self.c('wave 7: arrival order inside the group at a few marks of the stream (a hint: it only sets the prefetch depth)')
        self.lab('L_h3')
        a(f'v_mov_b32 v{vT}, {L_AD}')
        a(f'v_mov_b32 v{vT+1}, 0')
        a(f'ds_write_b32 v{vT}, v{vT+1}')
        a(f's_lshl_b32 {sT1}, {sG}, 7')
        a(f's_add_u32 {sT1}, {sT1}, {hex(RBOX)}')
        a(f'v_and_b32 v{vT+2}, 31, v1')
        a(f'v_lshl_add_u32 v{vT+2}, v{vT+2}, 2, {sT1}')
        a(f's_lshl_b32 {sT0}, {sJ}, 2')
        a(f's_add_u32 {sT1}, {sT1}, {sT0}')
        a(f'v_mov_b32 v{vT+3}, {sT1}')
        a(f'v_mov_b32 v{vT+4}, {sTAG}')
        a('s_waitcnt lgkmcnt(0)')
        k = 0
        for b in 'TGABCM':
            a('s_barrier', b)
            if b in 'GACM':
                a('s_mov_b64 exec, 1')
                a(f'buffer_store_dword v{vT+4}, v{vT+3}, {SRD_WS}, 0 offen offset:{1024*k}')
                a('s_mov_b64 exec, -1')
                a(f'buffer_load_dword v{vT+5}, v{vT+2}, {SRD_WS}, 0 offen offset:{1024*k} sc1')
                a('s_waitcnt vmcnt(0)')
                a(f'v_cmp_eq_u32 vcc, v{vT+4}, v{vT+5}')
                a(f's_bcnt1_i32_b32 {sT0}, vcc_lo')
                a(f's_cmp_gt_u32 {sT0}, {self.late}')
                a(f's_cselect_b32 {sT1}, 1, 0')
                a(f'v_mov_b32 v{vT+1}, {sT1}')
                a(f'ds_write_b32 v{vT}, v{vT+1}')
                k += 1
        a('s_branch L_Z')


def gen(**kw):
    g = G(**kw)
    s = g.gen()
    return s, g.stamp_names


if __name__ == '__main__':
    kw = eval('dict(' + (sys.argv[2] if len(sys.argv) > 2 else '') + ')')
    s, _ = gen(**kw)
    open(sys.argv[1], 'w').write(s)
```

```python
import math, struct, sys

NAME = 'recurrent_scan__gqa_block_cached__swiglu_ffn__decode_kernel'

HEADER = """; Kernarg layout for this problem (96 bytes, ptrs only, base s[0:1]):
;
"""


def f2u(x):
    return struct.unpack('<I', struct.pack('<f', x))[0]


QBOX  = 0x000000
HBOX  = 0x010000
MLBOX = 0x020000
RBOX  = 0x024000
XBOX  = 0x028000
FBOX  = 0x030000
SBOX  = 0x040000
OBOX  = 0x060000
EPOCH = 0x0e0000
STAMP = 0x800000

L_BQ = 0
L_XN = 1024
L_MB = 3072
L_LB = 3200
L_WB = 3312
L_GB = 3440
L_XB = 3568
L_O2 = 3696
L_S2 = 4208
L_CT = 5236
L_AD = 5240
L_FL = 5244
L_HB = 5248
L_A  = 1024
L_OB = 5376
L_WO = 5376 + 16384
L_TL = 5376
LDS_BYTES = L_TL + 2 * 16384

SRD_A, SRD_B, SRD_X, SRD_C, SRD_OUT, SRD_WS = [f's[{b}:{b+3}]' for b in range(28, 52, 4)]
sG, sJ, sW, sTAG, sOFF, sT0, sT1, sT2, sPLO, sPHI, sC, sCNT = [f's{i}' for i in range(52, 64)]
sL2E, sSEL, sSA, sSB, sLOC = 's3', 's64', 's65', 's66', 's67'
STAMP_BASE = 68
NVGPR = 256
RING = 44
RING0 = NVGPR - 4 * RING


class G:
    def __init__(self, Ds=((0, 7), (16, 5), (110, 8)), kfirst=1, nT=12, nG=24, nA=44, nM=44, nZ=64, late=26, pol='sc1 nt', wpol='sc1 nt', Xs=((0, 1),), pick=6,
                 qtry=4, spin=200000, stamps=False):
        self.__dict__.update(locals())
        self.L = []
        self.vm = []
        self.nlab = 0
        self.stamp_names = []

    def a(self, s, note=None):
        self.L.append('    ' + s + (f'    ; {note}' if note else ''))

    def c(self, text):
        for line in text.split('\n'):
            self.L.append('    ; ' + line)

    def lab(self, s):
        self.L.append(s + ':')

    def newlab(self, p):
        self.nlab += 1
        return f'L_{p}_{self.nlab}'

    def load(self, name, text):
        self.a(text)
        self.vm.append(name)

    def wait(self, name):
        n = len(self.vm) - 1 - self.vm.index(name)
        assert n <= 63
        self.a(f's_waitcnt vmcnt({n})')

    def stamp(self, name):
        if not self.stamps:
            return
        if self.stamps is True:
            if name.startswith('_'):
                return
        elif name not in self.stamps and name not in ('start', 'end'):
            return
        i = len(self.stamp_names)
        assert STAMP_BASE + 2 * i + 1 <= 101
        self.a(f's_memrealtime s[{STAMP_BASE+2*i}:{STAMP_BASE+2*i+1}]')
        self.stamp_names.append(name)

    def dpp(self, op, d, s0, s1, ctl, bank=0xf):
        self.a(f'{op}_dpp v{d}, v{s0}, v{s1} {ctl} row_mask:0xf bank_mask:{hex(bank)}')

    def rows_allreduce(self, op, v, t, do16=True, do32=True):
        if do16:
            self.a(f'v_mov_b32 v{t}, v{v}')
            self.a('s_nop 1')
            self.a(f'v_permlane16_swap_b32 v{v}, v{t}')
            self.a(f'{op} v{v}, v{v}, v{t}')
        if do32:
            self.a(f'v_mov_b32 v{t}, v{v}')
            self.a('s_nop 1')
            self.a(f'v_permlane32_swap_b32 v{v}, v{t}')
            self.a(f'{op} v{v}, v{v}, v{t}')

    def inrow_allreduce(self, op, v, rots):
        for r in rots:
            self.a('s_nop 1')
            self.dpp(op, v, v, v, f'row_ror:{r}')

    def bf16r(self, d, s):
        self.a(f'v_cvt_pk_bf16_f32 v{d}, v{s}, v{s}')
        self.a(f'v_and_b32 v{d}, 0xffff0000, v{d}')

    def sum8(self, d, b):
        for k in range(4):
            self.a(f'v_add_f32 v{b+k}, v{b+k}, v{b+4+k}')
        self.a(f'v_add_f32 v{b}, v{b}, v{b+2}')
        self.a(f'v_add_f32 v{b+1}, v{b+1}, v{b+3}')
        self.a(f'v_add_f32 v{d}, v{b}, v{b+1}')

    def max8(self, d, b, t):
        self.a(f'v_max3_f32 v{d}, v{b}, v{b+1}, v{b+2}')
        self.a(f'v_max3_f32 v{t}, v{b+3}, v{b+4}, v{b+5}')
        self.a(f'v_max3_f32 v{d}, v{d}, v{b+6}, v{b+7}')
        self.a(f'v_max_f32 v{d}, v{d}, v{t}')

    def silu_bf16(self, d, x, t):
        self.a(f'v_mul_f32 v{t}, {hex(f2u(math.log2(math.e)))}, v{x}')
        self.a(f'v_exp_f32 v{t}, -v{t}')
        self.a('s_nop 0')
        self.a(f'v_add_f32 v{t}, 1.0, v{t}')
        self.a(f'v_rcp_f32 v{t}, v{t}')
        self.a('s_nop 0')
        self.a(f'v_mul_f32 v{t}, v{x}, v{t}')
        self.bf16r(d, t)

    def make_tag(self):
        self.a(f's_and_b32 {sT0}, {sTAG}, 0x7f7f7f7f')
        self.a(f's_add_u32 {sT0}, {sT0}, 0x47611b35')
        self.a(f's_and_b32 {sTAG}, {sTAG}, 0x80808080')
        self.a(f's_xor_b32 {sTAG}, {sTAG}, {sT0}')

    def untag(self, regs):
        for r in regs:
            self.a(f'v_and_b32 v{r}, 0xffffff00, v{r}')

    def check_quads(self, quads, vtag, t0, t1, t2, cmp=True):
        for i, q in enumerate(quads):
            self.a(f'v_perm_b32 v{t0}, v{q+1}, v{q}, {sSA}')
            self.a(f'v_perm_b32 v{t1}, v{q+3}, v{q+2}, {sSB}')
            if i == 0:
                self.a(f'v_bitop3_b32 v{t2}, v{t0}, v{t1}, v{vtag} bitop3:0x56')
            else:
                self.a(f'v_bitop3_b32 v{t0}, v{t0}, v{t1}, v{vtag} bitop3:0x56')
                self.a(f'v_or_b32 v{t2}, v{t2}, v{t0}')
        if cmp:
            self.a(f'v_cmp_ne_u32 vcc, 0, v{t2}')

    def poll(self, loads, check, first_issued=False):
        again, done = self.newlab('again'), self.newlab('done')
        self.a(f's_mov_b32 {sCNT}, {self.spin}')
        if first_issued:
            check()
            self.a(f's_cbranch_vccz {done}')
        self.lab(again)
        for x in loads:
            self.lab(x[:-1]) if x.endswith(':') else self.a(x)
        self.a(f's_sub_u32 {sCNT}, {sCNT}, 1')
        self.a('s_waitcnt vmcnt(0)')
        self.a(f's_cbranch_scc1 {done}')
        check()
        self.a(f's_cbranch_vccnz {again}')
        self.lab(done)

    def quad_reduce(self, v, lpp):
        self.a('s_nop 1')
        self.a(f'v_permlane32_swap_b32 v{v}, v{v+2}')
        self.a(f'v_permlane32_swap_b32 v{v+1}, v{v+3}')
        self.a(f'v_add_f32 v{v}, v{v}, v{v+2}')
        self.a(f'v_add_f32 v{v+1}, v{v+1}, v{v+3}')
        self.a('s_nop 1')
        self.a(f'v_permlane16_swap_b32 v{v}, v{v+1}')
        self.a(f'v_add_f32 v{v}, v{v}, v{v+1}')
        self.inrow_allreduce('v_add_f32', v, [r for r in (8, 4, 2) if r >= lpp])

    def tile_dot(self, npairs, vW, vX, vA, vB, waitp):
        a = self.a
        for p in range(npairs):
            waitp(p)
            w0, w1 = vW + 8 * p, vW + 8 * p + 4
            for e in range(8):
                a(f'v_perm_b32 v{vB+e}, v{w1+(e>>1)}, v{w0+(e>>1)}, {sPHI if e & 1 else sPLO}')
            for e in range(8):
                a(f'v_dot2_f32_bf16 v{vA+e}, v{vB+e}, v{vX+p}, {"0" if p == 0 else f"v{vA+e}"}')
        a('s_nop 2')
        for e in range(4):
            a(f'v_permlane32_swap_b32 v{vA+e}, v{vA+e+4}')
        for e in range(4):
            a(f'v_add_f32 v{vA+e}, v{vA+e}, v{vA+e+4}')
        a('s_nop 0')
        for e in range(2):
            a(f'v_permlane16_swap_b32 v{vA+e}, v{vA+e+2}')
        for e in range(2):
            a(f'v_add_f32 v{vA+e}, v{vA+e}, v{vA+e+2}')
        a('s_nop 0')
        self.dpp('v_add_f32', vA + 4, vA, vA, 'row_ror:8', 0x3)
        a('s_nop 1')
        self.dpp('v_add_f32', vA + 4, vA + 1, vA + 1, 'row_ror:8', 0xc)

    def srd(self, srd, p, nbytes):
        b = int(srd[2:srd.index(':')])
        self.a(f's_mov_b64 s[{b}:{b+1}], s[{p}:{p+1}]')
        self.a(f's_mov_b32 s{b+2}, {hex(nbytes)}')
        self.a(f's_mov_b32 s{b+3}, 0x20000')

    def barrier(self, note):
        self.a('s_waitcnt lgkmcnt(0)')
        self.a('s_barrier', note)

    def slot(self, n):
        return RING0 + 4 * (n % RING)

    def depth(self, m):
        return [d for f, d in self.Ds if m >= f][-1]

    def need(self, name):
        k = self.seq.index(name)
        assert k < self.m, name
        if k > self.landed:
            self.wait(name)
            self.landed = k

    def has(self, name):
        return self.seq.index(name) <= self.landed

    def step(self):
        if self.m >= len(self.seq):
            return
        k = self.m - self.depth(self.m)
        if self.adapting:
            k2 = k - [d for f, d in self.Xs if self.m >= f][-1]
            if k2 > self.landed:
                self.wait(self.seq[k2])
                self.landed = k2
            if k > self.landed:
                skip = self.newlab('deep')
                self.a(f's_cbranch_vccnz {skip}')
                self.wait(self.seq[k])
                self.lab(skip)
        elif k > self.landed:
            self.wait(self.seq[k])
            self.landed = k
        if self.m in self.picks:
            self.a(f'ds_read_b32 v78, v79')
        if self.m - 1 in self.picks:
            self.a('s_waitcnt lgkmcnt(0)')
            self.a('v_cmp_ne_u32 vcc, 0, v78', 'vcc: this workgroup is late, keep one more load in flight')
            self.adapting = True
        name = self.seq[self.m]
        kind, i = name[0], int(name[1:])
        if kind in 'KV':
            n = i + (64 if kind == 'V' else 0)
            old = n - RING
            assert old < 0 or (old < 64 and old < 4 * self.beta) or (old >= 64 and old - 64 < 4 * self.tau), name
            r = self.slot(n)
            srd, vo, off, dst, tailtxt = (SRD_A if kind == 'K' else SRD_B), (2 if kind == 'K' else 3), i * 4096, f'v[{r}:{r+3}], ', self.pol
        else:
            if i == 0:
                self.tile_setup(kind)
            srd, vo = (SRD_X, 76) if kind == 'Q' else (SRD_C, 77)
            off, dst, tailtxt = i * ((8192 if kind == 'Q' else 3584) - 1024), '', f'offset:{i*1024} {self.wpol} lds'
        so = '0'
        if off:
            self.a(f's_mov_b32 {sOFF}, {hex(off)}')
            so = sOFF
        self.load(name, f'buffer_load_dwordx4 {dst}v{vo}, {srd}, {so} offen {tailtxt}')
        self.stamp('_' + name)
        self.m += 1

    def steps_until(self, name):
        while self.seq[self.m] != name:
            self.step()

    def tile_setup(self, kind):
        a, vT = self.a, 60
        if kind == 'Q':
            self.srd(SRD_X, 10, 4 << 20)
            a(f's_and_b32 {sT0}, {sJ}, 3')
            a(f's_lshl_b32 {sT0}, {sT0}, 7')
            a(f's_lshl_b32 {sT1}, {sW}, 2')
            a(f's_add_u32 {sT0}, {sT0}, {sT1}')
            a(f'v_lshrrev_b32 v{vT}, 3, v1')
            a(f'v_lshl_add_u32 v{vT}, v{vT}, 4, {sT0}', 'row = 128*rb + 16*(l>>3) + 4w')
            a(f'v_and_b32 v{vT+1}, 7, v1')
            a(f'v_lshlrev_b32 v{vT+1}, 4, v{vT+1}')
            a(f's_lshr_b32 {sT2}, {sJ}, 2')
            a(f's_lshl_b32 {sT0}, {sG}, 10')
            a(f's_lshl_b32 {sT1}, {sT2}, 7')
            a(f's_add_u32 {sT0}, {sT0}, {sT1}')
            a(f'v_lshlrev_b32 v76, 13, v{vT}')
            a(f'v_add3_u32 v76, v76, v{vT+1}, {sT0}')
            a(f's_lshl_b32 {sT1}, {sW}, 12')
            a(f's_add_u32 m0, {sT1}, {L_TL}')
            a('s_nop 0')
        else:
            a(f's_lshl_b32 {sT2}, {sT2}, 3')
            a(f's_add_u32 {sT2}, {sT2}, {sG}')
            a(f's_sub_u32 {sT0}, {sT2}, 28')
            a(f's_cmp_ge_u32 {sT2}, 28')
            a(f's_cselect_b32 {sT2}, {sT0}, {sT2}')
            a('s_cselect_b64 s[40:41], s[18:19], s[16:17]')
            a(f's_mov_b32 s42, {hex(512*3584)}')
            a('s_mov_b32 s43, 0x20000')
            a(f's_lshl_b32 {sT2}, {sT2}, 7')
            a(f's_cmp_ge_u32 {sJ}, 28')
            a(f's_cselect_b32 {sT2}, 0x10000000, {sT2}', 'no FFN tile: out of range, nothing is fetched')
            a(f's_add_u32 m0, {sT1}, {L_TL + 16384}')
            a(f'v_mul_u32_u24 v77, 3584, v{vT}')
            a(f'v_add3_u32 v77, v77, v{vT+1}, {sT2}')

    def qk_batch(self):
        beta = self.beta
        half, t = beta >> 2, beta & 3
        Dr, P0, Bq = 36, 4, 52
        self.need(f'K{4*beta+3}')
        self.beta += 1
        self.c(f'scores of K tiles {4*beta}..{4*beta+3}: the valid quarter of each product, summed into bank {t}')
        for gam in range(4):
            r = self.slot(4 * beta + gam)
            self.a(f'v_mfma_f32_16x16x32_bf16 v[{Dr+4*gam}:{Dr+4*gam+3}], v[{r}:{r+3}], v[{Bq}:{Bq+3}], 0')
        self.a('s_nop 5')
        for k in (1, 2, 3):
            for gam in range(4):
                P = P0 + 4 * half + gam
                d = Dr + 4 * gam
                self.dpp('v_add_f32', P, d + ((t + k) & 3), d + t if k == 1 else P, f'row_ror:{16-4*k}', 1 << t)

    def pv_group(self):
        tau = self.tau
        B = 36
        self.tau += 1
        self.c(f'P.V of V tiles {4*tau}..{4*tau+3}')
        for pair in range(2):
            v0 = self.slot(64 + 4 * tau + 2 * pair)
            v1 = self.slot(64 + 4 * tau + 2 * pair + 1)
            self.need(f'V{4*tau+2*pair+1}')
            for e in range(8):
                self.a(f'v_perm_b32 v{B+2*e+pair}, v{v1+(e>>1)}, v{v0+(e>>1)}, {sPHI if e & 1 else sPLO}')
        PA = 52 + 2 * (tau >> 2)
        for e in range(8):
            ac = 4 + 4 * e
            c = '0' if tau == 0 else f'v[{ac}:{ac+3}]'
            self.a(f'v_mfma_f32_4x4x4_16b_bf16 v[{ac}:{ac+3}], v[{PA}:{PA+1}], v[{B+2*e}:{B+2*e+1}], {c} cbsz:2 abid:{tau & 3}')

    def gen(self):
        a = self.a
        self.L.append(f'; @launch grid=(256,1,1) block=(512,1,1) lds={LDS_BYTES}')
        self.L.append('.amdgcn_target "amdgcn-amd-amdhsa--gfx950"')
        self.L.append('.text')
        self.L.append(f'.globl {NAME}')
        self.L.append('.p2align 8')
        self.L.append(f'.type {NAME},@function')
        self.lab(NAME)
        a('s_load_dwordx16 s[4:19], s[0:1], 0')
        a('s_load_dwordx8 s[20:27], s[0:1], 64')
        if self.stamps:
            for i in range(STAMP_BASE, 102, 2):
                a(f's_mov_b64 s[{i}:{i+1}], 0')
            self.stamp('start')
        a('s_cmp_ge_u32 s2, 0x100')
        a('s_cbranch_scc1 L_end')
        a('v_lshrrev_b32 v4, 6, v0')
        a('v_and_b32 v1, 63, v0')
        a(f'v_readfirstlane_b32 {sW}, v4')
        a(f's_and_b32 {sG}, s2, 7')
        a(f's_lshr_b32 {sJ}, s2, 3')
        a(f's_cmp_ge_u32 {sW}, 4')
        a('s_cbranch_scc1 L_helper')
        self.stream_wave()
        self.tail()
        self.far_store()
        self.helper_join()
        self.helpers()
        self.lab('L_exit0')
        if self.stamps:
            a('s_mov_b64 exec, -1')
        self.lab('L_exit')
        if self.stamps:
            self.stamp('end')
            a('s_waitcnt lgkmcnt(0)')
            a('v_mov_b32 v4, 0')
            for i in range(len(self.stamp_names)):
                a(f'v_writelane_b32 v4, s{STAMP_BASE+2*i}, {i}')
            a(f's_getreg_b32 {sT1}, hwreg(HW_REG_XCC_ID)')
            a(f'v_writelane_b32 v4, {sT1}, 63')
            a(f's_getreg_b32 {sT1}, hwreg(HW_REG_HW_ID)')
            a(f'v_writelane_b32 v4, {sT1}, 62')
            a(f's_lshl_b32 {sT0}, s2, 3')
            a(f's_add_u32 {sT0}, {sT0}, {sW}')
            a(f's_lshl_b32 {sT0}, {sT0}, 8')
            a(f's_add_u32 {sT0}, {sT0}, {hex(STAMP)}')
            a(f'v_lshl_add_u32 v5, v1, 2, {sT0}')
            a(f'buffer_store_dword v4, v5, {SRD_WS}, 0 offen')
        self.lab('L_end')
        a('s_endpgm')
        self.L += ['.section .rodata,"a"', '.p2align 6', f'.amdhsa_kernel {NAME}',
                   f'  .amdhsa_next_free_vgpr {NVGPR}', '  .amdhsa_next_free_sgpr 102', f'  .amdhsa_accum_offset {NVGPR}',
                   '  .amdhsa_group_segment_fixed_size 0', '  .amdhsa_kernarg_size 96',
                   '  .amdhsa_user_sgpr_count 2', '  .amdhsa_user_sgpr_kernarg_segment_ptr 1',
                   '  .amdhsa_system_sgpr_workgroup_id_x 1',
                   '  .amdhsa_float_denorm_mode_32 3', '.end_amdhsa_kernel']
        return HEADER + '\n'.join(self.L) + '\n'

    def stream_wave(self):
        a = self.a
        vP, vD, vPA, vBq, vT = 4, 36, 52, 52, 60
        assert RING0 == 80
        kf = self.kfirst
        self.seq = [f'K{i}' for i in range(kf)] + [f'Q{i}' for i in range(4)] + [f'F{i}' for i in range(4)] + \
                   [f'K{i}' for i in range(kf, 64)] + [f'V{i}' for i in range(64)]
        self.m = self.beta = self.tau = 0
        self.landed = -1
        self.adapting = False
        self.picks = set()
        self.vm = []
        a(f's_lshl_b32 {sT0}, {sG}, 23')
        a(f's_lshl_b32 {sT1}, {sJ}, 18')
        a(f's_add_u32 {sT0}, {sT0}, {sT1}')
        a(f's_lshl_b32 {sT1}, {sW}, 10')
        a(f's_add_u32 {sT0}, {sT0}, {sT1}')
        self.c('K lane offset: key (l&15)>>2, 16-byte chunk (l&3) + 4*(l>>4)')
        a(f'v_bfe_u32 v{vT}, v1, 2, 2')
        a(f'v_lshlrev_b32 v{vT}, 8, v{vT}')
        a(f'v_and_b32 v{vT+1}, 3, v1')
        a(f'v_lshl_add_u32 v{vT}, v{vT+1}, 4, v{vT}')
        a(f'v_lshrrev_b32 v{vT+2}, 4, v1')
        a(f'v_lshlrev_b32 v{vT+2}, 6, v{vT+2}')
        a(f'v_add3_u32 v2, v{vT}, v{vT+2}, {sT0}')
        a(f'v_lshl_add_u32 v3, v1, 4, {sT0}')
        a('s_waitcnt lgkmcnt(0)')
        self.srd(SRD_A, 6, 64 << 20)
        self.steps_until('F0')
        self.stamp('issued0')
        a(f's_load_dword {sTAG}, s[26:27], {hex(EPOCH)}')
        self.srd(SRD_WS, 26, 256 << 20)
        self.srd(SRD_B, 8, 64 << 20)
        a(f's_mov_b32 {sPLO}, 0x05040100')
        a(f's_mov_b32 {sPHI}, 0x07060302')
        a(f's_mov_b32 {sC}, {hex(f2u(math.log2(math.e)))}')
        while not self.has('Q3'):
            self.step()
        self.steps_until(f'K{self.nT}')
        self.stamp('preT')
        a('s_barrier', 'T: the wq tile is in LDS')
        self.stamp('_postT')
        self.steps_until(f'K{self.nG}')
        assert self.has('F3')
        self.stamp('_preG')
        a('s_barrier', 'G: FFN tile in LDS; late enough to look for q')
        self.stamp('_postG')
        a(f'v_mov_b32 v79, {L_AD}')
        self.picks.add(self.m + self.pick)
        self.steps_until(f'K{self.nA}')
        a(f'v_lshlrev_b32 v{vT}, 4, v1')
        self.stamp('preA')
        self.barrier('A: q is in LDS')
        a(f'ds_read_b128 v[{vBq}:{vBq+3}], v{vT} offset:{L_BQ}')
        self.stamp('A')
        self.picks.add(self.m + self.pick)
        self.make_tag()
        a(f'v_and_b32 v{vT+6}, 3, v1')
        a(f'v_lshlrev_b32 v{vT+6}, 4, v{vT+6}', 'h*16')
        a(f's_lshl_b32 {sT0}, {sW}, 2')
        a(f'v_add_u32 v{vT+7}, {sT0}, v{vT+6}')
        a('s_waitcnt lgkmcnt(0)')
        self.c('---- scores ----')
        while self.beta < 16:
            nxt = self.seq[self.m]
            if int(nxt[1:]) + (64 if nxt[0] == 'V' else 0) - RING >= 4 * self.beta:
                self.qk_batch()
            self.step()
            if self.beta < 16 and self.has(f'K{4*self.beta+3}'):
                self.qk_batch()
        self.c('---- softmax: workgroup max, exponentials, sums ----')
        self.c('the reference keeps q.k and q.k / sqrt(128) in bf16')
        for rnd in range(2):
            for i in range(8):
                a(f'v_cvt_pk_bf16_f32 v{vD+i}, v{vP+2*i}, v{vP+2*i+1}')
            for i in range(8):
                a(f'v_lshlrev_b32 v{vP+2*i}, 16, v{vD+i}')
                a(f'v_and_b32 v{vP+2*i+1}, 0xffff0000, v{vD+i}')
            if rnd == 0:
                self.step()
                for i in range(16):
                    a(f'v_mul_f32 v{vP+i}, {hex(f2u(128.0 ** -0.5))}, v{vP+i}')
        self.step()
        self.max8(vT, vP, vT + 1)
        self.max8(vT + 2, vP + 8, vT + 1)
        a(f'v_max_f32 v{vT}, v{vT}, v{vT+2}')
        self.inrow_allreduce('v_max_f32', vT, (8, 4))
        self.rows_allreduce('v_max_f32', vT, vT + 1)
        a(f'ds_write_b32 v{vT+7}, v{vT} offset:{L_MB}')
        self.step()
        self.stamp('_preB')
        self.barrier('B')
        self.stamp('_postB')
        a(f'ds_read_b128 v[{vD}:{vD+3}], v{vT+6} offset:{L_MB}')
        a('s_waitcnt lgkmcnt(0)')
        a(f'v_max3_f32 v{vT}, v{vD}, v{vD+1}, v{vD+2}')
        a(f'v_max_f32 v{vT}, v{vT}, v{vD+3}')
        a(f'v_mul_f32 v{vT}, {sC}, v{vT}')
        for i in range(16):
            a(f'v_fma_f32 v{vP+i}, v{vP+i}, {sC}, -v{vT}')
        self.step()
        for i in range(16):
            a(f'v_exp_f32 v{vP+i}, v{vP+i}')
        self.step()
        for i in range(8):
            a(f'v_cvt_pk_bf16_f32 v{vPA+i}, v{vP+2*i}, v{vP+2*i+1}')
        for i in range(8):
            a(f'v_add_f32 v{vP+i}, v{vP+i}, v{vP+8+i}')
        self.sum8(vT, vP)
        self.inrow_allreduce('v_add_f32', vT, (8, 4))
        self.rows_allreduce('v_add_f32', vT, vT + 1)
        a(f'ds_write_b32 v{vT+7}, v{vT} offset:{L_LB}')
        self.step()
        self.barrier('C')
        self.stamp('C')
        self.picks.add(self.m + self.pick)
        self.c('---- P.V ----')
        while self.m < len(self.seq):
            if self.seq[self.m] == f'V{self.nM}':
                self.stamp('_preM')
                a('s_barrier', "M: late enough to look for the other splits' sums")
                self.stamp('_postM')
                self.picks.add(self.m + self.pick)
            if self.seq[self.m] == f'V{self.nZ}':
                a('s_barrier', 'Z: waves 4..7 may ask for wo')
            if int(self.seq[self.m][1:]) - RING >= 4 * self.tau:
                self.pv_group()
            self.step()
            if self.has(f'V{4*self.tau+3}'):
                self.pv_group()
        self.stamp('allissued')

    def tail_setup(self, pause=lambda: None):
        a = self.a
        vT = 60
        vA0, vA1, vA2, vA3, vA4, vA5, vTB, vWt = range(68, 76)
        self.srd(SRD_OUT, 22, 1024)
        a(f's_mov_b32 {sSEL}, 0x07060500')
        a(f's_mov_b32 {sSA}, 0x0c0c0400')
        a(f's_mov_b32 {sSB}, 0x04000c0c')
        a(f'v_and_b32 v{vT+3}, 3, v1')
        a(f'v_lshlrev_b32 v{vT}, 3, v{vT+3}')
        a(f'v_lshrrev_b32 v{vTB}, v{vT}, {sTAG}', 'tag byte of column lane & 3')
        a(f'v_lshrrev_b32 v{vT}, 4, v0')
        a(f'v_lshlrev_b32 v{vWt}, 2, v{vT}')
        a(f'v_mov_b32 v{vT+5}, {L_FL}')
        self.c('A0: LDS writer of the key-row sums (position 4*(l&15) + (l>>4)); vT+7: writer of the weighted columns')
        a(f'v_lshrrev_b32 v{vT}, 4, v1')
        a(f'v_and_b32 v{vT+1}, 15, v1')
        a(f'v_lshl_add_u32 v{vT+2}, v{vT+1}, 2, v{vT}')
        a(f's_lshl_b32 {sT0}, {sW}, 11')
        a(f's_add_u32 {sT0}, {sT0}, {L_OB}')
        a(f'v_lshl_add_u32 v{vA0}, v{vT+2}, 2, {sT0}')
        a(f's_mul_i32 {sT0}, {sW}, 144')
        a(f'v_lshl_add_u32 v{vT+7}, v{vT+2}, 1, {sT0}')
        pause()
        self.c('vT+6: reader of the weighted columns as an MFMA A operand')
        a(f'v_and_b32 v{vT+2}, 7, v1')
        a(f'v_mul_u32_u24 v{vT+2}, 144, v{vT+2}')
        a(f'v_lshl_add_u32 v{vT+6}, v{vT}, 4, v{vT+2}')
        self.c('A5: transposing reader of the wo tile: row 8*(l>>4) + ((l>>2)&3), 8 bytes (l&3)')
        a(f'v_lshlrev_b32 v{vT}, 9, v{vT}')
        a(f'v_bfe_u32 v{vT+2}, v1, 2, 2')
        a(f'v_lshl_add_u32 v{vT}, v{vT+2}, 6, v{vT}')
        a(f'v_lshl_add_u32 v{vT}, v{vT+3}, 3, v{vT}')
        a(f's_and_b32 {sT2}, {sW}, 3')
        a(f's_lshl_b32 {sT0}, {sT2}, 12')
        a(f'v_add_u32 v{vA5}, {sT0}, v{vT}')
        pause()
        self.c('A1: LDS reader of column tid: head tid>>7, parity tid&1, position (tid&127)>>1')
        a(f'v_lshrrev_b32 v{vT}, 7, v0')
        a(f'v_lshlrev_b32 v{vT}, 9, v{vT}')
        a(f'v_and_b32 v{vT+2}, 1, v0')
        a(f'v_lshl_add_u32 v{vT}, v{vT+2}, 8, v{vT}')
        a(f'v_bfe_u32 v{vT+2}, v0, 1, 6')
        a(f'v_lshl_add_u32 v{vA1}, v{vT+2}, 2, v{vT}')
        a(f'v_add_u32 v{vA1}, {L_OB}, v{vA1}')
        pause()
        self.c('A2: o publish  OBOX + g*64K + w*8K + j*256 + l*4 ; A3: o gather  OBOX + g*64K + (j>>2)*8K + tid*16')
        a(f's_lshl_b32 {sT1}, {sG}, 16')
        a(f's_add_u32 {sT1}, {sT1}, {hex(OBOX)}')
        a(f's_lshl_b32 {sT0}, {sW}, 13')
        a(f's_add_u32 {sT0}, {sT0}, {sT1}')
        a(f's_lshl_b32 {sCNT}, {sJ}, 8')
        a(f's_add_u32 {sT0}, {sT0}, {sCNT}')
        a(f'v_lshl_add_u32 v{vA2}, v1, 2, {sT0}')
        a(f's_lshr_b32 {sCNT}, {sJ}, 2')
        a(f's_lshl_b32 {sT0}, {sCNT}, 13')
        a(f's_add_u32 {sT0}, {sT0}, {sT1}')
        a(f'v_lshl_add_u32 v{vA3}, v0, 4, {sT0}')
        pause()
        self.c('A4: s publish  SBOX + (4*(j&3) + (w&3))*8K + (8g + (j>>2))*128 + l*4, lanes 32..63 out of range')
        a(f's_and_b32 {sT0}, {sJ}, 3')
        a(f's_lshl_b32 {sT0}, {sT0}, 2')
        a(f's_add_u32 {sT0}, {sT0}, {sT2}')
        a(f's_lshl_b32 {sT0}, {sT0}, 6')
        a(f's_lshl_b32 {sT1}, {sG}, 3')
        a(f's_add_u32 {sT0}, {sT0}, {sT1}')
        a(f's_add_u32 {sT0}, {sT0}, {sCNT}')
        a(f's_lshl_b32 {sT0}, {sT0}, 7')
        a(f's_add_u32 {sT0}, {sT0}, {hex(SBOX)}')
        a(f'v_lshrrev_b32 v{vT}, 5, v1')
        a(f'v_lshlrev_b32 v{vT}, 29, v{vT}')
        a(f'v_lshl_add_u32 v{vT}, v1, 2, v{vT}')
        a(f'v_add_u32 v{vA4}, {sT0}, v{vT}')
        a(f'v_mov_b32 v{vT+4}, {sTAG}')

    def tail(self):
        a = self.a
        CPC = 32
        assert CPC == 32
        NCONS = 16
        lg = 5
        emu = None
        vAcc, vD, vT = 4, 36, 60
        vA0, vA1, vA2, vA3, vA4, vA5, vTB, vWt = range(68, 76)
        vW, SG = 80, 96
        vZ = 20
        AM = (52, 54, 56, 76)
        assert self.tau >= 12
        if self.nZ >= 64:
            a('s_barrier', 'Z')
        self.stamp('_postZ')
        self.lab('L_Z2')
        self.tail_setup()
        a(f'ds_read_b32 v{vWt}, v{vWt} offset:{L_WB}', "this thread's split weight")
        a(f'ds_read_b32 v{vT+5}, v{vT+5}')
        a('s_waitcnt lgkmcnt(0)')
        a(f'v_readfirstlane_b32 {sLOC}, v{vT+5}')
        a(f's_cmp_ge_u32 {sW}, 4')
        a('s_cbranch_scc1 L_D')
        self.c('P operand of the last group, one copy per block of four rows with the other rows zero')
        for b in range(4):
            a(f'v_mov_b32 v{AM[b]}, 0')
            a(f'v_mov_b32 v{AM[b]+1}, 0')
        while self.tau < 15:
            self.pv_group()
        for b in range(4):
            for k in range(2):
                ctl = f'row_ror:{4*(b+1)}' if b < 3 else 'quad_perm:[0,1,2,3]'
                a(f'v_mov_b32_dpp v{AM[b]+k}, v{58+k} {ctl} row_mask:0xf bank_mask:{hex(1 << b)}')
        self.c('---- sum the four key rows of everything so far while the last tiles arrive ----')
        for e in range(4):
            for h in range(4):
                a(f'v_permlane32_swap_b32 v{vAcc+4*e+h}, v{vAcc+4*(e+4)+h}')
        for e in range(4):
            for h in range(4):
                a(f'v_add_f32 v{vAcc+4*e+h}, v{vAcc+4*e+h}, v{vAcc+4*(e+4)+h}')
        for e in range(2):
            for h in range(4):
                a(f'v_permlane16_swap_b32 v{vAcc+4*e+h}, v{vAcc+4*(e+2)+h}')
        for e in range(2):
            for h in range(4):
                a(f'v_add_f32 v{vZ+4*e+h}, v{vAcc+4*e+h}, v{vAcc+4*(e+2)+h}')
        for pair in range(2):
            v0, v1 = self.slot(64 + 60 + 2 * pair), self.slot(64 + 61 + 2 * pair)
            self.need(f'V{61+2*pair}')
            for e in range(8):
                a(f'v_perm_b32 v{vD+2*e+pair}, v{v1+(e>>1)}, v{v0+(e>>1)}, {sPHI if e & 1 else sPLO}')
        for e in range(8):
            z = vZ + 4 * (e & 1)
            a(f'v_mfma_f32_16x16x16_bf16 v[{z}:{z+3}], v[{AM[e>>1]}:{AM[e>>1]+1}], v[{vD+2*e}:{vD+2*e+1}], v[{z}:{z+3}]')
        self.stamp('pvdone')
        a('s_nop 7')
        for h in range(4):
            a(f'ds_write2st64_b32 v{vA0}, v{vZ+h}, v{vZ+4+h} offset0:{2*h} offset1:{2*h+1}')
        self.lab('L_D')
        self.barrier('D')
        for k in range(2):
            a(f'ds_read2st64_b32 v[{vD+2*k}:{vD+2*k+1}], v{vA1} offset0:{16*k} offset1:{16*k+8}')
        a(f's_cmp_eq_u32 {sLOC}, 1')
        a('s_waitcnt lgkmcnt(0)')
        a(f'v_add_f32 v{vD}, v{vD}, v{vD+2}')
        a(f'v_add_f32 v{vD+1}, v{vD+1}, v{vD+3}')
        a(f'v_add_f32 v{vT}, v{vD}, v{vD+1}')
        a(f'v_perm_b32 v{vT}, v{vT}, v{vTB}, {sSEL}')
        a('s_cbranch_scc0 L_far')
        a(f'buffer_store_dword v{vT}, v{vA2}, {SRD_WS}, 0 offen')
        self.lab('L_near')
        self.stamp('opub')

        self.c("---- hop 1: the 64 attention output columns of this workgroup's wo tile ----")
        ol = [f'buffer_load_dwordx4 v[{SG}:{SG+3}], v{vA3}, {SRD_WS}, 0 offen sc1']
        a(ol[0])
        a('s_waitcnt vmcnt(0)')
        self.stamp('poll1')
        for t2 in range(2):
            for kh in range(2):
                for m in range(2):
                    r = vW + 8 * t2 + 4 * kh + 2 * m
                    a(f'ds_read_b64_tr_b16 v[{r}:{r+1}], v{vA5} offset:{L_WO + kh*2048 + m*256 + t2*32}')
        self.poll(ol, lambda: self.check_quads([SG], vT + 4, vT + 1, vT + 2, vT + 3), True)
        R = SG
        self.stamp('goto')
        self.untag(range(R, R + 4))
        for k in range(4):
            a(f'v_mul_f32 v{R+k}, v{R+k}, v{vWt}')
        self.quad_reduce(R, 16)
        a(f'v_cvt_pk_bf16_f32 v{R}, v{R}, v{R}')
        a(f'ds_write_b16 v{vT+7}, v{R} offset:{L_A}')
        SG = 120
        self.barrier('E')
        a(f's_cmp_lt_u32 {sW}, 4')
        a('s_cbranch_scc1 L_hop2')
        a(f'ds_read_b128 v[{vD}:{vD+3}], v{vT+6} offset:{L_A}')
        a(f'ds_read_b128 v[{vD+4}:{vD+7}], v{vT+6} offset:{L_A+64}')
        a('s_waitcnt lgkmcnt(1)')
        a(f'v_mfma_f32_16x16x32_bf16 v[{vD+8}:{vD+11}], v[{vD}:{vD+3}], v[{vW}:{vW+3}], 0')
        a(f'v_mfma_f32_16x16x32_bf16 v[{vD+12}:{vD+15}], v[{vD}:{vD+3}], v[{vW+8}:{vW+11}], 0')
        a('s_waitcnt lgkmcnt(0)')
        a(f'v_mfma_f32_16x16x32_bf16 v[{vD+8}:{vD+11}], v[{vD+4}:{vD+7}], v[{vW+4}:{vW+7}], v[{vD+8}:{vD+11}]')
        a(f'v_mfma_f32_16x16x32_bf16 v[{vD+12}:{vD+15}], v[{vD+4}:{vD+7}], v[{vW+12}:{vW+15}], v[{vD+12}:{vD+15}]')
        a('s_nop 6')
        a(f'v_add_f32 v{vD+8}, v{vD+8}, v{vD+9}')
        a(f'v_add_f32 v{vD+10}, v{vD+10}, v{vD+11}')
        a(f'v_add_f32 v{vD+12}, v{vD+12}, v{vD+13}')
        a(f'v_add_f32 v{vD+14}, v{vD+14}, v{vD+15}')
        a(f'v_add_f32 v{vD+8}, v{vD+8}, v{vD+10}')
        a(f'v_add_f32 v{vD+12}, v{vD+12}, v{vD+14}')
        a('s_nop 1')
        a(f'v_permlane16_swap_b32 v{vD+8}, v{vD+12}')
        a(f'v_add_f32 v{vT}, v{vD+8}, v{vD+12}')
        a(f'v_perm_b32 v{vT}, v{vT}, v{vTB}, {sSEL}')
        a(f'buffer_store_dword v{vT}, v{vA4}, {SRD_WS}, 0 offen sc1')
        self.stamp('spub')
        self.lab('L_hop2')

        self.c('---- hop 2: final consumers ----')
        a(f's_cmp_ge_u32 s2, {NCONS}')
        a('s_cbranch_scc1 L_exit')
        nl, lpp = 1, 8
        a(f's_lshl_b32 {sT0}, s2, 13')
        a(f's_add_u32 {sT0}, {sT0}, {hex(SBOX)}')
        a(f'v_lshl_add_u32 v{vA0}, v0, 4, {sT0}')
        mk = lambda r: f'buffer_load_dwordx4 v[{r}:{r+3}], v{vA0}, {SRD_WS}, 0 offen sc1'
        a(mk(SG))
        a(f'v_mov_b32 v{vA1}, {sTAG}')
        a(f'v_and_b32 v{vT+1}, 7, v1')
        a(f'v_lshlrev_b32 v{vT+1}, 7, v{vT+1}')
        a(f'v_lshrrev_b32 v{vT+2}, 4, v1')
        a(f'v_lshlrev_b32 v{vT+2}, 5, v{vT+2}')
        a(f's_lshl_b32 {sT0}, {sW}, 2')
        a(f'v_add3_u32 v{vA2}, v{vT+1}, v{vT+2}, {sT0}', 'LDS writer [col][wave]')
        a(f'v_and_b32 v{vT+1}, 31, v1')
        a(f'v_lshlrev_b32 v{vA3}, 5, v{vT+1}', 'LDS reader')
        a(f'v_lshlrev_b32 v{vT+2}, 2, v{vT+1}')
        a(f'ds_read_b32 v{vA4}, v{vT+2} offset:{L_GB}')
        a(f'ds_read_b32 v{vA5}, v{vT+2} offset:{L_XB}')
        a(f's_lshl_b32 {sT0}, s2, 6')
        a(f'v_lshl_add_u32 v{vWt}, v{vT+1}, 1, {sT0}', 'output byte offset')
        a(f'v_mov_b32 v{vT+5}, {L_CT}')
        a(f'v_mov_b32 v{vT+6}, 1')
        a('s_waitcnt vmcnt(0)')
        self.poll([mk(SG)], lambda: self.check_quads([SG], vA1, vT + 1, vT + 2, vT + 3), True)
        self.stamp('gots')
        self.untag(range(SG, SG + 4))
        self.quad_reduce(SG, 8)
        self.c('the wave that delivers last finds every sum in LDS and finishes the 32 columns')
        a(f'ds_write_b32 v{vA2}, v{SG} offset:{L_S2}')
        a('s_mov_b64 exec, 1')
        a(f'ds_add_rtn_u32 v{vT+6}, v{vT+5}, v{vT+6}')
        a('s_mov_b32 exec_lo, -1')
        a(f'ds_read_b128 v[{vD}:{vD+3}], v{vA3} offset:{L_S2}')
        a(f'ds_read_b128 v[{vD+4}:{vD+7}], v{vA3} offset:{L_S2+16}')
        a('s_waitcnt lgkmcnt(0)')
        a(f'v_readfirstlane_b32 {sT0}, v{vT+6}')
        self.sum8(vT, vD)
        a(f's_cmp_lg_u32 {sT0}, 7')
        a('s_cbranch_scc1 L_exit0')
        self.bf16r(vT, vT)
        a(f'v_mul_f32 v{vT}, v{vT}, v{vA4}')
        self.bf16r(vT, vT)
        a(f'v_add_f32 v{vT}, v{vT}, v{vA5}')
        a(f'v_cvt_pk_bf16_f32 v{vT}, v{vT}, v{vT}')
        a(f'buffer_store_short v{vT}, v{vWt}, {SRD_OUT}, 0 offen')
        a('s_mov_b64 exec, -1')
        a('s_cmp_lg_u32 s2, 0')
        a('s_cbranch_scc1 L_exit')
        self.c("every workgroup has read the old word by now: leave this launch's tag for the next one")
        a(f'v_mov_b32 v{vT}, {hex(EPOCH)}')
        a('s_mov_b64 exec, 1')
        a(f'buffer_store_dword v{vA1}, v{vT}, {SRD_WS}, 0 offen sc1')
        a('s_mov_b64 exec, -1')
        a('s_branch L_exit')

    def helper_join(self):
        a = self.a
        vT = 60
        self.lab('L_Z')
        self.c('waves 4..7: 64 rows x 32 columns of wo straight to LDS')
        self.srd(SRD_C, 12, 4 << 20)
        a(f's_lshl_b32 {sT0}, {sG}, 19')
        a(f's_lshr_b32 {sT1}, {sJ}, 2')
        a(f's_lshl_b32 {sT1}, {sT1}, 16')
        a(f's_add_u32 {sT0}, {sT0}, {sT1}')
        a(f's_and_b32 {sT1}, {sJ}, 3')
        a(f's_lshl_b32 {sT1}, {sT1}, 8')
        a(f's_add_u32 {sT0}, {sT0}, {sT1}')
        a(f's_and_b32 {sT2}, {sW}, 3')
        a(f's_lshl_b32 {sT1}, {sT2}, 6')
        a(f's_add_u32 {sT0}, {sT0}, {sT1}')
        a(f'v_lshrrev_b32 v{vT}, 2, v1')
        a(f'v_lshlrev_b32 v{vT}, 10, v{vT}')
        a(f'v_and_b32 v{vT+1}, 3, v1')
        a(f'v_lshlrev_b32 v{vT+1}, 4, v{vT+1}')
        a(f'v_add3_u32 v{vT}, v{vT}, v{vT+1}, {sT0}')
        a(f's_lshl_b32 {sT2}, {sT2}, 12')
        a(f's_add_u32 m0, {sT2}, {L_WO}')
        a('s_barrier', 'Z: the last V tile has been requested')
        for i in range(4):
            if i:
                a(f's_mov_b32 {sOFF}, {i*(16384-1024)}')
            a(f'buffer_load_dwordx4 v{vT}, {SRD_C}, {sOFF if i else 0} offen offset:{i*1024} nt lds')
        a('s_branch L_Z2')

    def far_store(self):
        self.lab('L_far')
        self.a(f'buffer_store_dword v60, v70, {SRD_WS}, 0 offen sc1')
        self.a('s_branch L_near')

    def helpers(self):
        a = self.a
        CPC = 32
        NCONS = 512 // CPC
        lg = int(math.log2(CPC))
        vLane = 1
        vT = 4
        vX = 16
        vA = 24
        vB = 32
        vCol, vTC = 40, 41
        vW = 112
        vTag, vTB = 2, 3
        self.lab('L_helper')
        a('s_waitcnt lgkmcnt(0)')
        self.stamp('_hstart')
        a(f's_load_dword {sTAG}, s[26:27], {hex(EPOCH)}')
        self.srd(SRD_WS, 26, 256 << 20)
        self.srd(SRD_X, 4, 1024)
        a(f's_cmp_ge_u32 {sW}, 6')
        a('s_cbranch_scc1 L_h23')
        self.c('---- projection tile: 128 rows x 64 columns; wave 4: wq, wave 5: w_gate / w_up ----')
        self.vm = []
        sRB, sCB, sPUB = 's60', 's61', 's3'
        a(f's_and_b32 {sRB}, {sJ}, 3')
        a(f's_lshr_b32 {sCB}, {sJ}, 2')
        a(f's_cmp_eq_u32 {sW}, 4')
        a('s_cbranch_scc0 L_h1_setup')
        a(f's_lshl_b32 {sPUB}, {sG}, 13')
        a(f's_lshl_b32 {sT0}, {sRB}, 11')
        a(f's_add_u32 {sPUB}, {sPUB}, {sT0}')
        a(f's_add_u32 {sPUB}, {sPUB}, {hex(QBOX)}')
        a('s_branch L_tile')
        self.lab('L_h1_setup')
        a(f's_cmp_ge_u32 {sJ}, 28')
        a('s_cbranch_scc1 L_h23')
        a(f's_lshl_b32 {sCB}, {sCB}, 3')
        a(f's_add_u32 {sCB}, {sCB}, {sG}')
        a(f's_sub_u32 {sT0}, {sCB}, 28')
        a(f's_cmp_ge_u32 {sCB}, 28')
        a(f's_cselect_b32 {sCB}, {sT0}, {sCB}')
        a(f's_cselect_b32 {sPUB}, {hex(4*7168)}, 0')
        a(f's_add_u32 {sPUB}, {sPUB}, {hex(HBOX)}')
        a(f's_mul_i32 {sT0}, {sRB}, 7168')
        a(f's_add_u32 {sPUB}, {sPUB}, {sT0}')
        self.lab('L_tile')
        a(f'v_lshlrev_b32 v{vT}, 4, v{vLane}')
        self.load('x16', f'buffer_load_dwordx4 v[{vX}:{vX+3}], v{vT}, {SRD_X}, 0 offen')
        a(f's_lshl_b32 {sT0}, {sCB}, 8')
        a(f's_add_u32 {sPUB}, {sPUB}, {sT0}')
        a(f'v_lshrrev_b32 v{vT+4}, 3, v{vLane}')
        a(f'v_lshlrev_b32 v{vT+1}, 4, v{vT+4}')
        a(f's_lshl_b32 {sT0}, {sRB}, 7')
        a(f'v_add_u32 v{vT+1}, {sT0}, v{vT+1}', 'first row of this lane')
        a(f's_sub_u32 {sT0}, {sW}, 4')
        a(f's_lshl_b32 {sT1}, {sT0}, 14')
        a(f'v_add_u32 v{vT+2}, {sT1}, v{vT}', 'LDS reader of the tile')
        a(f's_lshl_b32 {sT0}, {sT0}, 10')
        a(f'v_add_u32 v{vT}, {sT0}, v{vT}', 'LDS writer of xn')
        a(f'v_lshl_add_u32 v{vT+1}, v{vT+1}, 1, {sT0}', 'LDS reader of xn')
        self.c('column of this lane after the reduction: 8*(l&7) + (l>>3)')
        a(f'v_and_b32 v{vT+3}, 7, v{vLane}')
        a(f'v_lshlrev_b32 v{vT+3}, 5, v{vT+3}')
        a(f'v_lshl_add_u32 v{vCol}, v{vT+4}, 2, v{vT+3}')
        a(f'v_add_u32 v{vT+3}, {sPUB}, v{vCol}')
        a(f'v_and_b32 v{vT+4}, 3, v{vT+4}')
        a(f'v_lshlrev_b32 v{vT+4}, 3, v{vT+4}')
        a(f's_mov_b32 {sPLO}, 0x05040100')
        a(f's_mov_b32 {sPHI}, 0x07060302')
        self.c("layernorm with the reference's bf16 rounding points")
        self.wait('x16')
        self.stamp('_x16')
        for k in range(4):
            a(f'v_lshlrev_b32 v{vA+2*k}, 16, v{vX+k}')
            a(f'v_and_b32 v{vA+2*k+1}, 0xffff0000, v{vX+k}')
        m, s2, t = vT + 5, vT + 6, vT + 7
        a(f'v_add_f32 v{m}, v{vA}, v{vA+1}')
        for k in range(2, 8):
            a(f'v_add_f32 v{m}, v{m}, v{vA+k}')
        self.inrow_allreduce('v_add_f32', m, (8, 4, 2, 1))
        self.rows_allreduce('v_add_f32', m, t)
        a(f'v_mul_f32 v{m}, {hex(f2u(1/512.))}, v{m}')
        for k in range(8):
            a(f'v_sub_f32 v{vB+k}, v{vA+k}, v{m}')
        a(f'v_mul_f32 v{s2}, v{vB}, v{vB}')
        for k in range(1, 8):
            a(f'v_fmac_f32 v{s2}, v{vB+k}, v{vB+k}')
        self.inrow_allreduce('v_add_f32', s2, (8, 4, 2, 1))
        self.rows_allreduce('v_add_f32', s2, t)
        a(f'v_mul_f32 v{s2}, {hex(f2u(1/512.))}, v{s2}')
        self.bf16r(m, m)
        self.bf16r(s2, s2)
        a(f'v_add_f32 v{s2}, {hex(f2u(1e-5))}, v{s2}')
        self.bf16r(s2, s2)
        a(f'v_sqrt_f32 v{s2}, v{s2}')
        for k in range(8):
            a(f'v_sub_f32 v{vA+k}, v{vA+k}, v{m}')
        self.bf16r(s2, s2)
        a(f'v_rcp_f32 v{s2}, v{s2}')
        for k in range(4):
            a(f'v_cvt_pk_bf16_f32 v{vX+k}, v{vA+2*k}, v{vA+2*k+1}')
        for k in range(4):
            a(f'v_lshlrev_b32 v{vA+2*k}, 16, v{vX+k}')
            a(f'v_and_b32 v{vA+2*k+1}, 0xffff0000, v{vX+k}')
        for k in range(8):
            a(f'v_mul_f32 v{vA+k}, v{vA+k}, v{s2}')
        for k in range(4):
            a(f'v_cvt_pk_bf16_f32 v{vX+k}, v{vA+2*k}, v{vA+2*k+1}')
        a(f'ds_write_b128 v{vT}, v[{vX}:{vX+3}] offset:{L_XN}')
        a('s_waitcnt lgkmcnt(0)')
        a(f'ds_read_b128 v[{vX}:{vX+3}], v{vT+1} offset:{L_XN}')
        a(f'ds_read_b128 v[{vX+4}:{vX+7}], v{vT+1} offset:{L_XN+16}')
        self.make_tag()
        a(f'v_lshrrev_b32 v{vTC}, v{vT+4}, {sTAG}')
        a(f's_mov_b32 {sSEL}, 0x07060500')
        self.stamp('_ln')
        self.barrier('T')
        a(f's_cmp_eq_u32 {sW}, 4')
        a('s_cbranch_scc1 L_tile2')
        a('s_barrier', 'G (wave 5)')
        self.lab('L_tile2')
        for u in range(16):
            a(f'ds_read_b128 v[{vW+4*u}:{vW+4*u+3}], v{vT+2} offset:{L_TL+1024*u}')
        self.tile_dot(8, vW, vX, vA, vB, lambda p: a(f's_waitcnt lgkmcnt({min(15, 14-2*p)})'))
        a(f'v_perm_b32 v{vA+4}, v{vA+4}, v{vTC}, {sSEL}')
        self.stamp('tilepub')
        a(f's_cmp_eq_u32 {sW}, 4')
        a('s_cbranch_scc0 L_h1')
        self.c('The first stores leave the lines in this die\'s L2, enough for readers on the same die; they are repeated')
        self.c('with write-through when a reader turns out to run elsewhere or when the gather below keeps missing.')
        sXC, sNEAR, sN = 's11', 's10', 's9'
        vQ, vQA, vXW, vXA, vXR, vXG = vA + 4, vA + 5, vA + 6, vA + 7, vB, vB + 1
        a(f's_getreg_b32 {sXC}, hwreg(HW_REG_XCC_ID, 0, 4)')
        a(f's_and_b32 {sT0}, {sTAG}, 0xfffffff0')
        a(f's_or_b32 {sXC}, {sXC}, {sT0}', '28 tag bits and the die this workgroup runs on')
        a(f'v_mov_b32 v{vXW}, {sXC}')
        a(f'v_mov_b32 v{vQA}, v{vT+3}')
        a(f's_lshl_b32 {sT0}, {sG}, 12')
        a(f's_add_u32 {sT0}, {sT0}, {hex(XBOX)}')
        a(f'v_and_b32 v{vXR}, 31, v{vLane}')
        a(f's_lshl_b32 {sT1}, {sJ}, 7')
        a(f's_add_u32 {sT1}, {sT1}, {sT0}')
        a(f'v_lshl_add_u32 v{vXA}, v{vXR}, 2, {sT1}')
        a(f'v_lshl_add_u32 v{vXR}, v{vXR}, 7, {sT0}')
        near = [f'buffer_store_dword v{vQ}, v{vQA}, {SRD_WS}, 0 offen', f'buffer_store_dword v{vXW}, v{vXA}, {SRD_WS}, 0 offen']
        far = [x + ' sc1' for x in near]
        for x in near:
            a(x)

        self.c('---- wave 4: gather q, then the softmax statistics of the 32 splits ----')
        a(f's_mov_b32 {sSA}, 0x0c0c0400')
        a(f's_mov_b32 {sSB}, 0x04000c0c')
        a(f'v_mov_b32 v{vTag}, {sTAG}')
        a(f's_lshl_b32 {sT0}, {sG}, 13')
        a(f's_add_u32 {sT0}, {sT0}, {hex(QBOX)}')
        a(f'v_lshrrev_b32 v{vT}, 5, v{vLane}')
        a(f'v_and_b32 v{vT+1}, 31, v{vLane}')
        a(f'v_lshlrev_b32 v{vT+2}, 11, v{vT}')
        a(f'v_lshlrev_b32 v{vT+3}, 4, v{vT+1}')
        a(f'v_add3_u32 v{vT+2}, v{vT+2}, v{vT+3}, {sT0}')
        a(f's_movk_i32 {sT2}, 0x1000')
        self.c('LDS address: chunk*64 + idx*4, chunk = (l&31)>>1, idx = 2*(l&1) + (l>>5)')
        a(f'v_lshrrev_b32 v{vT+1}, 1, v{vT+1}')
        a(f'v_lshlrev_b32 v{vT+1}, 6, v{vT+1}')
        a(f'v_and_b32 v{vT+3}, 1, v{vLane}')
        a(f'v_lshlrev_b32 v{vT+3}, 3, v{vT+3}')
        a(f'v_lshl_add_u32 v{vT+1}, v{vT}, 2, v{vT+1}')
        a(f'v_add_u32 v{vT+1}, v{vT+1}, v{vT+3}')
        ql = [f'buffer_load_dwordx4 v[{vW+8*h+4*b}:{vW+8*h+4*b+3}], v{vT+2}, {SRD_WS}, {sT2 if b else 0} offen offset:{512*h} sc1'
              for h in range(4) for b in range(2)]
        a(f's_mov_b32 {sN}, {self.qtry}')
        ql = [f's_sub_u32 {sN}, {sN}, 1', f's_cmp_lg_u32 {sN}, 0', 's_cbranch_scc1 L_qtry'] + far + ['L_qtry:'] + ql
        ql.append(f'buffer_load_dword v{vXG}, v{vXR}, {SRD_WS}, 0 offen sc1')
        a('s_barrier', 'G')

        def chk_q():
            self.check_quads([vW + 4 * i for i in range(8)], vTag, vT + 4, vT + 5, vT + 6, cmp=False)
            a(f'v_xor_b32 v{vT+4}, {sTAG}, v{vXG}')
            a(f'v_lshrrev_b32 v{vT+4}, 4, v{vT+4}')
            a(f'v_or_b32 v{vT+6}, v{vT+6}, v{vT+4}')
            a(f'v_cmp_ne_u32 vcc, 0, v{vT+6}')
        self.poll(ql, chk_q)
        a(f'v_cmp_ne_u32 vcc, {sXC}, v{vXG}')
        a(f'v_mov_b32 v{vT+5}, {L_FL}')
        a('s_cmp_eq_u64 vcc, 0')
        a(f's_cselect_b32 {sNEAR}, 1, 0')
        a('s_cbranch_scc1 L_qnear')
        for x in far:
            a(x)
        self.lab('L_qnear')
        a(f'v_mov_b32 v{vT+4}, {sNEAR}')
        a(f'ds_write_b32 v{vT+5}, v{vT+4}', '1: hand-offs inside the group may stay in this L2')
        self.stamp('gotq')
        self.untag(range(vW, vW + 32))
        for h in range(4):
            for k in range(4):
                a(f'v_add_f32 v{vW+8*h+k}, v{vW+8*h+k}, v{vW+8*h+4+k}')
        for h in range(4):
            a(f'v_permlane32_swap_b32 v{vW+8*h}, v{vW+8*h+2}')
            a(f'v_permlane32_swap_b32 v{vW+8*h+1}, v{vW+8*h+3}')
        for h in range(4):
            a(f'v_add_f32 v{vW+8*h}, v{vW+8*h}, v{vW+8*h+2}')
            a(f'v_add_f32 v{vW+8*h+1}, v{vW+8*h+1}, v{vW+8*h+3}')
            a(f'v_cvt_pk_bf16_f32 v{vW+8*h}, v{vW+8*h}, v{vW+8*h+1}')
            a(f'ds_write_b32 v{vT+1}, v{vW+8*h} offset:{L_BQ+16*h}')
        self.barrier('A')
        a(f'v_and_b32 v{vT}, 3, v{vLane}')
        a(f'v_lshlrev_b32 v{vT}, 4, v{vT}')
        a(f's_lshl_b32 {sT2}, {sG}, 11')
        a(f's_add_u32 {sT2}, {sT2}, {hex(MLBOX)}')
        a(f's_lshl_b32 {sT1}, {sJ}, 4')
        a(f's_add_u32 {sT0}, {sT2}, {sT1}')
        a(f'v_lshl_add_u32 v{vT+1}, v{vT}, 5, {sT0}', 'publish: h*512 + j*16')
        a(f's_lshr_b32 {sT1}, {sJ}, 3')
        a(f's_lshl_b32 {sT1}, {sT1}, 9')
        a(f's_add_u32 {sT0}, {sT2}, {sT1}')
        a(f'v_and_b32 v{vT+2}, 31, v{vLane}')
        a(f'v_lshlrev_b32 v{vT+3}, 2, v{vT+2}', 'LDS address of weight l&31')
        a(f'v_lshl_add_u32 v{vT+2}, v{vT+2}, 4, {sT0}', 'gather: head j>>3, split l&31')
        a(f'v_mov_b32 v{vX+2}, {sTAG}')
        a(f'v_mov_b32 v{vX+3}, {sTAG}')
        a(f's_mov_b32 {sC}, {hex(f2u(math.log2(math.e)))}')
        a('s_barrier', 'B')
        a(f'ds_read_b128 v[{vA}:{vA+3}], v{vT} offset:{L_MB}')
        a('s_waitcnt lgkmcnt(0)')
        a(f'v_max3_f32 v{vX}, v{vA}, v{vA+1}, v{vA+2}')
        a(f'v_max_f32 v{vX}, v{vX}, v{vA+3}')
        a('s_barrier', 'C')
        a(f'ds_read_b128 v[{vA}:{vA+3}], v{vT} offset:{L_LB}')
        a('s_waitcnt lgkmcnt(0)')
        a(f'v_add_f32 v{vA}, v{vA}, v{vA+2}')
        a(f'v_add_f32 v{vA+1}, v{vA+1}, v{vA+3}')
        a(f'v_add_f32 v{vX+1}, v{vA}, v{vA+1}')
        a('s_mov_b64 exec, 0xf')
        a(f's_cmp_eq_u32 {sNEAR}, 1')
        a('s_cbranch_scc1 L_mlnear')
        a(f'buffer_store_dwordx4 v[{vX}:{vX+3}], v{vT+1}, {SRD_WS}, 0 offen sc1')
        a('s_branch L_mlfar')
        self.lab('L_mlnear')
        a(f'buffer_store_dwordx4 v[{vX}:{vX+3}], v{vT+1}, {SRD_WS}, 0 offen')
        self.lab('L_mlfar')
        a('s_mov_b64 exec, -1')
        a('s_barrier', 'M')

        def chk_ml():
            a(f'v_xor_b32 v{vT+4}, {sTAG}, v{vB+2}')
            a(f'v_xor_b32 v{vT+5}, {sTAG}, v{vB+3}')
            a(f'v_or_b32 v{vT+4}, v{vT+4}, v{vT+5}')
            a(f'v_cmp_ne_u32 vcc, 0, v{vT+4}')
        self.poll([f'buffer_load_dwordx4 v[{vB}:{vB+3}], v{vT+2}, {SRD_WS}, 0 offen sc1'], chk_ml)
        mx, y, t = vT + 4, vT + 5, vT + 6
        a(f'v_mov_b32 v{mx}, v{vB}')
        self.inrow_allreduce('v_max_f32', mx, (8, 4, 2, 1))
        self.rows_allreduce('v_max_f32', mx, t, do32=False)
        a(f'v_sub_f32 v{mx}, v{vB}, v{mx}')
        a(f'v_mul_f32 v{mx}, {sC}, v{mx}')
        a(f'v_exp_f32 v{mx}, v{mx}')
        a('s_nop 0')
        a(f'v_mul_f32 v{y}, v{mx}, v{vB+1}')
        self.inrow_allreduce('v_add_f32', y, (8, 4, 2, 1))
        self.rows_allreduce('v_add_f32', y, t, do32=False)
        a(f'v_rcp_f32 v{y}, v{y}')
        a('s_nop 0')
        a(f'v_mul_f32 v{mx}, v{mx}, v{y}')
        a(f'ds_write_b32 v{vT+3}, v{mx} offset:{L_WB}')
        self.stamp('mlw')
        a('s_waitcnt lgkmcnt(0)')
        a('s_branch L_Z')

        self.c('---- wave 5: hidden values and one 64 x 64 tile of the down projection ----')
        self.lab('L_h1')
        a(f'buffer_store_dword v{vA+4}, v{vT+3}, {SRD_WS}, 0 offen sc1')
        self.srd(SRD_B, 20, 1792 * 1024)
        sFI, sRD, sCD = 's8', 's9', 's10'
        a(f's_mul_i32 {sFI}, {sG}, 28')
        a(f's_add_u32 {sFI}, {sFI}, {sJ}')
        a(f's_lshr_b32 {sRD}, {sFI}, 3')
        a(f's_and_b32 {sCD}, {sFI}, 7')
        a(f's_lshl_b32 {sT0}, {sRD}, 16')
        a(f's_lshl_b32 {sT1}, {sCD}, 7')
        a(f's_add_u32 {sT0}, {sT0}, {sT1}')
        a(f'v_lshrrev_b32 v{vT+2}, 3, v{vLane}')
        a(f'v_lshlrev_b32 v{vT}, 13, v{vT+2}')
        a(f'v_lshlrev_b32 v{vT+2}, 4, v{vT+2}', 'LDS reader of h')
        a(f'v_and_b32 v{vT+1}, 7, v{vLane}')
        a(f'v_lshlrev_b32 v{vT+1}, 4, v{vT+1}')
        a(f'v_add3_u32 v{vT}, v{vT}, v{vT+1}, {sT0}')
        a(f's_movk_i32 {sT2}, 0x1000')
        for e in range(8):
            a(f'buffer_load_dwordx4 v[{vW+4*e}:{vW+4*e+3}], v{vT}, {SRD_B}, {sT2 if e >= 4 else 0} offen offset:{(e & 3)*1024} nt')
        a(f's_lshl_b32 {sT0}, {sRD}, 8')
        a(f's_add_u32 {sT0}, {sT0}, {hex(HBOX)}')
        a(f'v_lshl_add_u32 v{vT+1}, v{vLane}, 2, {sT0}', 'hidden unit 64*rd + lane')
        a(f'v_and_b32 v{vT+3}, 3, v{vLane}')
        a(f'v_lshlrev_b32 v{vT+3}, 3, v{vT+3}')
        a(f'v_lshrrev_b32 v{vTB}, v{vT+3}, {sTAG}')
        a(f'v_lshlrev_b32 v{vT+3}, 1, v{vLane}', 'LDS writer of h')
        a(f's_lshl_b32 {sT0}, {sCD}, 13')
        a(f's_lshl_b32 {sT1}, {sRD}, 8')
        a(f's_add_u32 {sT0}, {sT0}, {sT1}')
        a(f's_add_u32 {sT0}, {sT0}, {hex(FBOX)}')
        a(f'v_add_u32 v{vCol}, {sT0}, v{vCol}')
        for b in 'ABC':
            a('s_barrier', b)
        hl = []
        for k in range(8):
            if k:
                hl.append(f's_movk_i32 {sT2}, {k*7168 - (0 if k < 4 else 0x7000)}')
            if k == 4:
                hl.append(f'v_add_u32 v{vT+4}, 0x7000, v{vT+1}')
            hl.append(f'buffer_load_dword v{vB+k}, v{vT+1 if k < 4 else vT+4}, {SRD_WS}, {sT2 if k else 0} offen sc1')

        def chk_h():
            a(f'v_xor_b32 v{vT+4}, v{vB}, v{vTB}')
            for k in range(1, 8):
                a(f'v_bitop3_b32 v{vT+4}, v{vB+k}, v{vTB}, v{vT+4} bitop3:0xbe')
            a(f'v_and_b32 v{vT+4}, 0xff, v{vT+4}')
            a(f'v_cmp_ne_u32 vcc, 0, v{vT+4}')
        self.poll(hl, chk_h)
        self.untag(range(vB, vB + 8))
        for b in (vB, vB + 4):
            a(f'v_add_f32 v{b}, v{b}, v{b+1}')
            a(f'v_add_f32 v{b+2}, v{b+2}, v{b+3}')
            a(f'v_add_f32 v{b}, v{b}, v{b+2}')
            self.bf16r(b, b)
        self.silu_bf16(vB + 1, vB, vB + 2)
        a(f'v_mul_f32 v{vB+1}, v{vB+1}, v{vB+4}')
        a(f'v_cvt_pk_bf16_f32 v{vB+1}, v{vB+1}, v{vB+1}')
        a(f'ds_write_b16 v{vT+3}, v{vB+1} offset:{L_HB}')
        a('s_waitcnt lgkmcnt(0)')
        a(f'ds_read_b128 v[{vX}:{vX+3}], v{vT+2} offset:{L_HB}')
        a('s_waitcnt lgkmcnt(0)')
        self.tile_dot(4, vW, vX, vA, vB, lambda p: None)
        a(f'v_perm_b32 v{vA+4}, v{vA+4}, v{vTC}, {sSEL}')
        a(f'buffer_store_dword v{vA+4}, v{vCol}, {SRD_WS}, 0 offen sc1')
        self.stamp('fpub')
        a('s_barrier', 'M')
        a('s_branch L_Z')

        self.c('---- waves 6, 7 (and wave 5 without a tile); wave 6 of a final consumer sums the FFN output ----')
        self.lab('L_h23')
        a('s_waitcnt lgkmcnt(0)')
        self.make_tag()
        a(f's_cmp_eq_u32 {sW}, 7')
        a('s_cbranch_scc1 L_h3')
        for b in 'TGABCM':
            a('s_barrier', b)
        a(f's_cmp_lg_u32 {sW}, 6')
        a('s_cbranch_scc1 L_Z')
        a(f's_cmp_ge_u32 s2, {NCONS}')
        a('s_cbranch_scc1 L_Z')
        lpp = CPC // 4
        ppl = 64 // lpp
        nl = -(-28 // ppl)
        last = (28 - (nl - 1) * ppl) * lpp
        a(f'v_mov_b32 v{vTag}, {sTAG}')
        a(f's_mov_b32 {sSA}, 0x0c0c0400')
        a(f's_mov_b32 {sSB}, 0x04000c0c')
        a(f's_lshr_b32 {sT0}, s2, {6-lg}')
        a(f's_lshl_b32 {sT0}, {sT0}, 13')
        a(f's_and_b32 {sT1}, s2, {64//CPC - 1}')
        a(f's_lshl_b32 {sT1}, {sT1}, {lg+2}')
        a(f's_add_u32 {sT0}, {sT0}, {sT1}')
        a(f's_add_u32 {sT0}, {sT0}, {hex(FBOX)}')
        a(f'v_and_b32 v{vT+1}, {lpp-1}, v{vLane}')
        a(f'v_lshlrev_b32 v{vT+2}, 4, v{vT+1}')
        a(f'v_lshrrev_b32 v{vT}, {lg-2}, v{vLane}')
        a(f'v_lshlrev_b32 v{vT}, 8, v{vT}')
        a(f'v_add3_u32 v{vT}, v{vT}, v{vT+2}, {sT0}')
        self.c('column of this lane after the reduction: 4*(l % lpp) + (l >> 4)')
        a(f'v_lshrrev_b32 v{vT+2}, 4, v{vLane}')
        a(f'v_lshl_add_u32 v{vT+1}, v{vT+1}, 2, v{vT+2}')
        a(f's_lshl_b32 {sT0}, s2, {lg+1}')
        a(f'v_lshl_add_u32 v{vT+2}, v{vT+1}, 1, {sT0}')
        a(f'v_lshlrev_b32 v{vT+1}, 2, v{vT+1}')
        a(f'buffer_load_short_d16_hi v{vT+3}, v{vT+2}, {SRD_X}, 0 offen')
        for k in range(4):
            a(f'v_bfe_u32 v{vW+4*(nl-1)+k}, v{vTag}, {8*k}, 8')
        fl = []
        for u in range(nl):
            off = u * ppl * 256
            if u == nl - 1 and last < 64:
                fl.append(f's_mov_b32 exec_lo, {hex(((1 << last) - 1) & 0xffffffff)}')
                fl.append(f's_mov_b32 exec_hi, {hex(((1 << last) - 1) >> 32)}')
            if off >= 4096:
                fl.append(f's_movk_i32 {sT2}, {hex(off & ~4095)}')
            fl.append(f'buffer_load_dwordx4 v[{vW+4*u}:{vW+4*u+3}], v{vT}, {SRD_WS}, {sT2 if off >= 4096 else 0} offen offset:{off & 4095} sc1')
        fl.append('s_mov_b64 exec, -1')
        self.poll(fl, lambda: self.check_quads([vW + 4 * u for u in range(nl)], vTag, vT + 4, vT + 5, vT + 6))
        self.untag(range(vW, vW + 4 * nl))
        for u in range(1, nl):
            for k in range(4):
                a(f'v_add_f32 v{vW+k}, v{vW+k}, v{vW+4*u+k}')
        self.quad_reduce(vW, lpp)
        self.bf16r(vW, vW)
        self.silu_bf16(vT + 4, vW, vT + 5)
        a(f'ds_write_b32 v{vT+1}, v{vT+4} offset:{L_GB}')
        a(f'ds_write_b32 v{vT+1}, v{vT+3} offset:{L_XB}')
        a(f'v_mov_b32 v{vT+4}, {L_CT}')
        a(f'v_mov_b32 v{vT+5}, 0')
        a(f'ds_write_b32 v{vT+4}, v{vT+5}')
        a('s_branch L_Z')
        self.c('wave 7: arrival order inside the group at a few marks of the stream (a hint: it only sets the prefetch depth)')
        self.lab('L_h3')
        a(f'v_mov_b32 v{vT}, {L_AD}')
        a(f'v_mov_b32 v{vT+1}, 0')
        a(f'ds_write_b32 v{vT}, v{vT+1}')
        a(f's_lshl_b32 {sT1}, {sG}, 7')
        a(f's_add_u32 {sT1}, {sT1}, {hex(RBOX)}')
        a(f'v_and_b32 v{vT+2}, 31, v1')
        a(f'v_lshl_add_u32 v{vT+2}, v{vT+2}, 2, {sT1}')
        a(f's_lshl_b32 {sT0}, {sJ}, 2')
        a(f's_add_u32 {sT1}, {sT1}, {sT0}')
        a(f'v_mov_b32 v{vT+3}, {sT1}')
        a(f'v_mov_b32 v{vT+4}, {sTAG}')
        a('s_waitcnt lgkmcnt(0)')
        k = 0
        for b in 'TGABCM':
            a('s_barrier', b)
            if b in 'GACM':
                a('s_mov_b64 exec, 1')
                a(f'buffer_store_dword v{vT+4}, v{vT+3}, {SRD_WS}, 0 offen offset:{1024*k}')
                a('s_mov_b64 exec, -1')
                a(f'buffer_load_dword v{vT+5}, v{vT+2}, {SRD_WS}, 0 offen offset:{1024*k} sc1')
                a('s_waitcnt vmcnt(0)')
                a(f'v_cmp_eq_u32 vcc, v{vT+4}, v{vT+5}')
                a(f's_bcnt1_i32_b32 {sT0}, vcc_lo')
                a(f's_cmp_gt_u32 {sT0}, {self.late}')
                a(f's_cselect_b32 {sT1}, 1, 0')
                a(f'v_mov_b32 v{vT+1}, {sT1}')
                a(f'ds_write_b32 v{vT}, v{vT+1}')
                k += 1
        a('s_branch L_Z')


def gen(**kw):
    g = G(**kw)
    s = g.gen()
    return s, g.stamp_names


if __name__ == '__main__':
    kw = eval('dict(' + (sys.argv[2] if len(sys.argv) > 2 else '') + ')')
    s, _ = gen(**kw)
    open(sys.argv[1], 'w').write(s)
```

```python
import math, struct, sys

NAME = 'recurrent_scan__gqa_block_cached__swiglu_ffn__decode_kernel'

HEADER = """; Kernarg layout for this problem (96 bytes, ptrs only, base s[0:1]):
;
"""


def f2u(x):
    return struct.unpack('<I', struct.pack('<f', x))[0]


QBOX  = 0x000000
HBOX  = 0x010000
MLBOX = 0x020000
RBOX  = 0x024000
XBOX  = 0x028000
FBOX  = 0x030000
SBOX  = 0x040000
OBOX  = 0x060000
EPOCH = 0x0e0000
STAMP = 0x800000

L_BQ = 0
L_XN = 1024
L_MB = 3072
L_LB = 3200
L_WB = 3312
L_GB = 3440
L_XB = 3568
L_O2 = 3696
L_S2 = 4208
L_CT = 5236
L_AD = 5240
L_FL = 5244
L_HB = 5248
L_A  = 1024
L_OB = 5376
L_WO = 5376 + 16384
L_TL = 5376
LDS_BYTES = L_TL + 2 * 16384

SRD_A, SRD_B, SRD_X, SRD_C, SRD_OUT, SRD_WS = [f's[{b}:{b+3}]' for b in range(28, 52, 4)]
sG, sJ, sW, sTAG, sOFF, sT0, sT1, sT2, sPLO, sPHI, sC, sCNT = [f's{i}' for i in range(52, 64)]
sL2E, sSEL, sSA, sSB, sLOC = 's3', 's64', 's65', 's66', 's67'
STAMP_BASE = 68
NVGPR = 256
RING = 44
RING0 = NVGPR - 4 * RING


class G:
    def __init__(self, Ds=((0, 7), (16, 5), (110, 8)), kfirst=1, nT=12, nG=24, nA=44, nM=44, nZ=64, late=26, pol='sc1 nt', wpol='sc1 nt', Xs=((0, 1),), pick=6,
                 qtry=4, spin=200000, stamps=False):
        self.__dict__.update(locals())
        self.L = []
        self.vm = []
        self.nlab = 0
        self.stamp_names = []

    def a(self, s, note=None):
        self.L.append('    ' + s + (f'    ; {note}' if note else ''))

    def c(self, text):
        for line in text.split('\n'):
            self.L.append('    ; ' + line)

    def lab(self, s):
        self.L.append(s + ':')

    def newlab(self, p):
        self.nlab += 1
        return f'L_{p}_{self.nlab}'

    def load(self, name, text):
        self.a(text)
        self.vm.append(name)

    def wait(self, name):
        n = len(self.vm) - 1 - self.vm.index(name)
        assert n <= 63
        self.a(f's_waitcnt vmcnt({n})')

    def stamp(self, name):
        if not self.stamps:
            return
        if self.stamps is True:
            if name.startswith('_'):
                return
        elif name not in self.stamps and name not in ('start', 'end'):
            return
        i = len(self.stamp_names)
        assert STAMP_BASE + 2 * i + 1 <= 101
        self.a(f's_memrealtime s[{STAMP_BASE+2*i}:{STAMP_BASE+2*i+1}]')
        self.stamp_names.append(name)

    def dpp(self, op, d, s0, s1, ctl, bank=0xf):
        self.a(f'{op}_dpp v{d}, v{s0}, v{s1} {ctl} row_mask:0xf bank_mask:{hex(bank)}')

    def rows_allreduce(self, op, v, t, do16=True, do32=True):
        if do16:
            self.a(f'v_mov_b32 v{t}, v{v}')
            self.a('s_nop 1')
            self.a(f'v_permlane16_swap_b32 v{v}, v{t}')
            self.a(f'{op} v{v}, v{v}, v{t}')
        if do32:
            self.a(f'v_mov_b32 v{t}, v{v}')
            self.a('s_nop 1')
            self.a(f'v_permlane32_swap_b32 v{v}, v{t}')
            self.a(f'{op} v{v}, v{v}, v{t}')

    def inrow_allreduce(self, op, v, rots):
        for r in rots:
            self.a('s_nop 1')
            self.dpp(op, v, v, v, f'row_ror:{r}')

    def bf16r(self, d, s):
        self.a(f'v_cvt_pk_bf16_f32 v{d}, v{s}, v{s}')
        self.a(f'v_and_b32 v{d}, 0xffff0000, v{d}')

    def sum8(self, d, b):
        for k in range(4):
            self.a(f'v_add_f32 v{b+k}, v{b+k}, v{b+4+k}')
        self.a(f'v_add_f32 v{b}, v{b}, v{b+2}')
        self.a(f'v_add_f32 v{b+1}, v{b+1}, v{b+3}')
        self.a(f'v_add_f32 v{d}, v{b}, v{b+1}')

    def max8(self, d, b, t):
        self.a(f'v_max3_f32 v{d}, v{b}, v{b+1}, v{b+2}')
        self.a(f'v_max3_f32 v{t}, v{b+3}, v{b+4}, v{b+5}')
        self.a(f'v_max3_f32 v{d}, v{d}, v{b+6}, v{b+7}')
        self.a(f'v_max_f32 v{d}, v{d}, v{t}')

    def silu_bf16(self, d, x, t):
        self.a(f'v_mul_f32 v{t}, {hex(f2u(math.log2(math.e)))}, v{x}')
        self.a(f'v_exp_f32 v{t}, -v{t}')
        self.a('s_nop 0')
        self.a(f'v_add_f32 v{t}, 1.0, v{t}')
        self.a(f'v_rcp_f32 v{t}, v{t}')
        self.a('s_nop 0')
        self.a(f'v_mul_f32 v{t}, v{x}, v{t}')
        self.bf16r(d, t)

    def make_tag(self):
        self.a(f's_and_b32 {sT0}, {sTAG}, 0x7f7f7f7f')
        self.a(f's_add_u32 {sT0}, {sT0}, 0x47611b35')
        self.a(f's_and_b32 {sTAG}, {sTAG}, 0x80808080')
        self.a(f's_xor_b32 {sTAG}, {sTAG}, {sT0}')

    def untag(self, regs):
        for r in regs:
            self.a(f'v_and_b32 v{r}, 0xffffff00, v{r}')

    def check_quads(self, quads, vtag, t0, t1, t2, cmp=True):
        for i, q in enumerate(quads):
            self.a(f'v_perm_b32 v{t0}, v{q+1}, v{q}, {sSA}')
            self.a(f'v_perm_b32 v{t1}, v{q+3}, v{q+2}, {sSB}')
            if i == 0:
                self.a(f'v_bitop3_b32 v{t2}, v{t0}, v{t1}, v{vtag} bitop3:0x56')
            else:
                self.a(f'v_bitop3_b32 v{t0}, v{t0}, v{t1}, v{vtag} bitop3:0x56')
                self.a(f'v_or_b32 v{t2}, v{t2}, v{t0}')
        if cmp:
            self.a(f'v_cmp_ne_u32 vcc, 0, v{t2}')

    def poll(self, loads, check, first_issued=False):
        again, done = self.newlab('again'), self.newlab('done')
        self.a(f's_mov_b32 {sCNT}, {self.spin}')
        if first_issued:
            check()
            self.a(f's_cbranch_vccz {done}')
        self.lab(again)
        for x in loads:
            self.lab(x[:-1]) if x.endswith(':') else self.a(x)
        self.a(f's_sub_u32 {sCNT}, {sCNT}, 1')
        self.a('s_waitcnt vmcnt(0)')
        self.a(f's_cbranch_scc1 {done}')
        check()
        self.a(f's_cbranch_vccnz {again}')
        self.lab(done)

    def quad_reduce(self, v, lpp):
        self.a('s_nop 1')
        self.a(f'v_permlane32_swap_b32 v{v}, v{v+2}')
        self.a(f'v_permlane32_swap_b32 v{v+1}, v{v+3}')
        self.a(f'v_add_f32 v{v}, v{v}, v{v+2}')
        self.a(f'v_add_f32 v{v+1}, v{v+1}, v{v+3}')
        self.a('s_nop 1')
        self.a(f'v_permlane16_swap_b32 v{v}, v{v+1}')
        self.a(f'v_add_f32 v{v}, v{v}, v{v+1}')
        self.inrow_allreduce('v_add_f32', v, [r for r in (8, 4, 2) if r >= lpp])

    def tile_dot(self, npairs, vW, vX, vA, vB, waitp):
        a = self.a
        for p in range(npairs):
            waitp(p)
            w0, w1 = vW + 8 * p, vW + 8 * p + 4
            for e in range(8):
                a(f'v_perm_b32 v{vB+e}, v{w1+(e>>1)}, v{w0+(e>>1)}, {sPHI if e & 1 else sPLO}')
            for e in range(8):
                a(f'v_dot2_f32_bf16 v{vA+e}, v{vB+e}, v{vX+p}, {"0" if p == 0 else f"v{vA+e}"}')
        a('s_nop 2')
        for e in range(4):
            a(f'v_permlane32_swap_b32 v{vA+e}, v{vA+e+4}')
        for e in range(4):
            a(f'v_add_f32 v{vA+e}, v{vA+e}, v{vA+e+4}')
        a('s_nop 0')
        for e in range(2):
            a(f'v_permlane16_swap_b32 v{vA+e}, v{vA+e+2}')
        for e in range(2):
            a(f'v_add_f32 v{vA+e}, v{vA+e}, v{vA+e+2}')
        a('s_nop 0')
        self.dpp('v_add_f32', vA + 4, vA, vA, 'row_ror:8', 0x3)
        a('s_nop 1')
        self.dpp('v_add_f32', vA + 4, vA + 1, vA + 1, 'row_ror:8', 0xc)

    def srd(self, srd, p, nbytes):
        b = int(srd[2:srd.index(':')])
        self.a(f's_mov_b64 s[{b}:{b+1}], s[{p}:{p+1}]')
        self.a(f's_mov_b32 s{b+2}, {hex(nbytes)}')
        self.a(f's_mov_b32 s{b+3}, 0x20000')

    def barrier(self, note):
        self.a('s_waitcnt lgkmcnt(0)')
        self.a('s_barrier', note)

    def slot(self, n):
        return RING0 + 4 * (n % RING)

    def depth(self, m):
        return [d for f, d in self.Ds if m >= f][-1]

    def need(self, name):
        k = self.seq.index(name)
        assert k < self.m, name
        if k > self.landed:
            self.wait(name)
            self.landed = k

    def has(self, name):
        return self.seq.index(name) <= self.landed

    def step(self):
        if self.m >= len(self.seq):
            return
        k = self.m - self.depth(self.m)
        if self.adapting:
            k2 = k - [d for f, d in self.Xs if self.m >= f][-1]
            if k2 > self.landed:
                self.wait(self.seq[k2])
                self.landed = k2
            if k > self.landed:
                skip = self.newlab('deep')
                self.a(f's_cbranch_vccnz {skip}')
                self.wait(self.seq[k])
                self.lab(skip)
        elif k > self.landed:
            self.wait(self.seq[k])
            self.landed = k
        if self.m in self.picks:
            self.a(f'ds_read_b32 v78, v79')
        if self.m - 1 in self.picks:
            self.a('s_waitcnt lgkmcnt(0)')
            self.a('v_cmp_ne_u32 vcc, 0, v78', 'vcc: this workgroup is late, keep one more load in flight')
            self.adapting = True
        name = self.seq[self.m]
        kind, i = name[0], int(name[1:])
        if kind in 'KV':
            n = i + (64 if kind == 'V' else 0)
            old = n - RING
            assert old < 0 or (old < 64 and old < 4 * self.beta) or (old >= 64 and old - 64 < 4 * self.tau), name
            r = self.slot(n)
            srd, vo, off, dst, tailtxt = (SRD_A if kind == 'K' else SRD_B), (2 if kind == 'K' else 3), i * 4096, f'v[{r}:{r+3}], ', self.pol
        else:
            if i == 0:
                self.tile_setup(kind)
            srd, vo = (SRD_X, 76) if kind == 'Q' else (SRD_C, 77)
            off, dst, tailtxt = i * ((8192 if kind == 'Q' else 3584) - 1024), '', f'offset:{i*1024} {self.wpol} lds'
        so = '0'
        if off:
            self.a(f's_mov_b32 {sOFF}, {hex(off)}')
            so = sOFF
        self.load(name, f'buffer_load_dwordx4 {dst}v{vo}, {srd}, {so} offen {tailtxt}')
        self.stamp('_' + name)
        self.m += 1

    def steps_until(self, name):
        while self.seq[self.m] != name:
            self.step()

    def tile_setup(self, kind):
        a, vT = self.a, 60
        if kind == 'Q':
            self.srd(SRD_X, 10, 4 << 20)
            a(f's_and_b32 {sT0}, {sJ}, 3')
            a(f's_lshl_b32 {sT0}, {sT0}, 7')
            a(f's_lshl_b32 {sT1}, {sW}, 2')
            a(f's_add_u32 {sT0}, {sT0}, {sT1}')
            a(f'v_lshrrev_b32 v{vT}, 3, v1')
            a(f'v_lshl_add_u32 v{vT}, v{vT}, 4, {sT0}', 'row = 128*rb + 16*(l>>3) + 4w')
            a(f'v_and_b32 v{vT+1}, 7, v1')
            a(f'v_lshlrev_b32 v{vT+1}, 4, v{vT+1}')
            a(f's_lshr_b32 {sT2}, {sJ}, 2')
            a(f's_lshl_b32 {sT0}, {sG}, 10')
            a(f's_lshl_b32 {sT1}, {sT2}, 7')
            a(f's_add_u32 {sT0}, {sT0}, {sT1}')
            a(f'v_lshlrev_b32 v76, 13, v{vT}')
            a(f'v_add3_u32 v76, v76, v{vT+1}, {sT0}')
            a(f's_lshl_b32 {sT1}, {sW}, 12')
            a(f's_add_u32 m0, {sT1}, {L_TL}')
            a('s_nop 0')
        else:
            a(f's_lshl_b32 {sT2}, {sT2}, 3')
            a(f's_add_u32 {sT2}, {sT2}, {sG}')
            a(f's_sub_u32 {sT0}, {sT2}, 28')
            a(f's_cmp_ge_u32 {sT2}, 28')
            a(f's_cselect_b32 {sT2}, {sT0}, {sT2}')
            a('s_cselect_b64 s[40:41], s[18:19], s[16:17]')
            a(f's_mov_b32 s42, {hex(512*3584)}')
            a('s_mov_b32 s43, 0x20000')
            a(f's_lshl_b32 {sT2}, {sT2}, 7')
            a(f's_cmp_ge_u32 {sJ}, 28')
            a(f's_cselect_b32 {sT2}, 0x10000000, {sT2}', 'no FFN tile: out of range, nothing is fetched')
            a(f's_add_u32 m0, {sT1}, {L_TL + 16384}')
            a(f'v_mul_u32_u24 v77, 3584, v{vT}')
            a(f'v_add3_u32 v77, v77, v{vT+1}, {sT2}')

    def qk_batch(self):
        beta = self.beta
        half, t = beta >> 2, beta & 3
        Dr, P0, Bq = 36, 4, 52
        self.need(f'K{4*beta+3}')
        self.beta += 1
        self.c(f'scores of K tiles {4*beta}..{4*beta+3}: the valid quarter of each product, summed into bank {t}')
        for gam in range(4):
            r = self.slot(4 * beta + gam)
            self.a(f'v_mfma_f32_16x16x32_bf16 v[{Dr+4*gam}:{Dr+4*gam+3}], v[{r}:{r+3}], v[{Bq}:{Bq+3}], 0')
        self.a('s_nop 5')
        for k in (1, 2, 3):
            for gam in range(4):
                P = P0 + 4 * half + gam
                d = Dr + 4 * gam
                self.dpp('v_add_f32', P, d + ((t + k) & 3), d + t if k == 1 else P, f'row_ror:{16-4*k}', 1 << t)

    def pv_group(self):
        tau = self.tau
        B = 36
        self.tau += 1
        self.c(f'P.V of V tiles {4*tau}..{4*tau+3}')
        for pair in range(2):
            v0 = self.slot(64 + 4 * tau + 2 * pair)
            v1 = self.slot(64 + 4 * tau + 2 * pair + 1)
            self.need(f'V{4*tau+2*pair+1}')
            for e in range(8):
                self.a(f'v_perm_b32 v{B+2*e+pair}, v{v1+(e>>1)}, v{v0+(e>>1)}, {sPHI if e & 1 else sPLO}')
        PA = 52 + 2 * (tau >> 2)
        for e in range(8):
            ac = 4 + 4 * e
            c = '0' if tau == 0 else f'v[{ac}:{ac+3}]'
            self.a(f'v_mfma_f32_4x4x4_16b_bf16 v[{ac}:{ac+3}], v[{PA}:{PA+1}], v[{B+2*e}:{B+2*e+1}], {c} cbsz:2 abid:{tau & 3}')

    def gen(self):
        a = self.a
        self.L.append(f'; @launch grid=(256,1,1) block=(512,1,1) lds={LDS_BYTES}')
        self.L.append('.amdgcn_target "amdgcn-amd-amdhsa--gfx950"')
        self.L.append('.text')
        self.L.append(f'.globl {NAME}')
        self.L.append('.p2align 8')
        self.L.append(f'.type {NAME},@function')
        self.lab(NAME)
        a('s_load_dwordx16 s[4:19], s[0:1], 0')
        a('s_load_dwordx8 s[20:27], s[0:1], 64')
        if self.stamps:
            for i in range(STAMP_BASE, 102, 2):
                a(f's_mov_b64 s[{i}:{i+1}], 0')
            self.stamp('start')
        a('s_cmp_ge_u32 s2, 0x100')
        a('s_cbranch_scc1 L_end')
        a('v_lshrrev_b32 v4, 6, v0')
        a('v_and_b32 v1, 63, v0')
        a(f'v_readfirstlane_b32 {sW}, v4')
        a(f's_and_b32 {sG}, s2, 7')
        a(f's_lshr_b32 {sJ}, s2, 3')
        a(f's_cmp_ge_u32 {sW}, 4')
        a('s_cbranch_scc1 L_helper')
        self.stream_wave()
        self.tail()
        self.far_store()
        self.helper_join()
        self.helpers()
        self.lab('L_exit0')
        if self.stamps:
            a('s_mov_b64 exec, -1')
        self.lab('L_exit')
        if self.stamps:
            self.stamp('end')
            a('s_waitcnt lgkmcnt(0)')
            a('v_mov_b32 v4, 0')
            for i in range(len(self.stamp_names)):
                a(f'v_writelane_b32 v4, s{STAMP_BASE+2*i}, {i}')
            a(f's_getreg_b32 {sT1}, hwreg(HW_REG_XCC_ID)')
            a(f'v_writelane_b32 v4, {sT1}, 63')
            a(f's_getreg_b32 {sT1}, hwreg(HW_REG_HW_ID)')
            a(f'v_writelane_b32 v4, {sT1}, 62')
            a(f's_lshl_b32 {sT0}, s2, 3')
            a(f's_add_u32 {sT0}, {sT0}, {sW}')
            a(f's_lshl_b32 {sT0}, {sT0}, 8')
            a(f's_add_u32 {sT0}, {sT0}, {hex(STAMP)}')
            a(f'v_lshl_add_u32 v5, v1, 2, {sT0}')
            a(f'buffer_store_dword v4, v5, {SRD_WS}, 0 offen')
        self.lab('L_end')
        a('s_endpgm')
        self.L += ['.section .rodata,"a"', '.p2align 6', f'.amdhsa_kernel {NAME}',
                   f'  .amdhsa_next_free_vgpr {NVGPR}', '  .amdhsa_next_free_sgpr 102', f'  .amdhsa_accum_offset {NVGPR}',
                   '  .amdhsa_group_segment_fixed_size 0', '  .amdhsa_kernarg_size 96',
                   '  .amdhsa_user_sgpr_count 2', '  .amdhsa_user_sgpr_kernarg_segment_ptr 1',
                   '  .amdhsa_system_sgpr_workgroup_id_x 1',
                   '  .amdhsa_float_denorm_mode_32 3', '.end_amdhsa_kernel']
        return HEADER + '\n'.join(self.L) + '\n'

    def stream_wave(self):
        a = self.a
        vP, vD, vPA, vBq, vT = 4, 36, 52, 52, 60
        assert RING0 == 80
        kf = self.kfirst
        self.seq = [f'K{i}' for i in range(kf)] + [f'Q{i}' for i in range(4)] + [f'F{i}' for i in range(4)] + \
                   [f'K{i}' for i in range(kf, 64)] + [f'V{i}' for i in range(64)]
        self.m = self.beta = self.tau = 0
        self.landed = -1
        self.adapting = False
        self.picks = set()
        self.vm = []
        a(f's_lshl_b32 {sT0}, {sG}, 23')
        a(f's_lshl_b32 {sT1}, {sJ}, 18')
        a(f's_add_u32 {sT0}, {sT0}, {sT1}')
        a(f's_lshl_b32 {sT1}, {sW}, 10')
        a(f's_add_u32 {sT0}, {sT0}, {sT1}')
        self.c('K lane offset: key (l&15)>>2, 16-byte chunk (l&3) + 4*(l>>4)')
        a(f'v_bfe_u32 v{vT}, v1, 2, 2')
        a(f'v_lshlrev_b32 v{vT}, 8, v{vT}')
        a(f'v_and_b32 v{vT+1}, 3, v1')
        a(f'v_lshl_add_u32 v{vT}, v{vT+1}, 4, v{vT}')
        a(f'v_lshrrev_b32 v{vT+2}, 4, v1')
        a(f'v_lshlrev_b32 v{vT+2}, 6, v{vT+2}')
        a(f'v_add3_u32 v2, v{vT}, v{vT+2}, {sT0}')
        a(f'v_lshl_add_u32 v3, v1, 4, {sT0}')
        a('s_waitcnt lgkmcnt(0)')
        self.srd(SRD_A, 6, 64 << 20)
        self.steps_until('F0')
        self.stamp('issued0')
        a(f's_load_dword {sTAG}, s[26:27], {hex(EPOCH)}')
        self.srd(SRD_WS, 26, 256 << 20)
        self.srd(SRD_B, 8, 64 << 20)
        a(f's_mov_b32 {sPLO}, 0x05040100')
        a(f's_mov_b32 {sPHI}, 0x07060302')
        a(f's_mov_b32 {sC}, {hex(f2u(math.log2(math.e)))}')
        while not self.has('Q3'):
            self.step()
        self.steps_until(f'K{self.nT}')
        self.stamp('preT')
        a('s_barrier', 'T: the wq tile is in LDS')
        self.stamp('_postT')
        self.steps_until(f'K{self.nG}')
        assert self.has('F3')
        self.stamp('_preG')
        a('s_barrier', 'G: FFN tile in LDS; late enough to look for q')
        self.stamp('_postG')
        a(f'v_mov_b32 v79, {L_AD}')
        self.picks.add(self.m + self.pick)
        self.steps_until(f'K{self.nA}')
        a(f'v_lshlrev_b32 v{vT}, 4, v1')
        self.stamp('preA')
        self.barrier('A: q is in LDS')
        a(f'ds_read_b128 v[{vBq}:{vBq+3}], v{vT} offset:{L_BQ}')
        self.stamp('A')
        self.picks.add(self.m + self.pick)
        self.make_tag()
        a(f'v_and_b32 v{vT+6}, 3, v1')
        a(f'v_lshlrev_b32 v{vT+6}, 4, v{vT+6}', 'h*16')
        a(f's_lshl_b32 {sT0}, {sW}, 2')
        a(f'v_add_u32 v{vT+7}, {sT0}, v{vT+6}')
        a('s_waitcnt lgkmcnt(0)')
        self.c('---- scores ----')
        while self.beta < 16:
            nxt = self.seq[self.m]
            if int(nxt[1:]) + (64 if nxt[0] == 'V' else 0) - RING >= 4 * self.beta:
                self.qk_batch()
            self.step()
            if self.beta < 16 and self.has(f'K{4*self.beta+3}'):
                self.qk_batch()
        self.c('---- softmax: workgroup max, exponentials, sums ----')
        self.c('the reference keeps q.k and q.k / sqrt(128) in bf16')
        for rnd in range(2):
            for i in range(8):
                a(f'v_cvt_pk_bf16_f32 v{vD+i}, v{vP+2*i}, v{vP+2*i+1}')
            for i in range(8):
                a(f'v_lshlrev_b32 v{vP+2*i}, 16, v{vD+i}')
                a(f'v_and_b32 v{vP+2*i+1}, 0xffff0000, v{vD+i}')
            if rnd == 0:
                self.step()
                for i in range(16):
                    a(f'v_mul_f32 v{vP+i}, {hex(f2u(128.0 ** -0.5))}, v{vP+i}')
        self.step()
        self.max8(vT, vP, vT + 1)
        self.max8(vT + 2, vP + 8, vT + 1)
        a(f'v_max_f32 v{vT}, v{vT}, v{vT+2}')
        self.inrow_allreduce('v_max_f32', vT, (8, 4))
        self.rows_allreduce('v_max_f32', vT, vT + 1)
        a(f'ds_write_b32 v{vT+7}, v{vT} offset:{L_MB}')
        self.step()
        self.stamp('_preB')
        self.barrier('B')
        self.stamp('_postB')
        a(f'ds_read_b128 v[{vD}:{vD+3}], v{vT+6} offset:{L_MB}')
        a('s_waitcnt lgkmcnt(0)')
        a(f'v_max3_f32 v{vT}, v{vD}, v{vD+1}, v{vD+2}')
        a(f'v_max_f32 v{vT}, v{vT}, v{vD+3}')
        a(f'v_mul_f32 v{vT}, {sC}, v{vT}')
        for i in range(16):
            a(f'v_fma_f32 v{vP+i}, v{vP+i}, {sC}, -v{vT}')
        self.step()
        for i in range(16):
            a(f'v_exp_f32 v{vP+i}, v{vP+i}')
        self.step()
        for i in range(8):
            a(f'v_cvt_pk_bf16_f32 v{vPA+i}, v{vP+2*i}, v{vP+2*i+1}')
        for i in range(8):
            a(f'v_add_f32 v{vP+i}, v{vP+i}, v{vP+8+i}')
        self.sum8(vT, vP)
        self.inrow_allreduce('v_add_f32', vT, (8, 4))
        self.rows_allreduce('v_add_f32', vT, vT + 1)
        a(f'ds_write_b32 v{vT+7}, v{vT} offset:{L_LB}')
        self.step()
        self.barrier('C')
        self.stamp('C')
        self.picks.add(self.m + self.pick)
        self.c('---- P.V ----')
        while self.m < len(self.seq):
            if self.seq[self.m] == f'V{self.nM}':
                self.stamp('_preM')
                a('s_barrier', "M: late enough to look for the other splits' sums")
                self.stamp('_postM')
                self.picks.add(self.m + self.pick)
            if self.seq[self.m] == f'V{self.nZ}':
                a('s_barrier', 'Z: waves 4..7 may ask for wo')
            if int(self.seq[self.m][1:]) - RING >= 4 * self.tau:
                self.pv_group()
            self.step()
            if self.has(f'V{4*self.tau+3}'):
                self.pv_group()
        self.stamp('allissued')

    def tail_setup(self, pause=lambda: None):
        a = self.a
        vT = 60
        vA0, vA1, vA2, vA3, vA4, vA5, vTB, vWt = range(68, 76)
        self.srd(SRD_OUT, 22, 1024)
        a(f's_mov_b32 {sSEL}, 0x07060500')
        a(f's_mov_b32 {sSA}, 0x0c0c0400')
        a(f's_mov_b32 {sSB}, 0x04000c0c')
        a(f'v_and_b32 v{vT+3}, 3, v1')
        a(f'v_lshlrev_b32 v{vT}, 3, v{vT+3}')
        a(f'v_lshrrev_b32 v{vTB}, v{vT}, {sTAG}', 'tag byte of column lane & 3')
        a(f'v_lshrrev_b32 v{vT}, 4, v0')
        a(f'v_lshlrev_b32 v{vWt}, 2, v{vT}')
        a(f'v_mov_b32 v{vT+5}, {L_FL}')
        self.c('A0: LDS writer of the key-row sums (position 4*(l&15) + (l>>4)); vT+7: writer of the weighted columns')
        a(f'v_lshrrev_b32 v{vT}, 4, v1')
        a(f'v_and_b32 v{vT+1}, 15, v1')
        a(f'v_lshl_add_u32 v{vT+2}, v{vT+1}, 2, v{vT}')
        a(f's_lshl_b32 {sT0}, {sW}, 11')
        a(f's_add_u32 {sT0}, {sT0}, {L_OB}')
        a(f'v_lshl_add_u32 v{vA0}, v{vT+2}, 2, {sT0}')
        a(f's_mul_i32 {sT0}, {sW}, 144')
        a(f'v_lshl_add_u32 v{vT+7}, v{vT+2}, 1, {sT0}')
        pause()
        self.c('vT+6: reader of the weighted columns as an MFMA A operand')
        a(f'v_and_b32 v{vT+2}, 7, v1')
        a(f'v_mul_u32_u24 v{vT+2}, 144, v{vT+2}')
        a(f'v_lshl_add_u32 v{vT+6}, v{vT}, 4, v{vT+2}')
        self.c('A5: transposing reader of the wo tile: row 8*(l>>4) + ((l>>2)&3), 8 bytes (l&3)')
        a(f'v_lshlrev_b32 v{vT}, 9, v{vT}')
        a(f'v_bfe_u32 v{vT+2}, v1, 2, 2')
        a(f'v_lshl_add_u32 v{vT}, v{vT+2}, 6, v{vT}')
        a(f'v_lshl_add_u32 v{vT}, v{vT+3}, 3, v{vT}')
        a(f's_and_b32 {sT2}, {sW}, 3')
        a(f's_lshl_b32 {sT0}, {sT2}, 12')
        a(f'v_add_u32 v{vA5}, {sT0}, v{vT}')
        pause()
        self.c('A1: LDS reader of column tid: head tid>>7, parity tid&1, position (tid&127)>>1')
        a(f'v_lshrrev_b32 v{vT}, 7, v0')
        a(f'v_lshlrev_b32 v{vT}, 9, v{vT}')
        a(f'v_and_b32 v{vT+2}, 1, v0')
        a(f'v_lshl_add_u32 v{vT}, v{vT+2}, 8, v{vT}')
        a(f'v_bfe_u32 v{vT+2}, v0, 1, 6')
        a(f'v_lshl_add_u32 v{vA1}, v{vT+2}, 2, v{vT}')
        a(f'v_add_u32 v{vA1}, {L_OB}, v{vA1}')
        pause()
        self.c('A2: o publish  OBOX + g*64K + w*8K + j*256 + l*4 ; A3: o gather  OBOX + g*64K + (j>>2)*8K + tid*16')
        a(f's_lshl_b32 {sT1}, {sG}, 16')
        a(f's_add_u32 {sT1}, {sT1}, {hex(OBOX)}')
        a(f's_lshl_b32 {sT0}, {sW}, 13')
        a(f's_add_u32 {sT0}, {sT0}, {sT1}')
        a(f's_lshl_b32 {sCNT}, {sJ}, 8')
        a(f's_add_u32 {sT0}, {sT0}, {sCNT}')
        a(f'v_lshl_add_u32 v{vA2}, v1, 2, {sT0}')
        a(f's_lshr_b32 {sCNT}, {sJ}, 2')
        a(f's_lshl_b32 {sT0}, {sCNT}, 13')
        a(f's_add_u32 {sT0}, {sT0}, {sT1}')
        a(f'v_lshl_add_u32 v{vA3}, v0, 4, {sT0}')
        pause()
        self.c('A4: s publish  SBOX + (4*(j&3) + (w&3))*8K + (8g + (j>>2))*128 + l*4, lanes 32..63 out of range')
        a(f's_and_b32 {sT0}, {sJ}, 3')
        a(f's_lshl_b32 {sT0}, {sT0}, 2')
        a(f's_add_u32 {sT0}, {sT0}, {sT2}')
        a(f's_lshl_b32 {sT0}, {sT0}, 6')
        a(f's_lshl_b32 {sT1}, {sG}, 3')
        a(f's_add_u32 {sT0}, {sT0}, {sT1}')
        a(f's_add_u32 {sT0}, {sT0}, {sCNT}')
        a(f's_lshl_b32 {sT0}, {sT0}, 7')
        a(f's_add_u32 {sT0}, {sT0}, {hex(SBOX)}')
        a(f'v_lshrrev_b32 v{vT}, 5, v1')
        a(f'v_lshlrev_b32 v{vT}, 29, v{vT}')
        a(f'v_lshl_add_u32 v{vT}, v1, 2, v{vT}')
        a(f'v_add_u32 v{vA4}, {sT0}, v{vT}')
        a(f'v_mov_b32 v{vT+4}, {sTAG}')

    def tail(self):
        a = self.a
        CPC = 32
        assert CPC == 32
        NCONS = 16
        lg = 5
        emu = None
        vAcc, vD, vT = 4, 36, 60
        vA0, vA1, vA2, vA3, vA4, vA5, vTB, vWt = range(68, 76)
        vW, SG = 80, 96
        vZ = 20
        AM = (52, 54, 56, 76)
        assert self.tau >= 12
        if self.nZ >= 64:
            a('s_barrier', 'Z')
        self.stamp('_postZ')
        self.lab('L_Z2')
        self.tail_setup()
        a(f'ds_read_b32 v{vWt}, v{vWt} offset:{L_WB}', "this thread's split weight")
        a(f'ds_read_b32 v{vT+5}, v{vT+5}')
        a('s_waitcnt lgkmcnt(0)')
        a(f'v_readfirstlane_b32 {sLOC}, v{vT+5}')
        a(f's_cmp_ge_u32 {sW}, 4')
        a('s_cbranch_scc1 L_D')
        self.c('P operand of the last group, one copy per block of four rows with the other rows zero')
        for b in range(4):
            a(f'v_mov_b32 v{AM[b]}, 0')
            a(f'v_mov_b32 v{AM[b]+1}, 0')
        while self.tau < 15:
            self.pv_group()
        for b in range(4):
            for k in range(2):
                ctl = f'row_ror:{4*(b+1)}' if b < 3 else 'quad_perm:[0,1,2,3]'
                a(f'v_mov_b32_dpp v{AM[b]+k}, v{58+k} {ctl} row_mask:0xf bank_mask:{hex(1 << b)}')
        self.c('---- sum the four key rows of everything so far while the last tiles arrive ----')
        for e in range(4):
            for h in range(4):
                a(f'v_permlane32_swap_b32 v{vAcc+4*e+h}, v{vAcc+4*(e+4)+h}')
        for e in range(4):
            for h in range(4):
                a(f'v_add_f32 v{vAcc+4*e+h}, v{vAcc+4*e+h}, v{vAcc+4*(e+4)+h}')
        for e in range(2):
            for h in range(4):
                a(f'v_permlane16_swap_b32 v{vAcc+4*e+h}, v{vAcc+4*(e+2)+h}')
        for e in range(2):
            for h in range(4):
                a(f'v_add_f32 v{vZ+4*e+h}, v{vAcc+4*e+h}, v{vAcc+4*(e+2)+h}')
        for pair in range(2):
            v0, v1 = self.slot(64 + 60 + 2 * pair), self.slot(64 + 61 + 2 * pair)
            self.need(f'V{61+2*pair}')
            for e in range(8):
                a(f'v_perm_b32 v{vD+2*e+pair}, v{v1+(e>>1)}, v{v0+(e>>1)}, {sPHI if e & 1 else sPLO}')
        for e in range(8):
            z = vZ + 4 * (e & 1)
            a(f'v_mfma_f32_16x16x16_bf16 v[{z}:{z+3}], v[{AM[e>>1]}:{AM[e>>1]+1}], v[{vD+2*e}:{vD+2*e+1}], v[{z}:{z+3}]')
        self.stamp('pvdone')
        a('s_nop 7')
        for h in range(4):
            a(f'ds_write2st64_b32 v{vA0}, v{vZ+h}, v{vZ+4+h} offset0:{2*h} offset1:{2*h+1}')
        self.lab('L_D')
        self.barrier('D')
        for k in range(2):
            a(f'ds_read2st64_b32 v[{vD+2*k}:{vD+2*k+1}], v{vA1} offset0:{16*k} offset1:{16*k+8}')
        a(f's_cmp_eq_u32 {sLOC}, 1')
        a('s_waitcnt lgkmcnt(0)')
        a(f'v_add_f32 v{vD}, v{vD}, v{vD+2}')
        a(f'v_add_f32 v{vD+1}, v{vD+1}, v{vD+3}')
        a(f'v_add_f32 v{vT}, v{vD}, v{vD+1}')
        a(f'v_perm_b32 v{vT}, v{vT}, v{vTB}, {sSEL}')
        a('s_cbranch_scc0 L_far')
        a(f'buffer_store_dword v{vT}, v{vA2}, {SRD_WS}, 0 offen')
        self.lab('L_near')
        self.stamp('opub')

        self.c("---- hop 1: the 64 attention output columns of this workgroup's wo tile ----")
        ol = [f'buffer_load_dwordx4 v[{SG}:{SG+3}], v{vA3}, {SRD_WS}, 0 offen sc1']
        a(ol[0])
        a('s_waitcnt vmcnt(0)')
        self.stamp('poll1')
        for t2 in range(2):
            for kh in range(2):
                for m in range(2):
                    r = vW + 8 * t2 + 4 * kh + 2 * m
                    a(f'ds_read_b64_tr_b16 v[{r}:{r+1}], v{vA5} offset:{L_WO + kh*2048 + m*256 + t2*32}')
        self.poll(ol, lambda: self.check_quads([SG], vT + 4, vT + 1, vT + 2, vT + 3), True)
        R = SG
        self.stamp('goto')
        self.untag(range(R, R + 4))
        for k in range(4):
            a(f'v_mul_f32 v{R+k}, v{R+k}, v{vWt}')
        self.quad_reduce(R, 16)
        a(f'v_cvt_pk_bf16_f32 v{R}, v{R}, v{R}')
        a(f'ds_write_b16 v{vT+7}, v{R} offset:{L_A}')
        SG = 120
        self.barrier('E')
        a(f's_cmp_lt_u32 {sW}, 4')
        a('s_cbranch_scc1 L_hop2')
        a(f'ds_read_b128 v[{vD}:{vD+3}], v{vT+6} offset:{L_A}')
        a(f'ds_read_b128 v[{vD+4}:{vD+7}], v{vT+6} offset:{L_A+64}')
        a('s_waitcnt lgkmcnt(1)')
        a(f'v_mfma_f32_16x16x32_bf16 v[{vD+8}:{vD+11}], v[{vD}:{vD+3}], v[{vW}:{vW+3}], 0')
        a(f'v_mfma_f32_16x16x32_bf16 v[{vD+12}:{vD+15}], v[{vD}:{vD+3}], v[{vW+8}:{vW+11}], 0')
        a('s_waitcnt lgkmcnt(0)')
        a(f'v_mfma_f32_16x16x32_bf16 v[{vD+8}:{vD+11}], v[{vD+4}:{vD+7}], v[{vW+4}:{vW+7}], v[{vD+8}:{vD+11}]')
        a(f'v_mfma_f32_16x16x32_bf16 v[{vD+12}:{vD+15}], v[{vD+4}:{vD+7}], v[{vW+12}:{vW+15}], v[{vD+12}:{vD+15}]')
        a('s_nop 6')
        a(f'v_add_f32 v{vD+8}, v{vD+8}, v{vD+9}')
        a(f'v_add_f32 v{vD+10}, v{vD+10}, v{vD+11}')
        a(f'v_add_f32 v{vD+12}, v{vD+12}, v{vD+13}')
        a(f'v_add_f32 v{vD+14}, v{vD+14}, v{vD+15}')
        a(f'v_add_f32 v{vD+8}, v{vD+8}, v{vD+10}')
        a(f'v_add_f32 v{vD+12}, v{vD+12}, v{vD+14}')
        a('s_nop 1')
        a(f'v_permlane16_swap_b32 v{vD+8}, v{vD+12}')
        a(f'v_add_f32 v{vT}, v{vD+8}, v{vD+12}')
        a(f'v_perm_b32 v{vT}, v{vT}, v{vTB}, {sSEL}')
        a(f'buffer_store_dword v{vT}, v{vA4}, {SRD_WS}, 0 offen sc1')
        self.stamp('spub')
        self.lab('L_hop2')

        self.c('---- hop 2: final consumers ----')
        a(f's_cmp_ge_u32 s2, {NCONS}')
        a('s_cbranch_scc1 L_exit')
        a(f's_lshl_b32 {sT0}, s2, 13')
        a(f's_add_u32 {sT0}, {sT0}, {hex(SBOX)}')
        a(f's_lshl_b32 {sT1}, {sW}, 10')
        a(f's_add_u32 {sT0}, {sT0}, {sT1}')
        a(f'v_lshl_add_u32 v{vA0}, v1, 3, {sT0}', 'wave w reads the eight lines of group w, two columns per lane')
        self.c('The lines are read with returning atomics (or 0): they see memory without leaving a copy in this L2')
        self.c('that the writer on another die would have to invalidate first.')
        pl = [f'v_mov_b32 v{SG+k}, 0' for k in range(4)] + \
             [f'buffer_atomic_or_x2 v[{SG+2*k}:{SG+2*k+1}], v{vA0}, {SRD_WS}, 0 offen offset:{512*k} sc0 sc1' for k in range(2)]
        for x in pl:
            a(x)
        a(f'v_mov_b32 v{vA1}, {sTAG}')
        a(f'v_and_b32 v{vT+1}, 1, v1')
        a(f'v_lshlrev_b32 v{vT+1}, 4, v{vT+1}')
        a(f'v_lshrrev_b32 v{vT+1}, v{vT+1}, {sTAG}')
        a(f'v_and_b32 v{vT+1}, 0xffff, v{vT+1}')
        a(f'v_lshl_or_b32 v{vT+7}, v{vT+1}, 16, v{vT+1}', 'the two tag bytes of the columns of this lane, twice')
        a(f'v_and_b32 v{vT+1}, 15, v1')
        a(f'v_lshlrev_b32 v{vT+1}, 6, v{vT+1}')
        a(f'v_lshrrev_b32 v{vT+2}, 5, v1')
        a(f'v_lshlrev_b32 v{vT+2}, 5, v{vT+2}')
        a(f's_lshl_b32 {sT0}, {sW}, 2')
        a(f'v_add3_u32 v{vA2}, v{vT+1}, v{vT+2}, {sT0}', 'LDS writer [col][wave]')
        a(f'v_and_b32 v{vT+1}, 31, v1')
        a(f'v_lshlrev_b32 v{vA3}, 5, v{vT+1}', 'LDS reader')
        a(f'v_lshlrev_b32 v{vT+2}, 2, v{vT+1}')
        a(f'ds_read_b32 v{vA4}, v{vT+2} offset:{L_GB}')
        a(f'ds_read_b32 v{vA5}, v{vT+2} offset:{L_XB}')
        a(f's_lshl_b32 {sT0}, s2, 6')
        a(f'v_lshl_add_u32 v{vWt}, v{vT+1}, 1, {sT0}', 'output byte offset')
        a(f'v_mov_b32 v{vT+5}, {L_CT}')
        a(f'v_mov_b32 v{vT+6}, 1')
        a('s_waitcnt vmcnt(0)')
        self.poll(pl, lambda: self.check_quads([SG], vT + 7, vT + 1, vT + 2, vT + 3), True)
        self.stamp('gots')
        self.untag(range(SG, SG + 4))
        a(f'v_add_f32 v{SG}, v{SG}, v{SG+2}')
        a(f'v_add_f32 v{SG+1}, v{SG+1}, v{SG+3}')
        a('s_nop 1')
        a(f'v_permlane32_swap_b32 v{SG}, v{SG+1}')
        a(f'v_add_f32 v{SG}, v{SG}, v{SG+1}')
        self.rows_allreduce('v_add_f32', SG, SG + 1, do32=False)
        self.c('the wave that delivers last finds every sum in LDS and finishes the 32 columns')
        a(f'ds_write_b32 v{vA2}, v{SG} offset:{L_S2}')
        a('s_mov_b64 exec, 1')
        a(f'ds_add_rtn_u32 v{vT+6}, v{vT+5}, v{vT+6}')
        a('s_mov_b32 exec_lo, -1')
        a(f'ds_read_b128 v[{vD}:{vD+3}], v{vA3} offset:{L_S2}')
        a(f'ds_read_b128 v[{vD+4}:{vD+7}], v{vA3} offset:{L_S2+16}')
        a('s_waitcnt lgkmcnt(0)')
        a(f'v_readfirstlane_b32 {sT0}, v{vT+6}')
        self.sum8(vT, vD)
        a(f's_cmp_lg_u32 {sT0}, 7')
        a('s_cbranch_scc1 L_exit0')
        self.bf16r(vT, vT)
        a(f'v_mul_f32 v{vT}, v{vT}, v{vA4}')
        self.bf16r(vT, vT)
        a(f'v_add_f32 v{vT}, v{vT}, v{vA5}')
        a(f'v_cvt_pk_bf16_f32 v{vT}, v{vT}, v{vT}')
        a(f'buffer_store_short v{vT}, v{vWt}, {SRD_OUT}, 0 offen')
        a('s_mov_b64 exec, -1')
        a('s_cmp_lg_u32 s2, 0')
        a('s_cbranch_scc1 L_exit')
        self.c("every workgroup has read the old word by now: leave this launch's tag for the next one")
        a(f'v_mov_b32 v{vT}, {hex(EPOCH)}')
        a('s_mov_b64 exec, 1')
        a(f'buffer_store_dword v{vA1}, v{vT}, {SRD_WS}, 0 offen sc1')
        a('s_mov_b64 exec, -1')
        a('s_branch L_exit')

    def helper_join(self):
        a = self.a
        vT = 60
        self.lab('L_Z')
        self.c('waves 4..7: 64 rows x 32 columns of wo straight to LDS')
        self.srd(SRD_C, 12, 4 << 20)
        a(f's_lshl_b32 {sT0}, {sG}, 19')
        a(f's_lshr_b32 {sT1}, {sJ}, 2')
        a(f's_lshl_b32 {sT1}, {sT1}, 16')
        a(f's_add_u32 {sT0}, {sT0}, {sT1}')
        a(f's_and_b32 {sT1}, {sJ}, 3')
        a(f's_lshl_b32 {sT1}, {sT1}, 8')
        a(f's_add_u32 {sT0}, {sT0}, {sT1}')
        a(f's_and_b32 {sT2}, {sW}, 3')
        a(f's_lshl_b32 {sT1}, {sT2}, 6')
        a(f's_add_u32 {sT0}, {sT0}, {sT1}')
        a(f'v_lshrrev_b32 v{vT}, 2, v1')
        a(f'v_lshlrev_b32 v{vT}, 10, v{vT}')
        a(f'v_and_b32 v{vT+1}, 3, v1')
        a(f'v_lshlrev_b32 v{vT+1}, 4, v{vT+1}')
        a(f'v_add3_u32 v{vT}, v{vT}, v{vT+1}, {sT0}')
        a(f's_lshl_b32 {sT2}, {sT2}, 12')
        a(f's_add_u32 m0, {sT2}, {L_WO}')
        a('s_barrier', 'Z: the last V tile has been requested')
        for i in range(4):
            if i:
                a(f's_mov_b32 {sOFF}, {i*(16384-1024)}')
            a(f'buffer_load_dwordx4 v{vT}, {SRD_C}, {sOFF if i else 0} offen offset:{i*1024} nt lds')
        a('s_branch L_Z2')

    def far_store(self):
        self.lab('L_far')
        self.a(f'buffer_store_dword v60, v70, {SRD_WS}, 0 offen sc1')
        self.a('s_branch L_near')

    def helpers(self):
        a = self.a
        CPC = 32
        NCONS = 512 // CPC
        lg = int(math.log2(CPC))
        vLane = 1
        vT = 4
        vX = 16
        vA = 24
        vB = 32
        vCol, vTC = 40, 41
        vW = 112
        vTag, vTB = 2, 3
        self.lab('L_helper')
        a('s_waitcnt lgkmcnt(0)')
        self.stamp('_hstart')
        a(f's_load_dword {sTAG}, s[26:27], {hex(EPOCH)}')
        self.srd(SRD_WS, 26, 256 << 20)
        self.srd(SRD_X, 4, 1024)
        a(f's_cmp_ge_u32 {sW}, 6')
        a('s_cbranch_scc1 L_h23')
        self.c('---- projection tile: 128 rows x 64 columns; wave 4: wq, wave 5: w_gate / w_up ----')
        self.vm = []
        sRB, sCB, sPUB = 's60', 's61', 's3'
        a(f's_and_b32 {sRB}, {sJ}, 3')
        a(f's_lshr_b32 {sCB}, {sJ}, 2')
        a(f's_cmp_eq_u32 {sW}, 4')
        a('s_cbranch_scc0 L_h1_setup')
        a(f's_lshl_b32 {sPUB}, {sG}, 13')
        a(f's_lshl_b32 {sT0}, {sRB}, 11')
        a(f's_add_u32 {sPUB}, {sPUB}, {sT0}')
        a(f's_add_u32 {sPUB}, {sPUB}, {hex(QBOX)}')
        a('s_branch L_tile')
        self.lab('L_h1_setup')
        a(f's_cmp_ge_u32 {sJ}, 28')
        a('s_cbranch_scc1 L_h23')
        a(f's_lshl_b32 {sCB}, {sCB}, 3')
        a(f's_add_u32 {sCB}, {sCB}, {sG}')
        a(f's_sub_u32 {sT0}, {sCB}, 28')
        a(f's_cmp_ge_u32 {sCB}, 28')
        a(f's_cselect_b32 {sCB}, {sT0}, {sCB}')
        a(f's_cselect_b32 {sPUB}, {hex(4*7168)}, 0')
        a(f's_add_u32 {sPUB}, {sPUB}, {hex(HBOX)}')
        a(f's_mul_i32 {sT0}, {sRB}, 7168')
        a(f's_add_u32 {sPUB}, {sPUB}, {sT0}')
        self.lab('L_tile')
        a(f'v_lshlrev_b32 v{vT}, 4, v{vLane}')
        self.load('x16', f'buffer_load_dwordx4 v[{vX}:{vX+3}], v{vT}, {SRD_X}, 0 offen')
        a(f's_lshl_b32 {sT0}, {sCB}, 8')
        a(f's_add_u32 {sPUB}, {sPUB}, {sT0}')
        a(f'v_lshrrev_b32 v{vT+4}, 3, v{vLane}')
        a(f'v_lshlrev_b32 v{vT+1}, 4, v{vT+4}')
        a(f's_lshl_b32 {sT0}, {sRB}, 7')
        a(f'v_add_u32 v{vT+1}, {sT0}, v{vT+1}', 'first row of this lane')
        a(f's_sub_u32 {sT0}, {sW}, 4')
        a(f's_lshl_b32 {sT1}, {sT0}, 14')
        a(f'v_add_u32 v{vT+2}, {sT1}, v{vT}', 'LDS reader of the tile')
        a(f's_lshl_b32 {sT0}, {sT0}, 10')
        a(f'v_add_u32 v{vT}, {sT0}, v{vT}', 'LDS writer of xn')
        a(f'v_lshl_add_u32 v{vT+1}, v{vT+1}, 1, {sT0}', 'LDS reader of xn')
        self.c('column of this lane after the reduction: 8*(l&7) + (l>>3)')
        a(f'v_and_b32 v{vT+3}, 7, v{vLane}')
        a(f'v_lshlrev_b32 v{vT+3}, 5, v{vT+3}')
        a(f'v_lshl_add_u32 v{vCol}, v{vT+4}, 2, v{vT+3}')
        a(f'v_add_u32 v{vT+3}, {sPUB}, v{vCol}')
        a(f'v_and_b32 v{vT+4}, 3, v{vT+4}')
        a(f'v_lshlrev_b32 v{vT+4}, 3, v{vT+4}')
        a(f's_mov_b32 {sPLO}, 0x05040100')
        a(f's_mov_b32 {sPHI}, 0x07060302')
        self.c("layernorm with the reference's bf16 rounding points")
        self.wait('x16')
        self.stamp('_x16')
        for k in range(4):
            a(f'v_lshlrev_b32 v{vA+2*k}, 16, v{vX+k}')
            a(f'v_and_b32 v{vA+2*k+1}, 0xffff0000, v{vX+k}')
        m, s2, t = vT + 5, vT + 6, vT + 7
        a(f'v_add_f32 v{m}, v{vA}, v{vA+1}')
        for k in range(2, 8):
            a(f'v_add_f32 v{m}, v{m}, v{vA+k}')
        self.inrow_allreduce('v_add_f32', m, (8, 4, 2, 1))
        self.rows_allreduce('v_add_f32', m, t)
        a(f'v_mul_f32 v{m}, {hex(f2u(1/512.))}, v{m}')
        for k in range(8):
            a(f'v_sub_f32 v{vB+k}, v{vA+k}, v{m}')
        a(f'v_mul_f32 v{s2}, v{vB}, v{vB}')
        for k in range(1, 8):
            a(f'v_fmac_f32 v{s2}, v{vB+k}, v{vB+k}')
        self.inrow_allreduce('v_add_f32', s2, (8, 4, 2, 1))
        self.rows_allreduce('v_add_f32', s2, t)
        a(f'v_mul_f32 v{s2}, {hex(f2u(1/512.))}, v{s2}')
        self.bf16r(m, m)
        self.bf16r(s2, s2)
        a(f'v_add_f32 v{s2}, {hex(f2u(1e-5))}, v{s2}')
        self.bf16r(s2, s2)
        a(f'v_sqrt_f32 v{s2}, v{s2}')
        for k in range(8):
            a(f'v_sub_f32 v{vA+k}, v{vA+k}, v{m}')
        self.bf16r(s2, s2)
        a(f'v_rcp_f32 v{s2}, v{s2}')
        for k in range(4):
            a(f'v_cvt_pk_bf16_f32 v{vX+k}, v{vA+2*k}, v{vA+2*k+1}')
        for k in range(4):
            a(f'v_lshlrev_b32 v{vA+2*k}, 16, v{vX+k}')
            a(f'v_and_b32 v{vA+2*k+1}, 0xffff0000, v{vX+k}')
        for k in range(8):
            a(f'v_mul_f32 v{vA+k}, v{vA+k}, v{s2}')
        for k in range(4):
            a(f'v_cvt_pk_bf16_f32 v{vX+k}, v{vA+2*k}, v{vA+2*k+1}')
        a(f'ds_write_b128 v{vT}, v[{vX}:{vX+3}] offset:{L_XN}')
        a('s_waitcnt lgkmcnt(0)')
        a(f'ds_read_b128 v[{vX}:{vX+3}], v{vT+1} offset:{L_XN}')
        a(f'ds_read_b128 v[{vX+4}:{vX+7}], v{vT+1} offset:{L_XN+16}')
        self.make_tag()
        a(f'v_lshrrev_b32 v{vTC}, v{vT+4}, {sTAG}')
        a(f's_mov_b32 {sSEL}, 0x07060500')
        self.stamp('_ln')
        self.barrier('T')
        a(f's_cmp_eq_u32 {sW}, 4')
        a('s_cbranch_scc1 L_tile2')
        a('s_barrier', 'G (wave 5)')
        self.lab('L_tile2')
        for u in range(16):
            a(f'ds_read_b128 v[{vW+4*u}:{vW+4*u+3}], v{vT+2} offset:{L_TL+1024*u}')
        self.tile_dot(8, vW, vX, vA, vB, lambda p: a(f's_waitcnt lgkmcnt({min(15, 14-2*p)})'))
        a(f'v_perm_b32 v{vA+4}, v{vA+4}, v{vTC}, {sSEL}')
        self.stamp('tilepub')
        a(f's_cmp_eq_u32 {sW}, 4')
        a('s_cbranch_scc0 L_h1')
        self.c('The first stores leave the lines in this die\'s L2, enough for readers on the same die; they are repeated')
        self.c('with write-through when a reader turns out to run elsewhere or when the gather below keeps missing.')
        sXC, sNEAR, sN = 's11', 's10', 's9'
        vQ, vQA, vXW, vXA, vXR, vXG = vA + 4, vA + 5, vA + 6, vA + 7, vB, vB + 1
        a(f's_getreg_b32 {sXC}, hwreg(HW_REG_XCC_ID, 0, 4)')
        a(f's_and_b32 {sT0}, {sTAG}, 0xfffffff0')
        a(f's_or_b32 {sXC}, {sXC}, {sT0}', '28 tag bits and the die this workgroup runs on')
        a(f'v_mov_b32 v{vXW}, {sXC}')
        a(f'v_mov_b32 v{vQA}, v{vT+3}')
        a(f's_lshl_b32 {sT0}, {sG}, 12')
        a(f's_add_u32 {sT0}, {sT0}, {hex(XBOX)}')
        a(f'v_and_b32 v{vXR}, 31, v{vLane}')
        a(f's_lshl_b32 {sT1}, {sJ}, 7')
        a(f's_add_u32 {sT1}, {sT1}, {sT0}')
        a(f'v_lshl_add_u32 v{vXA}, v{vXR}, 2, {sT1}')
        a(f'v_lshl_add_u32 v{vXR}, v{vXR}, 7, {sT0}')
        near = [f'buffer_store_dword v{vQ}, v{vQA}, {SRD_WS}, 0 offen', f'buffer_store_dword v{vXW}, v{vXA}, {SRD_WS}, 0 offen']
        far = [x + ' sc1' for x in near]
        for x in near:
            a(x)

        self.c('---- wave 4: gather q, then the softmax statistics of the 32 splits ----')
        a(f's_mov_b32 {sSA}, 0x0c0c0400')
        a(f's_mov_b32 {sSB}, 0x04000c0c')
        a(f'v_mov_b32 v{vTag}, {sTAG}')
        a(f's_lshl_b32 {sT0}, {sG}, 13')
        a(f's_add_u32 {sT0}, {sT0}, {hex(QBOX)}')
        a(f'v_lshrrev_b32 v{vT}, 5, v{vLane}')
        a(f'v_and_b32 v{vT+1}, 31, v{vLane}')
        a(f'v_lshlrev_b32 v{vT+2}, 11, v{vT}')
        a(f'v_lshlrev_b32 v{vT+3}, 4, v{vT+1}')
        a(f'v_add3_u32 v{vT+2}, v{vT+2}, v{vT+3}, {sT0}')
        a(f's_movk_i32 {sT2}, 0x1000')
        self.c('LDS address: chunk*64 + idx*4, chunk = (l&31)>>1, idx = 2*(l&1) + (l>>5)')
        a(f'v_lshrrev_b32 v{vT+1}, 1, v{vT+1}')
        a(f'v_lshlrev_b32 v{vT+1}, 6, v{vT+1}')
        a(f'v_and_b32 v{vT+3}, 1, v{vLane}')
        a(f'v_lshlrev_b32 v{vT+3}, 3, v{vT+3}')
        a(f'v_lshl_add_u32 v{vT+1}, v{vT}, 2, v{vT+1}')
        a(f'v_add_u32 v{vT+1}, v{vT+1}, v{vT+3}')
        ql = [f'buffer_load_dwordx4 v[{vW+8*h+4*b}:{vW+8*h+4*b+3}], v{vT+2}, {SRD_WS}, {sT2 if b else 0} offen offset:{512*h} sc1'
              for h in range(4) for b in range(2)]
        a(f's_mov_b32 {sN}, {self.qtry}')
        ql = [f's_sub_u32 {sN}, {sN}, 1', f's_cmp_lg_u32 {sN}, 0', 's_cbranch_scc1 L_qtry'] + far + ['L_qtry:'] + ql
        ql.append(f'buffer_load_dword v{vXG}, v{vXR}, {SRD_WS}, 0 offen sc1')
        a('s_barrier', 'G')

        def chk_q():
            self.check_quads([vW + 4 * i for i in range(8)], vTag, vT + 4, vT + 5, vT + 6, cmp=False)
            a(f'v_xor_b32 v{vT+4}, {sTAG}, v{vXG}')
            a(f'v_lshrrev_b32 v{vT+4}, 4, v{vT+4}')
            a(f'v_or_b32 v{vT+6}, v{vT+6}, v{vT+4}')
            a(f'v_cmp_ne_u32 vcc, 0, v{vT+6}')
        self.poll(ql, chk_q)
        a(f'v_cmp_ne_u32 vcc, {sXC}, v{vXG}')
        a(f'v_mov_b32 v{vT+5}, {L_FL}')
        a('s_cmp_eq_u64 vcc, 0')
        a(f's_cselect_b32 {sNEAR}, 1, 0')
        a('s_cbranch_scc1 L_qnear')
        for x in far:
            a(x)
        self.lab('L_qnear')
        a(f'v_mov_b32 v{vT+4}, {sNEAR}')
        a(f'ds_write_b32 v{vT+5}, v{vT+4}', '1: hand-offs inside the group may stay in this L2')
        self.stamp('gotq')
        self.untag(range(vW, vW + 32))
        for h in range(4):
            for k in range(4):
                a(f'v_add_f32 v{vW+8*h+k}, v{vW+8*h+k}, v{vW+8*h+4+k}')
        for h in range(4):
            a(f'v_permlane32_swap_b32 v{vW+8*h}, v{vW+8*h+2}')
            a(f'v_permlane32_swap_b32 v{vW+8*h+1}, v{vW+8*h+3}')
        for h in range(4):
            a(f'v_add_f32 v{vW+8*h}, v{vW+8*h}, v{vW+8*h+2}')
            a(f'v_add_f32 v{vW+8*h+1}, v{vW+8*h+1}, v{vW+8*h+3}')
            a(f'v_cvt_pk_bf16_f32 v{vW+8*h}, v{vW+8*h}, v{vW+8*h+1}')
            a(f'ds_write_b32 v{vT+1}, v{vW+8*h} offset:{L_BQ+16*h}')
        self.barrier('A')
        a(f'v_and_b32 v{vT}, 3, v{vLane}')
        a(f'v_lshlrev_b32 v{vT}, 4, v{vT}')
        a(f's_lshl_b32 {sT2}, {sG}, 11')
        a(f's_add_u32 {sT2}, {sT2}, {hex(MLBOX)}')
        a(f's_lshl_b32 {sT1}, {sJ}, 4')
        a(f's_add_u32 {sT0}, {sT2}, {sT1}')
        a(f'v_lshl_add_u32 v{vT+1}, v{vT}, 5, {sT0}', 'publish: h*512 + j*16')
        a(f's_lshr_b32 {sT1}, {sJ}, 3')
        a(f's_lshl_b32 {sT1}, {sT1}, 9')
        a(f's_add_u32 {sT0}, {sT2}, {sT1}')
        a(f'v_and_b32 v{vT+2}, 31, v{vLane}')
        a(f'v_lshlrev_b32 v{vT+3}, 2, v{vT+2}', 'LDS address of weight l&31')
        a(f'v_lshl_add_u32 v{vT+2}, v{vT+2}, 4, {sT0}', 'gather: head j>>3, split l&31')
        a(f'v_mov_b32 v{vX+2}, {sTAG}')
        a(f'v_mov_b32 v{vX+3}, {sTAG}')
        a(f's_mov_b32 {sC}, {hex(f2u(math.log2(math.e)))}')
        a('s_barrier', 'B')
        a(f'ds_read_b128 v[{vA}:{vA+3}], v{vT} offset:{L_MB}')
        a('s_waitcnt lgkmcnt(0)')
        a(f'v_max3_f32 v{vX}, v{vA}, v{vA+1}, v{vA+2}')
        a(f'v_max_f32 v{vX}, v{vX}, v{vA+3}')
        a('s_barrier', 'C')
        a(f'ds_read_b128 v[{vA}:{vA+3}], v{vT} offset:{L_LB}')
        a('s_waitcnt lgkmcnt(0)')
        a(f'v_add_f32 v{vA}, v{vA}, v{vA+2}')
        a(f'v_add_f32 v{vA+1}, v{vA+1}, v{vA+3}')
        a(f'v_add_f32 v{vX+1}, v{vA}, v{vA+1}')
        a('s_mov_b64 exec, 0xf')
        a(f's_cmp_eq_u32 {sNEAR}, 1')
        a('s_cbranch_scc1 L_mlnear')
        a(f'buffer_store_dwordx4 v[{vX}:{vX+3}], v{vT+1}, {SRD_WS}, 0 offen sc1')
        a('s_branch L_mlfar')
        self.lab('L_mlnear')
        a(f'buffer_store_dwordx4 v[{vX}:{vX+3}], v{vT+1}, {SRD_WS}, 0 offen')
        self.lab('L_mlfar')
        a('s_mov_b64 exec, -1')
        a('s_barrier', 'M')

        def chk_ml():
            a(f'v_xor_b32 v{vT+4}, {sTAG}, v{vB+2}')
            a(f'v_xor_b32 v{vT+5}, {sTAG}, v{vB+3}')
            a(f'v_or_b32 v{vT+4}, v{vT+4}, v{vT+5}')
            a(f'v_cmp_ne_u32 vcc, 0, v{vT+4}')
        self.poll([f'buffer_load_dwordx4 v[{vB}:{vB+3}], v{vT+2}, {SRD_WS}, 0 offen sc1'], chk_ml)
        mx, y, t = vT + 4, vT + 5, vT + 6
        a(f'v_mov_b32 v{mx}, v{vB}')
        self.inrow_allreduce('v_max_f32', mx, (8, 4, 2, 1))
        self.rows_allreduce('v_max_f32', mx, t, do32=False)
        a(f'v_sub_f32 v{mx}, v{vB}, v{mx}')
        a(f'v_mul_f32 v{mx}, {sC}, v{mx}')
        a(f'v_exp_f32 v{mx}, v{mx}')
        a('s_nop 0')
        a(f'v_mul_f32 v{y}, v{mx}, v{vB+1}')
        self.inrow_allreduce('v_add_f32', y, (8, 4, 2, 1))
        self.rows_allreduce('v_add_f32', y, t, do32=False)
        a(f'v_rcp_f32 v{y}, v{y}')
        a('s_nop 0')
        a(f'v_mul_f32 v{mx}, v{mx}, v{y}')
        a(f'ds_write_b32 v{vT+3}, v{mx} offset:{L_WB}')
        self.stamp('mlw')
        a('s_waitcnt lgkmcnt(0)')
        a('s_branch L_Z')

        self.c('---- wave 5: hidden values and one 64 x 64 tile of the down projection ----')
        self.lab('L_h1')
        a(f'buffer_store_dword v{vA+4}, v{vT+3}, {SRD_WS}, 0 offen sc1')
        self.srd(SRD_B, 20, 1792 * 1024)
        sFI, sRD, sCD = 's8', 's9', 's10'
        a(f's_mul_i32 {sFI}, {sG}, 28')
        a(f's_add_u32 {sFI}, {sFI}, {sJ}')
        a(f's_lshr_b32 {sRD}, {sFI}, 3')
        a(f's_and_b32 {sCD}, {sFI}, 7')
        a(f's_lshl_b32 {sT0}, {sRD}, 16')
        a(f's_lshl_b32 {sT1}, {sCD}, 7')
        a(f's_add_u32 {sT0}, {sT0}, {sT1}')
        a(f'v_lshrrev_b32 v{vT+2}, 3, v{vLane}')
        a(f'v_lshlrev_b32 v{vT}, 13, v{vT+2}')
        a(f'v_lshlrev_b32 v{vT+2}, 4, v{vT+2}', 'LDS reader of h')
        a(f'v_and_b32 v{vT+1}, 7, v{vLane}')
        a(f'v_lshlrev_b32 v{vT+1}, 4, v{vT+1}')
        a(f'v_add3_u32 v{vT}, v{vT}, v{vT+1}, {sT0}')
        a(f's_movk_i32 {sT2}, 0x1000')
        for e in range(8):
            a(f'buffer_load_dwordx4 v[{vW+4*e}:{vW+4*e+3}], v{vT}, {SRD_B}, {sT2 if e >= 4 else 0} offen offset:{(e & 3)*1024} nt')
        a(f's_lshl_b32 {sT0}, {sRD}, 8')
        a(f's_add_u32 {sT0}, {sT0}, {hex(HBOX)}')
        a(f'v_lshl_add_u32 v{vT+1}, v{vLane}, 2, {sT0}', 'hidden unit 64*rd + lane')
        a(f'v_and_b32 v{vT+3}, 3, v{vLane}')
        a(f'v_lshlrev_b32 v{vT+3}, 3, v{vT+3}')
        a(f'v_lshrrev_b32 v{vTB}, v{vT+3}, {sTAG}')
        a(f'v_lshlrev_b32 v{vT+3}, 1, v{vLane}', 'LDS writer of h')
        a(f's_lshl_b32 {sT0}, {sCD}, 13')
        a(f's_lshl_b32 {sT1}, {sRD}, 8')
        a(f's_add_u32 {sT0}, {sT0}, {sT1}')
        a(f's_add_u32 {sT0}, {sT0}, {hex(FBOX)}')
        a(f'v_add_u32 v{vCol}, {sT0}, v{vCol}')
        for b in 'ABC':
            a('s_barrier', b)
        hl = []
        for k in range(8):
            if k:
                hl.append(f's_movk_i32 {sT2}, {k*7168 - (0 if k < 4 else 0x7000)}')
            if k == 4:
                hl.append(f'v_add_u32 v{vT+4}, 0x7000, v{vT+1}')
            hl.append(f'buffer_load_dword v{vB+k}, v{vT+1 if k < 4 else vT+4}, {SRD_WS}, {sT2 if k else 0} offen sc1')

        def chk_h():
            a(f'v_xor_b32 v{vT+4}, v{vB}, v{vTB}')
            for k in range(1, 8):
                a(f'v_bitop3_b32 v{vT+4}, v{vB+k}, v{vTB}, v{vT+4} bitop3:0xbe')
            a(f'v_and_b32 v{vT+4}, 0xff, v{vT+4}')
            a(f'v_cmp_ne_u32 vcc, 0, v{vT+4}')
        self.poll(hl, chk_h)
        self.untag(range(vB, vB + 8))
        for b in (vB, vB + 4):
            a(f'v_add_f32 v{b}, v{b}, v{b+1}')
            a(f'v_add_f32 v{b+2}, v{b+2}, v{b+3}')
            a(f'v_add_f32 v{b}, v{b}, v{b+2}')
            self.bf16r(b, b)
        self.silu_bf16(vB + 1, vB, vB + 2)
        a(f'v_mul_f32 v{vB+1}, v{vB+1}, v{vB+4}')
        a(f'v_cvt_pk_bf16_f32 v{vB+1}, v{vB+1}, v{vB+1}')
        a(f'ds_write_b16 v{vT+3}, v{vB+1} offset:{L_HB}')
        a('s_waitcnt lgkmcnt(0)')
        a(f'ds_read_b128 v[{vX}:{vX+3}], v{vT+2} offset:{L_HB}')
        a('s_waitcnt lgkmcnt(0)')
        self.tile_dot(4, vW, vX, vA, vB, lambda p: None)
        a(f'v_perm_b32 v{vA+4}, v{vA+4}, v{vTC}, {sSEL}')
        a(f'buffer_store_dword v{vA+4}, v{vCol}, {SRD_WS}, 0 offen sc1')
        self.stamp('fpub')
        a('s_barrier', 'M')
        a('s_branch L_Z')

        self.c('---- waves 6, 7 (and wave 5 without a tile); wave 6 of a final consumer sums the FFN output ----')
        self.lab('L_h23')
        a('s_waitcnt lgkmcnt(0)')
        self.make_tag()
        a(f's_cmp_eq_u32 {sW}, 7')
        a('s_cbranch_scc1 L_h3')
        for b in 'TGABCM':
            a('s_barrier', b)
        a(f's_cmp_lg_u32 {sW}, 6')
        a('s_cbranch_scc1 L_Z')
        a(f's_cmp_ge_u32 s2, {NCONS}')
        a('s_cbranch_scc1 L_Z')
        lpp = CPC // 4
        ppl = 64 // lpp
        nl = -(-28 // ppl)
        last = (28 - (nl - 1) * ppl) * lpp
        a(f'v_mov_b32 v{vTag}, {sTAG}')
        a(f's_mov_b32 {sSA}, 0x0c0c0400')
        a(f's_mov_b32 {sSB}, 0x04000c0c')
        a(f's_lshr_b32 {sT0}, s2, {6-lg}')
        a(f's_lshl_b32 {sT0}, {sT0}, 13')
        a(f's_and_b32 {sT1}, s2, {64//CPC - 1}')
        a(f's_lshl_b32 {sT1}, {sT1}, {lg+2}')
        a(f's_add_u32 {sT0}, {sT0}, {sT1}')
        a(f's_add_u32 {sT0}, {sT0}, {hex(FBOX)}')
        a(f'v_and_b32 v{vT+1}, {lpp-1}, v{vLane}')
        a(f'v_lshlrev_b32 v{vT+2}, 4, v{vT+1}')
        a(f'v_lshrrev_b32 v{vT}, {lg-2}, v{vLane}')
        a(f'v_lshlrev_b32 v{vT}, 8, v{vT}')
        a(f'v_add3_u32 v{vT}, v{vT}, v{vT+2}, {sT0}')
        self.c('column of this lane after the reduction: 4*(l % lpp) + (l >> 4)')
        a(f'v_lshrrev_b32 v{vT+2}, 4, v{vLane}')
        a(f'v_lshl_add_u32 v{vT+1}, v{vT+1}, 2, v{vT+2}')
        a(f's_lshl_b32 {sT0}, s2, {lg+1}')
        a(f'v_lshl_add_u32 v{vT+2}, v{vT+1}, 1, {sT0}')
        a(f'v_lshlrev_b32 v{vT+1}, 2, v{vT+1}')
        a(f'buffer_load_short_d16_hi v{vT+3}, v{vT+2}, {SRD_X}, 0 offen')
        for k in range(4):
            a(f'v_bfe_u32 v{vW+4*(nl-1)+k}, v{vTag}, {8*k}, 8')
        fl = []
        for u in range(nl):
            off = u * ppl * 256
            if u == nl - 1 and last < 64:
                fl.append(f's_mov_b32 exec_lo, {hex(((1 << last) - 1) & 0xffffffff)}')
                fl.append(f's_mov_b32 exec_hi, {hex(((1 << last) - 1) >> 32)}')
            if off >= 4096:
                fl.append(f's_movk_i32 {sT2}, {hex(off & ~4095)}')
            fl.append(f'buffer_load_dwordx4 v[{vW+4*u}:{vW+4*u+3}], v{vT}, {SRD_WS}, {sT2 if off >= 4096 else 0} offen offset:{off & 4095} sc1')
        fl.append('s_mov_b64 exec, -1')
        self.poll(fl, lambda: self.check_quads([vW + 4 * u for u in range(nl)], vTag, vT + 4, vT + 5, vT + 6))
        self.untag(range(vW, vW + 4 * nl))
        for u in range(1, nl):
            for k in range(4):
                a(f'v_add_f32 v{vW+k}, v{vW+k}, v{vW+4*u+k}')
        self.quad_reduce(vW, lpp)
        self.bf16r(vW, vW)
        self.silu_bf16(vT + 4, vW, vT + 5)
        a(f'ds_write_b32 v{vT+1}, v{vT+4} offset:{L_GB}')
        a(f'ds_write_b32 v{vT+1}, v{vT+3} offset:{L_XB}')
        a(f'v_mov_b32 v{vT+4}, {L_CT}')
        a(f'v_mov_b32 v{vT+5}, 0')
        a(f'ds_write_b32 v{vT+4}, v{vT+5}')
        a('s_branch L_Z')
        self.c('wave 7: arrival order inside the group at a few marks of the stream (a hint: it only sets the prefetch depth)')
        self.lab('L_h3')
        a(f'v_mov_b32 v{vT}, {L_AD}')
        a(f'v_mov_b32 v{vT+1}, 0')
        a(f'ds_write_b32 v{vT}, v{vT+1}')
        a(f's_lshl_b32 {sT1}, {sG}, 7')
        a(f's_add_u32 {sT1}, {sT1}, {hex(RBOX)}')
        a(f'v_and_b32 v{vT+2}, 31, v1')
        a(f'v_lshl_add_u32 v{vT+2}, v{vT+2}, 2, {sT1}')
        a(f's_lshl_b32 {sT0}, {sJ}, 2')
        a(f's_add_u32 {sT1}, {sT1}, {sT0}')
        a(f'v_mov_b32 v{vT+3}, {sT1}')
        a(f'v_mov_b32 v{vT+4}, {sTAG}')
        a('s_waitcnt lgkmcnt(0)')
        k = 0
        for b in 'TGABCM':
            a('s_barrier', b)
            if b in 'GACM':
                a('s_mov_b64 exec, 1')
                a(f'buffer_store_dword v{vT+4}, v{vT+3}, {SRD_WS}, 0 offen offset:{1024*k}')
                a('s_mov_b64 exec, -1')
                a(f'buffer_load_dword v{vT+5}, v{vT+2}, {SRD_WS}, 0 offen offset:{1024*k} sc1')
                a('s_waitcnt vmcnt(0)')
                a(f'v_cmp_eq_u32 vcc, v{vT+4}, v{vT+5}')
                a(f's_bcnt1_i32_b32 {sT0}, vcc_lo')
                a(f's_cmp_gt_u32 {sT0}, {self.late}')
                a(f's_cselect_b32 {sT1}, 1, 0')
                a(f'v_mov_b32 v{vT+1}, {sT1}')
                a(f'ds_write_b32 v{vT}, v{vT+1}')
                k += 1
        a('s_branch L_Z')


def gen(**kw):
    g = G(**kw)
    s = g.gen()
    return s, g.stamp_names


if __name__ == '__main__':
    kw = eval('dict(' + (sys.argv[2] if len(sys.argv) > 2 else '') + ')')
    s, _ = gen(**kw)
    open(sys.argv[1], 'w').write(s)
```
